```python
import torch

def _softmax(x, axis=-1):
    return torch.softmax(x, dim=axis)
def _gelu(x):
    return torch.nn.functional.gelu(x, approximate="tanh")
def _silu(x):
    return torch.nn.functional.silu(x)
def _sigmoid(x):
    return torch.sigmoid(x)
def _layernorm(x, axis=-1, eps=1e-5):
    m = x.mean(dim=axis, keepdim=True)
    v = x.var(dim=axis, keepdim=True, unbiased=False)
    return (x - m) / torch.sqrt(v + eps)
def _scatter_add(tgt, idx, src, axis=0):
    return tgt.clone().index_add_(axis, idx, src)
def _segment_sum(src, seg, n):
    out = torch.zeros((n,) + src.shape[1:], dtype=src.dtype)
    return out.index_add_(0, seg, src)
def _pad(x, pw):
    flat = tuple(v for pair in reversed(pw) for v in pair)
    return torch.nn.functional.pad(x, flat)

kernel_name = 'sequential_preLN__spectral_fnet__geglu_ffn__prompt'

def setup_inputs():

    _w = (lambda a: (lambda t: t.to(torch.bfloat16) if t.is_floating_point() else t)(torch.as_tensor(a)))
    def _A_setup():
        B, S, D = 1, 2048, 640
        ns = torch.arange(S)[:, None] * torch.arange(S)[None, :]
        nd = torch.arange(D)[:, None] * torch.arange(D)[None, :]
        Ws_re = torch.cos(-2.0 * torch.pi * ns / S).to(float)
        Ws_im = torch.sin(-2.0 * torch.pi * ns / S).to(float)
        Wd_re = torch.cos(-2.0 * torch.pi * nd / D).to(float)
        Wd_im = torch.sin(-2.0 * torch.pi * nd / D).to(float)
        return {
            "x": _w((lambda *s: torch.randn(*s, dtype=torch.bfloat16) * 0.05)(B, S, D)),
            "dft_seq_re": _w(Ws_re),
            "dft_seq_im": _w(Ws_im),
            "dft_hid_re": _w(Wd_re),
            "dft_hid_im": _w(Wd_im),
        }
    _A_in = _A_setup()

    def _B_setup():
        B, S, D, F = 1, 2048, 640, 1536
        return {
            "x": _w((lambda *s: torch.randn(*s, dtype=torch.bfloat16) * 0.05)(B, S, D)),
            "w_gate": _w((lambda *s: torch.randn(*s, dtype=torch.bfloat16) * 0.2)(D, F)),
            "w_up": _w((lambda *s: torch.randn(*s, dtype=torch.bfloat16) * 0.2)(D, F)),
            "w_down": _w((lambda *s: torch.randn(*s, dtype=torch.bfloat16) * 0.2)(F, D)),
        }
    _B_in = _B_setup()

    return {
        "A_x": _A_in["x"],
        "A_dft_seq_re": _A_in["dft_seq_re"],
        "A_dft_seq_im": _A_in["dft_seq_im"],
        "A_dft_hid_re": _A_in["dft_hid_re"],
        "A_dft_hid_im": _A_in["dft_hid_im"],
        "B_x": _B_in["x"],
        "B_w_gate": _B_in["w_gate"],
        "B_w_up": _B_in["w_up"],
        "B_w_down": _B_in["w_down"],
    }

def reference(A_x, A_dft_seq_re, A_dft_seq_im, A_dft_hid_re, A_dft_hid_im, B_x, B_w_gate, B_w_up, B_w_down):
    def _A_ref(x, dft_seq_re, dft_seq_im, dft_hid_re, dft_hid_im):
        a = torch.einsum("bsd,ed->bse", x, dft_hid_re)
        b = torch.einsum("bsd,ed->bse", x, dft_hid_im)
        y = torch.einsum("ts,bse->bte", dft_seq_re, a) - torch.einsum("ts,bse->bte", dft_seq_im, b)
        return y

    def _B_ref(x, w_gate, w_up, w_down):
        return (_gelu(x @ w_gate) * (x @ w_up)) @ w_down

    x = A_x
    h = x + _A_ref(_layernorm(x, axis=-1), A_dft_seq_re, A_dft_seq_im, A_dft_hid_re, A_dft_hid_im)
    h2 = h + _B_ref(_layernorm(h, axis=-1), B_w_gate, B_w_up, B_w_down)
    return h2
```

```python
import sys

L = []
def e(s): L.append("    " + s)
def lab(s): L.append(s + ":")
def raw(s): L.append(s)

NAME = "sequential_preLN__spectral_fnet__geglu_ffn__prompt"

WS_ABP = 0
SZ_ABP = 80 * 64 * 1024
WS_HP = 0x500000
SZ_HP = 128 * 20 * 1024
WS_HSTAT = 0x780000
SZ_HSTAT = 2048 * 8 * 8
WS_ACT = 0x800000
SZ_ACT = 128 * 48 * 1024
WS_WGU = 0xE00000
WSUM_OFF = 192 * 20 * 1024
SZ_WGU = WSUM_OFF + 192 * 4 * 64
WS_WDN = 0x1200000
SZ_WDN = 40 * 48 * 1024

INV640 = 0x3ACCCCCD
EPS = 0x3727C5AC

def srd(d, lo, size, off=0):
    if off:
        e(f"s_add_u32 s{d}, s{lo}, {off}")
        e(f"s_addc_u32 s{d+1}, s{lo+1}, 0")
    else:
        e(f"s_mov_b32 s{d}, s{lo}")
        e(f"s_mov_b32 s{d+1}, s{lo+1}")
    e(f"s_mov_b32 s{d+2}, {size}")
    e(f"s_mov_b32 s{d+3}, 0x20000")

def bf16r(dst, src):
    e(f"v_cvt_pk_bf16_f32 v{dst}, v{src}, v{src}")
    e(f"v_lshlrev_b32 v{dst}, 16, v{dst}")

def vr(b, n=4): return f"v[{b}:{b+n-1}]"
def ar(b, n=4): return f"a[{b}:{b+n-1}]"

def mfma(d, a, b, c=None):
    c = d if c is None else c
    e(f"v_mfma_f32_16x16x32_bf16 {d}, {a}, {b}, {c}")

def kernel_begin(name):
    raw(f".globl {name}")
    raw(".p2align 8")
    raw(f".type {name},@function")
    lab(name)

def lane_setup():
    e("v_lshrrev_b32 v4, 6, v0")
    e("v_and_b32 v1, 63, v0")
    e("v_readfirstlane_b32 s16, v4")
    e("v_and_b32 v2, 15, v1")
    e("v_lshrrev_b32 v3, 4, v1")

def ln_stats(vsum, vsq, vm, vrd, t):
    e(f"v_mul_f32 v{vm}, s17, v{vsum}")
    e(f"v_mul_f32 v{t}, s17, v{vsq}")
    e(f"v_fma_f32 v{t}, -v{vm}, v{vm}, v{t}")
    e(f"v_max_f32 v{t}, 0, v{t}")
    bf16r(vm, vm)
    bf16r(t, t)
    e(f"v_add_f32 v{t}, s18, v{t}")
    bf16r(t, t)
    e(f"v_sqrt_f32 v{t}, v{t}")
    e("s_nop 0")
    bf16r(t, t)
    e(f"v_rcp_f32 v{vrd}, v{t}")
    e("s_nop 0")

def gen_k1():
    kernel_begin("k1_kernel")
    e("s_cmp_ge_u32 s2, 256")
    e("s_cbranch_scc1 k1_end")
    e("s_load_dwordx2 s[4:5], s[0:1], 0")
    e("s_load_dwordx2 s[8:9], s[0:1], 24")
    e("s_load_dwordx2 s[10:11], s[0:1], 32")
    e("s_load_dwordx2 s[12:13], s[0:1], 48")
    e("s_load_dwordx2 s[14:15], s[0:1], 56")
    e("s_load_dwordx2 s[6:7], s[0:1], 88")
    lane_setup()
    e("s_and_b32 s19, s2, 7")
    e("s_lshr_b32 s20, s2, 3")
    e("s_and_b32 s21, s20, 1")
    e("s_lshl_b32 s19, s19, 1")
    e("s_add_u32 s19, s19, s21")
    e("s_lshr_b32 s20, s20, 1")
    e(f"s_mov_b32 s17, {INV640}")
    e(f"s_mov_b32 s18, {EPS}")
    e("s_waitcnt lgkmcnt(0)")
    srd(24, 4, 2621440)
    e("s_cmp_lt_u32 s20, 8")
    e("s_cselect_b32 s28, s8, s10")
    e("s_cselect_b32 s29, s9, s11")
    e("s_mov_b32 s30, 819200")
    e("s_mov_b32 s31, 0x20000")
    srd(32, 6, SZ_ABP, WS_ABP)
    srd(36, 12, 1966080)
    srd(40, 14, 1966080)
    srd(44, 6, SZ_WGU, WS_WGU)
    e("s_and_b32 s21, s20, 7")
    e("s_mul_i32 s21, s21, 102400")
    e("s_mul_i32 s22, s16, 320")
    e("s_add_u32 s21, s21, s22")
    e("v_mul_u32_u24 v5, 1280, v2")
    e("v_lshl_add_u32 v5, v3, 4, v5")
    e("v_add_u32 v5, s21, v5")
    e("s_mul_i32 s22, s16, 5120")
    for i in range(5):
        for t in range(5):
            e(f"s_add_u32 m0, s22, {(i*20+t)*1024}")
            e(f"s_mov_b32 s23, {i*20480 + t*64}")
            e(f"buffer_load_dwordx4 v5, s[28:31], s23 offen lds")
    e("s_lshl_b32 s21, s19, 7")
    e("s_lshl_b32 s22, s16, 5")
    e("s_add_u32 s21, s21, s22")
    e("s_mul_i32 s21, s21, 1280")
    e("v_mul_u32_u24 v6, 1280, v2")
    e("v_lshl_add_u32 v6, v3, 4, v6")
    e("v_add_u32 v6, s21, v6")
    e("v_add_u32 v7, 20480, v6")
    XB = 16
    def X(st, kk): return XB + (kk * 2 + st) * 4
    for kk in range(20):
        for st in range(2):
            e(f"buffer_load_dwordx4 {vr(X(st,kk))}, v{6+st}, s[24:27], 0 offen offset:{kk*64}")
    ONES = 216
    for r in range(4):
        e(f"v_mov_b32 v{ONES+r}, 0x3f803f80")
    for a in range(76):
        e(f"v_accvgpr_write_b32 a{a}, 0")
    e("v_lshlrev_b32 v8, 4, v1")
    e("v_add_u32 v9, 61440, v8")
    e("s_waitcnt vmcnt(40)")
    e("s_barrier")
    WB = 176
    def W(b, i): return WB + (b * 5 + i) * 4
    def wread(kk):
        for i in range(5):
            off = (i * 20 + kk) * 1024
            if off < 61440:
                e(f"ds_read_b128 {vr(W(kk&1,i))}, v8 offset:{off}")
            else:
                e(f"ds_read_b128 {vr(W(kk&1,i))}, v9 offset:{off-61440}")
    wread(0)
    for kk in range(20):
        if kk + 1 < 20:
            wread(kk + 1)
            e(f"s_waitcnt vmcnt({38-2*kk}) lgkmcnt(5)")
        else:
            e("s_waitcnt vmcnt(0) lgkmcnt(0)")
        for i in range(5):
            for st in range(2):
                mfma(ar((st*5+i)*4), vr(X(st,kk)), vr(W(kk&1,i)))
            mfma(ar(56+4*i), vr(ONES), vr(W(kk&1,i)))
        for st in range(2):
            mfma(ar(40+4*st), vr(X(st,kk)), vr(ONES))
            mfma(ar(48+4*st), vr(X(st,kk)), vr(X(st,kk)))
    PK = 220
    e("s_cmp_ge_u32 s2, 192")
    e("s_cbranch_scc1 k1_nopack1")
    e("v_lshrrev_b32 v10, 2, v2")
    e("v_lshlrev_b32 v10, 1, v10")
    e("v_and_b32 v11, 1, v2")
    e("v_add_u32 v10, v10, v11")
    e("s_lshl_b32 s21, s2, 3")
    e("v_add_u32 v10, s21, v10")
    e("v_lshlrev_b32 v10, 1, v10")
    e("v_mul_u32_u24 v11, 24576, v3")
    e("v_add_u32 v10, v10, v11")
    e("s_mul_i32 s22, s16, 491520")
    for which, (mask, sr) in enumerate(((0x33333333, 36), (0xCCCCCCCC, 40))):
        e(f"s_mov_b32 exec_lo, {mask:#x}")
        e(f"s_mov_b32 exec_hi, {mask:#x}")
        for t in range(5):
            for j in range(8):
                e(f"s_add_u32 s23, s22, {(t*32+j)*3072}")
                e(f"buffer_load_ushort v{110+t*8+j}, v10, s[{sr}:{sr+3}], s23 offen")
    e("s_mov_b64 exec, -1")
    lab("k1_nopack1")
    e("s_nop 7")
    e("s_nop 7")
    e("v_mul_u32_u24 v12, 80, v3")
    e("v_lshrrev_b32 v13, 1, v3")
    e("v_lshlrev_b32 v13, 8, v13")
    e("v_lshl_add_u32 v13, v2, 4, v13")
    e("v_and_b32 v14, 1, v3")
    e("v_lshl_add_u32 v13, v14, 3, v13")
    e("s_mul_i32 s21, s20, 320")
    e("s_lshl_b32 s22, s19, 2")
    e("s_add_u32 s21, s21, s22")
    e("s_add_u32 s21, s21, s16")
    e("s_lshl_b32 s21, s21, 10")
    for i in range(5):
        e(f"v_accvgpr_read_b32 v{100+i}, a{56+4*i}")
    for st in range(2):
        for r in range(4):
            e(f"v_accvgpr_read_b32 v{16+r}, a{40+4*st+r}")
            e(f"v_accvgpr_read_b32 v{20+r}, a{48+4*st+r}")
        e("s_nop 1")
        for r in range(4):
            e(f"ds_bpermute_b32 v{24+r}, v12, v{20+r} offset:{4*r}")
        e("s_waitcnt lgkmcnt(0)")
        for r in range(4):
            ln_stats(16+r, 24+r, 28+r, 32+r, 36)
        for i in range(5):
            for r in range(4):
                e(f"v_accvgpr_read_b32 v{40+r}, a{(st*5+i)*4+r}")
            for r in range(4):
                e(f"v_fma_f32 v{40+r}, -v{28+r}, v{100+i}, v{40+r}")
            for r in range(4):
                e(f"v_mul_f32 v{40+r}, v{40+r}, v{32+r}")
            o = 44 + ((st*5+i) % 8) * 2
            e(f"v_cvt_pk_bf16_f32 v{o}, v40, v41")
            e(f"v_cvt_pk_bf16_f32 v{o+1}, v42, v43")
            e(f"s_add_u32 s23, s21, {i*65536 + st*512}")
            e(f"buffer_store_dwordx2 v[{o}:{o+1}], v13, s[32:35], s23 offen")
    e("s_cmp_ge_u32 s2, 192")
    e("s_cbranch_scc1 k1_end")
    for r in range(4):
        e(f"v_mov_b32 v{64+r}, 0")
    e("s_waitcnt vmcnt(0)")
    for t in range(5):
        for j in range(4):
            e(f"v_lshl_or_b32 v{PK+t*4+j}, v{110+t*8+2*j+1}, 16, v{110+t*8+2*j}")
    e("s_nop 1")
    for t in range(5):
        mfma(vr(64), vr(PK+4*t), vr(ONES))
    e("s_mul_i32 s21, s2, 20")
    e("s_mul_i32 s22, s16, 5")
    e("s_add_u32 s21, s21, s22")
    e("s_lshl_b32 s21, s21, 10")
    for t in range(5):
        e(f"s_add_u32 s23, s21, {t*1024}")
        e(f"buffer_store_dwordx4 {vr(PK+4*t)}, v8, s[44:47], s23 offen")
    e("s_lshl_b32 s21, s2, 2")
    e("s_add_u32 s21, s21, s16")
    e("s_lshl_b32 s21, s21, 6")
    e(f"s_add_u32 s21, s21, {WSUM_OFF}")
    e("v_lshlrev_b32 v14, 4, v3")
    e("s_nop 7")
    e("s_mov_b32 exec_lo, 0x00010001")
    e("s_mov_b32 exec_hi, 0x00010001")
    e("buffer_store_dwordx4 v[64:67], v14, s[44:47], s21 offen")
    e("s_mov_b64 exec, -1")
    lab("k1_end")
    e("s_endpgm")

ACC = 176
BUF = 32
def bufA(b, i): return BUF + b * 36 + i * 4
def bufB(b, n): return BUF + b * 36 + 20 + n * 4
def acc(i, n): return ACC + (i * 4 + n) * 4

def splitk_core(nsteps, srdA, srdB, shA, shB, vA, vB, mask):
    def addr():
        e("s_add_u32 s44, s40, s41")
        e(f"s_lshl_b32 s42, s44, {shA}")
        e(f"s_lshl_b32 s43, s44, {shB}")
        e("s_add_u32 s40, s40, 1")
        if mask:
            e(f"s_and_b32 s40, s40, {nsteps-1}")
        else:
            e(f"s_cmp_ge_u32 s40, {nsteps}")
            e("s_cselect_b32 s40, 0, s40")
    def loads(b):
        out = []
        for n in range(4):
            out.append(f"buffer_load_dwordx4 {vr(bufB(b,n))}, v{vB+n}, s[{srdB}:{srdB+3}], s43 offen")
        for i in range(5):
            out.append(f"buffer_load_dwordx4 {vr(bufA(b,i))}, v{vA+i}, s[{srdA}:{srdA+3}], s42 offen")
        return out
    for it in range(3):
        addr()
        for l in loads(it): e(l)
    for a in range(80):
        e(f"v_mov_b32 v{ACC+a}, 0")
    for it in range(nsteps):
        b = it % 4
        rem = min(nsteps - 1 - it, 2)
        e(f"s_waitcnt vmcnt({9*rem})")
        ld = []
        if it + 3 < nsteps:
            addr()
            ld = loads((it + 3) % 4)
        k = 0
        for i in range(5):
            for n in range(4):
                mfma(vr(acc(i,n)), vr(bufA(b,i)), vr(bufB(b,n)))
                k += 1
                if k % 2 == 0 and ld:
                    e(ld.pop(0))
        assert not ld

def splitk_exchange():
    e("s_nop 7")
    e("s_nop 7")
    e("s_mul_i32 s44, s16, 5120")
    e("v_add_u32 v9, s44, v8")
    e("v_add_u32 v10, 61440, v9")
    for n in range(4):
        for i in range(5):
            if n < 3:
                e(f"ds_write_b128 v9, {vr(acc(i,n))} offset:{(n*20+i)*1024}")
            else:
                e(f"ds_write_b128 v10, {vr(acc(i,n))} offset:{i*1024}")
    e("s_mul_i32 s44, s16, 20480")
    e("v_add_u32 v9, s44, v8")
    e("s_waitcnt lgkmcnt(0)")
    e("s_barrier")
    for src in range(4):
        for i in range(5):
            e(f"ds_read_b128 {vr(BUF+(src*5+i)*4)}, v9 offset:{(src*5+i)*1024}")


def hp_addr(vdst, s_st, s_d16base, sdst_list):
    e(f"v_lshrrev_b32 v{vdst}, 1, v3")
    e(f"v_lshlrev_b32 v{vdst}, 8, v{vdst}")
    e(f"v_lshl_add_u32 v{vdst}, v2, 4, v{vdst}")
    e("v_and_b32 v10, 1, v3")
    e(f"v_lshl_add_u32 v{vdst}, v10, 3, v{vdst}")
    e(f"s_mul_i32 s44, s{s_st}, 20480")
    for i in range(5):
        e(f"s_add_u32 s45, s{s_d16base}, {i}")
        e(f"s_lshl_b32 s45, s45, 9")
        e(f"s_add_u32 s{sdst_list[i]}, s44, s45")

def gen_k2():
    kernel_begin("k2_kernel")
    e("s_cmp_ge_u32 s2, 256")
    e("s_cbranch_scc1 k2_end")
    e("s_load_dwordx2 s[4:5], s[0:1], 0")
    e("s_load_dwordx2 s[8:9], s[0:1], 8")
    e("s_load_dwordx2 s[10:11], s[0:1], 16")
    e("s_load_dwordx2 s[12:13], s[0:1], 64")
    e("s_load_dwordx2 s[6:7], s[0:1], 88")
    lane_setup()
    e("s_and_b32 s19, s2, 7")
    e("s_lshr_b32 s20, s2, 3")
    e("s_lshr_b32 s21, s20, 3")
    e("s_lshl_b32 s21, s21, 3")
    e("s_add_u32 s19, s19, s21")
    e("s_and_b32 s20, s20, 7")
    e("s_waitcnt lgkmcnt(0)")
    srd(24, 4, 2621440)
    e("s_cmp_lt_u32 s16, 2")
    e("s_cselect_b32 s28, s8, s10")
    e("s_cselect_b32 s29, s9, s11")
    e("s_mov_b32 s30, 8388608")
    e("s_mov_b32 s31, 0x20000")
    srd(32, 6, SZ_ABP, WS_ABP)
    srd(36, 12, 1966080)
    srd(48, 6, SZ_HP, WS_HP)
    srd(52, 6, SZ_HSTAT, WS_HSTAT)
    srd(56, 6, SZ_WDN, WS_WDN)
    e("v_lshlrev_b32 v8, 4, v1")
    e("s_lshl_b32 s22, s19, 18")
    e("v_lshlrev_b32 v4, 12, v2")
    e("v_lshl_add_u32 v4, v3, 4, v4")
    e("v_add_u32 v4, s22, v4")
    for n in range(1, 4):
        e(f"v_add_u32 v{4+n}, {n*65536}, v4")
    e("s_lshr_b32 s22, s16, 1")
    e("s_mul_i32 s22, s22, 40")
    e("s_mul_i32 s23, s20, 5")
    e("s_add_u32 s22, s22, s23")
    e("s_lshl_b32 s22, s22, 16")
    e("v_add_u32 v12, s22, v8")
    for i in range(1, 5):
        e(f"v_add_u32 v{12+i}, {i*65536}, v12")
    e("s_and_b32 s41, s16, 1")
    e("s_lshl_b32 s41, s41, 5")
    e("s_mul_i32 s40, s2, 5")
    e("s_lshr_b32 s40, s40, 1")
    e("s_and_b32 s40, s40, 31")
    splitk_core(32, 32, 28, 10, 6, 12, 4, True)
    PK = 20
    e("s_cmp_ge_u32 s2, 240")
    e("s_cbranch_scc1 k2_nopack1")
    e("s_mul_i32 s22, s2, 43691")
    e("s_lshr_b32 s22, s22, 18")
    e("s_mul_i32 s23, s22, 6")
    e("s_sub_u32 s23, s2, s23")
    e("s_lshl_b32 s23, s23, 3")
    e("s_lshl_b32 s44, s16, 1")
    e("s_add_u32 s23, s23, s44")
    e("s_mul_i32 s60, s22, 48")
    e("s_add_u32 s60, s60, s23")
    e("s_lshl_b32 s60, s60, 10")
    e("v_mul_u32_u24 v10, 10240, v3")
    e("v_lshl_add_u32 v10, v2, 1, v10")
    e("s_lshl_b32 s44, s22, 5")
    e("v_add_u32 v10, s44, v10")
    e("s_mul_i32 s44, s23, 40960")
    for b in range(2):
        for j in range(8):
            e(f"s_add_u32 s46, s44, {(b*32+j)*1280}")
            e(f"buffer_load_ushort v{150+b*8+j}, v10, s[36:39], s46 offen")
    lab("k2_nopack1")
    XR = 112
    e("s_lshl_b32 s21, s19, 6")
    e("s_lshl_b32 s22, s16, 4")
    e("s_add_u32 s21, s21, s22")
    e("s_mul_i32 s22, s21, 1280")
    e("s_mul_i32 s23, s20, 160")
    e("s_add_u32 s22, s22, s23")
    e("v_mul_u32_u24 v11, 1280, v2")
    e("v_lshl_add_u32 v11, v3, 3, v11")
    e("v_add_u32 v11, s22, v11")
    for i in range(5):
        e(f"buffer_load_dwordx2 v[{XR+2*i}:{XR+2*i+1}], v11, s[24:27], 0 offen offset:{i*32}")
    splitk_exchange()
    e("s_lshl_b32 s22, s19, 2")
    e("s_add_u32 s22, s22, s16")
    e("s_mul_i32 s23, s20, 5")
    hp_addr(11, 22, 23, [61, 62, 63, 64, 65])
    e("v_mov_b32 v17, 0")
    e("v_mov_b32 v18, 0")
    e("s_waitcnt vmcnt(0) lgkmcnt(0)")
    T = 124
    for i in range(5):
        def S(src, r): return BUF + (src*5+i)*4 + r
        for r in range(4):
            e(f"v_add_f32 v{T+r}, v{S(0,r)}, v{S(1,r)}")
            e(f"v_add_f32 v{T+4+r}, v{S(2,r)}, v{S(3,r)}")
        for r in range(4):
            bf16r(T+r, T+r)
            bf16r(T+4+r, T+4+r)
        for r in range(4):
            e(f"v_sub_f32 v{T+r}, v{T+r}, v{T+4+r}")
        for r in range(4):
            bf16r(T+r, T+r)
        e(f"v_lshlrev_b32 v{T+4}, 16, v{XR+2*i}")
        e(f"v_and_b32 v{T+5}, 0xffff0000, v{XR+2*i}")
        e(f"v_lshlrev_b32 v{T+6}, 16, v{XR+2*i+1}")
        e(f"v_and_b32 v{T+7}, 0xffff0000, v{XR+2*i+1}")
        for r in range(4):
            e(f"v_add_f32 v{T+r}, v{T+r}, v{T+4+r}")
        o = 136 + 2*i
        e(f"v_cvt_pk_bf16_f32 v{o}, v{T}, v{T+1}")
        e(f"v_cvt_pk_bf16_f32 v{o+1}, v{T+2}, v{T+3}")
        e(f"buffer_store_dwordx2 v[{o}:{o+1}], v11, s[48:51], s{61+i} offen")
        e(f"v_lshlrev_b32 v{T}, 16, v{o}")
        e(f"v_and_b32 v{T+1}, 0xffff0000, v{o}")
        e(f"v_lshlrev_b32 v{T+2}, 16, v{o+1}")
        e(f"v_and_b32 v{T+3}, 0xffff0000, v{o+1}")
        for r in range(4):
            e(f"v_add_f32 v17, v17, v{T+r}")
            e(f"v_fmac_f32 v18, v{T+r}, v{T+r}")
    e("v_xor_b32 v10, 16, v1")
    e("v_lshlrev_b32 v10, 2, v10")
    e("ds_bpermute_b32 v19, v10, v17")
    e("ds_bpermute_b32 v28, v10, v18")
    e("s_waitcnt lgkmcnt(0)")
    e("v_add_f32 v17, v17, v19")
    e("v_add_f32 v18, v18, v28")
    e("v_xor_b32 v10, 32, v1")
    e("v_lshlrev_b32 v10, 2, v10")
    e("ds_bpermute_b32 v19, v10, v17")
    e("ds_bpermute_b32 v28, v10, v18")
    e("s_waitcnt lgkmcnt(0)")
    e("v_add_f32 v30, v17, v19")
    e("v_add_f32 v31, v18, v28")
    e("s_lshl_b32 s22, s21, 6")
    e("s_lshl_b32 s23, s20, 3")
    e("s_add_u32 s22, s22, s23")
    e("v_lshlrev_b32 v10, 6, v2")
    e("s_mov_b32 exec_lo, 0x0000ffff")
    e("s_mov_b32 exec_hi, 0")
    e("buffer_store_dwordx2 v[30:31], v10, s[52:55], s22 offen")
    e("s_mov_b64 exec, -1")
    e("s_cmp_ge_u32 s2, 240")
    e("s_cbranch_scc1 k2_end")
    for j in range(8):
        e(f"v_lshl_or_b32 v{20+j}, v{150+2*j+1}, 16, v{150+2*j}")
    e("buffer_store_dwordx4 v[20:23], v8, s[56:59], s60 offen")
    e("buffer_store_dwordx4 v[24:27], v8, s[56:59], s60 offen offset:1024")
    lab("k2_end")
    e("s_endpgm")

def gen_k4():
    kernel_begin("k4_kernel")
    e("s_cmp_ge_u32 s2, 256")
    e("s_cbranch_scc1 k4_end")
    e("s_load_dwordx2 s[4:5], s[0:1], 72")
    e("s_load_dwordx2 s[6:7], s[0:1], 88")
    lane_setup()
    e("s_and_b32 s19, s2, 7")
    e("s_lshr_b32 s20, s2, 3")
    e("s_lshr_b32 s21, s20, 3")
    e("s_lshl_b32 s21, s21, 3")
    e("s_add_u32 s19, s19, s21")
    e("s_and_b32 s20, s20, 7")
    e("s_waitcnt lgkmcnt(0)")
    srd(24, 4, 2621440)
    srd(28, 6, SZ_ACT, WS_ACT)
    srd(32, 6, SZ_WDN, WS_WDN)
    srd(48, 6, SZ_HP, WS_HP)
    e("v_lshlrev_b32 v8, 4, v1")
    e("s_mul_i32 s22, s19, 196608")
    e("v_add_u32 v4, s22, v8")
    for n in range(1, 4):
        e(f"v_add_u32 v{4+n}, {n*49152}, v4")
    e("s_mul_i32 s22, s20, 245760")
    e("v_add_u32 v12, s22, v8")
    for i in range(1, 5):
        e(f"v_add_u32 v{12+i}, {i*49152}, v12")
    e("s_mul_i32 s41, s16, 12")
    e("s_lshr_b32 s40, s2, 3")
    e("s_mul_i32 s44, s40, 43691")
    e("s_lshr_b32 s44, s44, 19")
    e("s_mul_i32 s44, s44, 12")
    e("s_sub_u32 s40, s40, s44")
    splitk_core(12, 32, 28, 10, 10, 12, 4, False)
    XR = 112
    e("s_lshl_b32 s22, s19, 2")
    e("s_add_u32 s22, s22, s16")
    e("s_mul_i32 s23, s20, 5")
    hp_addr(11, 22, 23, [61, 62, 63, 64, 65])
    for i in range(5):
        e(f"buffer_load_dwordx2 v[{XR+2*i}:{XR+2*i+1}], v11, s[48:51], s{61+i} offen")
    splitk_exchange()
    e("s_mul_i32 s22, s22, 20480")
    e("s_mul_i32 s23, s20, 160")
    e("s_add_u32 s22, s22, s23")
    e("v_mul_u32_u24 v11, 1280, v2")
    e("v_lshl_add_u32 v11, v3, 3, v11")
    e("v_add_u32 v11, s22, v11")
    e("s_waitcnt vmcnt(0) lgkmcnt(0)")
    T = 124
    for i in range(5):
        def S(src, r): return BUF + (src*5+i)*4 + r
        for r in range(4):
            e(f"v_add_f32 v{T+r}, v{S(0,r)}, v{S(1,r)}")
            e(f"v_add_f32 v{T+4+r}, v{S(2,r)}, v{S(3,r)}")
        for r in range(4):
            e(f"v_add_f32 v{T+r}, v{T+r}, v{T+4+r}")
        for r in range(4):
            bf16r(T+r, T+r)
        e(f"v_lshlrev_b32 v{T+4}, 16, v{XR+2*i}")
        e(f"v_and_b32 v{T+5}, 0xffff0000, v{XR+2*i}")
        e(f"v_lshlrev_b32 v{T+6}, 16, v{XR+2*i+1}")
        e(f"v_and_b32 v{T+7}, 0xffff0000, v{XR+2*i+1}")
        for r in range(4):
            e(f"v_add_f32 v{T+r}, v{T+r}, v{T+4+r}")
        o = 136 + 2*i
        e(f"v_cvt_pk_bf16_f32 v{o}, v{T}, v{T+1}")
        e(f"v_cvt_pk_bf16_f32 v{o+1}, v{T+2}, v{T+3}")
        e(f"buffer_store_dwordx2 v[{o}:{o+1}], v11, s[24:27], 0 offen offset:{i*32}")
    lab("k4_end")
    e("s_endpgm")

def gen_k3():
    kernel_begin("k3_kernel")
    e("s_cmp_ge_u32 s2, 256")
    e("s_cbranch_scc1 k3_end")
    e("s_load_dwordx2 s[6:7], s[0:1], 88")
    lane_setup()
    e("s_and_b32 s19, s2, 7")
    e("s_lshr_b32 s20, s2, 3")
    e("s_and_b32 s21, s20, 1")
    e("s_lshl_b32 s19, s19, 1")
    e("s_add_u32 s19, s19, s21")
    e("s_lshr_b32 s20, s20, 1")
    e(f"s_mov_b32 s17, {INV640}")
    e(f"s_mov_b32 s18, {EPS}")
    e("s_waitcnt lgkmcnt(0)")
    srd(24, 6, SZ_HP, WS_HP)
    srd(28, 6, SZ_HSTAT, WS_HSTAT)
    srd(32, 6, SZ_WGU, WS_WGU)
    srd(36, 6, SZ_ACT, WS_ACT)
    e("v_lshlrev_b32 v8, 4, v1")
    e("s_mul_i32 s22, s19, 163840")
    e("s_mul_i32 s23, s16, 40960")
    e("s_add_u32 s22, s22, s23")
    for g in range(10):
        e(f"s_add_u32 m0, s23, {g*4096}")
        e(f"s_add_u32 s44, s22, {g*4096}")
        for t in range(4):
            e(f"buffer_load_dwordx4 v8, s[24:27], s44 offen offset:{t*1024} lds")
    e("s_mul_i32 s21, s20, 12")
    e("s_mul_i32 s23, s16, 3")
    e("s_add_u32 s21, s21, s23")
    e("s_mul_i32 s22, s21, 20480")
    e("v_add_u32 v4, s22, v8")
    e("v_add_u32 v5, 20480, v4")
    e("v_add_u32 v6, 40960, v4")
    D = 6
    WB = 96
    def Wf(kk, i): return WB + ((kk % D) * 3 + i) * 4
    HB = 32
    def Hf(b, n): return HB + (b * 8 + n) * 4
    def wload(kk):
        out = []
        for i in range(3):
            if kk < 4:
                out.append(f"buffer_load_dwordx4 {vr(Wf(kk,i))}, v{4+i}, s[32:35], 0 offen offset:{kk*1024}")
            else:
                out.append(f"buffer_load_dwordx4 {vr(Wf(kk,i))}, v{4+i}, s[32:35], s{45+(kk&1)} offen")
        return out
    for kk in range(D):
        if kk >= 4:
            e(f"s_mov_b32 s{45+(kk&1)}, {kk*1024}")
        for l in wload(kk): e(l)
    e("s_lshl_b32 s22, s21, 8")
    e(f"s_add_u32 s22, s22, {WSUM_OFF}")
    e("v_lshlrev_b32 v9, 4, v3")
    WSR = 200
    for i in range(3):
        for p in range(4):
            e(f"buffer_load_dwordx4 {vr(WSR+(i*4+p)*4)}, v9, s[32:35], s22 offen offset:{i*256+p*64}")
    for a in range(96):
        e(f"v_accvgpr_write_b32 a{a}, 0")
    e("v_add_u32 v10, 65536, v8")
    e("v_add_u32 v11, 131072, v8")
    def hread(kk):
        for n in range(8):
            off = (n * 20 + kk) * 1024
            base = 8 if off < 65536 else (10 if off < 131072 else 11)
            e(f"ds_read_b128 {vr(Hf(kk&1,n))}, v{base} offset:{off % 65536}")
    e("s_waitcnt vmcnt(30)")
    e("s_barrier")
    hread(0)
    for kk in range(20):
        if kk + 1 < 20:
            hread(kk + 1)
        later = 3 * (min(kk + D - 1, 19) - kk)
        if kk < D:
            later += 12
        e(f"s_waitcnt vmcnt({later}) lgkmcnt({8 if kk+1<20 else 0})")
        ld = []
        if kk + D < 20:
            e(f"s_mov_b32 s{45+((kk+D)&1)}, {(kk+D)*1024}")
        k = 0
        for n in range(8):
            for i in range(3):
                mfma(ar((i*8+n)*4), vr(Wf(kk,i)), vr(Hf(kk&1,n)))
        if kk + D < 20:
            for l in wload(kk + D): e(l)
    e("s_lshl_b32 s22, s19, 13")
    e("v_lshlrev_b32 v9, 6, v2")
    for n in range(8):
        e(f"s_add_u32 s44, s22, {n*1024}")
        for p in range(4):
            e(f"buffer_load_dwordx4 {vr(32+(n*4+p)*4)}, v9, s[28:31], s44 offen offset:{p*16}")
    for i in range(3):
        for r in range(4):
            b = WSR + i*16 + r
            e(f"v_add_f32 v{b}, v{b}, v{b+4}")
            e(f"v_add_f32 v{b+8}, v{b+8}, v{b+12}")
            e(f"v_add_f32 v{b}, v{b}, v{b+8}")
    e("s_waitcnt vmcnt(0)")
    MR = 168
    for n in range(8):
        b = 32 + n * 16
        for k in (2, 4, 6, 8, 10, 12, 14):
            e(f"v_add_f32 v{b}, v{b}, v{b+k}")
            e(f"v_add_f32 v{b+1}, v{b+1}, v{b+k+1}")
        ln_stats(b, b+1, MR+n, MR+8+n, 184)
    e("v_lshlrev_b32 v9, 4, v2")
    e("v_lshl_add_u32 v9, v3, 2, v9")
    e("s_mul_i32 s22, s19, 393216")
    e("s_lshl_b32 s23, s21, 8")
    e("s_add_u32 s22, s22, s23")
    e("s_mov_b32 s46, 0x3d372713")
    e("s_mov_b32 s47, 0xc0135761")
    T = 32
    cnt = 0
    for n in range(8):
        for i in range(3):
            t = T + (cnt % 4) * 16
            cnt += 1
            for r in range(4):
                e(f"v_accvgpr_read_b32 v{t+r}, a{(i*8+n)*4+r}")
            for r in range(4):
                e(f"v_fma_f32 v{t+r}, -v{MR+n}, v{WSR+i*16+r}, v{t+r}")
            for r in range(4):
                e(f"v_mul_f32 v{t+r}, v{t+r}, v{MR+8+n}")
            for r in range(4):
                bf16r(t+r, t+r)
            for r in range(2):
                e(f"v_mul_f32 v{t+4+r}, v{t+r}, v{t+r}")
            for r in range(2):
                e(f"v_mul_f32 v{t+4+r}, s46, v{t+4+r}")
            for r in range(2):
                e(f"v_fma_f32 v{t+4+r}, v{t+4+r}, v{t+r}, v{t+r}")
            for r in range(2):
                e(f"v_mul_f32 v{t+4+r}, s47, v{t+4+r}")
            for r in range(2):
                e(f"v_exp_f32 v{t+4+r}, v{t+4+r}")
            e("s_nop 0")
            for r in range(2):
                e(f"v_add_f32 v{t+4+r}, 1.0, v{t+4+r}")
            for r in range(2):
                e(f"v_rcp_f32 v{t+4+r}, v{t+4+r}")
            e("s_nop 0")
            for r in range(2):
                e(f"v_mul_f32 v{t+4+r}, v{t+4+r}, v{t+r}")
            for r in range(2):
                bf16r(t+4+r, t+4+r)
            for r in range(2):
                e(f"v_mul_f32 v{t+4+r}, v{t+4+r}, v{t+2+r}")
            e(f"v_cvt_pk_bf16_f32 v{t+8}, v{t+4}, v{t+5}")
            e(f"s_add_u32 s44, s22, {n*49152 + i*256}")
            e(f"buffer_store_dword v{t+8}, v9, s[36:39], s44 offen")
    lab("k3_end")
    e("s_endpgm")

def descriptor(name, vgpr, accum, sgpr=102):
    raw(f".amdhsa_kernel {name}")
    raw(f"  .amdhsa_next_free_vgpr {vgpr}")
    raw(f"  .amdhsa_next_free_sgpr {sgpr}")
    raw(f"  .amdhsa_accum_offset {accum}")
    raw("  .amdhsa_group_segment_fixed_size 0")
    raw("  .amdhsa_kernarg_size 96")
    raw("  .amdhsa_user_sgpr_count 2")
    raw("  .amdhsa_user_sgpr_kernarg_segment_ptr 1")
    raw("  .amdhsa_system_sgpr_workgroup_id_x 1")
    raw(".end_amdhsa_kernel")

def main():
    raw("; 4-kernel pipeline: K1 LN1+hidden DFT GEMM, K2 seq DFT GEMM + residual, K3 LN2+gate/up GEMM+GEGLU, K4 down GEMM + residual")
    raw("; @launch kernel=k1_kernel grid=(256,1,1) block=(256,1,1) lds=102400")
    raw("; @launch kernel=k2_kernel grid=(256,1,1) block=(256,1,1) lds=81920")
    raw("; @launch kernel=k3_kernel grid=(256,1,1) block=(256,1,1) lds=163840")
    raw("; @launch kernel=k4_kernel grid=(256,1,1) block=(256,1,1) lds=81920")
    raw('.amdgcn_target "amdgcn-amd-amdhsa--gfx950"')
    raw(".text")
    gen_k1(); gen_k2(); gen_k3(); gen_k4()
    raw('.section .rodata,"a"')
    raw(".p2align 6")
    descriptor("k1_kernel", 336, 256)
    raw(".p2align 6")
    descriptor("k2_kernel", 256, 256)
    raw(".p2align 6")
    descriptor("k3_kernel", 352, 256)
    raw(".p2align 6")
    descriptor("k4_kernel", 256, 256)
    out = sys.argv[1] if len(sys.argv) > 1 else f"cdna_kernels/{NAME}.s"
    open(out, "w").write("\n".join(L) + "\n")

main()
```

```python
import sys

L = []
def e(s): L.append("    " + s)
def lab(s): L.append(s + ":")
def raw(s): L.append(s)

NAME = "sequential_preLN__spectral_fnet__geglu_ffn__prompt"

WS_ABP = 0
SZ_ABP = 80 * 64 * 1024
WS_HP = 0x500000
SZ_HP = 128 * 20 * 1024
WS_HSTAT = 0x780000
SZ_HSTAT = 2048 * 8 * 8
WS_ACT = 0x800000
SZ_ACT = 128 * 48 * 1024
WS_WGU = 0xE00000
WSUM_OFF = 192 * 20 * 1024
SZ_WGU = WSUM_OFF + 192 * 4 * 64
WS_WDN = 0x1200000
SZ_WDN = 40 * 48 * 1024

INV640 = 0x3ACCCCCD
EPS = 0x3727C5AC

import os
DIAG = os.environ.get("DIAG", "0") == "1"
WS_DIAG = 0x3000000
def stamp(i):
    if DIAG:
        e(f"s_memtime s[{70+2*i}:{71+2*i}]")
        e("s_waitcnt lgkmcnt(0)")
def stamp_dump(kidx, n):
    if not DIAG: return
    e("s_waitcnt vmcnt(0)")
    stamp(n)
    e(f"s_add_u32 s64, s6, {WS_DIAG + kidx*0x40000}")
    e("s_addc_u32 s65, s7, 0")
    e("s_mov_b32 s66, 0x40000")
    e("s_mov_b32 s67, 0x20000")
    e("s_lshl_b32 s68, s2, 2")
    e("s_add_u32 s68, s68, s16")
    e("s_lshl_b32 s68, s68, 8")
    e("v_mov_b32 v0, 0")
    e("s_mov_b64 exec, 1")
    for i in range(n+1):
        e(f"v_mov_b32 v2, s{70+2*i}")
        e(f"v_mov_b32 v3, s{71+2*i}")
        e(f"buffer_store_dwordx2 v[2:3], v0, s[64:67], s68 offen offset:{i*8}")
    e("s_waitcnt vmcnt(0)")

def srd(d, lo, size, off=0):
    if off:
        e(f"s_add_u32 s{d}, s{lo}, {off}")
        e(f"s_addc_u32 s{d+1}, s{lo+1}, 0")
    else:
        e(f"s_mov_b32 s{d}, s{lo}")
        e(f"s_mov_b32 s{d+1}, s{lo+1}")
    e(f"s_mov_b32 s{d+2}, {size}")
    e(f"s_mov_b32 s{d+3}, 0x20000")

def bf16r(dst, src):
    e(f"v_cvt_pk_bf16_f32 v{dst}, v{src}, v{src}")
    e(f"v_lshlrev_b32 v{dst}, 16, v{dst}")

def vr(b, n=4): return f"v[{b}:{b+n-1}]"
def ar(b, n=4): return f"a[{b}:{b+n-1}]"

def mfma(d, a, b, c=None):
    c = d if c is None else c
    e(f"v_mfma_f32_16x16x32_bf16 {d}, {a}, {b}, {c}")

def kernel_begin(name):
    raw(f".globl {name}")
    raw(".p2align 8")
    raw(f".type {name},@function")
    lab(name)

def lane_setup():
    e("v_lshrrev_b32 v4, 6, v0")
    e("v_and_b32 v1, 63, v0")
    e("v_readfirstlane_b32 s16, v4")
    e("v_and_b32 v2, 15, v1")
    e("v_lshrrev_b32 v3, 4, v1")

def ln_stats(vsum, vsq, vm, vrd, t):
    e(f"v_mul_f32 v{vm}, s17, v{vsum}")
    e(f"v_mul_f32 v{t}, s17, v{vsq}")
    e(f"v_fma_f32 v{t}, -v{vm}, v{vm}, v{t}")
    e(f"v_max_f32 v{t}, 0, v{t}")
    bf16r(vm, vm)
    bf16r(t, t)
    e(f"v_add_f32 v{t}, s18, v{t}")
    bf16r(t, t)
    e(f"v_sqrt_f32 v{t}, v{t}")
    e("s_nop 0")
    bf16r(t, t)
    e(f"v_rcp_f32 v{vrd}, v{t}")
    e("s_nop 0")

def gen_k1():
    kernel_begin("k1_kernel")
    e("s_cmp_ge_u32 s2, 256")
    e("s_cbranch_scc1 k1_end")
    stamp(0)
    e("s_load_dwordx2 s[4:5], s[0:1], 0")
    e("s_load_dwordx2 s[8:9], s[0:1], 24")
    e("s_load_dwordx2 s[10:11], s[0:1], 32")
    e("s_load_dwordx2 s[12:13], s[0:1], 48")
    e("s_load_dwordx2 s[14:15], s[0:1], 56")
    e("s_load_dwordx2 s[60:61], s[0:1], 64")
    e("s_load_dwordx2 s[6:7], s[0:1], 88")
    lane_setup()
    e("s_and_b32 s19, s2, 7")
    e("s_lshr_b32 s20, s2, 3")
    e("s_and_b32 s21, s20, 1")
    e("s_lshl_b32 s19, s19, 1")
    e("s_add_u32 s19, s19, s21")
    e("s_lshr_b32 s20, s20, 1")
    e(f"s_mov_b32 s17, {INV640}")
    e(f"s_mov_b32 s18, {EPS}")
    e("s_mov_b32 s62, 0x3f803f80")
    e("v_lshlrev_b32 v15, 4, v1")
    e("v_lshrrev_b32 v25, 3, v1")
    e("v_and_b32 v26, 7, v1")
    e("v_xor_b32 v26, v26, v25")
    e("v_mul_u32_u24 v25, 1280, v25")
    e("v_lshl_add_u32 v25, v26, 4, v25")
    e("s_and_b32 s21, s20, 7")
    e("s_mul_i32 s21, s21, 102400")
    e("s_and_b32 s22, s16, 1")
    e("s_mul_i32 s22, s22, 51200")
    e("s_add_u32 s21, s21, s22")
    e("s_lshr_b32 s22, s16, 1")
    e("s_lshl_b32 s22, s22, 7")
    e("s_add_u32 s21, s21, s22")
    e("v_add_u32 v4, s21, v25")
    e("s_lshl_b32 s21, s19, 7")
    e("s_lshl_b32 s22, s16, 5")
    e("s_add_u32 s21, s21, s22")
    e("s_mul_i32 s21, s21, 1280")
    e("v_add_u32 v5, s21, v25")
    for j in range(1, 4):
        e(f"v_add_u32 v{5+j}, {j*10240 - j*1024}, v5")
    e("v_and_b32 v26, 7, v2")
    e("v_xor_b32 v26, v26, v3")
    e("v_lshlrev_b32 v11, 7, v2")
    e("v_lshl_add_u32 v11, v26, 4, v11")
    e("v_xor_b32 v12, 64, v11")
    e("v_add_u32 v13, 61440, v11")
    e("v_add_u32 v14, 61440, v12")
    e("s_mul_i32 s46, s16, 12288")
    e("s_add_u32 s46, s46, 102400")
    e("v_add_u32 v9, s46, v11")
    e("v_add_u32 v10, s46, v12")
    e("s_mul_i32 s47, s16, 5120")
    e("s_waitcnt lgkmcnt(0)")
    srd(24, 4, 2621440)
    e("s_cmp_lt_u32 s20, 8")
    e("s_cselect_b32 s28, s8, s10")
    e("s_cselect_b32 s29, s9, s11")
    e("s_mov_b32 s30, 819200")
    e("s_mov_b32 s31, 0x20000")
    def wdma(sc):
        o = []
        for u in range(5):
            o.append(f"s_add_u32 m0, s47, {sc*20480 + u*1024}")
            o.append(f"s_mov_b32 s23, {sc*256 + u*10240}")
            o.append("buffer_load_dwordx4 v4, s[28:31], s23 offen lds")
        return o
    def xdma(c):
        o = [f"s_add_u32 m0, s46, {(c%3)*4096}", f"s_mov_b32 s22, {c*128}"]
        for j in range(4):
            o.append(f"buffer_load_dwordx4 v{5+j}, s[24:27], s22 offen offset:{j*1024} lds")
        return o
    for l in wdma(0) + xdma(0) + xdma(1) + wdma(1) + xdma(2): e(l)
    srd(32, 6, SZ_ABP, WS_ABP)
    PL, PO = 144, 176
    def packloads():
        e("s_lshl_b32 s48, s2, 2")
        e("s_add_u32 s48, s48, s16")
        e("s_cmp_ge_u32 s2, 180")
        e("s_cbranch_scc1 k1_np1")
        e("s_cmp_ge_u32 s2, 120")
        e("s_cbranch_scc1 k1_pdn")
        e("s_mul_i32 s49, s48, 52429")
        e("s_lshr_b32 s49, s49, 20")
        e("s_mul_i32 s50, s49, 20")
        e("s_sub_u32 s50, s48, s50")
        srd(36, 12, 1966080)
        srd(40, 14, 1966080)
        e("v_bfe_u32 v25, v1, 3, 2")
        e("v_and_b32 v26, 7, v1")
        e("v_mul_u32_u24 v27, 24576, v25")
        e("v_lshl_add_u32 v27, v26, 4, v27")
        e("s_mul_i32 s51, s50, 98304")
        e("s_lshl_b32 s52, s49, 7")
        e("s_add_u32 s51, s51, s52")
        for which in range(2):
            e(f"s_mov_b32 exec_lo, {-1 if which == 0 else 0}")
            e(f"s_mov_b32 exec_hi, {0 if which == 0 else -1}")
            for j in range(8):
                e(f"s_add_u32 s52, s51, {j*3072}")
                e(f"buffer_load_dwordx4 {vr(PL+4*j)}, v27, s[{36+4*which}:{39+4*which}], s52 offen")
        e("s_mov_b64 exec, -1")
        e("v_lshrrev_b32 v28, 5, v1")
        e("v_lshlrev_b32 v28, 5, v28")
        e("v_lshl_add_u32 v28, v25, 8, v28")
        e("v_mul_u32_u24 v26, 1040, v26")
        e("v_add_u32 v28, v28, v26")
        e("v_add_u32 v28, s46, v28")
        e("s_mul_i32 s53, s49, 163840")
        e("s_lshl_b32 s52, s50, 10")
        e("s_add_u32 s53, s53, s52")
        e(f"s_add_u32 s53, s53, {WS_WGU}")
        e("s_mov_b32 s54, 20480")
        e("s_mov_b32 s55, 16")
        e("s_branch k1_np1")
        lab("k1_pdn")
        e("s_sub_u32 s48, s48, 480")
        e("s_mul_i32 s49, s48, 43691")
        e("s_lshr_b32 s49, s49, 21")
        e("s_mul_i32 s50, s49, 48")
        e("s_sub_u32 s50, s48, s50")
        srd(36, 60, 1966080)
        e("v_mul_u32_u24 v27, 10240, v3")
        e("v_lshl_add_u32 v27, v2, 4, v27")
        e("s_mul_i32 s51, s50, 40960")
        e("s_lshl_b32 s52, s49, 8")
        e("s_add_u32 s51, s51, s52")
        for j in range(8):
            e(f"s_add_u32 s52, s51, {j*1280}")
            e(f"buffer_load_dwordx4 {vr(PL+4*j)}, v27, s[36:39], s52 offen")
        e("v_lshrrev_b32 v26, 1, v2")
        e("v_mul_u32_u24 v26, 1040, v26")
        e("v_and_b32 v28, 1, v2")
        e("v_lshlrev_b32 v28, 7, v28")
        e("v_lshl_add_u32 v28, v3, 8, v28")
        e("v_add_u32 v28, v28, v26")
        e("v_add_u32 v28, s46, v28")
        e("s_mul_i32 s53, s49, 393216")
        e("s_lshl_b32 s52, s50, 10")
        e("s_add_u32 s53, s53, s52")
        e(f"s_add_u32 s53, s53, {WS_WDN}")
        e("s_mov_b32 s54, 49152")
        e("s_mov_b32 s55, 0")
        lab("k1_np1")
    NPK = 16
    for a in range(76):
        e(f"v_accvgpr_write_b32 a{a}, 0")
    ONES = 16
    for r in range(4):
        e(f"v_mov_b32 v{ONES+r}, 0x3f803f80")
    FB = 32
    def XF(b, st, h): return FB + b * 56 + (st * 2 + h) * 4
    def WF(b, i, h): return FB + b * 56 + 16 + (i * 2 + h) * 4
    def fread(c):
        o = []
        b = c & 1
        for h in range(2):
            for st in range(2):
                o.append(f"ds_read_b128 {vr(XF(b,st,h))}, v{9+h} offset:{(c%3)*4096 + st*2048}")
            for i in range(5):
                off = c * 10240 + i * 2048
                if off < 61440:
                    o.append(f"ds_read_b128 {vr(WF(b,i,h))}, v{11+h} offset:{off}")
                else:
                    o.append(f"ds_read_b128 {vr(WF(b,i,h))}, v{13+h} offset:{off-61440}")
        return o
    stamp(1)
    e("s_waitcnt vmcnt(13)")
    e("s_barrier")
    stamp(2)
    for l in fread(0): e(l)
    waits = {0: 9, 1: 9, 2: 9, 3: 9, 4: 4, 5: 4, 6: 4, 7: 4, 8: 0}
    for c in range(10):
        b = c & 1
        if c in waits:
            e(f"s_waitcnt vmcnt({waits[c]}) lgkmcnt(0)")
            if c in (1, 3, 5): e("s_barrier")
            if c == 8: packloads()
        else:
            e("s_waitcnt lgkmcnt(0)")
        NM = 28
        slots = [[] for _ in range(NM)]
        if c + 1 < 10:
            for j, l in enumerate(fread(c + 1)):
                slots[j].append(l)
        groups = []
        lst = (wdma(c + 2) if c < 3 else []) + (xdma(c + 3) if c + 3 < 10 else [])
        grp = []
        for l in lst:
            grp.append(l)
            if l.startswith("buffer"):
                groups.append(grp); grp = []
        for g, gl in enumerate(groups):
            slots[(g * NM) // len(groups)] += gl
        ml = []
        for h in range(2):
            for i in range(5):
                for st in range(2):
                    ml.append((ar((st*5+i)*4), vr(XF(b,st,h)), vr(WF(b,i,h))))
            for st in range(2):
                ml.append((ar(40+4*st), vr(XF(b,st,h)), vr(ONES)))
                ml.append((ar(48+4*st), vr(XF(b,st,h)), vr(XF(b,st,h))))
        for k, m in enumerate(ml):
            mfma(*m)
            for l in slots[k]: e(l)
        for wv in range(4):
            e(f"s_cmp_lg_u32 s16, {wv}")
            e(f"s_cbranch_scc1 k1_ws{c}_{wv}")
            for i in range(5):
                for h in range(2):
                    if (c * 2 + i * 2 + h) % 4 == wv:
                        mfma(ar(56+4*i), vr(ONES), vr(WF(b,i,h)))
            lab(f"k1_ws{c}_{wv}")
    stamp(3)
    e("s_nop 7")
    e("s_nop 7")
    for i in range(5):
        e(f"v_accvgpr_read_b32 v{20+i}, a{56+4*i}")
    e("v_lshlrev_b32 v25, 2, v2")
    e("v_add_u32 v26, s46, v25")
    for i in range(5):
        e(f"ds_write_b32 v26, v{20+i} offset:{i*64}")
    e("v_mul_u32_u24 v12, 80, v3")
    for st in range(2):
        for r in range(4):
            e(f"v_accvgpr_read_b32 v{32+st*4+r}, a{40+4*st+r}")
            e(f"v_accvgpr_read_b32 v{40+st*4+r}, a{48+4*st+r}")
    e("s_nop 1")
    for st in range(2):
        for r in range(4):
            e(f"ds_bpermute_b32 v{40+st*4+r}, v12, v{40+st*4+r} offset:{4*r}")
    e("v_add_u32 v26, 102400, v25")
    e("s_waitcnt lgkmcnt(0)")
    e("s_barrier")
    for wv in range(4):
        for i in range(5):
            e(f"ds_read_b32 v{124+wv*5+i}, v26 offset:{wv*12288 + i*64}")
    for st in range(2):
        for r in range(4):
            ln_stats(32+st*4+r, 40+st*4+r, 52+st*4+r, 60+st*4+r, 48)
    e("s_waitcnt lgkmcnt(0)")
    for i in range(5):
        e(f"v_add_f32 v{20+i}, v{124+i}, v{129+i}")
        e(f"v_add_f32 v{124+i}, v{134+i}, v{139+i}")
        e(f"v_add_f32 v{20+i}, v{20+i}, v{124+i}")
    e("s_barrier")
    e("v_and_b32 v26, 1, v3")
    e("v_lshlrev_b32 v26, 9, v26")
    e("v_lshrrev_b32 v27, 1, v3")
    e("v_lshl_add_u32 v26, v27, 8, v26")
    e("v_lshl_add_u32 v26, v2, 4, v26")
    e("s_mul_i32 s21, s20, 320")
    e("s_lshl_b32 s22, s19, 2")
    e("s_add_u32 s21, s21, s22")
    e("s_add_u32 s21, s21, s16")
    e("s_lshl_b32 s21, s21, 10")
    e("s_waitcnt lgkmcnt(0)")
    for i in range(5):
        T = 72 + (i & 1) * 16
        O = 104 + i * 4
        for st in range(2):
            for r in range(4):
                e(f"v_accvgpr_read_b32 v{T+st*4+r}, a{(st*5+i)*4+r}")
        for st in range(2):
            for r in range(4):
                e(f"v_fma_f32 v{T+st*4+r}, -v{52+st*4+r}, v{20+i}, v{T+st*4+r}")
        for st in range(2):
            for r in range(4):
                e(f"v_mul_f32 v{T+st*4+r}, v{T+st*4+r}, v{60+st*4+r}")
        for st in range(2):
            e(f"v_cvt_pk_bf16_f32 v{O+2*st}, v{T+st*4}, v{T+st*4+1}")
            e(f"v_cvt_pk_bf16_f32 v{O+2*st+1}, v{T+st*4+2}, v{T+st*4+3}")
        e("s_nop 1")
        e(f"v_permlane16_swap_b32 v{O}, v{O+2}")
        e(f"v_permlane16_swap_b32 v{O+1}, v{O+3}")
        e(f"s_add_u32 s23, s21, {i*65536}")
        e("s_nop 1")
        e(f"buffer_store_dwordx4 {vr(O)}, v26, s[32:35], s23 offen")
    stamp(4)
    e("s_cmp_ge_u32 s2, 180")
    e("s_cbranch_scc1 k1_fin")
    e("s_mov_b32 s56, 0x05040100")
    e("s_mov_b32 s57, 0x07060302")
    e("s_mov_b32 s40, s6")
    e("s_mov_b32 s41, s7")
    e(f"s_mov_b32 s42, {WS_WDN + SZ_WDN}")
    e("s_mov_b32 s43, 0x20000")
    e("s_waitcnt vmcnt(5)")
    for ee in range(8):
        for t in range(4):
            e(f"v_perm_b32 v{PO+ee*4+t}, v{PL+(2*t+1)*4+(ee>>1)}, v{PL+(2*t)*4+(ee>>1)}, s{56+(ee&1)}")
    e("s_lshl_b32 s55, s55, 1")
    e("v_add_u32 v29, s55, v28")
    e("v_add_u32 v30, s55, v29")
    e("v_add_u32 v31, s55, v30")
    for ee in range(8):
        e(f"ds_write_b128 v{28+(ee>>1)}, {vr(PO+ee*4)} offset:{ee*16}")
    e("v_add_u32 v25, s46, v15")
    e("s_waitcnt lgkmcnt(0)")
    for g in range(8):
        e(f"ds_read_b128 {vr(PL+g*4)}, v25 offset:{g*1040}")
    for g in range(8):
        e(f"s_waitcnt lgkmcnt({7-g})")
        e(f"buffer_store_dwordx4 {vr(PL+g*4)}, v15, s[40:43], s53 offen")
        e("s_add_u32 s53, s53, s54")
    lab("k1_fin")
    stamp(5)
    stamp_dump(0, 6)
    lab("k1_end")
    e("s_endpgm")

ACC = 176
BUF = 32
def bufA(b, i): return BUF + b * 36 + i * 4
def bufB(b, n): return BUF + b * 36 + 20 + n * 4
def acc(i, n): return ACC + (i * 4 + n) * 4

def splitk_core(nsteps, srdA, srdB, shA, shB, vA, vB, mask):
    def addr():
        e("s_add_u32 s44, s40, s41")
        e(f"s_lshl_b32 s42, s44, {shA}")
        e(f"s_lshl_b32 s43, s44, {shB}")
        e("s_add_u32 s40, s40, 1")
        if mask:
            e(f"s_and_b32 s40, s40, {nsteps-1}")
        else:
            e(f"s_cmp_ge_u32 s40, {nsteps}")
            e("s_cselect_b32 s40, 0, s40")
    def loads(b):
        out = []
        for n in range(4):
            out.append(f"buffer_load_dwordx4 {vr(bufB(b,n))}, v{vB+n}, s[{srdB}:{srdB+3}], s43 offen")
        for i in range(5):
            out.append(f"buffer_load_dwordx4 {vr(bufA(b,i))}, v{vA+i}, s[{srdA}:{srdA+3}], s42 offen")
        return out
    for it in range(3):
        addr()
        for l in loads(it): e(l)
    for a in range(80):
        e(f"v_mov_b32 v{ACC+a}, 0")
    for it in range(nsteps):
        b = it % 4
        rem = min(nsteps - 1 - it, 2)
        e(f"s_waitcnt vmcnt({9*rem})")
        ld = []
        if it + 3 < nsteps:
            addr()
            ld = loads((it + 3) % 4)
        k = 0
        for i in range(5):
            for n in range(4):
                mfma(vr(acc(i,n)), vr(bufA(b,i)), vr(bufB(b,n)))
                k += 1
                if k % 2 == 0 and ld:
                    e(ld.pop(0))
        assert not ld

def splitk_exchange():
    e("s_nop 7")
    e("s_nop 7")
    e("s_mul_i32 s44, s16, 5120")
    e("v_add_u32 v9, s44, v8")
    e("v_add_u32 v10, 61440, v9")
    for n in range(4):
        for i in range(5):
            if n < 3:
                e(f"ds_write_b128 v9, {vr(acc(i,n))} offset:{(n*20+i)*1024}")
            else:
                e(f"ds_write_b128 v10, {vr(acc(i,n))} offset:{i*1024}")
    e("s_mul_i32 s44, s16, 20480")
    e("v_add_u32 v9, s44, v8")
    e("s_waitcnt lgkmcnt(0)")
    e("s_barrier")
    for src in range(4):
        for i in range(5):
            e(f"ds_read_b128 {vr(BUF+(src*5+i)*4)}, v9 offset:{(src*5+i)*1024}")


def hp_addr(vdst, s_st, s_d16base, sdst_list):
    e(f"v_lshrrev_b32 v{vdst}, 1, v3")
    e(f"v_lshlrev_b32 v{vdst}, 8, v{vdst}")
    e(f"v_lshl_add_u32 v{vdst}, v2, 4, v{vdst}")
    e("v_and_b32 v10, 1, v3")
    e(f"v_lshl_add_u32 v{vdst}, v10, 3, v{vdst}")
    e(f"s_mul_i32 s44, s{s_st}, 20480")
    for i in range(5):
        e(f"s_add_u32 s45, s{s_d16base}, {i}")
        e(f"s_lshl_b32 s45, s45, 9")
        e(f"s_add_u32 s{sdst_list[i]}, s44, s45")

def gen_k2():
    ROT = os.environ.get("K2ROT", "1") == "1"
    kernel_begin("k2_kernel")
    e("s_cmp_ge_u32 s2, 256")
    e("s_cbranch_scc1 k2_end")
    stamp(0)
    e("s_load_dwordx2 s[4:5], s[0:1], 0")
    e("s_load_dwordx2 s[8:9], s[0:1], 8")
    e("s_load_dwordx2 s[10:11], s[0:1], 16")
    e("s_load_dwordx2 s[6:7], s[0:1], 88")
    lane_setup()
    e("s_and_b32 s19, s2, 7")
    e("s_lshr_b32 s20, s2, 3")
    e("s_lshr_b32 s21, s20, 3")
    e("s_lshl_b32 s21, s21, 3")
    e("s_add_u32 s19, s19, s21")
    e("s_and_b32 s20, s20, 7")
    e("v_lshlrev_b32 v8, 4, v1")
    VC, VA, VB0, VB1 = 16, 24, 29, 30
    e("v_lshrrev_b32 v4, 3, v1")
    e("v_and_b32 v5, 7, v1")
    e("v_xor_b32 v5, v5, v4")
    e("v_lshlrev_b32 v4, 12, v4")
    e("v_lshl_add_u32 v4, v5, 4, v4")
    e("s_lshl_b32 s22, s19, 18")
    if os.environ.get("XC"): e("s_mov_b32 s22, 0")
    e(f"v_add_u32 v{VC}, s22, v4")
    for j in range(1, 8):
        e(f"v_add_u32 v{VC+j}, {j*32768 - (j%4)*1024}, v{VC}")
    e("s_lshr_b32 s22, s16, 1")
    e("s_mul_i32 s22, s22, 40")
    e("s_mul_i32 s23, s20, 5")
    if os.environ.get("XA"): e("s_mov_b32 s23, 0")
    e("s_add_u32 s22, s22, s23")
    e("s_lshl_b32 s22, s22, 16")
    e(f"v_add_u32 v{VA}, s22, v8")
    for i in range(1, 5):
        e(f"v_add_u32 v{VA+i}, {i*65536}, v{VA}")
    e("s_lshl_b32 s46, s16, 15")
    e("v_and_b32 v5, 7, v2")
    e("v_xor_b32 v5, v5, v3")
    e("v_lshlrev_b32 v4, 7, v2")
    e("v_lshl_add_u32 v4, v5, 4, v4")
    e(f"v_add_u32 v{VB0}, s46, v4")
    e(f"v_xor_b32 v{VB1}, 64, v{VB0}")
    e("s_and_b32 s41, s16, 1")
    e("s_lshl_b32 s47, s41, 11")
    e("s_lshl_b32 s41, s41, 15")
    if ROT:
        e("s_mul_i32 s40, s2, 5")
        e("s_lshr_b32 s40, s40, 2")
        e("s_and_b32 s40, s40, 15")
    else:
        e("s_mov_b32 s40, 0")
    e("s_lshl_b32 s21, s19, 6")
    e("s_lshl_b32 s22, s16, 4")
    e("s_add_u32 s21, s21, s22")
    e("s_mul_i32 s22, s21, 1280")
    e("s_mul_i32 s23, s20, 160")
    e("s_add_u32 s22, s22, s23")
    e("v_mul_u32_u24 v11, 1280, v2")
    e("v_lshl_add_u32 v11, v3, 3, v11")
    e("v_add_u32 v11, s22, v11")
    e("s_waitcnt lgkmcnt(0)")
    srd(24, 4, 2621440)
    e("s_cmp_lt_u32 s16, 2")
    e("s_cselect_b32 s28, s8, s10")
    e("s_cselect_b32 s29, s9, s11")
    e("s_mov_b32 s30, 8388608")
    e("s_mov_b32 s31, 0x20000")
    srd(32, 6, SZ_ABP, WS_ABP)
    stamp(1)
    AB = 32
    BB = 192
    def A(b, h, i): return AB + (b * 10 + h * 5 + i) * 4
    def B(b, h, n): return BB + (b * 8 + h * 4 + n) * 4
    def stage_issue(b):
        o = []
        o.append("s_lshl_b32 s42, s40, 7")
        o.append("s_add_u32 s42, s42, s47")
        o.append(f"s_add_u32 m0, s46, {b*8192}")
        o.append("s_lshl_b32 s43, s40, 11")
        for j in range(4):
            o.append(f"buffer_load_dwordx4 v{VC+j}, s[28:31], s42 offen offset:{j*1024} lds")
        o.append(f"s_add_u32 m0, s46, {b*8192+4096}")
        o.append("s_add_u32 s43, s43, s41")
        for j in range(4, 8):
            o.append(f"buffer_load_dwordx4 v{VC+j}, s[28:31], s42 offen offset:{(j-4)*1024} lds")
        for h in range(2):
            for i in range(5):
                o.append(f"buffer_load_dwordx4 {vr(A(b,h,i))}, v{VA+i}, s[32:35], s43 offen offset:{h*1024}")
        o.append("s_add_u32 s40, s40, 1")
        o.append("s_and_b32 s40, s40, 15")
        return o
    def bread(st):
        o = []
        for h in range(2):
            for n in range(4):
                o.append(f"ds_read_b128 {vr(B(st&1,h,n))}, v{VB0+h} offset:{(st%4)*8192 + n*2048}")
        return o
    for st in range(3):
        for l in stage_issue(st): e(l)
    for i in range(5):
        e(f"buffer_load_dwordx2 a[{80+2*i}:{81+2*i}], v11, s[24:27], 0 offen offset:{i*32}")
    srd(48, 6, SZ_HP, WS_HP)
    srd(52, 6, SZ_HSTAT, WS_HSTAT)
    for a in range(80):
        e(f"v_accvgpr_write_b32 a{a}, 0")
    e("s_waitcnt vmcnt(41)")
    for l in bread(0): e(l)
    NS = 16
    for st in range(NS):
        b = st % 4
        if st + 1 < NS:
            allowed = 18 if st + 2 < NS else 0
            if os.environ.get("NOA") and st >= 2 and allowed: allowed = 8
            if os.environ.get("NOC") and st >= 2 and allowed: allowed = 10
            if st < 1: allowed += 5
            e(f"s_waitcnt vmcnt({allowed}) lgkmcnt(0)")
        else:
            e("s_waitcnt lgkmcnt(0)")
        if os.environ.get("K2ST") and st in (0,1,2,3,4,6,8,12): stamp(7 + (0,1,2,3,4,6,8,12).index(st))
        slots = [[] for _ in range(40)]
        if st + 1 < NS:
            for j, l in enumerate(bread(st + 1)):
                slots[1 + 2*j].append(l)
        if st + 3 < NS:
            grp = []; groups = []
            for l in stage_issue((st + 3) % 4):
                grp.append(l)
                if l.startswith("buffer"):
                    groups.append(grp); grp = []
            groups[-1] += grp
            for g, gl in enumerate(groups):
                slots[(g * 40) // len(groups)] += gl
        k = 0
        for h in range(2):
            for i in range(5):
                for n in range(4):
                    if not os.environ.get("NOMFMA"): mfma(ar((i*4+n)*4), vr(A(b,h,i)), vr(B(st&1,h,n)))
                    for l in slots[k]:
                        if os.environ.get("NODS") and l.startswith("ds_"): continue
                        if os.environ.get("NOA") and l.startswith("buffer") and not l.endswith("lds"): continue
                        if os.environ.get("NOC") and l.startswith("buffer") and l.endswith("lds"): continue
                        e(l)
                    k += 1
    stamp(2)
    stamp(3)
    e("s_nop 7")
    e("v_add_u32 v9, s46, v8")
    for n in range(4):
        for i in range(5):
            e(f"ds_write_b128 v9, {ar((i*4+n)*4)} offset:{(n*5+i)*1024}")
    e("s_mul_i32 s44, s16, 5120")
    e("v_add_u32 v9, s44, v8")
    e("v_add_u32 v10, 65536, v9")
    XR = 112
    for i in range(10):
        e(f"v_accvgpr_read_b32 v{XR+i}, a{80+i}")
    e("s_waitcnt lgkmcnt(0)")
    e("s_barrier")
    for src in range(4):
        for i in range(5):
            e(f"ds_read_b128 {vr(BUF+(src*5+i)*4)}, v{9 + (src>>1)} offset:{(src&1)*32768 + i*1024}")
    stamp(4)
    e("s_lshl_b32 s22, s19, 2")
    e("s_add_u32 s22, s22, s16")
    e("s_mul_i32 s23, s20, 5")
    hp_addr(11, 22, 23, [61, 62, 63, 64, 65])
    e("v_mov_b32 v17, 0")
    e("v_mov_b32 v18, 0")
    e("s_waitcnt vmcnt(0) lgkmcnt(0)")
    T = 124
    for i in range(5):
        def S(src, r): return BUF + (src*5+i)*4 + r
        for r in range(4):
            e(f"v_add_f32 v{T+r}, v{S(0,r)}, v{S(1,r)}")
            e(f"v_add_f32 v{T+4+r}, v{S(2,r)}, v{S(3,r)}")
        for r in range(4):
            bf16r(T+r, T+r)
            bf16r(T+4+r, T+4+r)
        for r in range(4):
            e(f"v_sub_f32 v{T+r}, v{T+r}, v{T+4+r}")
        for r in range(4):
            bf16r(T+r, T+r)
        e(f"v_lshlrev_b32 v{T+4}, 16, v{XR+2*i}")
        e(f"v_and_b32 v{T+5}, 0xffff0000, v{XR+2*i}")
        e(f"v_lshlrev_b32 v{T+6}, 16, v{XR+2*i+1}")
        e(f"v_and_b32 v{T+7}, 0xffff0000, v{XR+2*i+1}")
        for r in range(4):
            e(f"v_add_f32 v{T+r}, v{T+r}, v{T+4+r}")
        o = 136 + 2*i
        e(f"v_cvt_pk_bf16_f32 v{o}, v{T}, v{T+1}")
        e(f"v_cvt_pk_bf16_f32 v{o+1}, v{T+2}, v{T+3}")
        e(f"buffer_store_dwordx2 v[{o}:{o+1}], v11, s[48:51], s{61+i} offen")
        e(f"v_lshlrev_b32 v{T}, 16, v{o}")
        e(f"v_and_b32 v{T+1}, 0xffff0000, v{o}")
        e(f"v_lshlrev_b32 v{T+2}, 16, v{o+1}")
        e(f"v_and_b32 v{T+3}, 0xffff0000, v{o+1}")
        for r in range(4):
            e(f"v_add_f32 v17, v17, v{T+r}")
            e(f"v_fmac_f32 v18, v{T+r}, v{T+r}")
    e("v_xor_b32 v10, 16, v1")
    e("v_lshlrev_b32 v10, 2, v10")
    e("ds_bpermute_b32 v19, v10, v17")
    e("ds_bpermute_b32 v28, v10, v18")
    e("s_waitcnt lgkmcnt(0)")
    e("v_add_f32 v17, v17, v19")
    e("v_add_f32 v18, v18, v28")
    e("v_xor_b32 v10, 32, v1")
    e("v_lshlrev_b32 v10, 2, v10")
    e("ds_bpermute_b32 v19, v10, v17")
    e("ds_bpermute_b32 v28, v10, v18")
    e("s_waitcnt lgkmcnt(0)")
    e("v_add_f32 v30, v17, v19")
    e("v_add_f32 v31, v18, v28")
    e("s_lshl_b32 s22, s21, 3")
    e("s_lshl_b32 s23, s20, 14")
    e("s_add_u32 s22, s22, s23")
    e("v_lshlrev_b32 v10, 3, v2")
    e("s_mov_b32 exec_lo, 0x0000ffff")
    e("s_mov_b32 exec_hi, 0")
    e("buffer_store_dwordx2 v[30:31], v10, s[52:55], s22 offen")
    e("s_mov_b64 exec, -1")
    lab("k2_fin")
    stamp(5)
    stamp_dump(1, 6)
    if os.environ.get("K2ST"):
        for i in range(7, 15):
            e(f"v_mov_b32 v2, s{70+2*i}")
            e(f"v_mov_b32 v3, s{71+2*i}")
            e(f"buffer_store_dwordx2 v[2:3], v0, s[64:67], s68 offen offset:{i*8}")
        e("s_waitcnt vmcnt(0)")
    lab("k2_end")
    e("s_endpgm")

def gen_k4():
    kernel_begin("k4_kernel")
    e("s_cmp_ge_u32 s2, 256")
    e("s_cbranch_scc1 k4_end")
    stamp(0)
    e("s_load_dwordx2 s[4:5], s[0:1], 72")
    e("s_load_dwordx2 s[6:7], s[0:1], 88")
    lane_setup()
    e("s_and_b32 s19, s2, 7")
    e("s_lshr_b32 s20, s2, 3")
    e("s_lshr_b32 s21, s20, 3")
    e("s_lshl_b32 s21, s21, 3")
    e("s_add_u32 s19, s19, s21")
    e("s_and_b32 s20, s20, 7")
    e("s_waitcnt lgkmcnt(0)")
    srd(24, 4, 2621440)
    srd(28, 6, SZ_ACT, WS_ACT)
    srd(32, 6, SZ_WDN, WS_WDN)
    srd(48, 6, SZ_HP, WS_HP)
    e("v_lshlrev_b32 v8, 4, v1")
    e("s_mul_i32 s22, s19, 196608")
    e("v_add_u32 v4, s22, v8")
    for n in range(1, 4):
        e(f"v_add_u32 v{4+n}, {n*49152}, v4")
    e("s_mul_i32 s22, s20, 245760")
    e("v_add_u32 v12, s22, v8")
    for i in range(1, 5):
        e(f"v_add_u32 v{12+i}, {i*49152}, v12")
    e("s_mul_i32 s41, s16, 12")
    e("s_lshr_b32 s40, s2, 3")
    e("s_mul_i32 s44, s40, 43691")
    e("s_lshr_b32 s44, s44, 19")
    e("s_mul_i32 s44, s44, 12")
    e("s_sub_u32 s40, s40, s44")
    stamp(1)
    splitk_core(12, 32, 28, 10, 10, 12, 4, False)
    stamp(2)
    XR = 112
    e("s_lshl_b32 s22, s19, 2")
    e("s_add_u32 s22, s22, s16")
    e("s_mul_i32 s23, s20, 5")
    hp_addr(11, 22, 23, [61, 62, 63, 64, 65])
    for i in range(5):
        e(f"buffer_load_dwordx2 v[{XR+2*i}:{XR+2*i+1}], v11, s[48:51], s{61+i} offen")
    stamp(3)
    splitk_exchange()
    stamp(4)
    e("s_mul_i32 s22, s22, 20480")
    e("s_mul_i32 s23, s20, 160")
    e("s_add_u32 s22, s22, s23")
    e("v_mul_u32_u24 v11, 1280, v2")
    e("v_lshl_add_u32 v11, v3, 3, v11")
    e("v_add_u32 v11, s22, v11")
    e("s_waitcnt vmcnt(0) lgkmcnt(0)")
    T = 124
    for i in range(5):
        def S(src, r): return BUF + (src*5+i)*4 + r
        for r in range(4):
            e(f"v_add_f32 v{T+r}, v{S(0,r)}, v{S(1,r)}")
            e(f"v_add_f32 v{T+4+r}, v{S(2,r)}, v{S(3,r)}")
        for r in range(4):
            e(f"v_add_f32 v{T+r}, v{T+r}, v{T+4+r}")
        for r in range(4):
            bf16r(T+r, T+r)
        e(f"v_lshlrev_b32 v{T+4}, 16, v{XR+2*i}")
        e(f"v_and_b32 v{T+5}, 0xffff0000, v{XR+2*i}")
        e(f"v_lshlrev_b32 v{T+6}, 16, v{XR+2*i+1}")
        e(f"v_and_b32 v{T+7}, 0xffff0000, v{XR+2*i+1}")
        for r in range(4):
            e(f"v_add_f32 v{T+r}, v{T+r}, v{T+4+r}")
        o = 136 + 2*i
        e(f"v_cvt_pk_bf16_f32 v{o}, v{T}, v{T+1}")
        e(f"v_cvt_pk_bf16_f32 v{o+1}, v{T+2}, v{T+3}")
        e(f"buffer_store_dwordx2 v[{o}:{o+1}], v11, s[24:27], 0 offen offset:{i*32}")
    stamp(5)
    stamp_dump(3, 6)
    lab("k4_end")
    e("s_endpgm")

class VM:
    def __init__(self): self.q = []
    def issue(self, tag, n=1): self.q += [tag] * n
    def younger(self, tags):
        last = max(i for i, t in enumerate(self.q) if t in tags)
        return min(63, len(self.q) - 1 - last)

def gen_k3():
    kernel_begin("k3_kernel")
    e("s_cmp_ge_u32 s2, 256")
    e("s_cbranch_scc1 k3_end")
    stamp(0)
    e("s_load_dwordx2 s[6:7], s[0:1], 88")
    lane_setup()
    e("s_and_b32 s19, s2, 7")
    e("s_lshr_b32 s20, s2, 3")
    e("s_and_b32 s21, s20, 1")
    e("s_lshl_b32 s19, s19, 1")
    e("s_add_u32 s19, s19, s21")
    e("s_lshr_b32 s20, s20, 1")
    e(f"s_mov_b32 s17, {INV640}")
    e(f"s_mov_b32 s18, {EPS}")
    e("s_mov_b32 s62, 0x3f803f80")
    e("v_lshlrev_b32 v8, 4, v1")
    e("s_mul_i32 s21, s20, 12")
    e("s_mul_i32 s23, s16, 3")
    e("s_add_u32 s21, s21, s23")
    e("s_mul_i32 s22, s21, 20480")
    e("v_add_u32 v4, s22, v8")
    e("v_add_u32 v5, 20480, v4")
    e("v_add_u32 v6, 40960, v4")
    e("s_mul_i32 s22, s19, 163840")
    e("s_mul_i32 s23, s16, 40960")
    e("s_add_u32 s22, s22, s23")
    e("v_lshlrev_b32 v9, 3, v1")
    e("s_lshl_b32 s48, s19, 10")
    e("s_waitcnt lgkmcnt(0)")
    srd(24, 6, SZ_HP, WS_HP)
    srd(32, 6, SZ_WGU, WS_WGU)
    srd(28, 6, SZ_HSTAT, WS_HSTAT)
    vm = VM()
    D = 6
    WB = 88
    ACC3 = 160
    def Wf(kk, i): return WB + ((kk % D) * 3 + i) * 4
    def Hf(b, n): return (b * 8 + n) * 4
    def hdma_l(g, t):
        o = []
        base = t * 20480 + g * 5120
        o.append(f"s_add_u32 m0, s23, {base}")
        o.append(f"s_add_u32 s44, s22, {base}")
        for u in range(4):
            o.append(f"buffer_load_dwordx4 v8, s[24:27], s44 offen offset:{u*1024} lds")
        o.append(f"s_add_u32 m0, s23, {base+4096}")
        o.append(f"s_add_u32 s44, s22, {base+4096}")
        o.append("buffer_load_dwordx4 v8, s[24:27], s44 offen lds")
        vm.issue(("H", g), 5)
        return o
    def hdma(g):
        for t in range(2):
            for l in hdma_l(g, t): e(l)
    def wload(kk):
        out = []
        if kk >= 4:
            out.append(f"s_mov_b32 s{45+(kk&1)}, {kk*1024}")
        for i in range(3):
            if kk < 4:
                out.append(f"buffer_load_dwordx4 {vr(Wf(kk,i))}, v{4+i}, s[32:35], 0 offen offset:{kk*1024}")
            else:
                out.append(f"buffer_load_dwordx4 {vr(Wf(kk,i))}, v{4+i}, s[32:35], s{45+(kk&1)} offen")
        vm.issue(("W", kk), 3)
        return out
    hdma(0)
    for kk in range(3):
        for l in wload(kk): e(l)
    for j in range(2):
        for eb in range(8):
            e(f"s_add_u32 s44, s48, {eb*16384 + j*512}")
            e(f"buffer_load_dwordx2 v[{40+(j*8+eb)*2}:{41+(j*8+eb)*2}], v9, s[28:31], s44 offen")
    vm.issue("S", 16)
    for kk in range(3, D):
        for l in wload(kk): e(l)
    srd(36, 6, SZ_ACT, WS_ACT)
    for a in range(96):
        e(f"v_mov_b32 v{ACC3+a}, 0")
    for r in range(24, 36):
        e(f"v_mov_b32 v{r}, 0")
    for r in range(16, 20):
        e(f"v_mov_b32 v{r}, 0x3f803f80")
    e("v_add_u32 v10, 65536, v8")
    e("v_add_u32 v11, 131072, v8")
    def hread(kk):
        o = []
        for n in range(8):
            off = (n * 20 + kk) * 1024
            base = 8 if off < 65536 else (10 if off < 131072 else 11)
            o.append(f"ds_read_b128 {ar(Hf(kk&1,n))}, v{base} offset:{off % 65536}")
        return o
    stamp(1)
    e(f"s_waitcnt vmcnt({vm.younger(['S'])})")
    for j in range(2):
        b = 40 + j * 16
        for k in (2, 4, 6, 8, 10, 12, 14):
            e(f"v_pk_add_f32 v[{b}:{b+1}], v[{b}:{b+1}], v[{b+k}:{b+k+1}]")
        ln_stats(b, b+1, 36+2*j, 37+2*j, 12)
    e("v_lshlrev_b32 v12, 2, v2")
    for t in range(8):
        e(f"ds_bpermute_b32 v{72+2*t}, v12, v{36+2*(t>>2)} offset:{(t&3)*64}")
        e(f"ds_bpermute_b32 v{73+2*t}, v12, v{37+2*(t>>2)} offset:{(t&3)*64}")
    e(f"s_waitcnt vmcnt({vm.younger([('H',0)])}) lgkmcnt(0)")
    stamp(2)
    e("s_barrier")
    stamp(3)
    for l in hread(0): e(l)
    for kk in range(20):
        need = [("W", kk)]
        bar = False
        if kk + 1 < 20 and (kk + 1) % 5 == 0:
            need.append(("H", (kk + 1) // 5)); bar = True
        e(f"s_waitcnt vmcnt({vm.younger(need)}) lgkmcnt(0)")
        if bar: e("s_barrier")
        slots = [[] for _ in range(27)]
        if kk + 1 < 20:
            for j, l in enumerate(hread(kk + 1)):
                slots[j].append(l)
        if kk < 6:
            grp = []; g = 0
            for l in hdma_l(1 + kk // 2, kk & 1):
                grp.append(l)
                if l.startswith("buffer"):
                    slots[1 + g * 5] += grp; grp = []; g += 1
        k = 0
        for n in range(8):
            for i in range(3):
                mfma(vr(ACC3+(i*8+n)*4), vr(Wf(kk,i)), ar(Hf(kk&1,n)))
                for l in slots[k]: e(l)
                k += 1
        for i in range(3):
            mfma(vr(24+4*i), vr(Wf(kk,i)), vr(16))
            for l in slots[k]: e(l)
            k += 1
        if kk + D < 20:
            for l in wload(kk + D): e(l)
    stamp(4)
    e("v_mul_u32_u24 v9, 49152, v3")
    e("v_lshl_add_u32 v9, v2, 4, v9")
    e("s_mul_i32 s22, s19, 393216")
    e("s_lshl_b32 s23, s21, 8")
    e("s_add_u32 s22, s22, s23")
    e("v_mov_b32 v36, 0xbdd2d3e8")
    e("v_mov_b32 v37, 0xc0135761")
    e("s_nop 7")
    e("s_nop 7")
    stamp(5)
    gi = 0
    for i in range(3):
        for n0 in (0, 4):
            TB = 88 + (gi & 1) * 32
            O = TB + 16
            gi += 1
            lists = []
            for g in range(4):
                n = n0 + g
                A = ACC3 + (i*8+n)*4
                S = 72 + 2*n
                WS = 24 + i*4
                t0 = TB + g*4; t2 = TB + g*4 + 2
                l = []
                for p in (0, 2):
                    l.append(f"v_pk_fma_f32 v[{A+p}:{A+p+1}], v[{S}:{S+1}], v[{WS+p}:{WS+p+1}], v[{A+p}:{A+p+1}] op_sel:[0,0,0] op_sel_hi:[0,1,1] neg_lo:[1,0,0] neg_hi:[1,0,0]")
                for p in (0, 2):
                    l.append(f"v_pk_mul_f32 v[{A+p}:{A+p+1}], v[{A+p}:{A+p+1}], v[{S}:{S+1}] op_sel:[0,1] op_sel_hi:[1,1]")
                l.append(f"v_cvt_pk_bf16_f32 v{t0}, v{A}, v{A+1}")
                l.append(f"v_cvt_pk_bf16_f32 v{t0+1}, v{A+2}, v{A+3}")
                l.append(f"v_lshlrev_b32 v{A}, 16, v{t0}")
                l.append(f"v_and_b32 v{A+1}, 0xffff0000, v{t0}")
                l.append(f"v_lshlrev_b32 v{A+2}, 16, v{t0+1}")
                l.append(f"v_and_b32 v{A+3}, 0xffff0000, v{t0+1}")
                l.append(f"v_pk_mul_f32 v[{t2}:{t2+1}], v[{A}:{A+1}], v[{A}:{A+1}]")
                l.append(f"v_pk_fma_f32 v[{t2}:{t2+1}], v[{t2}:{t2+1}], v[36:37], v[36:37] op_sel:[0,0,1] op_sel_hi:[1,0,1]")
                l.append(f"v_pk_mul_f32 v[{t2}:{t2+1}], v[{t2}:{t2+1}], v[{A}:{A+1}]")
                l.append(f"v_exp_f32 v{t2}, v{t2}")
                l.append(f"v_exp_f32 v{t2+1}, v{t2+1}")
                l.append(f"v_add_f32 v{t2}, 1.0, v{t2}")
                l.append(f"v_add_f32 v{t2+1}, 1.0, v{t2+1}")
                l.append(f"v_rcp_f32 v{t2}, v{t2}")
                l.append(f"v_rcp_f32 v{t2+1}, v{t2+1}")
                l.append(f"v_pk_mul_f32 v[{t2}:{t2+1}], v[{t2}:{t2+1}], v[{A}:{A+1}]")
                l.append(f"v_cvt_pk_bf16_f32 v{t0}, v{t2}, v{t2+1}")
                l.append(f"v_lshlrev_b32 v{t2}, 16, v{t0}")
                l.append(f"v_and_b32 v{t2+1}, 0xffff0000, v{t0}")
                l.append(f"v_pk_mul_f32 v[{t2}:{t2+1}], v[{t2}:{t2+1}], v[{A+2}:{A+3}]")
                l.append(f"v_cvt_pk_bf16_f32 v{O+g}, v{t2}, v{t2+1}")
                lists.append(l)
            for k in range(len(lists[0])):
                for g in range(4): e(lists[g][k])
            e("s_nop 1")
            e(f"v_permlane16_swap_b32 v{O}, v{O+1}")
            e(f"v_permlane16_swap_b32 v{O+2}, v{O+3}")
            e("s_nop 1")
            e(f"v_permlane32_swap_b32 v{O}, v{O+2}")
            e(f"v_permlane32_swap_b32 v{O+1}, v{O+3}")
            e(f"s_add_u32 s44, s22, {n0*49152 + i*256}")
            e("s_nop 1")
            e(f"buffer_store_dwordx4 {vr(O)}, v9, s[36:39], s44 offen")
    stamp(6)
    stamp_dump(2, 7)
    lab("k3_end")
    e("s_endpgm")

def descriptor(name, vgpr, accum, sgpr=102):
    raw(f".amdhsa_kernel {name}")
    raw(f"  .amdhsa_next_free_vgpr {vgpr}")
    raw(f"  .amdhsa_next_free_sgpr {sgpr}")
    raw(f"  .amdhsa_accum_offset {accum}")
    raw("  .amdhsa_group_segment_fixed_size 0")
    raw("  .amdhsa_kernarg_size 96")
    raw("  .amdhsa_user_sgpr_count 2")
    raw("  .amdhsa_user_sgpr_kernarg_segment_ptr 1")
    raw("  .amdhsa_system_sgpr_workgroup_id_x 1")
    raw(".end_amdhsa_kernel")

def main():
    raw("; 4-kernel pipeline: K1 LN1+hidden DFT GEMM, K2 seq DFT GEMM + residual, K3 LN2+gate/up GEMM+GEGLU, K4 down GEMM + residual")
    raw("; @launch kernel=k1_kernel grid=(256,1,1) block=(256,1,1) lds=151552")
    raw("; @launch kernel=k2_kernel grid=(256,1,1) block=(256,1,1) lds=131072")
    raw("; @launch kernel=k3_kernel grid=(256,1,1) block=(256,1,1) lds=163840")
    raw("; @launch kernel=k4_kernel grid=(256,1,1) block=(256,1,1) lds=81920")
    raw('.amdgcn_target "amdgcn-amd-amdhsa--gfx950"')
    raw(".text")
    gen_k1(); gen_k2(); gen_k3(); gen_k4()
    raw('.section .rodata,"a"')
    raw(".p2align 6")
    descriptor("k1_kernel", 336, 256)
    raw(".p2align 6")
    descriptor("k2_kernel", 352, 256)
    raw(".p2align 6")
    descriptor("k3_kernel", 320, 256)
    raw(".p2align 6")
    descriptor("k4_kernel", 256, 256)
    out = sys.argv[1] if len(sys.argv) > 1 else f"cdna_kernels/{NAME}.s"
    open(out, "w").write("\n".join(L) + "\n")

main()
```

```python
import sys

L = []
def e(s): L.append("    " + s)
def lab(s): L.append(s + ":")
def raw(s): L.append(s)

NAME = "sequential_preLN__spectral_fnet__geglu_ffn__prompt"

WS_ABP = 0
SZ_ABP = 80 * 64 * 1024
WS_HP = 0x500000
SZ_HP = 128 * 20 * 1024
WS_HSTAT = 0x780000
SZ_HSTAT = 2048 * 8 * 8
WS_ACT = 0x800000
SZ_ACT = 128 * 48 * 1024
WS_WGU = 0xE00000
WSUM_OFF = 192 * 20 * 1024
SZ_WGU = WSUM_OFF + 192 * 4 * 64
WS_WDN = 0x1200000
SZ_WDN = 40 * 48 * 1024

INV640 = 0x3ACCCCCD
EPS = 0x3727C5AC

import os
DIAG = os.environ.get("DIAG", "0") == "1"
WS_DIAG = 0x3000000
def stamp(i):
    if DIAG:
        e(f"s_memtime s[{70+2*i}:{71+2*i}]")
        e("s_waitcnt lgkmcnt(0)")
def stamp_dump(kidx, n):
    if not DIAG: return
    e("s_waitcnt vmcnt(0)")
    stamp(n)
    e(f"s_add_u32 s64, s6, {WS_DIAG + kidx*0x40000}")
    e("s_addc_u32 s65, s7, 0")
    e("s_mov_b32 s66, 0x40000")
    e("s_mov_b32 s67, 0x20000")
    e("s_lshl_b32 s68, s2, 2")
    e("s_add_u32 s68, s68, s16")
    e("s_lshl_b32 s68, s68, 8")
    e("v_mov_b32 v0, 0")
    e("s_mov_b64 exec, 1")
    for i in range(n+1):
        e(f"v_mov_b32 v2, s{70+2*i}")
        e(f"v_mov_b32 v3, s{71+2*i}")
        e(f"buffer_store_dwordx2 v[2:3], v0, s[64:67], s68 offen offset:{i*8}")
    e("s_waitcnt vmcnt(0)")

def srd(d, lo, size, off=0):
    if off:
        e(f"s_add_u32 s{d}, s{lo}, {off}")
        e(f"s_addc_u32 s{d+1}, s{lo+1}, 0")
    else:
        e(f"s_mov_b32 s{d}, s{lo}")
        e(f"s_mov_b32 s{d+1}, s{lo+1}")
    e(f"s_mov_b32 s{d+2}, {size}")
    e(f"s_mov_b32 s{d+3}, 0x20000")

def bf16r(dst, src):
    e(f"v_cvt_pk_bf16_f32 v{dst}, v{src}, v{src}")
    e(f"v_lshlrev_b32 v{dst}, 16, v{dst}")

def vr(b, n=4): return f"v[{b}:{b+n-1}]"
def ar(b, n=4): return f"a[{b}:{b+n-1}]"

def mfma(d, a, b, c=None):
    c = d if c is None else c
    e(f"v_mfma_f32_16x16x32_bf16 {d}, {a}, {b}, {c}")

def kernel_begin(name):
    raw(f".globl {name}")
    raw(".p2align 8")
    raw(f".type {name},@function")
    lab(name)

def lane_setup():
    e("v_lshrrev_b32 v4, 6, v0")
    e("v_and_b32 v1, 63, v0")
    e("v_readfirstlane_b32 s16, v4")
    e("v_and_b32 v2, 15, v1")
    e("v_lshrrev_b32 v3, 4, v1")

def ln_stats(vsum, vsq, vm, vrd, t):
    e(f"v_mul_f32 v{vm}, s17, v{vsum}")
    e(f"v_mul_f32 v{t}, s17, v{vsq}")
    e(f"v_fma_f32 v{t}, -v{vm}, v{vm}, v{t}")
    e(f"v_max_f32 v{t}, 0, v{t}")
    bf16r(vm, vm)
    bf16r(t, t)
    e(f"v_add_f32 v{t}, s18, v{t}")
    bf16r(t, t)
    e(f"v_sqrt_f32 v{t}, v{t}")
    e("s_nop 0")
    bf16r(t, t)
    e(f"v_rcp_f32 v{vrd}, v{t}")
    e("s_nop 0")

def gen_k1():
    kernel_begin("k1_kernel")
    e("s_cmp_ge_u32 s2, 256")
    e("s_cbranch_scc1 k1_end")
    stamp(0)
    e("s_load_dwordx2 s[4:5], s[0:1], 0")
    e("s_load_dwordx2 s[8:9], s[0:1], 24")
    e("s_load_dwordx2 s[10:11], s[0:1], 32")
    e("s_load_dwordx2 s[12:13], s[0:1], 48")
    e("s_load_dwordx2 s[14:15], s[0:1], 56")
    e("s_load_dwordx2 s[60:61], s[0:1], 64")
    e("s_load_dwordx2 s[6:7], s[0:1], 88")
    e("s_load_dwordx4 s[56:59], s[0:1], 8")
    lane_setup()
    e("s_cmp_eq_u32 s16, 4")
    e("s_cbranch_scc1 k1_aux")
    e("s_and_b32 s19, s2, 7")
    e("s_lshr_b32 s20, s2, 3")
    e("s_and_b32 s21, s20, 1")
    e("s_lshl_b32 s19, s19, 1")
    e("s_add_u32 s19, s19, s21")
    e("s_lshr_b32 s20, s20, 1")
    e(f"s_mov_b32 s17, {INV640}")
    e(f"s_mov_b32 s18, {EPS}")
    e("s_mov_b32 s62, 0x3f803f80")
    e("v_lshlrev_b32 v15, 4, v1")
    e("v_lshrrev_b32 v25, 3, v1")
    e("v_and_b32 v26, 7, v1")
    e("v_xor_b32 v26, v26, v25")
    e("v_mul_u32_u24 v25, 1280, v25")
    e("v_lshl_add_u32 v25, v26, 4, v25")
    e("s_and_b32 s21, s20, 7")
    e("s_mul_i32 s21, s21, 102400")
    e("s_and_b32 s22, s16, 1")
    e("s_mul_i32 s22, s22, 51200")
    e("s_add_u32 s21, s21, s22")
    e("s_lshr_b32 s22, s16, 1")
    e("s_lshl_b32 s22, s22, 7")
    e("s_add_u32 s21, s21, s22")
    e("v_add_u32 v4, s21, v25")
    e("s_lshl_b32 s21, s19, 7")
    e("s_lshl_b32 s22, s16, 5")
    e("s_add_u32 s21, s21, s22")
    e("s_mul_i32 s21, s21, 1280")
    e("v_add_u32 v5, s21, v25")
    for j in range(1, 4):
        e(f"v_add_u32 v{5+j}, {j*10240 - j*1024}, v5")
    e("v_and_b32 v26, 7, v2")
    e("v_xor_b32 v26, v26, v3")
    e("v_lshlrev_b32 v11, 7, v2")
    e("v_lshl_add_u32 v11, v26, 4, v11")
    e("v_xor_b32 v12, 64, v11")
    e("v_add_u32 v13, 61440, v11")
    e("v_add_u32 v14, 61440, v12")
    e("s_mul_i32 s46, s16, 12288")
    e("s_add_u32 s46, s46, 102400")
    e("v_add_u32 v9, s46, v11")
    e("v_add_u32 v10, s46, v12")
    e("s_mul_i32 s47, s16, 5120")
    e("s_waitcnt lgkmcnt(0)")
    srd(24, 4, 2621440)
    e("s_cmp_lt_u32 s20, 8")
    e("s_cselect_b32 s28, s8, s10")
    e("s_cselect_b32 s29, s9, s11")
    e("s_mov_b32 s30, 819200")
    e("s_mov_b32 s31, 0x20000")
    def wdma(sc):
        o = []
        for u in range(5):
            o.append(f"s_add_u32 m0, s47, {sc*20480 + u*1024}")
            o.append(f"s_mov_b32 s23, {sc*256 + u*10240}")
            o.append("buffer_load_dwordx4 v4, s[28:31], s23 offen lds")
        return o
    def xdma(c):
        o = [f"s_add_u32 m0, s46, {(c%3)*4096}", f"s_mov_b32 s22, {c*128}"]
        for j in range(4):
            o.append(f"buffer_load_dwordx4 v{5+j}, s[24:27], s22 offen offset:{j*1024} lds")
        return o
    for l in wdma(0) + xdma(0) + xdma(1) + wdma(1) + xdma(2): e(l)
    srd(32, 6, SZ_ABP, WS_ABP)
    NPK = 16
    for a in range(76):
        e(f"v_accvgpr_write_b32 a{a}, 0")
    ONES = 16
    for r in range(4):
        e(f"v_mov_b32 v{ONES+r}, 0x3f803f80")
    FB = 32
    def XF(b, st, h): return FB + b * 56 + (st * 2 + h) * 4
    def WF(b, i, h): return FB + b * 56 + 16 + (i * 2 + h) * 4
    def fread(c):
        o = []
        b = c & 1
        for h in range(2):
            for st in range(2):
                o.append(f"ds_read_b128 {vr(XF(b,st,h))}, v{9+h} offset:{(c%3)*4096 + st*2048}")
            for i in range(5):
                off = c * 10240 + i * 2048
                if off < 61440:
                    o.append(f"ds_read_b128 {vr(WF(b,i,h))}, v{11+h} offset:{off}")
                else:
                    o.append(f"ds_read_b128 {vr(WF(b,i,h))}, v{13+h} offset:{off-61440}")
        return o
    stamp(1)
    e("s_waitcnt vmcnt(13)")
    e("s_barrier")
    stamp(2)
    for l in fread(0): e(l)
    waits = {0: 9, 1: 9, 2: 9, 3: 9, 4: 4, 5: 4, 6: 4, 7: 4, 8: 0}
    for c in range(10):
        b = c & 1
        if c in waits:
            e(f"s_waitcnt vmcnt({waits[c]}) lgkmcnt(0)")
            if c in (1, 3, 5): e("s_barrier")
        else:
            e("s_waitcnt lgkmcnt(0)")
        NM = 28
        slots = [[] for _ in range(NM)]
        if c + 1 < 10:
            for j, l in enumerate(fread(c + 1)):
                slots[j].append(l)
        groups = []
        lst = (wdma(c + 2) if c < 3 else []) + (xdma(c + 3) if c + 3 < 10 else [])
        grp = []
        for l in lst:
            grp.append(l)
            if l.startswith("buffer"):
                groups.append(grp); grp = []
        for g, gl in enumerate(groups):
            slots[(g * NM) // len(groups)] += gl
        ml = []
        for h in range(2):
            for i in range(5):
                for st in range(2):
                    ml.append((ar((st*5+i)*4), vr(XF(b,st,h)), vr(WF(b,i,h))))
            for st in range(2):
                ml.append((ar(40+4*st), vr(XF(b,st,h)), vr(ONES)))
                ml.append((ar(48+4*st), vr(XF(b,st,h)), vr(XF(b,st,h))))
        for k, m in enumerate(ml):
            mfma(*m)
            for l in slots[k]: e(l)
        for wv in range(4):
            e(f"s_cmp_lg_u32 s16, {wv}")
            e(f"s_cbranch_scc1 k1_ws{c}_{wv}")
            for i in range(5):
                for h in range(2):
                    if (c * 2 + i * 2 + h) % 4 == wv:
                        mfma(ar(56+4*i), vr(ONES), vr(WF(b,i,h)))
            lab(f"k1_ws{c}_{wv}")
    stamp(3)
    e("s_nop 7")
    e("s_nop 7")
    for i in range(5):
        e(f"v_accvgpr_read_b32 v{20+i}, a{56+4*i}")
    e("v_lshlrev_b32 v25, 2, v2")
    e("v_add_u32 v26, s46, v25")
    for i in range(5):
        e(f"ds_write_b32 v26, v{20+i} offset:{i*64}")
    e("v_mul_u32_u24 v12, 80, v3")
    for st in range(2):
        for r in range(4):
            e(f"v_accvgpr_read_b32 v{32+st*4+r}, a{40+4*st+r}")
            e(f"v_accvgpr_read_b32 v{40+st*4+r}, a{48+4*st+r}")
    e("s_nop 1")
    for st in range(2):
        for r in range(4):
            e(f"ds_bpermute_b32 v{40+st*4+r}, v12, v{40+st*4+r} offset:{4*r}")
    e("v_add_u32 v26, 102400, v25")
    e("s_waitcnt lgkmcnt(0)")
    e("s_barrier")
    for wv in range(4):
        for i in range(5):
            e(f"ds_read_b32 v{124+wv*5+i}, v26 offset:{wv*12288 + i*64}")
    for st in range(2):
        for r in range(4):
            ln_stats(32+st*4+r, 40+st*4+r, 52+st*4+r, 60+st*4+r, 48)
    e("s_waitcnt lgkmcnt(0)")
    for i in range(5):
        e(f"v_add_f32 v{20+i}, v{124+i}, v{129+i}")
        e(f"v_add_f32 v{124+i}, v{134+i}, v{139+i}")
        e(f"v_add_f32 v{20+i}, v{20+i}, v{124+i}")
    e("s_barrier")
    e("v_and_b32 v26, 1, v3")
    e("v_lshlrev_b32 v26, 9, v26")
    e("v_lshrrev_b32 v27, 1, v3")
    e("v_lshl_add_u32 v26, v27, 8, v26")
    e("v_lshl_add_u32 v26, v2, 4, v26")
    e("s_mul_i32 s21, s20, 320")
    e("s_lshl_b32 s22, s19, 2")
    e("s_add_u32 s21, s21, s22")
    e("s_add_u32 s21, s21, s16")
    e("s_lshl_b32 s21, s21, 10")
    e("s_waitcnt lgkmcnt(0)")
    for i in range(5):
        T = 72 + (i & 1) * 16
        O = 104 + i * 4
        for st in range(2):
            for r in range(4):
                e(f"v_accvgpr_read_b32 v{T+st*4+r}, a{(st*5+i)*4+r}")
        for st in range(2):
            for r in range(4):
                e(f"v_fma_f32 v{T+st*4+r}, -v{52+st*4+r}, v{20+i}, v{T+st*4+r}")
        for st in range(2):
            for r in range(4):
                e(f"v_mul_f32 v{T+st*4+r}, v{T+st*4+r}, v{60+st*4+r}")
        for st in range(2):
            e(f"v_cvt_pk_bf16_f32 v{O+2*st}, v{T+st*4}, v{T+st*4+1}")
            e(f"v_cvt_pk_bf16_f32 v{O+2*st+1}, v{T+st*4+2}, v{T+st*4+3}")
        e("s_nop 1")
        e(f"v_permlane16_swap_b32 v{O}, v{O+2}")
        e(f"v_permlane16_swap_b32 v{O+1}, v{O+3}")
        e(f"s_add_u32 s23, s21, {i*65536}")
        e("s_nop 1")
        e(f"buffer_store_dwordx4 {vr(O)}, v26, s[32:35], s23 offen")
    stamp(4)
    lab("k1_fin")
    stamp(5)
    stamp_dump(0, 6)
    lab("k1_end")
    e("s_endpgm")
    lab("k1_aux")
    PL, PO, PF = 32, 128, 160
    STG = 151552
    e("v_lshlrev_b32 v15, 4, v1")
    e("s_waitcnt lgkmcnt(0)")
    e("s_cmp_lt_u32 s2, 128")
    e("s_cselect_b32 s24, s56, s58")
    e("s_cselect_b32 s25, s57, s59")
    e("s_mov_b32 s26, 8388608")
    e("s_mov_b32 s27, 0x20000")
    e("s_and_b32 s21, s2, 7")
    e("s_bfe_u32 s22, s2, 0x20005")
    e("s_lshl_b32 s22, s22, 3")
    e("s_add_u32 s21, s21, s22")
    e("s_lshl_b32 s21, s21, 2")
    e("s_bfe_u32 s22, s2, 0x20003")
    e("s_add_u32 s21, s21, s22")
    e("s_lshl_b32 s21, s21, 16")
    e("s_mov_b32 s40, s6")
    e("s_mov_b32 s41, s7")
    e(f"s_mov_b32 s42, {WS_WDN + SZ_WDN}")
    e("s_mov_b32 s43, 0x20000")
    e("s_mov_b32 s56, 0x05040100")
    e("s_mov_b32 s57, 0x07060302")
    def prefetch(lo, hi):
        for t in range(lo, hi):
            if t % 4 == 0:
                e(f"s_add_u32 s22, s21, {t*1024}")
            e(f"buffer_load_dwordx4 {vr(PF)}, v15, s[24:27], s22 offen offset:{(t%4)*1024}")
    e("s_cmp_ge_u32 s2, 240")
    e("s_cbranch_scc1 k1_pf_only")
    e("s_mul_i32 s48, s2, 3")
    e("s_cmp_ge_u32 s2, 160")
    e("s_cbranch_scc1 k1_pdn")
    srd(36, 12, 1966080)
    srd(44, 14, 1966080)
    e("v_bfe_u32 v25, v1, 3, 2")
    e("v_and_b32 v26, 7, v1")
    e("v_mul_u32_u24 v27, 24576, v25")
    e("v_lshl_add_u32 v27, v26, 4, v27")
    for t in range(3):
        e(f"s_add_u32 s49, s48, {t}")
        e("s_mul_i32 s50, s49, 52429")
        e("s_lshr_b32 s50, s50, 20")
        e("s_mul_i32 s51, s50, 20")
        e("s_sub_u32 s51, s49, s51")
        e("s_mul_i32 s52, s51, 98304")
        e("s_lshl_b32 s49, s50, 7")
        e("s_add_u32 s52, s52, s49")
        for which in range(2):
            e(f"s_mov_b32 exec_lo, {-1 if which == 0 else 0}")
            e(f"s_mov_b32 exec_hi, {0 if which == 0 else -1}")
            for j in range(8):
                e(f"s_add_u32 s49, s52, {j*3072}")
                e(f"buffer_load_dwordx4 {vr(PL+32*t+4*j)}, v27, s[{36+8*which}:{39+8*which}], s49 offen")
        e("s_mov_b64 exec, -1")
        e(f"s_mul_i32 s{28+t}, s50, 163840")
        e("s_lshl_b32 s49, s51, 10")
        e(f"s_add_u32 s{28+t}, s{28+t}, s49")
        e(f"s_add_u32 s{28+t}, s{28+t}, {WS_WGU}")
    e("v_lshrrev_b32 v28, 5, v1")
    e("v_lshlrev_b32 v28, 5, v28")
    e("v_lshl_add_u32 v28, v25, 8, v28")
    e("v_mul_u32_u24 v26, 1040, v26")
    e("v_add_u32 v28, v28, v26")
    e(f"v_add_u32 v28, {STG}, v28")
    e("s_mov_b32 s54, 20480")
    e("s_mov_b32 s55, 32")
    e("s_mov_b32 s53, 16")
    e("s_branch k1_pk")
    lab("k1_pdn")
    e("s_sub_u32 s48, s48, 480")
    srd(36, 60, 1966080)
    e("v_mul_u32_u24 v27, 10240, v3")
    e("v_lshl_add_u32 v27, v2, 4, v27")
    for t in range(3):
        e(f"s_add_u32 s49, s48, {t}")
        e("s_mul_i32 s50, s49, 43691")
        e("s_lshr_b32 s50, s50, 21")
        e("s_mul_i32 s51, s50, 48")
        e("s_sub_u32 s51, s49, s51")
        e("s_mul_i32 s52, s51, 40960")
        e("s_lshl_b32 s49, s50, 8")
        e("s_add_u32 s52, s52, s49")
        for j in range(8):
            e(f"s_add_u32 s49, s52, {j*1280}")
            e(f"buffer_load_dwordx4 {vr(PL+32*t+4*j)}, v27, s[36:39], s49 offen")
        e(f"s_mul_i32 s{28+t}, s50, 393216")
        e("s_lshl_b32 s49, s51, 10")
        e(f"s_add_u32 s{28+t}, s{28+t}, s49")
        e(f"s_add_u32 s{28+t}, s{28+t}, {WS_WDN}")
    e("v_lshrrev_b32 v26, 1, v2")
    e("v_mul_u32_u24 v26, 1040, v26")
    e("v_and_b32 v28, 1, v2")
    e("v_lshlrev_b32 v28, 7, v28")
    e("v_lshl_add_u32 v28, v3, 8, v28")
    e("v_add_u32 v28, v28, v26")
    e(f"v_add_u32 v28, {STG}, v28")
    e("s_mov_b32 s54, 49152")
    e("s_mov_b32 s55, 0")
    lab("k1_pk")
    e("s_barrier")
    prefetch(0, 12)
    e("v_add_u32 v29, s55, v28")
    e("v_add_u32 v30, s55, v29")
    e("v_add_u32 v31, s55, v30")
    e(f"v_add_u32 v25, {STG}, v15")
    e("s_barrier")
    e("s_waitcnt vmcnt(12)")
    PFR = [(12, 28), (28, 44), (44, 64)]
    for t in range(3):
        for ee in range(8):
            for k in range(4):
                e(f"v_perm_b32 v{PO+ee*4+k}, v{PL+32*t+(2*k+1)*4+(ee>>1)}, v{PL+32*t+(2*k)*4+(ee>>1)}, s{56+(ee&1)}")
        for ee in range(8):
            e(f"ds_write_b128 v{28+(ee>>1)}, {vr(PO+ee*4)} offset:{ee*16}")
        e("s_waitcnt lgkmcnt(0)")
        for g in range(8):
            e(f"ds_read_b128 {vr(PL+32*t+g*4)}, v25 offset:{g*1040}")
        for g in range(8):
            e(f"s_waitcnt lgkmcnt({7-g})")
            e(f"buffer_store_dwordx4 {vr(PL+32*t+g*4)}, v15, s[40:43], s{28+t} offen")
            e(f"s_add_u32 s{28+t}, s{28+t}, s54")
        prefetch(*PFR[t])
        e("s_barrier")
    e("s_barrier")
    e("s_waitcnt vmcnt(0)")
    e("s_endpgm")
    lab("k1_pf_only")
    e("s_barrier")
    prefetch(0, 12)
    e("s_barrier")
    prefetch(12, 28)
    e("s_barrier")
    prefetch(28, 44)
    e("s_barrier")
    prefetch(44, 64)
    e("s_barrier")
    e("s_barrier")
    e("s_waitcnt vmcnt(0)")
    e("s_endpgm")

ACC = 176
BUF = 32
def bufA(b, i): return BUF + b * 36 + i * 4
def bufB(b, n): return BUF + b * 36 + 20 + n * 4
def acc(i, n): return ACC + (i * 4 + n) * 4

def splitk_core(nsteps, srdA, srdB, shA, shB, vA, vB, mask):
    def addr():
        e("s_add_u32 s44, s40, s41")
        e(f"s_lshl_b32 s42, s44, {shA}")
        e(f"s_lshl_b32 s43, s44, {shB}")
        e("s_add_u32 s40, s40, 1")
        if mask:
            e(f"s_and_b32 s40, s40, {nsteps-1}")
        else:
            e(f"s_cmp_ge_u32 s40, {nsteps}")
            e("s_cselect_b32 s40, 0, s40")
    def loads(b):
        out = []
        for n in range(4):
            out.append(f"buffer_load_dwordx4 {vr(bufB(b,n))}, v{vB+n}, s[{srdB}:{srdB+3}], s43 offen")
        for i in range(5):
            out.append(f"buffer_load_dwordx4 {vr(bufA(b,i))}, v{vA+i}, s[{srdA}:{srdA+3}], s42 offen")
        return out
    for it in range(3):
        addr()
        for l in loads(it): e(l)
    for a in range(80):
        e(f"v_mov_b32 v{ACC+a}, 0")
    for it in range(nsteps):
        b = it % 4
        rem = min(nsteps - 1 - it, 2)
        e(f"s_waitcnt vmcnt({9*rem})")
        ld = []
        if it + 3 < nsteps:
            addr()
            ld = loads((it + 3) % 4)
        k = 0
        for i in range(5):
            for n in range(4):
                mfma(vr(acc(i,n)), vr(bufA(b,i)), vr(bufB(b,n)))
                k += 1
                if k % 2 == 0 and ld:
                    e(ld.pop(0))
        assert not ld

def splitk_exchange():
    e("s_nop 7")
    e("s_nop 7")
    e("s_mul_i32 s44, s16, 5120")
    e("v_add_u32 v9, s44, v8")
    e("v_add_u32 v10, 61440, v9")
    for n in range(4):
        for i in range(5):
            if n < 3:
                e(f"ds_write_b128 v9, {vr(acc(i,n))} offset:{(n*20+i)*1024}")
            else:
                e(f"ds_write_b128 v10, {vr(acc(i,n))} offset:{i*1024}")
    e("s_mul_i32 s44, s16, 20480")
    e("v_add_u32 v9, s44, v8")
    e("s_waitcnt lgkmcnt(0)")
    e("s_barrier")
    for src in range(4):
        for i in range(5):
            e(f"ds_read_b128 {vr(BUF+(src*5+i)*4)}, v9 offset:{(src*5+i)*1024}")


def hp_addr(vdst, s_st, s_d16base, sdst_list):
    e(f"v_lshrrev_b32 v{vdst}, 1, v3")
    e(f"v_lshlrev_b32 v{vdst}, 8, v{vdst}")
    e(f"v_lshl_add_u32 v{vdst}, v2, 4, v{vdst}")
    e("v_and_b32 v10, 1, v3")
    e(f"v_lshl_add_u32 v{vdst}, v10, 3, v{vdst}")
    e(f"s_mul_i32 s44, s{s_st}, 20480")
    for i in range(5):
        e(f"s_add_u32 s45, s{s_d16base}, {i}")
        e(f"s_lshl_b32 s45, s45, 9")
        e(f"s_add_u32 s{sdst_list[i]}, s44, s45")

def gen_k2():
    ROT = os.environ.get("K2ROT", "0") == "1"
    kernel_begin("k2_kernel")
    e("s_cmp_ge_u32 s2, 256")
    e("s_cbranch_scc1 k2_end")
    stamp(0)
    e("s_load_dwordx2 s[4:5], s[0:1], 0")
    e("s_load_dwordx2 s[8:9], s[0:1], 8")
    e("s_load_dwordx2 s[10:11], s[0:1], 16")
    e("s_load_dwordx2 s[6:7], s[0:1], 88")
    lane_setup()
    e("s_and_b32 s19, s2, 7")
    e("s_lshr_b32 s20, s2, 3")
    e("s_lshr_b32 s21, s20, 3")
    e("s_lshl_b32 s21, s21, 3")
    e("s_add_u32 s19, s19, s21")
    e("s_and_b32 s20, s20, 7")
    e("v_lshlrev_b32 v8, 4, v1")
    VC, VA, VB0, VB1 = 16, 24, 29, 30
    e("v_lshrrev_b32 v4, 3, v1")
    e("v_and_b32 v5, 7, v1")
    e("v_xor_b32 v5, v5, v4")
    e("v_lshlrev_b32 v4, 12, v4")
    e("v_lshl_add_u32 v4, v5, 4, v4")
    e("s_lshl_b32 s22, s19, 18")
    if os.environ.get("XC"): e("s_mov_b32 s22, 0")
    e(f"v_add_u32 v{VC}, s22, v4")
    for j in range(1, 8):
        e(f"v_add_u32 v{VC+j}, {j*32768 - (j%4)*1024}, v{VC}")
    e("s_lshr_b32 s22, s16, 1")
    e("s_mul_i32 s22, s22, 40")
    e("s_mul_i32 s23, s20, 5")
    if os.environ.get("XA"): e("s_mov_b32 s23, 0")
    e("s_add_u32 s22, s22, s23")
    e("s_lshl_b32 s22, s22, 16")
    e(f"v_add_u32 v{VA}, s22, v8")
    for i in range(1, 5):
        e(f"v_add_u32 v{VA+i}, {i*65536}, v{VA}")
    e("s_lshl_b32 s46, s16, 15")
    e("v_and_b32 v5, 7, v2")
    e("v_xor_b32 v5, v5, v3")
    e("v_lshlrev_b32 v4, 7, v2")
    e("v_lshl_add_u32 v4, v5, 4, v4")
    e(f"v_add_u32 v{VB0}, s46, v4")
    e(f"v_xor_b32 v{VB1}, 64, v{VB0}")
    e("s_and_b32 s41, s16, 1")
    e("s_lshl_b32 s47, s41, 11")
    e("s_lshl_b32 s41, s41, 15")
    if ROT:
        e("s_mul_i32 s40, s2, 5")
        e("s_lshr_b32 s40, s40, 2")
        e("s_and_b32 s40, s40, 15")
    else:
        e("s_mov_b32 s40, 0")
    e("s_lshl_b32 s21, s19, 6")
    e("s_lshl_b32 s22, s16, 4")
    e("s_add_u32 s21, s21, s22")
    e("s_mul_i32 s22, s21, 1280")
    e("s_mul_i32 s23, s20, 160")
    e("s_add_u32 s22, s22, s23")
    e("v_mul_u32_u24 v11, 1280, v2")
    e("v_lshl_add_u32 v11, v3, 3, v11")
    e("v_add_u32 v11, s22, v11")
    e("s_waitcnt lgkmcnt(0)")
    srd(24, 4, 2621440)
    e("s_cmp_lt_u32 s16, 2")
    e("s_cselect_b32 s28, s8, s10")
    e("s_cselect_b32 s29, s9, s11")
    e("s_mov_b32 s30, 8388608")
    e("s_mov_b32 s31, 0x20000")
    srd(32, 6, SZ_ABP, WS_ABP)
    stamp(1)
    AB = 32
    BB = 192
    def A(b, h, i): return AB + (b * 10 + h * 5 + i) * 4
    def B(b, h, n): return BB + (b * 8 + h * 4 + n) * 4
    def stage_issue(b):
        o = []
        o.append("s_lshl_b32 s42, s40, 7")
        o.append("s_add_u32 s42, s42, s47")
        o.append(f"s_add_u32 m0, s46, {b*8192}")
        o.append("s_lshl_b32 s43, s40, 11")
        for j in range(4):
            o.append(f"buffer_load_dwordx4 v{VC+j}, s[28:31], s42 offen offset:{j*1024} lds")
        o.append(f"s_add_u32 m0, s46, {b*8192+4096}")
        o.append("s_add_u32 s43, s43, s41")
        for j in range(4, 8):
            o.append(f"buffer_load_dwordx4 v{VC+j}, s[28:31], s42 offen offset:{(j-4)*1024} lds")
        for h in range(2):
            for i in range(5):
                o.append(f"buffer_load_dwordx4 {vr(A(b,h,i))}, v{VA+i}, s[32:35], s43 offen offset:{h*1024}")
        o.append("s_add_u32 s40, s40, 1")
        o.append("s_and_b32 s40, s40, 15")
        return o
    def bread(st):
        o = []
        for h in range(2):
            for n in range(4):
                o.append(f"ds_read_b128 {vr(B(st&1,h,n))}, v{VB0+h} offset:{(st%4)*8192 + n*2048}")
        return o
    for st in range(3):
        for l in stage_issue(st): e(l)
    for i in range(5):
        e(f"buffer_load_dwordx2 a[{80+2*i}:{81+2*i}], v11, s[24:27], 0 offen offset:{i*32}")
    srd(48, 6, SZ_HP, WS_HP)
    srd(52, 6, SZ_HSTAT, WS_HSTAT)
    for a in range(80):
        e(f"v_accvgpr_write_b32 a{a}, 0")
    e("s_waitcnt vmcnt(41)")
    for l in bread(0): e(l)
    NS = 16
    for st in range(NS):
        b = st % 4
        if st + 1 < NS:
            allowed = 18 if st + 2 < NS else 0
            if os.environ.get("NOA") and st >= 2 and allowed: allowed = 8
            if os.environ.get("NOC") and st >= 2 and allowed: allowed = 10
            if st < 1: allowed += 5
            e(f"s_waitcnt vmcnt({allowed}) lgkmcnt(0)")
        else:
            e("s_waitcnt lgkmcnt(0)")
        if os.environ.get("K2ST") and st in (0,1,2,3,4,6,8,12): stamp(7 + (0,1,2,3,4,6,8,12).index(st))
        slots = [[] for _ in range(40)]
        if st + 1 < NS:
            for j, l in enumerate(bread(st + 1)):
                slots[1 + 2*j].append(l)
        if st + 3 < NS:
            grp = []; groups = []
            for l in stage_issue((st + 3) % 4):
                grp.append(l)
                if l.startswith("buffer"):
                    groups.append(grp); grp = []
            groups[-1] += grp
            for g, gl in enumerate(groups):
                slots[(g * 40) // len(groups)] += gl
        k = 0
        for h in range(2):
            for i in range(5):
                for n in range(4):
                    if not os.environ.get("NOMFMA"): mfma(ar((i*4+n)*4), vr(A(b,h,i)), vr(B(st&1,h,n)))
                    for l in slots[k]:
                        if os.environ.get("NODS") and l.startswith("ds_"): continue
                        if os.environ.get("NOA") and l.startswith("buffer") and not l.endswith("lds"): continue
                        if os.environ.get("NOC") and l.startswith("buffer") and l.endswith("lds"): continue
                        e(l)
                    k += 1
    stamp(2)
    stamp(3)
    e("s_nop 7")
    e("v_add_u32 v9, s46, v8")
    for n in range(4):
        for i in range(5):
            e(f"ds_write_b128 v9, {ar((i*4+n)*4)} offset:{(n*5+i)*1024}")
    e("s_mul_i32 s44, s16, 5120")
    e("v_add_u32 v9, s44, v8")
    e("v_add_u32 v10, 65536, v9")
    XR = 112
    for i in range(10):
        e(f"v_accvgpr_read_b32 v{XR+i}, a{80+i}")
    e("s_waitcnt lgkmcnt(0)")
    e("s_barrier")
    for src in range(4):
        for i in range(5):
            e(f"ds_read_b128 {vr(BUF+(src*5+i)*4)}, v{9 + (src>>1)} offset:{(src&1)*32768 + i*1024}")
    stamp(4)
    e("s_lshl_b32 s22, s19, 2")
    e("s_add_u32 s22, s22, s16")
    e("s_mul_i32 s23, s20, 5")
    hp_addr(11, 22, 23, [61, 62, 63, 64, 65])
    e("v_mov_b32 v17, 0")
    e("v_mov_b32 v18, 0")
    e("s_waitcnt vmcnt(0) lgkmcnt(0)")
    T = 124
    for i in range(5):
        def S(src, r): return BUF + (src*5+i)*4 + r
        for r in range(4):
            e(f"v_add_f32 v{T+r}, v{S(0,r)}, v{S(1,r)}")
            e(f"v_add_f32 v{T+4+r}, v{S(2,r)}, v{S(3,r)}")
        for r in range(4):
            bf16r(T+r, T+r)
            bf16r(T+4+r, T+4+r)
        for r in range(4):
            e(f"v_sub_f32 v{T+r}, v{T+r}, v{T+4+r}")
        for r in range(4):
            bf16r(T+r, T+r)
        e(f"v_lshlrev_b32 v{T+4}, 16, v{XR+2*i}")
        e(f"v_and_b32 v{T+5}, 0xffff0000, v{XR+2*i}")
        e(f"v_lshlrev_b32 v{T+6}, 16, v{XR+2*i+1}")
        e(f"v_and_b32 v{T+7}, 0xffff0000, v{XR+2*i+1}")
        for r in range(4):
            e(f"v_add_f32 v{T+r}, v{T+r}, v{T+4+r}")
        o = 136 + 2*i
        e(f"v_cvt_pk_bf16_f32 v{o}, v{T}, v{T+1}")
        e(f"v_cvt_pk_bf16_f32 v{o+1}, v{T+2}, v{T+3}")
        e(f"buffer_store_dwordx2 v[{o}:{o+1}], v11, s[48:51], s{61+i} offen")
        e(f"v_lshlrev_b32 v{T}, 16, v{o}")
        e(f"v_and_b32 v{T+1}, 0xffff0000, v{o}")
        e(f"v_lshlrev_b32 v{T+2}, 16, v{o+1}")
        e(f"v_and_b32 v{T+3}, 0xffff0000, v{o+1}")
        for r in range(4):
            e(f"v_add_f32 v17, v17, v{T+r}")
            e(f"v_fmac_f32 v18, v{T+r}, v{T+r}")
    e("v_xor_b32 v10, 16, v1")
    e("v_lshlrev_b32 v10, 2, v10")
    e("ds_bpermute_b32 v19, v10, v17")
    e("ds_bpermute_b32 v28, v10, v18")
    e("s_waitcnt lgkmcnt(0)")
    e("v_add_f32 v17, v17, v19")
    e("v_add_f32 v18, v18, v28")
    e("v_xor_b32 v10, 32, v1")
    e("v_lshlrev_b32 v10, 2, v10")
    e("ds_bpermute_b32 v19, v10, v17")
    e("ds_bpermute_b32 v28, v10, v18")
    e("s_waitcnt lgkmcnt(0)")
    e("v_add_f32 v30, v17, v19")
    e("v_add_f32 v31, v18, v28")
    e("s_lshl_b32 s22, s21, 3")
    e("s_lshl_b32 s23, s20, 14")
    e("s_add_u32 s22, s22, s23")
    e("v_lshlrev_b32 v10, 3, v2")
    e("s_mov_b32 exec_lo, 0x0000ffff")
    e("s_mov_b32 exec_hi, 0")
    e("buffer_store_dwordx2 v[30:31], v10, s[52:55], s22 offen")
    e("s_mov_b64 exec, -1")
    lab("k2_fin")
    stamp(5)
    stamp_dump(1, 6)
    if os.environ.get("K2ST"):
        for i in range(7, 15):
            e(f"v_mov_b32 v2, s{70+2*i}")
            e(f"v_mov_b32 v3, s{71+2*i}")
            e(f"buffer_store_dwordx2 v[2:3], v0, s[64:67], s68 offen offset:{i*8}")
        e("s_waitcnt vmcnt(0)")
    lab("k2_end")
    e("s_endpgm")

def gen_k4():
    kernel_begin("k4_kernel")
    e("s_cmp_ge_u32 s2, 256")
    e("s_cbranch_scc1 k4_end")
    stamp(0)
    e("s_load_dwordx2 s[4:5], s[0:1], 72")
    e("s_load_dwordx2 s[6:7], s[0:1], 88")
    lane_setup()
    e("s_and_b32 s19, s2, 7")
    e("s_lshr_b32 s20, s2, 3")
    e("s_lshr_b32 s21, s20, 3")
    e("s_lshl_b32 s21, s21, 3")
    e("s_add_u32 s19, s19, s21")
    e("s_and_b32 s20, s20, 7")
    e("s_waitcnt lgkmcnt(0)")
    srd(24, 4, 2621440)
    srd(28, 6, SZ_ACT, WS_ACT)
    srd(32, 6, SZ_WDN, WS_WDN)
    srd(48, 6, SZ_HP, WS_HP)
    e("v_lshlrev_b32 v8, 4, v1")
    e("s_mul_i32 s22, s19, 196608")
    e("v_add_u32 v4, s22, v8")
    for n in range(1, 4):
        e(f"v_add_u32 v{4+n}, {n*49152}, v4")
    e("s_mul_i32 s22, s20, 245760")
    e("v_add_u32 v12, s22, v8")
    for i in range(1, 5):
        e(f"v_add_u32 v{12+i}, {i*49152}, v12")
    e("s_mul_i32 s41, s16, 12")
    e("s_lshr_b32 s40, s2, 3")
    e("s_mul_i32 s44, s40, 43691")
    e("s_lshr_b32 s44, s44, 19")
    e("s_mul_i32 s44, s44, 12")
    e("s_sub_u32 s40, s40, s44")
    stamp(1)
    splitk_core(12, 32, 28, 10, 10, 12, 4, False)
    stamp(2)
    XR = 112
    e("s_lshl_b32 s22, s19, 2")
    e("s_add_u32 s22, s22, s16")
    e("s_mul_i32 s23, s20, 5")
    hp_addr(11, 22, 23, [61, 62, 63, 64, 65])
    for i in range(5):
        e(f"buffer_load_dwordx2 v[{XR+2*i}:{XR+2*i+1}], v11, s[48:51], s{61+i} offen")
    stamp(3)
    splitk_exchange()
    stamp(4)
    e("s_mul_i32 s22, s22, 20480")
    e("s_mul_i32 s23, s20, 160")
    e("s_add_u32 s22, s22, s23")
    e("v_mul_u32_u24 v11, 1280, v2")
    e("v_lshl_add_u32 v11, v3, 3, v11")
    e("v_add_u32 v11, s22, v11")
    e("s_waitcnt vmcnt(0) lgkmcnt(0)")
    T = 124
    for i in range(5):
        def S(src, r): return BUF + (src*5+i)*4 + r
        for r in range(4):
            e(f"v_add_f32 v{T+r}, v{S(0,r)}, v{S(1,r)}")
            e(f"v_add_f32 v{T+4+r}, v{S(2,r)}, v{S(3,r)}")
        for r in range(4):
            e(f"v_add_f32 v{T+r}, v{T+r}, v{T+4+r}")
        for r in range(4):
            bf16r(T+r, T+r)
        e(f"v_lshlrev_b32 v{T+4}, 16, v{XR+2*i}")
        e(f"v_and_b32 v{T+5}, 0xffff0000, v{XR+2*i}")
        e(f"v_lshlrev_b32 v{T+6}, 16, v{XR+2*i+1}")
        e(f"v_and_b32 v{T+7}, 0xffff0000, v{XR+2*i+1}")
        for r in range(4):
            e(f"v_add_f32 v{T+r}, v{T+r}, v{T+4+r}")
        o = 136 + 2*i
        e(f"v_cvt_pk_bf16_f32 v{o}, v{T}, v{T+1}")
        e(f"v_cvt_pk_bf16_f32 v{o+1}, v{T+2}, v{T+3}")
        e(f"buffer_store_dwordx2 v[{o}:{o+1}], v11, s[24:27], 0 offen offset:{i*32}")
    stamp(5)
    stamp_dump(3, 6)
    lab("k4_end")
    e("s_endpgm")

class VM:
    def __init__(self): self.q = []
    def issue(self, tag, n=1): self.q += [tag] * n
    def younger(self, tags):
        last = max(i for i, t in enumerate(self.q) if t in tags)
        return min(63, len(self.q) - 1 - last)

def gen_k3():
    kernel_begin("k3_kernel")
    e("s_cmp_ge_u32 s2, 256")
    e("s_cbranch_scc1 k3_end")
    stamp(0)
    e("s_load_dwordx2 s[6:7], s[0:1], 88")
    lane_setup()
    e("s_and_b32 s19, s2, 7")
    e("s_lshr_b32 s20, s2, 3")
    e("s_and_b32 s21, s20, 1")
    e("s_lshl_b32 s19, s19, 1")
    e("s_add_u32 s19, s19, s21")
    e("s_lshr_b32 s20, s20, 1")
    e(f"s_mov_b32 s17, {INV640}")
    e(f"s_mov_b32 s18, {EPS}")
    e("s_mov_b32 s62, 0x3f803f80")
    e("v_lshlrev_b32 v8, 4, v1")
    e("s_mul_i32 s21, s20, 12")
    e("s_mul_i32 s23, s16, 3")
    e("s_add_u32 s21, s21, s23")
    e("s_mul_i32 s22, s21, 20480")
    e("v_add_u32 v4, s22, v8")
    e("v_add_u32 v5, 20480, v4")
    e("v_add_u32 v6, 40960, v4")
    e("s_mul_i32 s22, s19, 163840")
    e("s_mul_i32 s23, s16, 40960")
    e("s_add_u32 s22, s22, s23")
    e("v_lshlrev_b32 v9, 3, v1")
    e("s_lshl_b32 s48, s19, 10")
    e("s_waitcnt lgkmcnt(0)")
    srd(24, 6, SZ_HP, WS_HP)
    srd(32, 6, SZ_WGU, WS_WGU)
    srd(28, 6, SZ_HSTAT, WS_HSTAT)
    vm = VM()
    D = 6
    WB = 88
    ACC3 = 160
    def Wf(kk, i): return WB + ((kk % D) * 3 + i) * 4
    def Hf(b, n): return (b * 8 + n) * 4
    def hdma_l(g, t):
        o = []
        base = t * 20480 + g * 5120
        o.append(f"s_add_u32 m0, s23, {base}")
        o.append(f"s_add_u32 s44, s22, {base}")
        for u in range(4):
            o.append(f"buffer_load_dwordx4 v8, s[24:27], s44 offen offset:{u*1024} lds")
        o.append(f"s_add_u32 m0, s23, {base+4096}")
        o.append(f"s_add_u32 s44, s22, {base+4096}")
        o.append("buffer_load_dwordx4 v8, s[24:27], s44 offen lds")
        vm.issue(("H", g), 5)
        return o
    def hdma(g):
        for t in range(2):
            for l in hdma_l(g, t): e(l)
    def wload(kk):
        out = []
        if kk >= 4:
            out.append(f"s_mov_b32 s{45+(kk&1)}, {kk*1024}")
        for i in range(3):
            if kk < 4:
                out.append(f"buffer_load_dwordx4 {vr(Wf(kk,i))}, v{4+i}, s[32:35], 0 offen offset:{kk*1024}")
            else:
                out.append(f"buffer_load_dwordx4 {vr(Wf(kk,i))}, v{4+i}, s[32:35], s{45+(kk&1)} offen")
        vm.issue(("W", kk), 3)
        return out
    hdma(0)
    for kk in range(3):
        for l in wload(kk): e(l)
    for j in range(2):
        for eb in range(8):
            e(f"s_add_u32 s44, s48, {eb*16384 + j*512}")
            e(f"buffer_load_dwordx2 v[{40+(j*8+eb)*2}:{41+(j*8+eb)*2}], v9, s[28:31], s44 offen")
    vm.issue("S", 16)
    for kk in range(3, D):
        for l in wload(kk): e(l)
    srd(36, 6, SZ_ACT, WS_ACT)
    for a in range(96):
        e(f"v_mov_b32 v{ACC3+a}, 0")
    for r in range(24, 36):
        e(f"v_mov_b32 v{r}, 0")
    for r in range(16, 20):
        e(f"v_mov_b32 v{r}, 0x3f803f80")
    e("v_add_u32 v10, 65536, v8")
    e("v_add_u32 v11, 131072, v8")
    def hread(kk):
        o = []
        for n in range(8):
            off = (n * 20 + kk) * 1024
            base = 8 if off < 65536 else (10 if off < 131072 else 11)
            o.append(f"ds_read_b128 {ar(Hf(kk&1,n))}, v{base} offset:{off % 65536}")
        return o
    stamp(1)
    e(f"s_waitcnt vmcnt({vm.younger(['S'])})")
    for j in range(2):
        b = 40 + j * 16
        for k in (2, 4, 6, 8, 10, 12, 14):
            e(f"v_pk_add_f32 v[{b}:{b+1}], v[{b}:{b+1}], v[{b+k}:{b+k+1}]")
        ln_stats(b, b+1, 36+2*j, 37+2*j, 12)
    e("v_lshlrev_b32 v12, 2, v2")
    for t in range(8):
        e(f"ds_bpermute_b32 v{72+2*t}, v12, v{36+2*(t>>2)} offset:{(t&3)*64}")
        e(f"ds_bpermute_b32 v{73+2*t}, v12, v{37+2*(t>>2)} offset:{(t&3)*64}")
    e(f"s_waitcnt vmcnt({vm.younger([('H',0)])}) lgkmcnt(0)")
    stamp(2)
    e("s_barrier")
    stamp(3)
    for l in hread(0): e(l)
    for kk in range(20):
        need = [("W", kk)]
        bar = False
        if kk + 1 < 20 and (kk + 1) % 5 == 0:
            need.append(("H", (kk + 1) // 5)); bar = True
        e(f"s_waitcnt vmcnt({vm.younger(need)}) lgkmcnt(0)")
        if bar: e("s_barrier")
        slots = [[] for _ in range(27)]
        if kk + 1 < 20:
            for j, l in enumerate(hread(kk + 1)):
                slots[j].append(l)
        if kk < 6:
            grp = []; g = 0
            for l in hdma_l(1 + kk // 2, kk & 1):
                grp.append(l)
                if l.startswith("buffer"):
                    slots[1 + g * 5] += grp; grp = []; g += 1
        k = 0
        for n in range(8):
            for i in range(3):
                mfma(vr(ACC3+(i*8+n)*4), vr(Wf(kk,i)), ar(Hf(kk&1,n)))
                for l in slots[k]: e(l)
                k += 1
        for i in range(3):
            mfma(vr(24+4*i), vr(Wf(kk,i)), vr(16))
            for l in slots[k]: e(l)
            k += 1
        if kk + D < 20:
            for l in wload(kk + D): e(l)
    stamp(4)
    e("v_mul_u32_u24 v9, 49152, v3")
    e("v_lshl_add_u32 v9, v2, 4, v9")
    e("s_mul_i32 s22, s19, 393216")
    e("s_lshl_b32 s23, s21, 8")
    e("s_add_u32 s22, s22, s23")
    e("v_mov_b32 v36, 0xbdd2d3e8")
    e("v_mov_b32 v37, 0xc0135761")
    e("s_nop 7")
    e("s_nop 7")
    stamp(5)
    gi = 0
    for i in range(3):
        for n0 in (0, 4):
            TB = 88 + (gi & 1) * 32
            O = TB + 16
            gi += 1
            lists = []
            for g in range(4):
                n = n0 + g
                A = ACC3 + (i*8+n)*4
                S = 72 + 2*n
                WS = 24 + i*4
                t0 = TB + g*4; t2 = TB + g*4 + 2
                l = []
                for p in (0, 2):
                    l.append(f"v_pk_fma_f32 v[{A+p}:{A+p+1}], v[{S}:{S+1}], v[{WS+p}:{WS+p+1}], v[{A+p}:{A+p+1}] op_sel:[0,0,0] op_sel_hi:[0,1,1] neg_lo:[1,0,0] neg_hi:[1,0,0]")
                for p in (0, 2):
                    l.append(f"v_pk_mul_f32 v[{A+p}:{A+p+1}], v[{A+p}:{A+p+1}], v[{S}:{S+1}] op_sel:[0,1] op_sel_hi:[1,1]")
                l.append(f"v_cvt_pk_bf16_f32 v{t0}, v{A}, v{A+1}")
                l.append(f"v_cvt_pk_bf16_f32 v{t0+1}, v{A+2}, v{A+3}")
                l.append(f"v_lshlrev_b32 v{A}, 16, v{t0}")
                l.append(f"v_and_b32 v{A+1}, 0xffff0000, v{t0}")
                l.append(f"v_lshlrev_b32 v{A+2}, 16, v{t0+1}")
                l.append(f"v_and_b32 v{A+3}, 0xffff0000, v{t0+1}")
                l.append(f"v_pk_mul_f32 v[{t2}:{t2+1}], v[{A}:{A+1}], v[{A}:{A+1}]")
                l.append(f"v_pk_fma_f32 v[{t2}:{t2+1}], v[{t2}:{t2+1}], v[36:37], v[36:37] op_sel:[0,0,1] op_sel_hi:[1,0,1]")
                l.append(f"v_pk_mul_f32 v[{t2}:{t2+1}], v[{t2}:{t2+1}], v[{A}:{A+1}]")
                l.append(f"v_exp_f32 v{t2}, v{t2}")
                l.append(f"v_exp_f32 v{t2+1}, v{t2+1}")
                l.append(f"v_add_f32 v{t2}, 1.0, v{t2}")
                l.append(f"v_add_f32 v{t2+1}, 1.0, v{t2+1}")
                l.append(f"v_rcp_f32 v{t2}, v{t2}")
                l.append(f"v_rcp_f32 v{t2+1}, v{t2+1}")
                l.append(f"v_pk_mul_f32 v[{t2}:{t2+1}], v[{t2}:{t2+1}], v[{A}:{A+1}]")
                l.append(f"v_cvt_pk_bf16_f32 v{t0}, v{t2}, v{t2+1}")
                l.append(f"v_lshlrev_b32 v{t2}, 16, v{t0}")
                l.append(f"v_and_b32 v{t2+1}, 0xffff0000, v{t0}")
                l.append(f"v_pk_mul_f32 v[{t2}:{t2+1}], v[{t2}:{t2+1}], v[{A+2}:{A+3}]")
                l.append(f"v_cvt_pk_bf16_f32 v{O+g}, v{t2}, v{t2+1}")
                lists.append(l)
            for k in range(len(lists[0])):
                for g in range(4): e(lists[g][k])
            e("s_nop 1")
            e(f"v_permlane16_swap_b32 v{O}, v{O+1}")
            e(f"v_permlane16_swap_b32 v{O+2}, v{O+3}")
            e("s_nop 1")
            e(f"v_permlane32_swap_b32 v{O}, v{O+2}")
            e(f"v_permlane32_swap_b32 v{O+1}, v{O+3}")
            e(f"s_add_u32 s44, s22, {n0*49152 + i*256}")
            e("s_nop 1")
            e(f"buffer_store_dwordx4 {vr(O)}, v9, s[36:39], s44 offen")
    stamp(6)
    stamp_dump(2, 7)
    lab("k3_end")
    e("s_endpgm")

def descriptor(name, vgpr, accum, sgpr=102):
    raw(f".amdhsa_kernel {name}")
    raw(f"  .amdhsa_next_free_vgpr {vgpr}")
    raw(f"  .amdhsa_next_free_sgpr {sgpr}")
    raw(f"  .amdhsa_accum_offset {accum}")
    raw("  .amdhsa_group_segment_fixed_size 0")
    raw("  .amdhsa_kernarg_size 96")
    raw("  .amdhsa_user_sgpr_count 2")
    raw("  .amdhsa_user_sgpr_kernarg_segment_ptr 1")
    raw("  .amdhsa_system_sgpr_workgroup_id_x 1")
    raw(".end_amdhsa_kernel")

def main():
    raw("; 4-kernel pipeline: K1 LN1+hidden DFT GEMM, K2 seq DFT GEMM + residual, K3 LN2+gate/up GEMM+GEGLU, K4 down GEMM + residual")
    raw("; @launch kernel=k1_kernel grid=(256,1,1) block=(320,1,1) lds=159872")
    raw("; @launch kernel=k2_kernel grid=(256,1,1) block=(256,1,1) lds=131072")
    raw("; @launch kernel=k3_kernel grid=(256,1,1) block=(256,1,1) lds=163840")
    raw("; @launch kernel=k4_kernel grid=(256,1,1) block=(256,1,1) lds=81920")
    raw('.amdgcn_target "amdgcn-amd-amdhsa--gfx950"')
    raw(".text")
    gen_k1(); gen_k2(); gen_k3(); gen_k4()
    raw('.section .rodata,"a"')
    raw(".p2align 6")
    descriptor("k1_kernel", 240, 164)
    raw(".p2align 6")
    descriptor("k2_kernel", 352, 256)
    raw(".p2align 6")
    descriptor("k3_kernel", 320, 256)
    raw(".p2align 6")
    descriptor("k4_kernel", 256, 256)
    out = sys.argv[1] if len(sys.argv) > 1 else f"cdna_kernels/{NAME}.s"
    LL = [ (l + " sc1") if ("buffer_store" in l and "s[64:67]" not in l) else l for l in L]
    open(out, "w").write("\n".join(LL) + "\n")

main()
```

```python
import sys

L = []
def e(s): L.append("    " + s)
def lab(s): L.append(s + ":")
def raw(s): L.append(s)

NAME = "sequential_preLN__spectral_fnet__geglu_ffn__prompt"

WS_ABP = 0
SZ_ABP = 80 * 64 * 1024
WS_HP = 0x500000
SZ_HP = 128 * 20 * 1024
WS_HSTAT = 0x780000
SZ_HSTAT = 2048 * 8 * 8
WS_ACT = 0x800000
SZ_ACT = 128 * 48 * 1024
WS_WGU = 0xE00000
WSUM_OFF = 192 * 20 * 1024
SZ_WGU = WSUM_OFF + 192 * 4 * 64
WS_WDN = 0x1200000
SZ_WDN = 40 * 48 * 1024

INV640 = 0x3ACCCCCD
EPS = 0x3727C5AC

import os
DIAG = os.environ.get("DIAG", "0") == "1"
WS_DIAG = 0x3000000
def stamp(i):
    if DIAG:
        e(f"s_memtime s[{70+2*i}:{71+2*i}]")
        e("s_waitcnt lgkmcnt(0)")
def stamp_dump(kidx, n):
    if not DIAG: return
    e("s_waitcnt vmcnt(0)")
    stamp(n)
    e(f"s_add_u32 s64, s6, {WS_DIAG + kidx*0x40000}")
    e("s_addc_u32 s65, s7, 0")
    e("s_mov_b32 s66, 0x40000")
    e("s_mov_b32 s67, 0x20000")
    e("s_lshl_b32 s68, s2, 2")
    e("s_add_u32 s68, s68, s16")
    e("s_lshl_b32 s68, s68, 8")
    e("v_mov_b32 v0, 0")
    e("s_mov_b64 exec, 1")
    for i in range(n+1):
        e(f"v_mov_b32 v2, s{70+2*i}")
        e(f"v_mov_b32 v3, s{71+2*i}")
        e(f"buffer_store_dwordx2 v[2:3], v0, s[64:67], s68 offen offset:{i*8}")
    e("s_waitcnt vmcnt(0)")

def srd(d, lo, size, off=0):
    if off:
        e(f"s_add_u32 s{d}, s{lo}, {off}")
        e(f"s_addc_u32 s{d+1}, s{lo+1}, 0")
    else:
        e(f"s_mov_b32 s{d}, s{lo}")
        e(f"s_mov_b32 s{d+1}, s{lo+1}")
    e(f"s_mov_b32 s{d+2}, {size}")
    e(f"s_mov_b32 s{d+3}, 0x20000")

def bf16r(dst, src):
    e(f"v_cvt_pk_bf16_f32 v{dst}, v{src}, v{src}")
    e(f"v_lshlrev_b32 v{dst}, 16, v{dst}")

def vr(b, n=4): return f"v[{b}:{b+n-1}]"
def ar(b, n=4): return f"a[{b}:{b+n-1}]"

def mfma(d, a, b, c=None):
    c = d if c is None else c
    e(f"v_mfma_f32_16x16x32_bf16 {d}, {a}, {b}, {c}")

def kernel_begin(name):
    raw(f".globl {name}")
    raw(".p2align 8")
    raw(f".type {name},@function")
    lab(name)

def lane_setup():
    e("v_lshrrev_b32 v4, 6, v0")
    e("v_and_b32 v1, 63, v0")
    e("v_readfirstlane_b32 s16, v4")
    e("v_and_b32 v2, 15, v1")
    e("v_lshrrev_b32 v3, 4, v1")

def ln_stats(vsum, vsq, vm, vrd, t):
    e(f"v_mul_f32 v{vm}, s17, v{vsum}")
    e(f"v_mul_f32 v{t}, s17, v{vsq}")
    e(f"v_fma_f32 v{t}, -v{vm}, v{vm}, v{t}")
    e(f"v_max_f32 v{t}, 0, v{t}")
    bf16r(vm, vm)
    bf16r(t, t)
    e(f"v_add_f32 v{t}, s18, v{t}")
    bf16r(t, t)
    e(f"v_sqrt_f32 v{t}, v{t}")
    e("s_nop 0")
    bf16r(t, t)
    e(f"v_rcp_f32 v{vrd}, v{t}")
    e("s_nop 0")

def gen_k1():
    kernel_begin("k1_kernel")
    e("s_cmp_ge_u32 s2, 256")
    e("s_cbranch_scc1 k1_end")
    stamp(0)
    e("s_load_dwordx2 s[4:5], s[0:1], 0")
    e("s_load_dwordx2 s[8:9], s[0:1], 24")
    e("s_load_dwordx2 s[10:11], s[0:1], 32")
    e("s_load_dwordx2 s[12:13], s[0:1], 48")
    e("s_load_dwordx2 s[14:15], s[0:1], 56")
    e("s_load_dwordx2 s[60:61], s[0:1], 64")
    e("s_load_dwordx2 s[6:7], s[0:1], 88")
    e("s_load_dwordx4 s[56:59], s[0:1], 8")
    lane_setup()
    e("s_and_b32 s19, s2, 3")
    e("s_lshl_b32 s19, s19, 2")
    e("s_bfe_u32 s21, s2, 0x20003")
    e("s_add_u32 s19, s19, s21")
    e("s_lshr_b32 s22, s2, 5")
    e("s_bfe_u32 s20, s2, 0x10002")
    e("s_lshl_b32 s20, s20, 3")
    e("s_add_u32 s20, s20, s22")
    e("s_add_u32 s48, s21, s22")
    e("v_lshlrev_b32 v15, 4, v1")
    e("v_lshrrev_b32 v25, 3, v1")
    e("v_and_b32 v26, 7, v1")
    e("v_xor_b32 v26, v26, v25")
    e("v_mul_u32_u24 v25, 1280, v25")
    e("v_lshl_add_u32 v25, v26, 4, v25")
    e("s_and_b32 s21, s20, 7")
    e("s_mul_i32 s21, s21, 102400")
    e("s_and_b32 s22, s16, 1")
    e("s_mul_i32 s22, s22, 51200")
    e("s_add_u32 s21, s21, s22")
    e("s_lshr_b32 s22, s16, 1")
    e("s_lshl_b32 s22, s22, 7")
    e("s_add_u32 s21, s21, s22")
    e("v_add_u32 v4, s21, v25")
    e("s_lshl_b32 s21, s19, 7")
    e("s_lshl_b32 s22, s16, 5")
    e("s_add_u32 s21, s21, s22")
    e("s_mul_i32 s21, s21, 1280")
    e("v_add_u32 v5, s21, v25")
    for j in range(1, 4):
        e(f"v_add_u32 v{5+j}, {j*10240 - j*1024}, v5")
    e("s_mul_i32 s46, s16, 12288")
    e("s_add_u32 s46, s46, 102400")
    e("s_mul_i32 s47, s16, 5120")
    e("s_mul_i32 s49, s48, 205")
    e("s_lshr_b32 s49, s49, 10")
    e("s_mul_i32 s49, s49, 5")
    e("s_sub_u32 s49, s48, s49")
    if os.environ.get("K1NOROT"): e("s_mov_b32 s49, 0")
    for sc in range(5):
        e(f"s_lshl_b32 s{50+sc}, s49, 8")
        e("s_add_u32 s49, s49, 1")
        e("s_cmp_ge_u32 s49, 5")
        e("s_cselect_b32 s49, 0, s49")
    e("s_waitcnt lgkmcnt(0)")
    srd(24, 4, 2621440)
    e("s_cmp_lt_u32 s20, 8")
    e("s_cselect_b32 s28, s8, s10")
    e("s_cselect_b32 s29, s9, s11")
    e("s_mov_b32 s30, 819200")
    e("s_mov_b32 s31, 0x20000")
    vm = VM()
    XS = 76
    def wdma(sc):
        o = []
        for u in range(5):
            o.append(f"s_add_u32 m0, s47, {sc*20480 + u*1024}")
            o.append(f"s_add_u32 s23, s{50+sc}, {u*10240}")
            o.append("buffer_load_dwordx4 v4, s[28:31], s23 offen lds")
        vm.issue(("W", sc), 5)
        return o
    def xld(c):
        if c < 3:
            o = [f"s_add_u32 m0, s46, {(c%3)*4096}", f"s_add_u32 s22, s{50+(c>>1)}, {(c&1)*128}"]
            for j in range(4):
                o.append(f"buffer_load_dwordx4 v{5+j}, s[24:27], s22 offen offset:{j*1024} lds")
        else:
            o = [f"s_add_u32 s22, s{50+(c>>1)}, {(c&1)*128}"]
            for j in range(4):
                o.append(f"buffer_load_dwordx4 {ar(XS+(c-3)*16+j*4)}, v{5+j}, s[24:27], s22 offen offset:{j*1024}")
        vm.issue(("X", c), 4)
        return o
    for l in wdma(0) + xld(0) + xld(1): e(l)
    e(f"s_mov_b32 s17, {INV640}")
    e(f"s_mov_b32 s18, {EPS}")
    e("v_and_b32 v26, 7, v2")
    e("v_xor_b32 v26, v26, v3")
    e("v_lshlrev_b32 v11, 7, v2")
    e("v_lshl_add_u32 v11, v26, 4, v11")
    e("v_xor_b32 v12, 64, v11")
    e("v_add_u32 v13, 61440, v11")
    e("v_add_u32 v14, 61440, v12")
    e("v_add_u32 v9, s46, v11")
    e("v_add_u32 v10, s46, v12")
    srd(32, 6, SZ_ABP, WS_ABP)
    PL, PO, PA = 144, 176, 208
    e(f"v_add_u32 v{PA+8}, s46, v15")
    e("s_cmp_lt_u32 s2, 128")
    e("s_cselect_b32 s56, s56, s58")
    e("s_cselect_b32 s57, s57, s59")
    e("s_mov_b32 s58, 8388608")
    e("s_mov_b32 s59, 0x20000")
    e("s_and_b32 s21, s2, 7")
    e("s_bfe_u32 s22, s2, 0x20005")
    e("s_lshl_b32 s21, s21, 2")
    e("s_add_u32 s21, s21, s22")
    e("s_lshl_b32 s21, s21, 2")
    e("s_bfe_u32 s22, s2, 0x20003")
    e("s_add_u32 s21, s21, s22")
    e("s_lshl_b32 s21, s21, 2")
    e("s_add_u32 s21, s21, s16")
    e("s_lshl_b32 s91, s21, 14")
    e(f"v_lshlrev_b32 v{PA+10}, 7, v1")
    e("s_lshl_b32 s48, s2, 2")
    e("s_add_u32 s48, s48, s16")
    e("s_cmp_ge_u32 s2, 120")
    e("s_cbranch_scc1 k1_pdn")
    e("s_mul_i32 s49, s48, 52429")
    e("s_lshr_b32 s49, s49, 20")
    e("s_mul_i32 s92, s49, 20")
    e("s_sub_u32 s92, s48, s92")
    srd(36, 12, 1966080)
    srd(40, 14, 1966080)
    e("v_bfe_u32 v25, v1, 3, 2")
    e("v_and_b32 v26, 7, v1")
    e("v_lshrrev_b32 v27, 5, v1")
    e(f"v_mul_u32_u24 v{PA+9}, 24576, v25")
    e(f"v_lshl_add_u32 v{PA+9}, v26, 4, v{PA+9}")
    e("v_mul_u32_u24 v28, 12288, v27")
    e(f"v_add_u32 v{PA+9}, v{PA+9}, v28")
    e("s_mul_i32 s84, s92, 98304")
    e("s_lshl_b32 s85, s49, 7")
    e("s_add_u32 s84, s84, s85")
    e("s_mov_b32 s85, s84")
    e("s_mov_b32 s86, 3072")
    e("v_mul_u32_u24 v26, 1040, v26")
    e("v_lshl_add_u32 v26, v25, 8, v26")
    e(f"v_lshl_add_u32 v{PA}, v27, 3, v26")
    e("s_mov_b32 s93, 64")
    e("s_mov_b32 s94, 32")
    e("s_mul_i32 s87, s49, 163840")
    e("s_lshl_b32 s92, s92, 10")
    e("s_add_u32 s87, s87, s92")
    e(f"s_add_u32 s87, s87, {WS_WGU}")
    e("s_mov_b32 s88, 20480")
    e("s_branch k1_pk")
    lab("k1_pdn")
    e("s_sub_u32 s48, s48, 480")
    e("s_cmp_ge_u32 s48, 240")
    e("s_cselect_b32 s49, 240, 0")
    e("s_sub_u32 s48, s48, s49")
    e("s_cmp_ge_u32 s48, 240")
    e("s_cselect_b32 s49, 240, 0")
    e("s_sub_u32 s48, s48, s49")
    e("s_mul_i32 s49, s48, 43691")
    e("s_lshr_b32 s49, s49, 21")
    e("s_mul_i32 s92, s49, 48")
    e("s_sub_u32 s92, s48, s92")
    srd(36, 60, 1966080)
    srd(40, 60, 1966080)
    e(f"v_mul_u32_u24 v{PA+9}, 10240, v3")
    e(f"v_lshl_add_u32 v{PA+9}, v2, 4, v{PA+9}")
    e("s_mul_i32 s84, s92, 40960")
    e("s_lshl_b32 s85, s49, 8")
    e("s_add_u32 s84, s84, s85")
    e("s_add_u32 s85, s84, 5120")
    e("s_mov_b32 s86, 1280")
    e("v_lshrrev_b32 v26, 1, v2")
    e("v_mul_u32_u24 v26, 1040, v26")
    e("v_and_b32 v28, 1, v2")
    e("v_lshlrev_b32 v28, 7, v28")
    e("v_lshl_add_u32 v28, v3, 8, v28")
    e(f"v_add_u32 v{PA}, v28, v26")
    e("s_mov_b32 s93, 32")
    e("s_mov_b32 s94, 8")
    e("s_mul_i32 s87, s49, 393216")
    e("s_lshl_b32 s92, s92, 10")
    e("s_add_u32 s87, s87, s92")
    e(f"s_add_u32 s87, s87, {WS_WDN}")
    e("s_mov_b32 s88, 49152")
    lab("k1_pk")
    e("s_mul_i32 s21, s16, 8320")
    e(f"v_add_u32 v{PA}, s21, v{PA}")
    for k in range(1, 4):
        e(f"v_add_u32 v{PA+k}, s93, v{PA+k-1}")
    for k in range(4):
        e(f"v_add_u32 v{PA+4+k}, s94, v{PA+k}")
    def pload(which):
        o = []
        for j in range(4):
            sr = 84 + which
            o.append(f"buffer_load_dwordx4 {vr(PL+(which*4+j)*4)}, v{PA+9}, s[{36+4*which}:{39+4*which}], s{sr} offen")
            o.append(f"s_add_u32 s{sr}, s{sr}, s86")
        vm.issue("P", 4)
        return o
    def touch():
        if os.environ.get("NOPF"): return []
        vm.issue("T", 1)
        return [f"buffer_load_dword v{PA+11}, v{PA+10}, s[56:59], s91 offen", "s_add_u32 s91, s91, 8192"]
    e("s_mov_b32 s89, 0x05040100")
    e("s_mov_b32 s90, 0x07060302")
    e("s_mov_b32 s64, s6")
    e("s_mov_b32 s65, s7")
    e(f"s_mov_b32 s66, {WS_WDN + SZ_WDN}")
    e("s_mov_b32 s67, 0x20000")
    e("s_cmp_ge_u32 s2, 180")
    e("s_cselect_b64 vcc, -1, 0")
    e("s_mul_i32 s21, s16, 8320")
    e(f"v_add_u32 v{PA+12}, s21, v15")
    for a in range(76):
        e(f"v_accvgpr_write_b32 a{a}, 0")
    ONES = 16
    for r in range(4):
        e(f"v_mov_b32 v{ONES+r}, 0x3f803f80")
    FB = 32
    def XF(b, st, h): return FB + b * 56 + (st * 2 + h) * 4
    def WF(b, i, h): return FB + b * 56 + 16 + (i * 2 + h) * 4
    def fread(c):
        o = []
        b = c & 1
        for h in range(2):
            for st in range(2):
                o.append(f"ds_read_b128 {vr(XF(b,st,h))}, v{9+h} offset:{(c%3)*4096 + st*2048}")
            for i in range(5):
                off = c * 10240 + i * 2048
                if off < 61440:
                    o.append(f"ds_read_b128 {vr(WF(b,i,h))}, v{11+h} offset:{off}")
                else:
                    o.append(f"ds_read_b128 {vr(WF(b,i,h))}, v{13+h} offset:{off-61440}")
        return o
    stamp(1)
    e(f"s_waitcnt vmcnt({vm.younger([('W',0),('X',0)])})")
    e("s_barrier")
    stamp(2)
    for l in fread(0): e(l)
    for c in range(10):
        b = c & 1
        need = []
        if c + 1 <= 2: need.append(("X", c + 1))
        if c + 1 < 10: need.append(("W", (c + 1) >> 1))
        if 3 <= c + 2 <= 9: need.append(("X", c + 2))
        if need and c < 8:
            e(f"s_waitcnt vmcnt({vm.younger(need)}) lgkmcnt(0)")
        else:
            e("s_waitcnt lgkmcnt(0)")
        if c in (1, 3, 5, 7): e("s_barrier")
        NM = 28
        slots = [[] for _ in range(NM)]
        if c + 1 < 10:
            for j, l in enumerate(fread(c + 1)):
                slots[j].append(l)
        if 3 <= c + 2 <= 9:
            for j in range(4):
                slots[14 + j].append(f"ds_write_b128 v{PA+8}, {ar(XS+(c-1)*16+j*4)} offset:{((c+2)%3)*4096 + j*1024}")
        lst = []
        if c < 4: lst = wdma(c + 1) + xld(2 * c + 2) + xld(2 * c + 3)
        if c < 2: lst += pload(c)
        elif c < 4: lst += touch()
        pk = []
        if c == 5:
            for which in range(2):
                for ee in range(8):
                    o = PO + (which*8+ee)*2
                    g = []
                    for t in range(2):
                        g.append(f"v_perm_b32 v{o+t}, v{PL+(which*4+2*t+1)*4+(ee>>1)}, v{PL+(which*4+2*t)*4+(ee>>1)}, s{89+(ee&1)}")
                    g.append(f"ds_write_b64 v{PA+which*4+(ee>>1)}, v[{o}:{o+1}] offset:{(ee&1)*16}")
                    pk.append(g)
            pk = [pk[2*i] + pk[2*i+1] for i in range(8)]
        if c == 6:
            pk = [[f"ds_read_b128 {vr(PL+g*4)}, v{PA+12} offset:{g*1040}"] for g in range(8)]
        if c == 7:
            pk = [[f"buffer_store_dwordx4 {vr(PL+g*4)}, v15, s[64:67], s87 offen sc1", "s_add_u32 s87, s87, s88"] for g in range(8)]
        for g, gl in enumerate(pk):
            slots[18 + g] += [f"s_cbranch_vccnz k1_np{c}_{g}"] + gl + [f"k1_np{c}_{g}:"]
        groups = []; grp = []
        for l in lst:
            if grp and any(x.startswith("buffer") for x in grp) and not (l.startswith("s_add_u32 s8") or l.startswith("s_add_u32 s9")):
                groups.append(grp); grp = []
            grp.append(l)
        if grp: groups.append(grp)
        for g, gl in enumerate(groups):
            slots[g] = gl + slots[g]
        ml = []
        for h in range(2):
            for i in range(5):
                for st in range(2):
                    ml.append((ar((st*5+i)*4), vr(XF(b,st,h)), vr(WF(b,i,h))))
            for st in range(2):
                ml.append((ar(40+4*st), vr(XF(b,st,h)), vr(ONES)))
                ml.append((ar(48+4*st), vr(XF(b,st,h)), vr(XF(b,st,h))))
        for k, m in enumerate(ml):
            mfma(*m)
            for l in slots[k]: e(l)
        for wv in range(4):
            e(f"s_cmp_lg_u32 s16, {wv}")
            e(f"s_cbranch_scc1 k1_ws{c}_{wv}")
            for i in range(5):
                for h in range(2):
                    if (c * 2 + i * 2 + h) % 4 == wv:
                        mfma(ar(56+4*i), vr(ONES), vr(WF(b,i,h)))
            lab(f"k1_ws{c}_{wv}")
    stamp(3)
    WX = 151552
    e("s_nop 7")
    e("s_nop 7")
    for i in range(5):
        e(f"v_accvgpr_read_b32 v{20+i}, a{56+4*i}")
    e("v_lshlrev_b32 v25, 2, v2")
    e("s_mul_i32 s21, s16, 320")
    e(f"s_add_u32 s21, s21, {WX}")
    e("v_add_u32 v26, s21, v25")
    for i in range(5):
        e(f"ds_write_b32 v26, v{20+i} offset:{i*64}")
    e("v_mul_u32_u24 v12, 80, v3")
    for st in range(2):
        for r in range(4):
            e(f"v_accvgpr_read_b32 v{32+st*4+r}, a{40+4*st+r}")
            e(f"v_accvgpr_read_b32 v{40+st*4+r}, a{48+4*st+r}")
    e("s_nop 1")
    for st in range(2):
        for r in range(4):
            e(f"ds_bpermute_b32 v{40+st*4+r}, v12, v{40+st*4+r} offset:{4*r}")
    e(f"v_add_u32 v26, {WX}, v25")
    e("s_waitcnt lgkmcnt(0)")
    e("s_barrier")
    for wv in range(4):
        for i in range(5):
            e(f"ds_read_b32 v{124+wv*5+i}, v26 offset:{wv*320 + i*64}")
    for st in range(2):
        for r in range(4):
            ln_stats(32+st*4+r, 40+st*4+r, 52+st*4+r, 60+st*4+r, 48)
    e("s_waitcnt lgkmcnt(0)")
    for i in range(5):
        e(f"v_add_f32 v{20+i}, v{124+i}, v{129+i}")
        e(f"v_add_f32 v{124+i}, v{134+i}, v{139+i}")
        e(f"v_add_f32 v{20+i}, v{20+i}, v{124+i}")
    e("v_and_b32 v26, 1, v3")
    e("v_lshlrev_b32 v26, 9, v26")
    e("v_lshrrev_b32 v27, 1, v3")
    e("v_lshl_add_u32 v26, v27, 8, v26")
    e("v_lshl_add_u32 v26, v2, 4, v26")
    e("s_mul_i32 s21, s20, 320")
    e("s_lshl_b32 s22, s19, 2")
    e("s_add_u32 s21, s21, s22")
    e("s_add_u32 s21, s21, s16")
    e("s_lshl_b32 s21, s21, 10")
    for i in range(5):
        T = 72 + (i & 1) * 16
        O = 104 + i * 4
        for st in range(2):
            for r in range(4):
                e(f"v_accvgpr_read_b32 v{T+st*4+r}, a{(st*5+i)*4+r}")
        for st in range(2):
            for r in range(4):
                e(f"v_fma_f32 v{T+st*4+r}, -v{52+st*4+r}, v{20+i}, v{T+st*4+r}")
        for st in range(2):
            for r in range(4):
                e(f"v_mul_f32 v{T+st*4+r}, v{T+st*4+r}, v{60+st*4+r}")
        for st in range(2):
            e(f"v_cvt_pk_bf16_f32 v{O+2*st}, v{T+st*4}, v{T+st*4+1}")
            e(f"v_cvt_pk_bf16_f32 v{O+2*st+1}, v{T+st*4+2}, v{T+st*4+3}")
        e("s_nop 1")
        e(f"v_permlane16_swap_b32 v{O}, v{O+2}")
        e(f"v_permlane16_swap_b32 v{O+1}, v{O+3}")
        e(f"s_add_u32 s23, s21, {i*65536}")
        e("s_nop 1")
        e(f"buffer_store_dwordx4 {vr(O)}, v26, s[32:35], s23 offen")
        vm.issue("S", 1)
    stamp(4)
    lab("k1_fin")
    stamp(5)
    stamp_dump(0, 6)
    lab("k1_end")
    e("s_endpgm")

ACC = 176
BUF = 32
def bufA(b, i): return BUF + b * 36 + i * 4
def bufB(b, n): return BUF + b * 36 + 20 + n * 4
def acc(i, n): return ACC + (i * 4 + n) * 4

def splitk_core(nsteps, srdA, srdB, shA, shB, vA, vB, mask):
    def addr():
        e("s_add_u32 s44, s40, s41")
        e(f"s_lshl_b32 s42, s44, {shA}")
        e(f"s_lshl_b32 s43, s44, {shB}")
        e("s_add_u32 s40, s40, 1")
        if mask:
            e(f"s_and_b32 s40, s40, {nsteps-1}")
        else:
            e(f"s_cmp_ge_u32 s40, {nsteps}")
            e("s_cselect_b32 s40, 0, s40")
    def loads(b):
        out = []
        for n in range(4):
            out.append(f"buffer_load_dwordx4 {vr(bufB(b,n))}, v{vB+n}, s[{srdB}:{srdB+3}], s43 offen")
        for i in range(5):
            out.append(f"buffer_load_dwordx4 {vr(bufA(b,i))}, v{vA+i}, s[{srdA}:{srdA+3}], s42 offen")
        return out
    for it in range(3):
        addr()
        for l in loads(it): e(l)
    for a in range(80):
        e(f"v_mov_b32 v{ACC+a}, 0")
    for it in range(nsteps):
        b = it % 4
        rem = min(nsteps - 1 - it, 2)
        e(f"s_waitcnt vmcnt({9*rem})")
        ld = []
        if it + 3 < nsteps:
            addr()
            ld = loads((it + 3) % 4)
        k = 0
        for i in range(5):
            for n in range(4):
                mfma(vr(acc(i,n)), vr(bufA(b,i)), vr(bufB(b,n)))
                k += 1
                if k % 2 == 0 and ld:
                    e(ld.pop(0))
        assert not ld

def splitk_exchange():
    e("s_nop 7")
    e("s_nop 7")
    e("s_mul_i32 s44, s16, 5120")
    e("v_add_u32 v9, s44, v8")
    e("v_add_u32 v10, 61440, v9")
    for n in range(4):
        for i in range(5):
            if n < 3:
                e(f"ds_write_b128 v9, {vr(acc(i,n))} offset:{(n*20+i)*1024}")
            else:
                e(f"ds_write_b128 v10, {vr(acc(i,n))} offset:{i*1024}")
    e("s_mul_i32 s44, s16, 20480")
    e("v_add_u32 v9, s44, v8")
    e("s_waitcnt lgkmcnt(0)")
    e("s_barrier")
    for src in range(4):
        for i in range(5):
            e(f"ds_read_b128 {vr(BUF+(src*5+i)*4)}, v9 offset:{(src*5+i)*1024}")


def hp_addr(vdst, s_st, s_d16base, sdst_list):
    e(f"v_lshrrev_b32 v{vdst}, 1, v3")
    e(f"v_lshlrev_b32 v{vdst}, 8, v{vdst}")
    e(f"v_lshl_add_u32 v{vdst}, v2, 4, v{vdst}")
    e("v_and_b32 v10, 1, v3")
    e(f"v_lshl_add_u32 v{vdst}, v10, 3, v{vdst}")
    e(f"s_mul_i32 s44, s{s_st}, 20480")
    for i in range(5):
        e(f"s_add_u32 s45, s{s_d16base}, {i}")
        e(f"s_lshl_b32 s45, s45, 9")
        e(f"s_add_u32 s{sdst_list[i]}, s44, s45")

def gen_k2():
    ROT = os.environ.get("K2ROT", "0") == "1"
    kernel_begin("k2_kernel")
    e("s_cmp_ge_u32 s2, 256")
    e("s_cbranch_scc1 k2_end")
    stamp(0)
    e("s_load_dwordx2 s[4:5], s[0:1], 0")
    e("s_load_dwordx2 s[8:9], s[0:1], 8")
    e("s_load_dwordx2 s[10:11], s[0:1], 16")
    e("s_load_dwordx2 s[6:7], s[0:1], 88")
    lane_setup()
    e("s_and_b32 s19, s2, 7")
    e("s_lshr_b32 s20, s2, 3")
    e("s_lshr_b32 s21, s20, 3")
    e("s_lshl_b32 s19, s19, 2")
    e("s_add_u32 s19, s19, s21")
    e("s_and_b32 s20, s20, 7")
    e("v_lshlrev_b32 v8, 4, v1")
    VC, VA, VB0, VB1 = 16, 24, 29, 30
    e("v_lshrrev_b32 v4, 3, v1")
    e("v_and_b32 v5, 7, v1")
    e("v_xor_b32 v5, v5, v4")
    e("v_lshlrev_b32 v4, 12, v4")
    e("v_lshl_add_u32 v4, v5, 4, v4")
    e("s_lshl_b32 s22, s19, 18")
    if os.environ.get("XC"): e("s_mov_b32 s22, 0")
    e(f"v_add_u32 v{VC}, s22, v4")
    for j in range(1, 8):
        e(f"v_add_u32 v{VC+j}, {j*32768 - (j%4)*1024}, v{VC}")
    e("s_lshr_b32 s22, s16, 1")
    e("s_mul_i32 s22, s22, 40")
    e("s_mul_i32 s23, s20, 5")
    if os.environ.get("XA"): e("s_mov_b32 s23, 0")
    e("s_add_u32 s22, s22, s23")
    e("s_lshl_b32 s22, s22, 16")
    e(f"v_add_u32 v{VA}, s22, v8")
    for i in range(1, 5):
        e(f"v_add_u32 v{VA+i}, {i*65536}, v{VA}")
    e("s_lshl_b32 s46, s16, 15")
    e("v_and_b32 v5, 7, v2")
    e("v_xor_b32 v5, v5, v3")
    e("v_lshlrev_b32 v4, 7, v2")
    e("v_lshl_add_u32 v4, v5, 4, v4")
    e(f"v_add_u32 v{VB0}, s46, v4")
    e(f"v_xor_b32 v{VB1}, 64, v{VB0}")
    e("s_and_b32 s41, s16, 1")
    e("s_lshl_b32 s47, s41, 11")
    e("s_lshl_b32 s41, s41, 15")
    if ROT:
        e("s_mul_i32 s40, s2, 5")
        e("s_lshr_b32 s40, s40, 2")
        e("s_and_b32 s40, s40, 15")
    else:
        e("s_mov_b32 s40, 0")
    e("s_lshl_b32 s21, s19, 6")
    e("s_lshl_b32 s22, s16, 4")
    e("s_add_u32 s21, s21, s22")
    e("s_mul_i32 s22, s21, 1280")
    e("s_mul_i32 s23, s20, 160")
    e("s_add_u32 s22, s22, s23")
    e("v_mul_u32_u24 v11, 1280, v2")
    e("v_lshl_add_u32 v11, v3, 3, v11")
    e("v_add_u32 v11, s22, v11")
    e("s_waitcnt lgkmcnt(0)")
    srd(24, 4, 2621440)
    e("s_cmp_lt_u32 s16, 2")
    e("s_cselect_b32 s28, s8, s10")
    e("s_cselect_b32 s29, s9, s11")
    e("s_mov_b32 s30, 8388608")
    e("s_mov_b32 s31, 0x20000")
    srd(32, 6, SZ_ABP, WS_ABP)
    stamp(1)
    AB = 32
    BB = 192
    def A(b, h, i): return AB + (b * 10 + h * 5 + i) * 4
    def B(b, h, n): return BB + (b * 8 + h * 4 + n) * 4
    def stage_issue(b):
        o = []
        o.append("s_lshl_b32 s42, s40, 7")
        o.append("s_add_u32 s42, s42, s47")
        o.append(f"s_add_u32 m0, s46, {b*8192}")
        o.append("s_lshl_b32 s43, s40, 11")
        for j in range(4):
            o.append(f"buffer_load_dwordx4 v{VC+j}, s[28:31], s42 offen offset:{j*1024} lds")
        o.append(f"s_add_u32 m0, s46, {b*8192+4096}")
        o.append("s_add_u32 s43, s43, s41")
        for j in range(4, 8):
            o.append(f"buffer_load_dwordx4 v{VC+j}, s[28:31], s42 offen offset:{(j-4)*1024} lds")
        for h in range(2):
            for i in range(5):
                o.append(f"buffer_load_dwordx4 {vr(A(b,h,i))}, v{VA+i}, s[32:35], s43 offen offset:{h*1024}")
        o.append("s_add_u32 s40, s40, 1")
        o.append("s_and_b32 s40, s40, 15")
        return o
    def bread(st):
        o = []
        for h in range(2):
            for n in range(4):
                o.append(f"ds_read_b128 {vr(B(st&1,h,n))}, v{VB0+h} offset:{(st%4)*8192 + n*2048}")
        return o
    for st in range(3):
        for l in stage_issue(st): e(l)
    for i in range(5):
        e(f"buffer_load_dwordx2 a[{80+2*i}:{81+2*i}], v11, s[24:27], 0 offen offset:{i*32}")
    srd(48, 6, 192 * 20 * 1024, WS_WGU)
    srd(52, 6, SZ_WDN, WS_WDN)
    e("s_lshl_b32 s22, s2, 2")
    e("s_add_u32 s22, s22, s16")
    e("s_mul_i32 s23, s22, 3840")
    e("s_mul_i32 s22, s22, 1920")
    e("v_lshlrev_b32 v12, 6, v1")
    e("v_lshlrev_b32 v13, 5, v1")
    e("buffer_load_dword a90, v12, s[48:51], s23 offen")
    e("buffer_load_dword a91, v13, s[52:55], s22 offen")
    srd(48, 6, SZ_HP, WS_HP)
    srd(52, 6, SZ_HSTAT, WS_HSTAT)
    for a in range(80):
        e(f"v_accvgpr_write_b32 a{a}, 0")
    e("s_waitcnt vmcnt(43)")
    for l in bread(0): e(l)
    NS = 16
    for st in range(NS):
        b = st % 4
        if st + 1 < NS:
            allowed = 18 if st + 2 < NS else 0
            if os.environ.get("NOA") and st >= 2 and allowed: allowed = 8
            if os.environ.get("NOC") and st >= 2 and allowed: allowed = 10
            if st < 1: allowed += 7
            e(f"s_waitcnt vmcnt({allowed}) lgkmcnt(0)")
        else:
            e("s_waitcnt lgkmcnt(0)")
        if os.environ.get("K2ST") and st in (0,1,2,3,4,6,8,12): stamp(7 + (0,1,2,3,4,6,8,12).index(st))
        slots = [[] for _ in range(40)]
        if st + 1 < NS:
            for j, l in enumerate(bread(st + 1)):
                slots[1 + 2*j].append(l)
        if st + 3 < NS:
            grp = []; groups = []
            for l in stage_issue((st + 3) % 4):
                grp.append(l)
                if l.startswith("buffer"):
                    groups.append(grp); grp = []
            groups[-1] += grp
            for g, gl in enumerate(groups):
                slots[(g * 40) // len(groups)] += gl
        k = 0
        for h in range(2):
            for i in range(5):
                for n in range(4):
                    if not os.environ.get("NOMFMA"): mfma(ar((i*4+n)*4), vr(A(b,h,i)), vr(B(st&1,h,n)))
                    for l in slots[k]:
                        if os.environ.get("NODS") and l.startswith("ds_"): continue
                        if os.environ.get("NOA") and l.startswith("buffer") and not l.endswith("lds"): continue
                        if os.environ.get("NOC") and l.startswith("buffer") and l.endswith("lds"): continue
                        e(l)
                    k += 1
    stamp(2)
    stamp(3)
    e("s_nop 7")
    e("v_add_u32 v9, s46, v8")
    for n in range(4):
        for i in range(5):
            e(f"ds_write_b128 v9, {ar((i*4+n)*4)} offset:{(n*5+i)*1024}")
    e("s_mul_i32 s44, s16, 5120")
    e("v_add_u32 v9, s44, v8")
    e("v_add_u32 v10, 65536, v9")
    XR = 112
    for i in range(10):
        e(f"v_accvgpr_read_b32 v{XR+i}, a{80+i}")
    e("s_waitcnt lgkmcnt(0)")
    e("s_barrier")
    for src in range(4):
        for i in range(5):
            e(f"ds_read_b128 {vr(BUF+(src*5+i)*4)}, v{9 + (src>>1)} offset:{(src&1)*32768 + i*1024}")
    stamp(4)
    e("s_lshl_b32 s22, s19, 2")
    e("s_add_u32 s22, s22, s16")
    e("s_mul_i32 s23, s20, 5")
    hp_addr(11, 22, 23, [61, 62, 63, 64, 65])
    e("v_mov_b32 v17, 0")
    e("v_mov_b32 v18, 0")
    e("s_waitcnt vmcnt(0) lgkmcnt(0)")
    T = 124
    for i in range(5):
        def S(src, r): return BUF + (src*5+i)*4 + r
        for r in range(4):
            e(f"v_add_f32 v{T+r}, v{S(0,r)}, v{S(1,r)}")
            e(f"v_add_f32 v{T+4+r}, v{S(2,r)}, v{S(3,r)}")
        for r in range(4):
            bf16r(T+r, T+r)
            bf16r(T+4+r, T+4+r)
        for r in range(4):
            e(f"v_sub_f32 v{T+r}, v{T+r}, v{T+4+r}")
        for r in range(4):
            bf16r(T+r, T+r)
        e(f"v_lshlrev_b32 v{T+4}, 16, v{XR+2*i}")
        e(f"v_and_b32 v{T+5}, 0xffff0000, v{XR+2*i}")
        e(f"v_lshlrev_b32 v{T+6}, 16, v{XR+2*i+1}")
        e(f"v_and_b32 v{T+7}, 0xffff0000, v{XR+2*i+1}")
        for r in range(4):
            e(f"v_add_f32 v{T+r}, v{T+r}, v{T+4+r}")
        o = 136 + 2*i
        e(f"v_cvt_pk_bf16_f32 v{o}, v{T}, v{T+1}")
        e(f"v_cvt_pk_bf16_f32 v{o+1}, v{T+2}, v{T+3}")
        e(f"buffer_store_dwordx2 v[{o}:{o+1}], v11, s[48:51], s{61+i} offen")
        e(f"v_lshlrev_b32 v{T}, 16, v{o}")
        e(f"v_and_b32 v{T+1}, 0xffff0000, v{o}")
        e(f"v_lshlrev_b32 v{T+2}, 16, v{o+1}")
        e(f"v_and_b32 v{T+3}, 0xffff0000, v{o+1}")
        for r in range(4):
            e(f"v_add_f32 v17, v17, v{T+r}")
            e(f"v_fmac_f32 v18, v{T+r}, v{T+r}")
    e("v_xor_b32 v10, 16, v1")
    e("v_lshlrev_b32 v10, 2, v10")
    e("ds_bpermute_b32 v19, v10, v17")
    e("ds_bpermute_b32 v28, v10, v18")
    e("s_waitcnt lgkmcnt(0)")
    e("v_add_f32 v17, v17, v19")
    e("v_add_f32 v18, v18, v28")
    e("v_xor_b32 v10, 32, v1")
    e("v_lshlrev_b32 v10, 2, v10")
    e("ds_bpermute_b32 v19, v10, v17")
    e("ds_bpermute_b32 v28, v10, v18")
    e("s_waitcnt lgkmcnt(0)")
    e("v_add_f32 v30, v17, v19")
    e("v_add_f32 v31, v18, v28")
    e("s_lshl_b32 s22, s21, 3")
    e("s_lshl_b32 s23, s20, 14")
    e("s_add_u32 s22, s22, s23")
    e("v_lshlrev_b32 v10, 3, v2")
    e("s_mov_b32 exec_lo, 0x0000ffff")
    e("s_mov_b32 exec_hi, 0")
    e("buffer_store_dwordx2 v[30:31], v10, s[52:55], s22 offen")
    e("s_mov_b64 exec, -1")
    lab("k2_fin")
    stamp(5)
    stamp_dump(1, 6)
    if os.environ.get("K2ST"):
        for i in range(7, 15):
            e(f"v_mov_b32 v2, s{70+2*i}")
            e(f"v_mov_b32 v3, s{71+2*i}")
            e(f"buffer_store_dwordx2 v[2:3], v0, s[64:67], s68 offen offset:{i*8}")
        e("s_waitcnt vmcnt(0)")
    lab("k2_end")
    e("s_endpgm")

def gen_k4():
    kernel_begin("k4_kernel")
    e("s_cmp_ge_u32 s2, 256")
    e("s_cbranch_scc1 k4_end")
    stamp(0)
    e("s_load_dwordx2 s[4:5], s[0:1], 72")
    e("s_load_dwordx2 s[6:7], s[0:1], 88")
    lane_setup()
    e("s_and_b32 s19, s2, 7")
    e("s_lshr_b32 s20, s2, 3")
    e("s_lshr_b32 s21, s20, 3")
    e("s_lshl_b32 s19, s19, 2")
    e("s_add_u32 s19, s19, s21")
    e("s_and_b32 s20, s20, 7")
    e("v_lshlrev_b32 v8, 4, v1")
    e("s_mul_i32 s22, s19, 196608")
    e("v_add_u32 v4, s22, v8")
    for n in range(1, 4):
        e(f"v_add_u32 v{4+n}, {n*49152}, v4")
    e("s_mul_i32 s22, s20, 245760")
    e("v_add_u32 v12, s22, v8")
    for i in range(1, 5):
        e(f"v_add_u32 v{12+i}, {i*49152}, v12")
    e("s_mul_i32 s41, s16, 12")
    e("s_lshr_b32 s40, s2, 3")
    e("s_mul_i32 s44, s40, 43691")
    e("s_lshr_b32 s44, s44, 19")
    e("s_mul_i32 s44, s44, 12")
    e("s_sub_u32 s40, s40, s44")
    e("s_waitcnt lgkmcnt(0)")
    srd(28, 6, SZ_ACT, WS_ACT)
    srd(32, 6, SZ_WDN, WS_WDN)
    NSL, AH = 8, 7
    def slot(b, k):
        if b < 6: return vr(32 + b * 36 + k * 4)
        return ar(80 + (b - 6) * 36 + k * 4)
    vm = VM()
    def issue(t):
        o = ["s_add_u32 s44, s40, s41", "s_lshl_b32 s42, s44, 10", "s_add_u32 s40, s40, 1",
             "s_cmp_ge_u32 s40, 12", "s_cselect_b32 s40, 0, s40"]
        b = t % NSL
        for n in range(4):
            o.append(f"buffer_load_dwordx4 {slot(b,5+n)}, v{4+n}, s[28:31], s42 offen")
        for i in range(5):
            o.append(f"buffer_load_dwordx4 {slot(b,i)}, v{12+i}, s[32:35], s42 offen")
        vm.issue(("S", t), 9)
        return o
    for t in range(AH):
        for l in issue(t): e(l)
    stamp(1)
    srd(24, 4, 2621440)
    srd(48, 6, SZ_HP, WS_HP)
    for a in range(80):
        e(f"v_accvgpr_write_b32 a{a}, 0")
    e("v_lshrrev_b32 v18, 2, v1")
    e("v_and_b32 v19, 3, v1")
    e("s_lshl_b32 s22, s19, 2")
    e("s_add_u32 s22, s22, s16")
    e("s_mul_i32 s23, s22, 20480")
    e("s_mul_i32 s45, s20, 2560")
    e("s_add_u32 s45, s45, s23")
    e("v_lshlrev_b32 v20, 4, v18")
    e("v_lshl_add_u32 v20, v19, 8, v20")
    e("v_and_b32 v21, 1, v1")
    e("v_lshlrev_b32 v22, 4, v18")
    e("v_lshl_add_u32 v21, v21, 8, v22")
    e("s_mul_i32 s46, s20, 160")
    e("s_add_u32 s46, s46, s23")
    e("v_mul_u32_u24 v22, 1280, v18")
    e("v_lshl_add_u32 v22, v19, 4, v22")
    if os.environ.get("OT"):
        e("buffer_load_dword v26, v22, s[24:27], s46 offen")
        vm.issue("O", 1)
    e("s_mul_i32 s47, s16, 23040")
    e("v_mul_u32_u24 v23, 288, v3")
    e("v_lshl_add_u32 v23, v2, 4, v23")
    e("v_add_u32 v23, s47, v23")
    e("s_mul_i32 s47, s16, 5760")
    e("v_mul_u32_u24 v24, 576, v19")
    e("v_lshl_add_u32 v24, v18, 4, v24")
    e("v_add_u32 v24, s47, v24")
    e("v_add_u32 v25, 46080, v24")
    HR = 152
    for t in range(12):
        b = t % NSL
        e(f"s_waitcnt vmcnt({vm.younger([('S', t)])})")
        ld = []
        if t + AH < 12:
            ld = issue(t + AH)
        elif t == 12 - AH:
            ld = [f"buffer_load_dwordx4 {ar(HR)}, v20, s[48:51], s45 offen",
                  f"buffer_load_dwordx4 {ar(HR+4)}, v20, s[48:51], s45 offen offset:1024",
                  f"buffer_load_dwordx4 {ar(HR+8)}, v21, s[48:51], s45 offen offset:2048"]
            vm.issue("H", 3)
        grp = []; groups = []
        for l in ld:
            grp.append(l)
            if l.startswith("buffer"):
                groups.append(grp); grp = []
        k = 0
        for i in range(5):
            for n in range(4):
                mfma(ar((i*4+n)*4), slot(b, i), slot(b, 5+n))
                k += 1
                if k % 2 == 0 and groups:
                    for l in groups.pop(0): e(l)
        assert not groups
    stamp(2)
    stamp(3)
    e("s_nop 7")
    e("s_nop 7")
    for n in range(4):
        for i in range(5):
            e(f"ds_write_b128 v23, {ar((i*4+n)*4)} offset:{(n*5+i)*1152}")
    XR = 128
    e("s_waitcnt vmcnt(0)")
    for r in range(12):
        e(f"v_accvgpr_read_b32 v{XR+r}, a{HR+r}")
    e("s_waitcnt lgkmcnt(0)")
    e("s_barrier")
    def S(src, j, hf): return 32 + ((j * 4 + src) * 2 + hf) * 4
    for j in range(3):
        for src in range(4):
            for hf in range(2):
                e(f"ds_read_b128 {vr(S(src,j,hf))}, v{24 + (src>>1)} offset:{(src&1)*23040 + j*2304 + hf*288}")
    stamp(4)
    for j in range(3):
        e(f"s_waitcnt lgkmcnt({min(15,(2-j)*8)})")
        T = 144 + j * 16
        for hf in range(2):
            for p in (0, 2):
                e(f"v_pk_add_f32 v[{T+hf*4+p}:{T+hf*4+p+1}], v[{S(0,j,hf)+p}:{S(0,j,hf)+p+1}], v[{S(1,j,hf)+p}:{S(1,j,hf)+p+1}]")
                e(f"v_pk_add_f32 v[{T+8+hf*4+p}:{T+8+hf*4+p+1}], v[{S(2,j,hf)+p}:{S(2,j,hf)+p+1}], v[{S(3,j,hf)+p}:{S(3,j,hf)+p+1}]")
        for p in range(0, 8, 2):
            e(f"v_pk_add_f32 v[{T+p}:{T+p+1}], v[{T+p}:{T+p+1}], v[{T+8+p}:{T+8+p+1}]")
        for p in range(4):
            e(f"v_cvt_pk_bf16_f32 v{T+8+p}, v{T+2*p}, v{T+2*p+1}")
        for p in range(4):
            e(f"v_lshlrev_b32 v{T+2*p}, 16, v{T+8+p}")
            e(f"v_and_b32 v{T+2*p+1}, 0xffff0000, v{T+8+p}")
        for p in range(4):
            e(f"v_lshlrev_b32 v{T+8+2*p}, 16, v{XR+4*j+p}")
            e(f"v_and_b32 v{T+8+2*p+1}, 0xffff0000, v{XR+4*j+p}")
        for p in range(0, 8, 2):
            e(f"v_pk_add_f32 v[{T+p}:{T+p+1}], v[{T+p}:{T+p+1}], v[{T+8+p}:{T+8+p+1}]")
        O = 192 + 4 * j
        for p in range(4):
            e(f"v_cvt_pk_bf16_f32 v{O+p}, v{T+2*p}, v{T+2*p+1}")
        if j == 2:
            e("s_mov_b32 exec_lo, 0x33333333")
            e("s_mov_b32 exec_hi, 0x33333333")
        e(f"buffer_store_dwordx4 {vr(O)}, v22, s[24:27], s46 offen offset:{j*64}")
    e("s_mov_b64 exec, -1")
    stamp(5)
    stamp_dump(3, 6)
    lab("k4_end")
    e("s_endpgm")

class VM:
    def __init__(self): self.q = []
    def issue(self, tag, n=1): self.q += [tag] * n
    def younger(self, tags):
        last = max(i for i, t in enumerate(self.q) if t in tags)
        return min(63, len(self.q) - 1 - last)

def gen_k3():
    kernel_begin("k3_kernel")
    e("s_cmp_ge_u32 s2, 256")
    e("s_cbranch_scc1 k3_end")
    stamp(0)
    e("s_load_dwordx2 s[6:7], s[0:1], 88")
    lane_setup()
    e("s_and_b32 s19, s2, 7")
    e("s_lshr_b32 s20, s2, 3")
    e("s_and_b32 s21, s20, 1")
    e("s_lshl_b32 s19, s19, 1")
    e("s_add_u32 s19, s19, s21")
    e("s_lshr_b32 s20, s20, 1")
    e(f"s_mov_b32 s17, {INV640}")
    e(f"s_mov_b32 s18, {EPS}")
    e("s_mov_b32 s62, 0x3f803f80")
    e("v_lshlrev_b32 v8, 4, v1")
    e("s_mul_i32 s21, s20, 12")
    e("s_mul_i32 s23, s16, 3")
    e("s_add_u32 s21, s21, s23")
    e("s_mul_i32 s22, s21, 20480")
    e("v_add_u32 v4, s22, v8")
    e("v_add_u32 v5, 20480, v4")
    e("v_add_u32 v6, 40960, v4")
    e("s_mul_i32 s22, s19, 163840")
    e("s_mul_i32 s23, s16, 40960")
    e("s_add_u32 s22, s22, s23")
    e("v_lshlrev_b32 v9, 3, v1")
    e("s_lshl_b32 s48, s19, 10")
    e("s_waitcnt lgkmcnt(0)")
    srd(24, 6, SZ_HP, WS_HP)
    srd(32, 6, SZ_WGU, WS_WGU)
    srd(28, 6, SZ_HSTAT, WS_HSTAT)
    vm = VM()
    D = 6
    WB = 88
    ACC3 = 160
    def Wf(kk, i): return WB + ((kk % D) * 3 + i) * 4
    def Hf(b, n): return (b * 8 + n) * 4
    def hdma_l(g, t):
        o = []
        base = t * 20480 + g * 5120
        o.append(f"s_add_u32 m0, s23, {base}")
        o.append(f"s_add_u32 s44, s22, {base}")
        for u in range(4):
            o.append(f"buffer_load_dwordx4 v8, s[24:27], s44 offen offset:{u*1024} lds")
        o.append(f"s_add_u32 m0, s23, {base+4096}")
        o.append(f"s_add_u32 s44, s22, {base+4096}")
        o.append("buffer_load_dwordx4 v8, s[24:27], s44 offen lds")
        vm.issue(("H", g), 5)
        return o
    def hdma(g):
        for t in range(2):
            for l in hdma_l(g, t): e(l)
    def wload(kk):
        out = []
        if kk >= 4:
            out.append(f"s_mov_b32 s{45+(kk&1)}, {kk*1024}")
        for i in range(3):
            if kk < 4:
                out.append(f"buffer_load_dwordx4 {vr(Wf(kk,i))}, v{4+i}, s[32:35], 0 offen offset:{kk*1024}")
            else:
                out.append(f"buffer_load_dwordx4 {vr(Wf(kk,i))}, v{4+i}, s[32:35], s{45+(kk&1)} offen")
        vm.issue(("W", kk), 3)
        return out
    hdma(0)
    for kk in range(3):
        for l in wload(kk): e(l)
    for j in range(2):
        for eb in range(8):
            e(f"s_add_u32 s44, s48, {eb*16384 + j*512}")
            e(f"buffer_load_dwordx2 v[{40+(j*8+eb)*2}:{41+(j*8+eb)*2}], v9, s[28:31], s44 offen")
    vm.issue("S", 16)
    for kk in range(3, D):
        for l in wload(kk): e(l)
    srd(36, 6, SZ_ACT, WS_ACT)
    for a in range(96):
        e(f"v_mov_b32 v{ACC3+a}, 0")
    for r in range(24, 36):
        e(f"v_mov_b32 v{r}, 0")
    for r in range(16, 20):
        e(f"v_mov_b32 v{r}, 0x3f803f80")
    e("v_add_u32 v10, 65536, v8")
    e("v_add_u32 v11, 131072, v8")
    def hread(kk):
        o = []
        for n in range(8):
            off = (n * 20 + kk) * 1024
            base = 8 if off < 65536 else (10 if off < 131072 else 11)
            o.append(f"ds_read_b128 {ar(Hf(kk&1,n))}, v{base} offset:{off % 65536}")
        return o
    stamp(1)
    e(f"s_waitcnt vmcnt({vm.younger(['S'])})")
    for j in range(2):
        b = 40 + j * 16
        for k in (2, 4, 6, 8, 10, 12, 14):
            e(f"v_pk_add_f32 v[{b}:{b+1}], v[{b}:{b+1}], v[{b+k}:{b+k+1}]")
        ln_stats(b, b+1, 36+2*j, 37+2*j, 12)
    e("v_lshlrev_b32 v12, 2, v2")
    for t in range(8):
        e(f"ds_bpermute_b32 v{72+2*t}, v12, v{36+2*(t>>2)} offset:{(t&3)*64}")
        e(f"ds_bpermute_b32 v{73+2*t}, v12, v{37+2*(t>>2)} offset:{(t&3)*64}")
    e(f"s_waitcnt vmcnt({vm.younger([('H',0)])}) lgkmcnt(0)")
    stamp(2)
    e("s_barrier")
    stamp(3)
    for l in hread(0): e(l)
    for kk in range(20):
        need = [("W", kk)]
        bar = False
        if kk + 1 < 20 and (kk + 1) % 5 == 0:
            need.append(("H", (kk + 1) // 5)); bar = True
        e(f"s_waitcnt vmcnt({vm.younger(need)}) lgkmcnt(0)")
        if bar: e("s_barrier")
        slots = [[] for _ in range(27)]
        if kk + 1 < 20:
            for j, l in enumerate(hread(kk + 1)):
                slots[j].append(l)
        if kk < 6:
            grp = []; g = 0
            for l in hdma_l(1 + kk // 2, kk & 1):
                grp.append(l)
                if l.startswith("buffer"):
                    slots[1 + g * 5] += grp; grp = []; g += 1
        k = 0
        for n in range(8):
            for i in range(3):
                mfma(vr(ACC3+(i*8+n)*4), vr(Wf(kk,i)), ar(Hf(kk&1,n)))
                for l in slots[k]: e(l)
                k += 1
        for i in range(3):
            mfma(vr(24+4*i), vr(Wf(kk,i)), vr(16))
            for l in slots[k]: e(l)
            k += 1
        if kk + D < 20:
            for l in wload(kk + D): e(l)
        if kk == 14:
            srd(52, 6, SZ_WDN, WS_WDN)
            e("s_lshr_b32 s50, s2, 3")
            e("s_lshl_b32 s50, s50, 2")
            e("s_add_u32 s50, s50, s16")
            e("s_mul_i32 s50, s50, 15360")
            e("v_lshlrev_b32 v41, 6, v1")
        if 14 <= kk < 18:
            e(f"buffer_load_dword v40, v41, s[52:55], s50 offen")
            vm.issue("P", 1)
            e("s_add_u32 s50, s50, 4096")
    stamp(4)
    e("v_mul_u32_u24 v9, 49152, v3")
    e("v_lshl_add_u32 v9, v2, 4, v9")
    e("s_mul_i32 s22, s19, 393216")
    e("s_lshl_b32 s23, s21, 8")
    e("s_add_u32 s22, s22, s23")
    e("v_mov_b32 v36, 0xbdd2d3e8")
    e("v_mov_b32 v37, 0xc0135761")
    e("s_nop 7")
    e("s_nop 7")
    stamp(5)
    gi = 0
    for i in range(3):
        for n0 in (0, 4):
            TB = 88 + (gi & 1) * 32
            O = TB + 16
            gi += 1
            lists = []
            for g in range(4):
                n = n0 + g
                A = ACC3 + (i*8+n)*4
                S = 72 + 2*n
                WS = 24 + i*4
                t0 = TB + g*4; t2 = TB + g*4 + 2
                l = []
                for p in (0, 2):
                    l.append(f"v_pk_fma_f32 v[{A+p}:{A+p+1}], v[{S}:{S+1}], v[{WS+p}:{WS+p+1}], v[{A+p}:{A+p+1}] op_sel:[0,0,0] op_sel_hi:[0,1,1] neg_lo:[1,0,0] neg_hi:[1,0,0]")
                for p in (0, 2):
                    l.append(f"v_pk_mul_f32 v[{A+p}:{A+p+1}], v[{A+p}:{A+p+1}], v[{S}:{S+1}] op_sel:[0,1] op_sel_hi:[1,1]")
                l.append(f"v_cvt_pk_bf16_f32 v{t0}, v{A}, v{A+1}")
                l.append(f"v_cvt_pk_bf16_f32 v{t0+1}, v{A+2}, v{A+3}")
                l.append(f"v_lshlrev_b32 v{A}, 16, v{t0}")
                l.append(f"v_and_b32 v{A+1}, 0xffff0000, v{t0}")
                l.append(f"v_lshlrev_b32 v{A+2}, 16, v{t0+1}")
                l.append(f"v_and_b32 v{A+3}, 0xffff0000, v{t0+1}")
                l.append(f"v_pk_mul_f32 v[{t2}:{t2+1}], v[{A}:{A+1}], v[{A}:{A+1}]")
                l.append(f"v_pk_fma_f32 v[{t2}:{t2+1}], v[{t2}:{t2+1}], v[36:37], v[36:37] op_sel:[0,0,1] op_sel_hi:[1,0,1]")
                l.append(f"v_pk_mul_f32 v[{t2}:{t2+1}], v[{t2}:{t2+1}], v[{A}:{A+1}]")
                l.append(f"v_exp_f32 v{t2}, v{t2}")
                l.append(f"v_exp_f32 v{t2+1}, v{t2+1}")
                l.append(f"v_add_f32 v{t2}, 1.0, v{t2}")
                l.append(f"v_add_f32 v{t2+1}, 1.0, v{t2+1}")
                l.append(f"v_rcp_f32 v{t2}, v{t2}")
                l.append(f"v_rcp_f32 v{t2+1}, v{t2+1}")
                l.append(f"v_pk_mul_f32 v[{t2}:{t2+1}], v[{t2}:{t2+1}], v[{A}:{A+1}]")
                l.append(f"v_cvt_pk_bf16_f32 v{t0}, v{t2}, v{t2+1}")
                l.append(f"v_lshlrev_b32 v{t2}, 16, v{t0}")
                l.append(f"v_and_b32 v{t2+1}, 0xffff0000, v{t0}")
                l.append(f"v_pk_mul_f32 v[{t2}:{t2+1}], v[{t2}:{t2+1}], v[{A+2}:{A+3}]")
                l.append(f"v_cvt_pk_bf16_f32 v{O+g}, v{t2}, v{t2+1}")
                lists.append(l)
            for k in range(len(lists[0])):
                for g in range(4): e(lists[g][k])
            e("s_nop 1")
            e(f"v_permlane16_swap_b32 v{O}, v{O+1}")
            e(f"v_permlane16_swap_b32 v{O+2}, v{O+3}")
            e("s_nop 1")
            e(f"v_permlane32_swap_b32 v{O}, v{O+2}")
            e(f"v_permlane32_swap_b32 v{O+1}, v{O+3}")
            e(f"s_add_u32 s44, s22, {n0*49152 + i*256}")
            e("s_nop 1")
            e(f"buffer_store_dwordx4 {vr(O)}, v9, s[36:39], s44 offen")
    stamp(6)
    stamp_dump(2, 7)
    lab("k3_end")
    e("s_endpgm")

def descriptor(name, vgpr, accum, sgpr=102):
    raw(f".amdhsa_kernel {name}")
    raw(f"  .amdhsa_next_free_vgpr {vgpr}")
    raw(f"  .amdhsa_next_free_sgpr {sgpr}")
    raw(f"  .amdhsa_accum_offset {accum}")
    raw("  .amdhsa_group_segment_fixed_size 0")
    raw("  .amdhsa_kernarg_size 96")
    raw("  .amdhsa_user_sgpr_count 2")
    raw("  .amdhsa_user_sgpr_kernarg_segment_ptr 1")
    raw("  .amdhsa_system_sgpr_workgroup_id_x 1")
    raw(".end_amdhsa_kernel")

def main():
    raw("; 4-kernel pipeline: K1 LN1+hidden DFT GEMM, K2 seq DFT GEMM + residual, K3 LN2+gate/up GEMM+GEGLU, K4 down GEMM + residual")
    raw("; @launch kernel=k1_kernel grid=(256,1,1) block=(256,1,1) lds=152832")
    raw("; @launch kernel=k2_kernel grid=(256,1,1) block=(256,1,1) lds=131072")
    raw("; @launch kernel=k3_kernel grid=(256,1,1) block=(256,1,1) lds=163840")
    raw("; @launch kernel=k4_kernel grid=(256,1,1) block=(256,1,1) lds=94208")
    raw('.amdgcn_target "amdgcn-amd-amdhsa--gfx950"')
    raw(".text")
    gen_k1(); gen_k2(); gen_k3(); gen_k4()
    raw('.section .rodata,"a"')
    raw(".p2align 6")
    descriptor("k1_kernel", 412, 224)
    raw(".p2align 6")
    descriptor("k2_kernel", 352, 256)
    raw(".p2align 6")
    descriptor("k3_kernel", 320, 256)
    raw(".p2align 6")
    descriptor("k4_kernel", 424, 256)
    out = sys.argv[1] if len(sys.argv) > 1 else f"cdna_kernels/{NAME}.s"
    NOSC = os.environ.get("NOSC", "").split(",")
    LL = [ (l + " sc1") if ("buffer_store" in l and "s[64:67]" not in l and not any(x and x in l for x in NOSC)) else l for l in L]
    open(out, "w").write("\n".join(LL) + "\n")

main()
```

```python
import sys

L = []
def e(s): L.append("    " + s)
def lab(s): L.append(s + ":")
def raw(s): L.append(s)

NAME = "sequential_preLN__spectral_fnet__geglu_ffn__prompt"

WS_ABP = 0
SZ_ABP = 80 * 64 * 1024
WS_HP = 0x500000
SZ_HP = 128 * 20 * 1024
WS_HSTAT = 0x780000
SZ_HSTAT = 2048 * 8 * 8
WS_ACT = 0x800000
SZ_ACT = 128 * 48 * 1024
WS_WGU = 0xE00000
WSUM_OFF = 192 * 20 * 1024
SZ_WGU = WSUM_OFF + 192 * 4 * 64
WS_WDN = 0x1200000
SZ_WDN = 40 * 48 * 1024

INV640 = 0x3ACCCCCD
EPS = 0x3727C5AC

import os
DIAG = os.environ.get("DIAG", "0") == "1"
WS_DIAG = 0x3000000
def stamp(i):
    if DIAG:
        e(f"s_memtime s[{70+2*i}:{71+2*i}]")
        e("s_waitcnt lgkmcnt(0)")
def stamp_dump(kidx, n):
    if not DIAG: return
    e("s_waitcnt vmcnt(0)")
    stamp(n)
    e(f"s_add_u32 s64, s6, {WS_DIAG + kidx*0x40000}")
    e("s_addc_u32 s65, s7, 0")
    e("s_mov_b32 s66, 0x40000")
    e("s_mov_b32 s67, 0x20000")
    e("s_lshl_b32 s68, s2, 2")
    e("s_add_u32 s68, s68, s16")
    e("s_lshl_b32 s68, s68, 8")
    e("v_mov_b32 v0, 0")
    e("s_mov_b64 exec, 1")
    for i in range(n+1):
        e(f"v_mov_b32 v2, s{70+2*i}")
        e(f"v_mov_b32 v3, s{71+2*i}")
        e(f"buffer_store_dwordx2 v[2:3], v0, s[64:67], s68 offen offset:{i*8}")
    e("s_waitcnt vmcnt(0)")

def srd(d, lo, size, off=0):
    if off:
        e(f"s_add_u32 s{d}, s{lo}, {off}")
        e(f"s_addc_u32 s{d+1}, s{lo+1}, 0")
    else:
        e(f"s_mov_b32 s{d}, s{lo}")
        e(f"s_mov_b32 s{d+1}, s{lo+1}")
    e(f"s_mov_b32 s{d+2}, {size}")
    e(f"s_mov_b32 s{d+3}, 0x20000")

def bf16r(dst, src):
    e(f"v_cvt_pk_bf16_f32 v{dst}, v{src}, v{src}")
    e(f"v_lshlrev_b32 v{dst}, 16, v{dst}")

def vr(b, n=4): return f"v[{b}:{b+n-1}]"
def ar(b, n=4): return f"a[{b}:{b+n-1}]"

def mfma(d, a, b, c=None):
    c = d if c is None else c
    e(f"v_mfma_f32_16x16x32_bf16 {d}, {a}, {b}, {c}")

def kernel_begin(name):
    raw(f".globl {name}")
    raw(".p2align 8")
    raw(f".type {name},@function")
    lab(name)

def lane_setup():
    e("v_lshrrev_b32 v4, 6, v0")
    e("v_and_b32 v1, 63, v0")
    e("v_readfirstlane_b32 s16, v4")
    e("v_and_b32 v2, 15, v1")
    e("v_lshrrev_b32 v3, 4, v1")

def ln_stats(vsum, vsq, vm, vrd, t):
    e(f"v_mul_f32 v{vm}, s17, v{vsum}")
    e(f"v_mul_f32 v{t}, s17, v{vsq}")
    e(f"v_fma_f32 v{t}, -v{vm}, v{vm}, v{t}")
    e(f"v_max_f32 v{t}, 0, v{t}")
    bf16r(vm, vm)
    bf16r(t, t)
    e(f"v_add_f32 v{t}, s18, v{t}")
    bf16r(t, t)
    e(f"v_sqrt_f32 v{t}, v{t}")
    e("s_nop 0")
    bf16r(t, t)
    e(f"v_rcp_f32 v{vrd}, v{t}")
    e("s_nop 0")

def gen_k1():
    kernel_begin("k1_kernel")
    e("s_cmp_ge_u32 s2, 256")
    e("s_cbranch_scc1 k1_end")
    stamp(0)
    e("s_load_dwordx2 s[4:5], s[0:1], 0")
    e("s_load_dwordx2 s[8:9], s[0:1], 24")
    e("s_load_dwordx2 s[10:11], s[0:1], 32")
    e("s_load_dwordx2 s[6:7], s[0:1], 88")
    e("s_load_dwordx4 s[56:59], s[0:1], 8")
    lane_setup()
    e("s_and_b32 s19, s2, 3")
    e("s_lshl_b32 s19, s19, 2")
    e("s_bfe_u32 s21, s2, 0x20003")
    e("s_add_u32 s19, s19, s21")
    e("s_lshr_b32 s22, s2, 5")
    e("s_bfe_u32 s20, s2, 0x10002")
    e("s_lshl_b32 s20, s20, 3")
    e("s_add_u32 s20, s20, s22")
    e("s_add_u32 s48, s21, s22")
    e("v_lshlrev_b32 v15, 4, v1")
    e("v_lshrrev_b32 v25, 3, v1")
    e("v_and_b32 v26, 7, v1")
    e("v_xor_b32 v26, v26, v25")
    e("v_mul_u32_u24 v25, 1280, v25")
    e("v_lshl_add_u32 v25, v26, 4, v25")
    e("s_and_b32 s21, s20, 7")
    e("s_mul_i32 s21, s21, 102400")
    e("s_and_b32 s22, s16, 1")
    e("s_mul_i32 s22, s22, 51200")
    e("s_add_u32 s21, s21, s22")
    e("s_lshr_b32 s22, s16, 1")
    e("s_lshl_b32 s22, s22, 7")
    e("s_add_u32 s21, s21, s22")
    e("v_add_u32 v4, s21, v25")
    e("s_lshl_b32 s21, s19, 7")
    e("s_lshl_b32 s22, s16, 5")
    e("s_add_u32 s21, s21, s22")
    e("s_mul_i32 s21, s21, 1280")
    e("v_add_u32 v5, s21, v25")
    for j in range(1, 4):
        e(f"v_add_u32 v{5+j}, {j*10240 - j*1024}, v5")
    e("s_mul_i32 s46, s16, 12288")
    e("s_add_u32 s46, s46, 102400")
    e("s_mul_i32 s47, s16, 5120")
    e("s_mul_i32 s49, s48, 205")
    e("s_lshr_b32 s49, s49, 10")
    e("s_mul_i32 s49, s49, 5")
    e("s_sub_u32 s49, s48, s49")
    if os.environ.get("K1NOROT"): e("s_mov_b32 s49, 0")
    for sc in range(5):
        e(f"s_lshl_b32 s{50+sc}, s49, 8")
        e("s_add_u32 s49, s49, 1")
        e("s_cmp_ge_u32 s49, 5")
        e("s_cselect_b32 s49, 0, s49")
    e("s_waitcnt lgkmcnt(0)")
    srd(24, 4, 2621440)
    e("s_cmp_lt_u32 s20, 8")
    e("s_cselect_b32 s28, s8, s10")
    e("s_cselect_b32 s29, s9, s11")
    e("s_mov_b32 s30, 819200")
    e("s_mov_b32 s31, 0x20000")
    vm = VM()
    XS = 76
    def wdma(sc):
        o = []
        for u in range(5):
            o.append(f"s_add_u32 m0, s47, {sc*20480 + u*1024}")
            o.append(f"s_add_u32 s23, s{50+sc}, {u*10240}")
            o.append("buffer_load_dwordx4 v4, s[28:31], s23 offen lds")
        vm.issue(("W", sc), 5)
        return o
    def xld(c):
        if c < 3:
            o = [f"s_add_u32 m0, s46, {(c%3)*4096}", f"s_add_u32 s22, s{50+(c>>1)}, {(c&1)*128}"]
            for j in range(4):
                o.append(f"buffer_load_dwordx4 v{5+j}, s[24:27], s22 offen offset:{j*1024} lds")
        else:
            o = [f"s_add_u32 s22, s{50+(c>>1)}, {(c&1)*128}"]
            for j in range(4):
                o.append(f"buffer_load_dwordx4 {ar(XS+(c-3)*16+j*4)}, v{5+j}, s[24:27], s22 offen offset:{j*1024}")
        vm.issue(("X", c), 4)
        return o
    for l in wdma(0) + xld(0) + xld(1): e(l)
    e(f"s_mov_b32 s17, {INV640}")
    e(f"s_mov_b32 s18, {EPS}")
    e("v_and_b32 v26, 7, v2")
    e("v_xor_b32 v26, v26, v3")
    e("v_lshlrev_b32 v11, 7, v2")
    e("v_lshl_add_u32 v11, v26, 4, v11")
    e("v_xor_b32 v12, 64, v11")
    e("v_add_u32 v13, 61440, v11")
    e("v_add_u32 v14, 61440, v12")
    e("v_add_u32 v9, s46, v11")
    e("v_add_u32 v10, s46, v12")
    srd(32, 6, SZ_ABP, WS_ABP)
    TST = [int(x) for x in os.environ.get("TST", "3,3").split(",")]
    PL, PO, PA = 144, 176, 144
    e(f"v_add_u32 v{PA+8}, s46, v15")
    e("s_cmp_lt_u32 s2, 128")
    e("s_cselect_b32 s56, s56, s58")
    e("s_cselect_b32 s57, s57, s59")
    e("s_mov_b32 s58, 8388608")
    e("s_mov_b32 s59, 0x20000")
    e("s_and_b32 s21, s2, 7")
    e("s_bfe_u32 s22, s2, 0x20005")
    e("s_lshl_b32 s21, s21, 2")
    e("s_add_u32 s21, s21, s22")
    e("s_lshl_b32 s21, s21, 2")
    e("s_bfe_u32 s22, s2, 0x20003")
    e("s_add_u32 s21, s21, s22")
    e("s_lshl_b32 s21, s21, 2")
    e("s_add_u32 s21, s21, s16")
    e("s_lshl_b32 s91, s21, 14")
    e(f"v_lshlrev_b32 v{PA+10}, 7, v1")
    def touch():
        if os.environ.get("NOPF"): return []
        vm.issue("T", 1)
        return [f"buffer_load_dword v{PA+11}, v{PA+10}, s[56:59], s91 offen", "s_add_u32 s91, s91, 8192"]
    for t in TST:
        if t == -1:
            for l in touch(): e(l)
    for a in range(76):
        e(f"v_accvgpr_write_b32 a{a}, 0")
    ONES = 16
    for r in range(4):
        e(f"v_mov_b32 v{ONES+r}, 0x3f803f80")
    FB = 32
    def XF(b, st, h): return FB + b * 56 + (st * 2 + h) * 4
    def WF(b, i, h): return FB + b * 56 + 16 + (i * 2 + h) * 4
    def fread(c):
        o = []
        b = c & 1
        for h in range(2):
            for st in range(2):
                o.append(f"ds_read_b128 {vr(XF(b,st,h))}, v{9+h} offset:{(c%3)*4096 + st*2048}")
            for i in range(5):
                off = c * 10240 + i * 2048
                if off < 61440:
                    o.append(f"ds_read_b128 {vr(WF(b,i,h))}, v{11+h} offset:{off}")
                else:
                    o.append(f"ds_read_b128 {vr(WF(b,i,h))}, v{13+h} offset:{off-61440}")
        return o
    stamp(1)
    e(f"s_waitcnt vmcnt({vm.younger([('W',0),('X',0)])})")
    e("s_barrier")
    stamp(2)
    for l in fread(0): e(l)
    for c in range(10):
        b = c & 1
        need = []
        if c + 1 <= 2: need.append(("X", c + 1))
        if c + 1 < 10: need.append(("W", (c + 1) >> 1))
        if 3 <= c + 2 <= 9: need.append(("X", c + 2))
        if need and c < 8:
            e(f"s_waitcnt vmcnt({vm.younger(need)}) lgkmcnt(0)")
        else:
            e("s_waitcnt lgkmcnt(0)")
        if c in (1, 3, 5, 7): e("s_barrier")
        NM = 28
        slots = [[] for _ in range(NM)]
        if c + 1 < 10:
            for j, l in enumerate(fread(c + 1)):
                slots[j].append(l)
        if 3 <= c + 2 <= 9:
            for j in range(4):
                slots[14 + j].append(f"ds_write_b128 v{PA+8}, {ar(XS+(c-1)*16+j*4)} offset:{((c+2)%3)*4096 + j*1024}")
        lst = []
        if c < 4: lst = wdma(c + 1) + xld(2 * c + 2) + xld(2 * c + 3)
        for t in TST:
            if t == c: lst += touch()
        groups = []; grp = []
        for l in lst:
            if grp and any(x.startswith("buffer") for x in grp) and not (l.startswith("s_add_u32 s8") or l.startswith("s_add_u32 s9")):
                groups.append(grp); grp = []
            grp.append(l)
        if grp: groups.append(grp)
        for g, gl in enumerate(groups):
            slots[g] = gl + slots[g]
        ml = []
        for h in range(2):
            for i in range(5):
                for st in range(2):
                    ml.append((ar((st*5+i)*4), vr(XF(b,st,h)), vr(WF(b,i,h))))
            for st in range(2):
                ml.append((ar(40+4*st), vr(XF(b,st,h)), vr(ONES)))
                ml.append((ar(48+4*st), vr(XF(b,st,h)), vr(XF(b,st,h))))
        for k, m in enumerate(ml):
            mfma(*m)
            for l in slots[k]: e(l)
        for wv in range(4):
            e(f"s_cmp_lg_u32 s16, {wv}")
            e(f"s_cbranch_scc1 k1_ws{c}_{wv}")
            for i in range(5):
                for h in range(2):
                    if (c * 2 + i * 2 + h) % 4 == wv:
                        mfma(ar(56+4*i), vr(ONES), vr(WF(b,i,h)))
            lab(f"k1_ws{c}_{wv}")
    stamp(3)
    WX = 151552
    e("s_nop 7")
    e("s_nop 7")
    for i in range(5):
        e(f"v_accvgpr_read_b32 v{20+i}, a{56+4*i}")
    e("v_lshlrev_b32 v25, 2, v2")
    e("s_mul_i32 s21, s16, 320")
    e(f"s_add_u32 s21, s21, {WX}")
    e("v_add_u32 v26, s21, v25")
    for i in range(5):
        e(f"ds_write_b32 v26, v{20+i} offset:{i*64}")
    e("v_mul_u32_u24 v12, 80, v3")
    for st in range(2):
        for r in range(4):
            e(f"v_accvgpr_read_b32 v{32+st*4+r}, a{40+4*st+r}")
            e(f"v_accvgpr_read_b32 v{40+st*4+r}, a{48+4*st+r}")
    e("s_nop 1")
    for st in range(2):
        for r in range(4):
            e(f"ds_bpermute_b32 v{40+st*4+r}, v12, v{40+st*4+r} offset:{4*r}")
    e(f"v_add_u32 v26, {WX}, v25")
    e("s_waitcnt lgkmcnt(0)")
    e("s_barrier")
    for wv in range(4):
        for i in range(5):
            e(f"ds_read_b32 v{124+wv*5+i}, v26 offset:{wv*320 + i*64}")
    for st in range(2):
        for r in range(4):
            ln_stats(32+st*4+r, 40+st*4+r, 52+st*4+r, 60+st*4+r, 48)
    e("s_waitcnt lgkmcnt(0)")
    for i in range(5):
        e(f"v_add_f32 v{20+i}, v{124+i}, v{129+i}")
        e(f"v_add_f32 v{124+i}, v{134+i}, v{139+i}")
        e(f"v_add_f32 v{20+i}, v{20+i}, v{124+i}")
    e("v_and_b32 v26, 1, v3")
    e("v_lshlrev_b32 v26, 9, v26")
    e("v_lshrrev_b32 v27, 1, v3")
    e("v_lshl_add_u32 v26, v27, 8, v26")
    e("v_lshl_add_u32 v26, v2, 4, v26")
    e("s_mul_i32 s21, s20, 320")
    e("s_lshl_b32 s22, s19, 2")
    e("s_add_u32 s21, s21, s22")
    e("s_add_u32 s21, s21, s16")
    e("s_lshl_b32 s21, s21, 10")
    for i in range(5):
        T = 72 + (i & 1) * 16
        O = 104 + i * 4
        for st in range(2):
            for r in range(4):
                e(f"v_accvgpr_read_b32 v{T+st*4+r}, a{(st*5+i)*4+r}")
        for st in range(2):
            for r in range(4):
                e(f"v_fma_f32 v{T+st*4+r}, -v{52+st*4+r}, v{20+i}, v{T+st*4+r}")
        for st in range(2):
            for r in range(4):
                e(f"v_mul_f32 v{T+st*4+r}, v{T+st*4+r}, v{60+st*4+r}")
        for st in range(2):
            e(f"v_cvt_pk_bf16_f32 v{O+2*st}, v{T+st*4}, v{T+st*4+1}")
            e(f"v_cvt_pk_bf16_f32 v{O+2*st+1}, v{T+st*4+2}, v{T+st*4+3}")
        e("s_nop 1")
        e(f"v_permlane16_swap_b32 v{O}, v{O+2}")
        e(f"v_permlane16_swap_b32 v{O+1}, v{O+3}")
        e(f"s_add_u32 s23, s21, {i*65536}")
        e("s_nop 1")
        e(f"buffer_store_dwordx4 {vr(O)}, v26, s[32:35], s23 offen")
        vm.issue("S", 1)
    stamp(4)
    lab("k1_fin")
    stamp(5)
    stamp_dump(0, 6)
    lab("k1_end")
    e("s_endpgm")

ACC = 176
BUF = 32
def bufA(b, i): return BUF + b * 36 + i * 4
def bufB(b, n): return BUF + b * 36 + 20 + n * 4
def acc(i, n): return ACC + (i * 4 + n) * 4

def splitk_core(nsteps, srdA, srdB, shA, shB, vA, vB, mask):
    def addr():
        e("s_add_u32 s44, s40, s41")
        e(f"s_lshl_b32 s42, s44, {shA}")
        e(f"s_lshl_b32 s43, s44, {shB}")
        e("s_add_u32 s40, s40, 1")
        if mask:
            e(f"s_and_b32 s40, s40, {nsteps-1}")
        else:
            e(f"s_cmp_ge_u32 s40, {nsteps}")
            e("s_cselect_b32 s40, 0, s40")
    def loads(b):
        out = []
        for n in range(4):
            out.append(f"buffer_load_dwordx4 {vr(bufB(b,n))}, v{vB+n}, s[{srdB}:{srdB+3}], s43 offen")
        for i in range(5):
            out.append(f"buffer_load_dwordx4 {vr(bufA(b,i))}, v{vA+i}, s[{srdA}:{srdA+3}], s42 offen")
        return out
    for it in range(3):
        addr()
        for l in loads(it): e(l)
    for a in range(80):
        e(f"v_mov_b32 v{ACC+a}, 0")
    for it in range(nsteps):
        b = it % 4
        rem = min(nsteps - 1 - it, 2)
        e(f"s_waitcnt vmcnt({9*rem})")
        ld = []
        if it + 3 < nsteps:
            addr()
            ld = loads((it + 3) % 4)
        k = 0
        for i in range(5):
            for n in range(4):
                mfma(vr(acc(i,n)), vr(bufA(b,i)), vr(bufB(b,n)))
                k += 1
                if k % 2 == 0 and ld:
                    e(ld.pop(0))
        assert not ld

def splitk_exchange():
    e("s_nop 7")
    e("s_nop 7")
    e("s_mul_i32 s44, s16, 5120")
    e("v_add_u32 v9, s44, v8")
    e("v_add_u32 v10, 61440, v9")
    for n in range(4):
        for i in range(5):
            if n < 3:
                e(f"ds_write_b128 v9, {vr(acc(i,n))} offset:{(n*20+i)*1024}")
            else:
                e(f"ds_write_b128 v10, {vr(acc(i,n))} offset:{i*1024}")
    e("s_mul_i32 s44, s16, 20480")
    e("v_add_u32 v9, s44, v8")
    e("s_waitcnt lgkmcnt(0)")
    e("s_barrier")
    for src in range(4):
        for i in range(5):
            e(f"ds_read_b128 {vr(BUF+(src*5+i)*4)}, v9 offset:{(src*5+i)*1024}")


def hp_addr(vdst, s_st, s_d16base, sdst_list):
    e(f"v_lshrrev_b32 v{vdst}, 1, v3")
    e(f"v_lshlrev_b32 v{vdst}, 8, v{vdst}")
    e(f"v_lshl_add_u32 v{vdst}, v2, 4, v{vdst}")
    e("v_and_b32 v10, 1, v3")
    e(f"v_lshl_add_u32 v{vdst}, v10, 3, v{vdst}")
    e(f"s_mul_i32 s44, s{s_st}, 20480")
    for i in range(5):
        e(f"s_add_u32 s45, s{s_d16base}, {i}")
        e(f"s_lshl_b32 s45, s45, 9")
        e(f"s_add_u32 s{sdst_list[i]}, s44, s45")

def gen_k2():
    ROT = os.environ.get("K2ROT", "0") == "1"
    kernel_begin("k2_kernel")
    e("s_cmp_ge_u32 s2, 256")
    e("s_cbranch_scc1 k2_end")
    stamp(0)
    e("s_load_dwordx2 s[4:5], s[0:1], 0")
    e("s_load_dwordx2 s[8:9], s[0:1], 8")
    e("s_load_dwordx2 s[10:11], s[0:1], 16")
    e("s_load_dwordx2 s[6:7], s[0:1], 88")
    e("s_load_dwordx4 s[12:15], s[0:1], 48")
    e("s_load_dwordx2 s[60:61], s[0:1], 64")
    lane_setup()
    e("s_and_b32 s19, s2, 7")
    e("s_lshr_b32 s20, s2, 3")
    e("s_lshr_b32 s21, s20, 3")
    e("s_lshl_b32 s19, s19, 2")
    e("s_add_u32 s19, s19, s21")
    e("s_and_b32 s20, s20, 7")
    e("v_lshlrev_b32 v8, 4, v1")
    VC, VA, VB0, VB1 = 16, 24, 29, 30
    e("v_lshrrev_b32 v4, 3, v1")
    e("v_and_b32 v5, 7, v1")
    e("v_xor_b32 v5, v5, v4")
    e("v_lshlrev_b32 v4, 12, v4")
    e("v_lshl_add_u32 v4, v5, 4, v4")
    e("s_lshl_b32 s22, s19, 18")
    if os.environ.get("XC"): e("s_mov_b32 s22, 0")
    e(f"v_add_u32 v{VC}, s22, v4")
    for j in range(1, 8):
        e(f"v_add_u32 v{VC+j}, {j*32768 - (j%4)*1024}, v{VC}")
    e("s_lshr_b32 s22, s16, 1")
    e("s_mul_i32 s22, s22, 40")
    e("s_mul_i32 s23, s20, 5")
    if os.environ.get("XA"): e("s_mov_b32 s23, 0")
    e("s_add_u32 s22, s22, s23")
    e("s_lshl_b32 s22, s22, 16")
    e(f"v_add_u32 v{VA}, s22, v8")
    for i in range(1, 5):
        e(f"v_add_u32 v{VA+i}, {i*65536}, v{VA}")
    e("s_lshl_b32 s46, s16, 15")
    e("v_and_b32 v5, 7, v2")
    e("v_xor_b32 v5, v5, v3")
    e("v_lshlrev_b32 v4, 7, v2")
    e("v_lshl_add_u32 v4, v5, 4, v4")
    e(f"v_add_u32 v{VB0}, s46, v4")
    e(f"v_xor_b32 v{VB1}, 64, v{VB0}")
    e("s_and_b32 s41, s16, 1")
    e("s_lshl_b32 s47, s41, 11")
    e("s_lshl_b32 s41, s41, 15")
    if ROT:
        e("s_lshr_b32 s40, s2, 6")
        e("s_lshl_b32 s40, s40, 2")
    else:
        e("s_mov_b32 s40, 0")
    e("s_lshl_b32 s21, s19, 6")
    e("s_lshl_b32 s22, s16, 4")
    e("s_add_u32 s21, s21, s22")
    e("s_mul_i32 s22, s21, 1280")
    e("s_mul_i32 s23, s20, 160")
    e("s_add_u32 s22, s22, s23")
    e("v_mul_u32_u24 v11, 1280, v2")
    e("v_lshl_add_u32 v11, v3, 3, v11")
    e("v_add_u32 v11, s22, v11")
    e("s_waitcnt lgkmcnt(0)")
    srd(24, 4, 2621440)
    e("s_cmp_lt_u32 s16, 2")
    e("s_cselect_b32 s28, s8, s10")
    e("s_cselect_b32 s29, s9, s11")
    e("s_mov_b32 s30, 8388608")
    e("s_mov_b32 s31, 0x20000")
    srd(32, 6, SZ_ABP, WS_ABP)
    stamp(1)
    AB = 32
    BB = 192
    def A(b, h, i):
        if b < 2: return vr(AB + (b * 10 + h * 5 + i) * 4)
        return ar(96 + ((b - 2) * 10 + h * 5 + i) * 4)
    def B(b, h, n): return BB + (b * 8 + h * 4 + n) * 4
    vm = VM()
    def stage_issue(stg):
        b = stg % 4
        vm.issue(("S", stg), 18)
        o = []
        o.append("s_lshl_b32 s42, s40, 7")
        o.append("s_add_u32 s42, s42, s47")
        o.append(f"s_add_u32 m0, s46, {b*8192}")
        o.append("s_lshl_b32 s43, s40, 11")
        for j in range(4):
            o.append(f"buffer_load_dwordx4 v{VC+j}, s[28:31], s42 offen offset:{j*1024} lds")
        o.append(f"s_add_u32 m0, s46, {b*8192+4096}")
        o.append("s_add_u32 s43, s43, s41")
        for j in range(4, 8):
            o.append(f"buffer_load_dwordx4 v{VC+j}, s[28:31], s42 offen offset:{(j-4)*1024} lds")
        for h in range(2):
            for i in range(5):
                o.append(f"buffer_load_dwordx4 {A(b,h,i)}, v{VA+i}, s[32:35], s43 offen offset:{h*1024}")
        o.append("s_add_u32 s40, s40, 1")
        o.append("s_and_b32 s40, s40, 15")
        return o
    def bread(st):
        o = []
        for h in range(2):
            for n in range(4):
                o.append(f"ds_read_b128 {vr(B(st&1,h,n))}, v{VB0+h} offset:{(st%4)*8192 + n*2048}")
        return o
    if os.environ.get("ABT"):
        e("s_lshl_b32 s22, s2, 2")
        e("s_add_u32 s22, s22, s16")
        e("s_mul_i32 s22, s22, 5120")
        e("v_lshlrev_b32 v12, 7, v1")
        e("s_mov_b32 exec_hi, 0xff")
        e("buffer_load_dword a92, v12, s[32:35], s22 offen")
        e("s_mov_b32 exec_hi, -1")
    for st in range(3):
        for l in stage_issue(st): e(l)
    for i in range(5):
        e(f"buffer_load_dwordx2 a[{80+2*i}:{81+2*i}], v11, s[24:27], 0 offen offset:{i*32}")
    vm.issue("X", 5)
    PL, PO, PA = 112, 144, 176
    e("s_mul_i32 s48, s2, 3")
    e("s_add_u32 s48, s48, s16")
    e("s_cmp_ge_u32 s2, 240")
    e("s_cselect_b64 vcc, -1, 0")
    e("s_cmp_eq_u32 s16, 3")
    e("s_cselect_b64 vcc, -1, vcc")
    e("s_cbranch_vccnz k2_pdum")
    e("s_cmp_ge_u32 s48, 480")
    e("s_cbranch_scc1 k2_pdn")
    e("s_mul_i32 s49, s48, 52429")
    e("s_lshr_b32 s49, s49, 20")
    e("s_mul_i32 s92, s49, 20")
    e("s_sub_u32 s92, s48, s92")
    srd(36, 12, 1966080)
    srd(56, 14, 1966080)
    e("v_bfe_u32 v12, v1, 3, 2")
    e("v_and_b32 v13, 7, v1")
    e("v_lshrrev_b32 v14, 5, v1")
    e(f"v_mul_u32_u24 v{PA+9}, 24576, v12")
    e(f"v_lshl_add_u32 v{PA+9}, v13, 4, v{PA+9}")
    e("v_mul_u32_u24 v15, 12288, v14")
    e(f"v_add_u32 v{PA+9}, v{PA+9}, v15")
    e("s_mul_i32 s84, s92, 98304")
    e("s_lshl_b32 s85, s49, 7")
    e("s_add_u32 s84, s84, s85")
    e("s_mov_b32 s85, s84")
    e("s_mov_b32 s86, 3072")
    e("v_mul_u32_u24 v13, 1040, v13")
    e("v_lshl_add_u32 v13, v12, 8, v13")
    e(f"v_lshl_add_u32 v{PA}, v14, 3, v13")
    e("s_mov_b32 s93, 64")
    e("s_mov_b32 s94, 32")
    e("s_mul_i32 s87, s49, 163840")
    e("s_lshl_b32 s92, s92, 10")
    e("s_add_u32 s87, s87, s92")
    e(f"s_add_u32 s87, s87, {WS_WGU}")
    e("s_mov_b32 s88, 20480")
    e("s_branch k2_pk")
    lab("k2_pdn")
    e("s_sub_u32 s48, s48, 480")
    e("s_mul_i32 s49, s48, 43691")
    e("s_lshr_b32 s49, s49, 21")
    e("s_mul_i32 s92, s49, 48")
    e("s_sub_u32 s92, s48, s92")
    srd(36, 60, 1966080)
    srd(56, 60, 1966080)
    e(f"v_mul_u32_u24 v{PA+9}, 10240, v3")
    e(f"v_lshl_add_u32 v{PA+9}, v2, 4, v{PA+9}")
    e("s_mul_i32 s84, s92, 40960")
    e("s_lshl_b32 s85, s49, 8")
    e("s_add_u32 s84, s84, s85")
    e("s_add_u32 s85, s84, 5120")
    e("s_mov_b32 s86, 1280")
    e("v_lshrrev_b32 v13, 1, v2")
    e("v_mul_u32_u24 v13, 1040, v13")
    e("v_and_b32 v15, 1, v2")
    e("v_lshlrev_b32 v15, 7, v15")
    e("v_lshl_add_u32 v15, v3, 8, v15")
    e(f"v_add_u32 v{PA}, v15, v13")
    e("s_mov_b32 s93, 32")
    e("s_mov_b32 s94, 8")
    e("s_mul_i32 s87, s49, 393216")
    e("s_lshl_b32 s92, s92, 10")
    e("s_add_u32 s87, s87, s92")
    e(f"s_add_u32 s87, s87, {WS_WDN}")
    e("s_mov_b32 s88, 49152")
    lab("k2_pk")
    for which in range(2):
        for j in range(4):
            sr = 84 + which
            e(f"buffer_load_dwordx4 {vr(PL+(which*4+j)*4)}, v{PA+9}, s[{36+20*which}:{39+20*which}], s{sr} offen")
            e(f"s_add_u32 s{sr}, s{sr}, s86")
    e("s_mul_i32 s49, s16, 8320")
    e("s_add_u32 s49, s49, 131072")
    e(f"v_add_u32 v{PA}, s49, v{PA}")
    for k in range(1, 4):
        e(f"v_add_u32 v{PA+k}, s93, v{PA+k-1}")
    for k in range(4):
        e(f"v_add_u32 v{PA+4+k}, s94, v{PA+k}")
    e(f"v_add_u32 v{PA+12}, s49, v8")
    e("s_branch k2_pdone")
    lab("k2_pdum")
    def dummy(n):
        o = ["s_mov_b64 exec, 1"]
        for j in range(n):
            o.append("buffer_load_dword a90, v8, s[24:27], 0 offen")
        o.append("s_mov_b64 exec, -1")
        return o
    for l in dummy(8): e(l)
    lab("k2_pdone")
    vm.issue("P", 8)
    e("s_mov_b32 s89, 0x05040100")
    e("s_mov_b32 s90, 0x07060302")
    e("s_mov_b32 s64, s6")
    e("s_mov_b32 s65, s7")
    e(f"s_mov_b32 s66, {WS_WDN + SZ_WDN}")
    e("s_mov_b32 s67, 0x20000")
    PST = int(os.environ.get("PST", "3"))
    srd(48, 6, SZ_HP, WS_HP)
    srd(52, 6, SZ_HSTAT, WS_HSTAT)
    for a in range(80):
        e(f"v_accvgpr_write_b32 a{a}, 0")
    e(f"s_waitcnt vmcnt({vm.younger([('S', 0)])})")
    for l in bread(0): e(l)
    NS = 16
    for st in range(NS):
        b = st % 4
        if st + 1 < NS:
            allowed = vm.younger([("S", st + 1)] + (["P"] if st == PST else []))
            e(f"s_waitcnt vmcnt({allowed}) lgkmcnt(0)")
        else:
            e("s_waitcnt lgkmcnt(0)")
        if os.environ.get("K2ST") and st in (0,1,2,3,4,6,8,12): stamp(7 + (0,1,2,3,4,6,8,12).index(st))
        slots = [[] for _ in range(40)]
        if st + 1 < NS:
            for j, l in enumerate(bread(st + 1)):
                slots[1 + 2*j].append(l)
        if st + 3 < NS:
            grp = []; groups = []
            for l in stage_issue(st + 3):
                grp.append(l)
                if l.startswith("buffer"):
                    groups.append(grp); grp = []
            groups[-1] += grp
            for g, gl in enumerate(groups):
                slots[(g * 40) // len(groups)] += gl
        pk = []
        if st == PST:
            for which in range(2):
                for ee in range(8):
                    o = PO + (which*8+ee)*2
                    g = []
                    for t in range(2):
                        g.append(f"v_perm_b32 v{o+t}, v{PL+(which*4+2*t+1)*4+(ee>>1)}, v{PL+(which*4+2*t)*4+(ee>>1)}, s{89+(ee&1)}")
                    g.append(f"ds_write_b64 v{PA+which*4+(ee>>1)}, v[{o}:{o+1}] offset:{(ee&1)*16}")
                    pk.append(g)
            pk = [pk[2*i] + pk[2*i+1] for i in range(8)]
        if st == PST + 1:
            pk = [[f"ds_read_b128 {vr(PL+g*4)}, v{PA+12} offset:{g*1040}"] for g in range(8)]
        for g, gl in enumerate(pk):
            slots[18 + 2*g] += [f"s_cbranch_vccnz k2_np{st}_{g}"] + gl + [f"k2_np{st}_{g}:"]
        if st == PST + 2:
            gl = ["s_cbranch_vccnz k2_sdum"]
            for g in range(8):
                gl += [f"buffer_store_dwordx4 {vr(PL+g*4)}, v8, s[64:67], s87 offen sc1", "s_add_u32 s87, s87, s88"]
            gl += ["s_branch k2_sdone", "k2_sdum:"] + dummy(8) + ["k2_sdone:"]
            slots[39] += gl
            vm.issue("Q", 8)
        k = 0
        for h in range(2):
            for i in range(5):
                for n in range(4):
                    if not os.environ.get("NOMFMA"): mfma(ar((i*4+n)*4), A(b,h,i), vr(B(st&1,h,n)))
                    for l in slots[k]:
                        if os.environ.get("NODS") and l.startswith("ds_"): continue
                        if os.environ.get("NOA") and l.startswith("buffer") and not l.endswith("lds"): continue
                        if os.environ.get("NOC") and l.startswith("buffer") and l.endswith("lds"): continue
                        e(l)
                    k += 1
    stamp(2)
    stamp(3)
    e("s_nop 7")
    e("v_add_u32 v9, s46, v8")
    for n in range(4):
        for i in range(5):
            e(f"ds_write_b128 v9, {ar((i*4+n)*4)} offset:{(n*5+i)*1024}")
    e("s_mul_i32 s44, s16, 5120")
    e("v_add_u32 v9, s44, v8")
    e("v_add_u32 v10, 65536, v9")
    XR = 112
    for i in range(10):
        e(f"v_accvgpr_read_b32 v{XR+i}, a{80+i}")
    e("s_waitcnt lgkmcnt(0)")
    e("s_barrier")
    for src in range(4):
        for i in range(5):
            e(f"ds_read_b128 {vr(BUF+(src*5+i)*4)}, v{9 + (src>>1)} offset:{(src&1)*32768 + i*1024}")
    stamp(4)
    e("s_lshl_b32 s22, s19, 2")
    e("s_add_u32 s22, s22, s16")
    e("s_mul_i32 s23, s20, 5")
    hp_addr(11, 22, 23, [61, 62, 63, 64, 65])
    e("v_mov_b32 v17, 0")
    e("v_mov_b32 v18, 0")
    e("s_waitcnt vmcnt(0) lgkmcnt(0)")
    T = 124
    for i in range(5):
        def S(src, r): return BUF + (src*5+i)*4 + r
        for r in range(4):
            e(f"v_add_f32 v{T+r}, v{S(0,r)}, v{S(1,r)}")
            e(f"v_add_f32 v{T+4+r}, v{S(2,r)}, v{S(3,r)}")
        for r in range(4):
            bf16r(T+r, T+r)
            bf16r(T+4+r, T+4+r)
        for r in range(4):
            e(f"v_sub_f32 v{T+r}, v{T+r}, v{T+4+r}")
        for r in range(4):
            bf16r(T+r, T+r)
        e(f"v_lshlrev_b32 v{T+4}, 16, v{XR+2*i}")
        e(f"v_and_b32 v{T+5}, 0xffff0000, v{XR+2*i}")
        e(f"v_lshlrev_b32 v{T+6}, 16, v{XR+2*i+1}")
        e(f"v_and_b32 v{T+7}, 0xffff0000, v{XR+2*i+1}")
        for r in range(4):
            e(f"v_add_f32 v{T+r}, v{T+r}, v{T+4+r}")
        o = 136 + 2*i
        e(f"v_cvt_pk_bf16_f32 v{o}, v{T}, v{T+1}")
        e(f"v_cvt_pk_bf16_f32 v{o+1}, v{T+2}, v{T+3}")
        e(f"buffer_store_dwordx2 v[{o}:{o+1}], v11, s[48:51], s{61+i} offen")
        e(f"v_lshlrev_b32 v{T}, 16, v{o}")
        e(f"v_and_b32 v{T+1}, 0xffff0000, v{o}")
        e(f"v_lshlrev_b32 v{T+2}, 16, v{o+1}")
        e(f"v_and_b32 v{T+3}, 0xffff0000, v{o+1}")
        for r in range(4):
            e(f"v_add_f32 v17, v17, v{T+r}")
            e(f"v_fmac_f32 v18, v{T+r}, v{T+r}")
    e("v_xor_b32 v10, 16, v1")
    e("v_lshlrev_b32 v10, 2, v10")
    e("ds_bpermute_b32 v19, v10, v17")
    e("ds_bpermute_b32 v28, v10, v18")
    e("s_waitcnt lgkmcnt(0)")
    e("v_add_f32 v17, v17, v19")
    e("v_add_f32 v18, v18, v28")
    e("v_xor_b32 v10, 32, v1")
    e("v_lshlrev_b32 v10, 2, v10")
    e("ds_bpermute_b32 v19, v10, v17")
    e("ds_bpermute_b32 v28, v10, v18")
    e("s_waitcnt lgkmcnt(0)")
    e("v_add_f32 v30, v17, v19")
    e("v_add_f32 v31, v18, v28")
    e("s_lshl_b32 s22, s21, 3")
    e("s_lshl_b32 s23, s20, 14")
    e("s_add_u32 s22, s22, s23")
    e("v_lshlrev_b32 v10, 3, v2")
    e("s_mov_b32 exec_lo, 0x0000ffff")
    e("s_mov_b32 exec_hi, 0")
    e("buffer_store_dwordx2 v[30:31], v10, s[52:55], s22 offen")
    e("s_mov_b64 exec, -1")
    lab("k2_fin")
    stamp(5)
    stamp_dump(1, 6)
    if os.environ.get("K2ST"):
        for i in range(7, 15):
            e(f"v_mov_b32 v2, s{70+2*i}")
            e(f"v_mov_b32 v3, s{71+2*i}")
            e(f"buffer_store_dwordx2 v[2:3], v0, s[64:67], s68 offen offset:{i*8}")
        e("s_waitcnt vmcnt(0)")
    lab("k2_end")
    e("s_endpgm")

def gen_k4():
    kernel_begin("k4_kernel")
    e("s_cmp_ge_u32 s2, 256")
    e("s_cbranch_scc1 k4_end")
    stamp(0)
    e("s_load_dwordx2 s[4:5], s[0:1], 72")
    e("s_load_dwordx2 s[6:7], s[0:1], 88")
    lane_setup()
    e("s_and_b32 s19, s2, 7")
    e("s_lshr_b32 s20, s2, 3")
    e("s_lshr_b32 s21, s20, 3")
    e("s_lshl_b32 s19, s19, 2")
    e("s_add_u32 s19, s19, s21")
    e("s_and_b32 s20, s20, 7")
    e("v_lshlrev_b32 v8, 4, v1")
    e("s_mul_i32 s22, s19, 196608")
    e("v_add_u32 v4, s22, v8")
    for n in range(1, 4):
        e(f"v_add_u32 v{4+n}, {n*49152}, v4")
    e("s_mul_i32 s22, s20, 245760")
    e("v_add_u32 v12, s22, v8")
    for i in range(1, 5):
        e(f"v_add_u32 v{12+i}, {i*49152}, v12")
    e("s_mul_i32 s41, s16, 12")
    e("s_lshr_b32 s40, s2, 3")
    e("s_mul_i32 s44, s40, 43691")
    e("s_lshr_b32 s44, s44, 19")
    e("s_mul_i32 s44, s44, 12")
    e("s_sub_u32 s40, s40, s44")
    e("s_waitcnt lgkmcnt(0)")
    srd(28, 6, SZ_ACT, WS_ACT)
    srd(32, 6, SZ_WDN, WS_WDN)
    NSL, AH = 8, 7
    def slot(b, k):
        if b < 6: return vr(32 + b * 36 + k * 4)
        return ar(80 + (b - 6) * 36 + k * 4)
    vm = VM()
    def issue(t):
        o = ["s_add_u32 s44, s40, s41", "s_lshl_b32 s42, s44, 10", "s_add_u32 s40, s40, 1",
             "s_cmp_ge_u32 s40, 12", "s_cselect_b32 s40, 0, s40"]
        b = t % NSL
        for n in range(4):
            o.append(f"buffer_load_dwordx4 {slot(b,5+n)}, v{4+n}, s[28:31], s42 offen")
        for i in range(5):
            o.append(f"buffer_load_dwordx4 {slot(b,i)}, v{12+i}, s[32:35], s42 offen")
        vm.issue(("S", t), 9)
        return o
    for t in range(AH):
        for l in issue(t): e(l)
    stamp(1)
    srd(24, 4, 2621440)
    srd(48, 6, SZ_HP, WS_HP)
    for a in range(80):
        e(f"v_accvgpr_write_b32 a{a}, 0")
    e("v_lshrrev_b32 v18, 2, v1")
    e("v_and_b32 v19, 3, v1")
    e("s_lshl_b32 s22, s19, 2")
    e("s_add_u32 s22, s22, s16")
    e("s_mul_i32 s23, s22, 20480")
    e("s_mul_i32 s45, s20, 2560")
    e("s_add_u32 s45, s45, s23")
    e("v_lshlrev_b32 v20, 4, v18")
    e("v_lshl_add_u32 v20, v19, 8, v20")
    e("v_and_b32 v21, 1, v1")
    e("v_lshlrev_b32 v22, 4, v18")
    e("v_lshl_add_u32 v21, v21, 8, v22")
    e("s_mul_i32 s46, s20, 160")
    e("s_add_u32 s46, s46, s23")
    e("v_mul_u32_u24 v22, 1280, v18")
    e("v_lshl_add_u32 v22, v19, 4, v22")
    if os.environ.get("OT"):
        e("buffer_load_dword v26, v22, s[24:27], s46 offen")
        vm.issue("O", 1)
    e("s_mul_i32 s47, s16, 23040")
    e("v_mul_u32_u24 v23, 288, v3")
    e("v_lshl_add_u32 v23, v2, 4, v23")
    e("v_add_u32 v23, s47, v23")
    e("s_mul_i32 s47, s16, 5760")
    e("v_mul_u32_u24 v24, 576, v19")
    e("v_lshl_add_u32 v24, v18, 4, v24")
    e("v_add_u32 v24, s47, v24")
    e("v_add_u32 v25, 46080, v24")
    HR = 152
    for t in range(12):
        b = t % NSL
        e(f"s_waitcnt vmcnt({vm.younger([('S', t)])})")
        ld = []
        if t + AH < 12:
            ld = issue(t + AH)
        elif t == 12 - AH:
            ld = [f"buffer_load_dwordx4 {ar(HR)}, v20, s[48:51], s45 offen",
                  f"buffer_load_dwordx4 {ar(HR+4)}, v20, s[48:51], s45 offen offset:1024",
                  f"buffer_load_dwordx4 {ar(HR+8)}, v21, s[48:51], s45 offen offset:2048"]
            vm.issue("H", 3)
        grp = []; groups = []
        for l in ld:
            grp.append(l)
            if l.startswith("buffer"):
                groups.append(grp); grp = []
        k = 0
        for i in range(5):
            for n in range(4):
                mfma(ar((i*4+n)*4), slot(b, i), slot(b, 5+n))
                k += 1
                if k % 2 == 0 and groups:
                    for l in groups.pop(0): e(l)
        assert not groups
    stamp(2)
    stamp(3)
    e("s_nop 7")
    e("s_nop 7")
    for n in range(4):
        for i in range(5):
            e(f"ds_write_b128 v23, {ar((i*4+n)*4)} offset:{(n*5+i)*1152}")
    XR = 128
    e("s_waitcnt vmcnt(0)")
    for r in range(12):
        e(f"v_accvgpr_read_b32 v{XR+r}, a{HR+r}")
    e("s_waitcnt lgkmcnt(0)")
    e("s_barrier")
    def S(src, j, hf): return 32 + ((j * 4 + src) * 2 + hf) * 4
    for j in range(3):
        for src in range(4):
            for hf in range(2):
                e(f"ds_read_b128 {vr(S(src,j,hf))}, v{24 + (src>>1)} offset:{(src&1)*23040 + j*2304 + hf*288}")
    stamp(4)
    for j in range(3):
        e(f"s_waitcnt lgkmcnt({min(15,(2-j)*8)})")
        T = 144 + j * 16
        for hf in range(2):
            for p in (0, 2):
                e(f"v_pk_add_f32 v[{T+hf*4+p}:{T+hf*4+p+1}], v[{S(0,j,hf)+p}:{S(0,j,hf)+p+1}], v[{S(1,j,hf)+p}:{S(1,j,hf)+p+1}]")
                e(f"v_pk_add_f32 v[{T+8+hf*4+p}:{T+8+hf*4+p+1}], v[{S(2,j,hf)+p}:{S(2,j,hf)+p+1}], v[{S(3,j,hf)+p}:{S(3,j,hf)+p+1}]")
        for p in range(0, 8, 2):
            e(f"v_pk_add_f32 v[{T+p}:{T+p+1}], v[{T+p}:{T+p+1}], v[{T+8+p}:{T+8+p+1}]")
        for p in range(4):
            e(f"v_cvt_pk_bf16_f32 v{T+8+p}, v{T+2*p}, v{T+2*p+1}")
        for p in range(4):
            e(f"v_lshlrev_b32 v{T+2*p}, 16, v{T+8+p}")
            e(f"v_and_b32 v{T+2*p+1}, 0xffff0000, v{T+8+p}")
        for p in range(4):
            e(f"v_lshlrev_b32 v{T+8+2*p}, 16, v{XR+4*j+p}")
            e(f"v_and_b32 v{T+8+2*p+1}, 0xffff0000, v{XR+4*j+p}")
        for p in range(0, 8, 2):
            e(f"v_pk_add_f32 v[{T+p}:{T+p+1}], v[{T+p}:{T+p+1}], v[{T+8+p}:{T+8+p+1}]")
        O = 192 + 4 * j
        for p in range(4):
            e(f"v_cvt_pk_bf16_f32 v{O+p}, v{T+2*p}, v{T+2*p+1}")
        if j == 2:
            e("s_mov_b32 exec_lo, 0x33333333")
            e("s_mov_b32 exec_hi, 0x33333333")
        e(f"buffer_store_dwordx4 {vr(O)}, v22, s[24:27], s46 offen offset:{j*64}")
    e("s_mov_b64 exec, -1")
    stamp(5)
    stamp_dump(3, 6)
    lab("k4_end")
    e("s_endpgm")

class VM:
    def __init__(self): self.q = []
    def issue(self, tag, n=1): self.q += [tag] * n
    def younger(self, tags):
        last = max(i for i, t in enumerate(self.q) if t in tags)
        return min(63, len(self.q) - 1 - last)

def gen_k3():
    kernel_begin("k3_kernel")
    e("s_cmp_ge_u32 s2, 256")
    e("s_cbranch_scc1 k3_end")
    stamp(0)
    e("s_load_dwordx2 s[6:7], s[0:1], 88")
    lane_setup()
    e("s_and_b32 s19, s2, 7")
    e("s_lshr_b32 s20, s2, 3")
    e("s_and_b32 s21, s20, 1")
    e("s_lshl_b32 s19, s19, 1")
    e("s_add_u32 s19, s19, s21")
    e("s_lshr_b32 s20, s20, 1")
    e(f"s_mov_b32 s17, {INV640}")
    e(f"s_mov_b32 s18, {EPS}")
    e("s_mov_b32 s62, 0x3f803f80")
    e("v_lshlrev_b32 v8, 4, v1")
    e("s_mul_i32 s21, s20, 12")
    e("s_mul_i32 s23, s16, 3")
    e("s_add_u32 s21, s21, s23")
    e("s_mul_i32 s22, s21, 20480")
    e("v_add_u32 v4, s22, v8")
    e("v_add_u32 v5, 20480, v4")
    e("v_add_u32 v6, 40960, v4")
    e("s_mul_i32 s22, s19, 163840")
    e("s_mul_i32 s23, s16, 40960")
    e("s_add_u32 s22, s22, s23")
    e("v_lshlrev_b32 v9, 3, v1")
    e("s_lshl_b32 s48, s19, 10")
    e("s_waitcnt lgkmcnt(0)")
    srd(24, 6, SZ_HP, WS_HP)
    srd(32, 6, SZ_WGU, WS_WGU)
    srd(28, 6, SZ_HSTAT, WS_HSTAT)
    vm = VM()
    D = 6
    WB = 88
    ACC3 = 160
    def Wf(kk, i): return WB + ((kk % D) * 3 + i) * 4
    def Hf(b, n): return (b * 8 + n) * 4
    def hdma_l(g, t):
        o = []
        base = t * 20480 + g * 5120
        o.append(f"s_add_u32 m0, s23, {base}")
        o.append(f"s_add_u32 s44, s22, {base}")
        for u in range(4):
            o.append(f"buffer_load_dwordx4 v8, s[24:27], s44 offen offset:{u*1024} lds")
        o.append(f"s_add_u32 m0, s23, {base+4096}")
        o.append(f"s_add_u32 s44, s22, {base+4096}")
        o.append("buffer_load_dwordx4 v8, s[24:27], s44 offen lds")
        vm.issue(("H", g), 5)
        return o
    def hdma(g):
        for t in range(2):
            for l in hdma_l(g, t): e(l)
    def wload(kk):
        out = []
        if kk >= 4:
            out.append(f"s_mov_b32 s{45+(kk&1)}, {kk*1024}")
        for i in range(3):
            if kk < 4:
                out.append(f"buffer_load_dwordx4 {vr(Wf(kk,i))}, v{4+i}, s[32:35], 0 offen offset:{kk*1024}")
            else:
                out.append(f"buffer_load_dwordx4 {vr(Wf(kk,i))}, v{4+i}, s[32:35], s{45+(kk&1)} offen")
        vm.issue(("W", kk), 3)
        return out
    hdma(0)
    for kk in range(3):
        for l in wload(kk): e(l)
    for j in range(2):
        for eb in range(8):
            e(f"s_add_u32 s44, s48, {eb*16384 + j*512}")
            e(f"buffer_load_dwordx2 v[{40+(j*8+eb)*2}:{41+(j*8+eb)*2}], v9, s[28:31], s44 offen")
    vm.issue("S", 16)
    for kk in range(3, D):
        for l in wload(kk): e(l)
    srd(36, 6, SZ_ACT, WS_ACT)
    for a in range(96):
        e(f"v_mov_b32 v{ACC3+a}, 0")
    for r in range(24, 36):
        e(f"v_mov_b32 v{r}, 0")
    for r in range(16, 20):
        e(f"v_mov_b32 v{r}, 0x3f803f80")
    e("v_add_u32 v10, 65536, v8")
    e("v_add_u32 v11, 131072, v8")
    def hread(kk):
        o = []
        for n in range(8):
            off = (n * 20 + kk) * 1024
            base = 8 if off < 65536 else (10 if off < 131072 else 11)
            o.append(f"ds_read_b128 {ar(Hf(kk&1,n))}, v{base} offset:{off % 65536}")
        return o
    stamp(1)
    e(f"s_waitcnt vmcnt({vm.younger(['S'])})")
    for j in range(2):
        b = 40 + j * 16
        for k in (2, 4, 6, 8, 10, 12, 14):
            e(f"v_pk_add_f32 v[{b}:{b+1}], v[{b}:{b+1}], v[{b+k}:{b+k+1}]")
        ln_stats(b, b+1, 36+2*j, 37+2*j, 12)
    e("v_lshlrev_b32 v12, 2, v2")
    for t in range(8):
        e(f"ds_bpermute_b32 v{72+2*t}, v12, v{36+2*(t>>2)} offset:{(t&3)*64}")
        e(f"ds_bpermute_b32 v{73+2*t}, v12, v{37+2*(t>>2)} offset:{(t&3)*64}")
    e(f"s_waitcnt vmcnt({vm.younger([('H',0)])}) lgkmcnt(0)")
    stamp(2)
    e("s_barrier")
    stamp(3)
    for l in hread(0): e(l)
    for kk in range(20):
        need = [("W", kk)]
        bar = False
        if kk + 1 < 20 and (kk + 1) % 5 == 0:
            need.append(("H", (kk + 1) // 5)); bar = True
        e(f"s_waitcnt vmcnt({vm.younger(need)}) lgkmcnt(0)")
        if bar: e("s_barrier")
        slots = [[] for _ in range(27)]
        if kk + 1 < 20:
            for j, l in enumerate(hread(kk + 1)):
                slots[j].append(l)
        if kk < 6:
            grp = []; g = 0
            for l in hdma_l(1 + kk // 2, kk & 1):
                grp.append(l)
                if l.startswith("buffer"):
                    slots[1 + g * 5] += grp; grp = []; g += 1
        k = 0
        for n in range(8):
            for i in range(3):
                mfma(vr(ACC3+(i*8+n)*4), vr(Wf(kk,i)), ar(Hf(kk&1,n)))
                for l in slots[k]: e(l)
                k += 1
        for i in range(3):
            mfma(vr(24+4*i), vr(Wf(kk,i)), vr(16))
            for l in slots[k]: e(l)
            k += 1
        if kk + D < 20:
            for l in wload(kk + D): e(l)
        if kk == 14:
            srd(52, 6, SZ_WDN, WS_WDN)
            e("s_lshr_b32 s50, s2, 3")
            e("s_lshl_b32 s50, s50, 2")
            e("s_add_u32 s50, s50, s16")
            e("s_mul_i32 s50, s50, 15360")
            e("v_lshlrev_b32 v41, 6, v1")
        if 14 <= kk < 18:
            e(f"buffer_load_dword v40, v41, s[52:55], s50 offen")
            vm.issue("P", 1)
            e("s_add_u32 s50, s50, 4096")
    stamp(4)
    e("v_mul_u32_u24 v9, 49152, v3")
    e("v_lshl_add_u32 v9, v2, 4, v9")
    e("s_mul_i32 s22, s19, 393216")
    e("s_lshl_b32 s23, s21, 8")
    e("s_add_u32 s22, s22, s23")
    e("v_mov_b32 v36, 0xbdd2d3e8")
    e("v_mov_b32 v37, 0xc0135761")
    e("s_nop 7")
    e("s_nop 7")
    stamp(5)
    gi = 0
    for i in range(3):
        for n0 in (0, 4):
            TB = 88 + (gi & 1) * 32
            O = TB + 16
            gi += 1
            lists = []
            for g in range(4):
                n = n0 + g
                A = ACC3 + (i*8+n)*4
                S = 72 + 2*n
                WS = 24 + i*4
                t0 = TB + g*4; t2 = TB + g*4 + 2
                l = []
                for p in (0, 2):
                    l.append(f"v_pk_fma_f32 v[{A+p}:{A+p+1}], v[{S}:{S+1}], v[{WS+p}:{WS+p+1}], v[{A+p}:{A+p+1}] op_sel:[0,0,0] op_sel_hi:[0,1,1] neg_lo:[1,0,0] neg_hi:[1,0,0]")
                for p in (0, 2):
                    l.append(f"v_pk_mul_f32 v[{A+p}:{A+p+1}], v[{A+p}:{A+p+1}], v[{S}:{S+1}] op_sel:[0,1] op_sel_hi:[1,1]")
                l.append(f"v_cvt_pk_bf16_f32 v{t0}, v{A}, v{A+1}")
                l.append(f"v_cvt_pk_bf16_f32 v{t0+1}, v{A+2}, v{A+3}")
                l.append(f"v_lshlrev_b32 v{A}, 16, v{t0}")
                l.append(f"v_and_b32 v{A+1}, 0xffff0000, v{t0}")
                l.append(f"v_lshlrev_b32 v{A+2}, 16, v{t0+1}")
                l.append(f"v_and_b32 v{A+3}, 0xffff0000, v{t0+1}")
                l.append(f"v_pk_mul_f32 v[{t2}:{t2+1}], v[{A}:{A+1}], v[{A}:{A+1}]")
                l.append(f"v_pk_fma_f32 v[{t2}:{t2+1}], v[{t2}:{t2+1}], v[36:37], v[36:37] op_sel:[0,0,1] op_sel_hi:[1,0,1]")
                l.append(f"v_pk_mul_f32 v[{t2}:{t2+1}], v[{t2}:{t2+1}], v[{A}:{A+1}]")
                l.append(f"v_exp_f32 v{t2}, v{t2}")
                l.append(f"v_exp_f32 v{t2+1}, v{t2+1}")
                l.append(f"v_add_f32 v{t2}, 1.0, v{t2}")
                l.append(f"v_add_f32 v{t2+1}, 1.0, v{t2+1}")
                l.append(f"v_rcp_f32 v{t2}, v{t2}")
                l.append(f"v_rcp_f32 v{t2+1}, v{t2+1}")
                l.append(f"v_pk_mul_f32 v[{t2}:{t2+1}], v[{t2}:{t2+1}], v[{A}:{A+1}]")
                l.append(f"v_cvt_pk_bf16_f32 v{t0}, v{t2}, v{t2+1}")
                l.append(f"v_lshlrev_b32 v{t2}, 16, v{t0}")
                l.append(f"v_and_b32 v{t2+1}, 0xffff0000, v{t0}")
                l.append(f"v_pk_mul_f32 v[{t2}:{t2+1}], v[{t2}:{t2+1}], v[{A+2}:{A+3}]")
                l.append(f"v_cvt_pk_bf16_f32 v{O+g}, v{t2}, v{t2+1}")
                lists.append(l)
            for k in range(len(lists[0])):
                for g in range(4): e(lists[g][k])
            e("s_nop 1")
            e(f"v_permlane16_swap_b32 v{O}, v{O+1}")
            e(f"v_permlane16_swap_b32 v{O+2}, v{O+3}")
            e("s_nop 1")
            e(f"v_permlane32_swap_b32 v{O}, v{O+2}")
            e(f"v_permlane32_swap_b32 v{O+1}, v{O+3}")
            e(f"s_add_u32 s44, s22, {n0*49152 + i*256}")
            e("s_nop 1")
            e(f"buffer_store_dwordx4 {vr(O)}, v9, s[36:39], s44 offen")
    stamp(6)
    stamp_dump(2, 7)
    lab("k3_end")
    e("s_endpgm")

def descriptor(name, vgpr, accum, sgpr=102):
    raw(f".amdhsa_kernel {name}")
    raw(f"  .amdhsa_next_free_vgpr {vgpr}")
    raw(f"  .amdhsa_next_free_sgpr {sgpr}")
    raw(f"  .amdhsa_accum_offset {accum}")
    raw("  .amdhsa_group_segment_fixed_size 0")
    raw("  .amdhsa_kernarg_size 96")
    raw("  .amdhsa_user_sgpr_count 2")
    raw("  .amdhsa_user_sgpr_kernarg_segment_ptr 1")
    raw("  .amdhsa_system_sgpr_workgroup_id_x 1")
    raw(".end_amdhsa_kernel")

def main():
    raw("; 4-kernel pipeline: K1 LN1+hidden DFT GEMM, K2 seq DFT GEMM + residual, K3 LN2+gate/up GEMM+GEGLU, K4 down GEMM + residual")
    raw("; @launch kernel=k1_kernel grid=(256,1,1) block=(256,1,1) lds=152832")
    raw("; @launch kernel=k2_kernel grid=(256,1,1) block=(256,1,1) lds=156032")
    raw("; @launch kernel=k3_kernel grid=(256,1,1) block=(256,1,1) lds=163840")
    raw("; @launch kernel=k4_kernel grid=(256,1,1) block=(256,1,1) lds=94208")
    raw('.amdgcn_target "amdgcn-amd-amdhsa--gfx950"')
    raw(".text")
    gen_k1(); gen_k2(); gen_k3(); gen_k4()
    raw('.section .rodata,"a"')
    raw(".p2align 6")
    descriptor("k1_kernel", 348, 160)
    raw(".p2align 6")
    descriptor("k2_kernel", 432, 256)
    raw(".p2align 6")
    descriptor("k3_kernel", 320, 256)
    raw(".p2align 6")
    descriptor("k4_kernel", 424, 256)
    out = sys.argv[1] if len(sys.argv) > 1 else f"cdna_kernels/{NAME}.s"
    NOSC = os.environ.get("NOSC", "").split(",")
    LL = [ (l + " sc1") if ("buffer_store" in l and "s[64:67]" not in l and not any(x and x in l for x in NOSC)) else l for l in L]
    open(out, "w").write("\n".join(LL) + "\n")

main()
```

```python
import sys

L = []
def e(s): L.append("    " + s)
def lab(s): L.append(s + ":")
def raw(s): L.append(s)

NAME = "sequential_preLN__spectral_fnet__geglu_ffn__prompt"

WS_ABP = 0
SZ_ABP = 80 * 64 * 1024
WS_HP = 0x500000
SZ_HP = 128 * 20 * 1024
WS_HSTAT = 0x780000
SZ_HSTAT = 2048 * 8 * 8
WS_ACT = 0x800000
SZ_ACT = 128 * 48 * 1024
WS_WGU = 0xE00000
WSUM_OFF = 192 * 20 * 1024
SZ_WGU = WSUM_OFF + 192 * 4 * 64
WS_WDN = 0x1200000
SZ_WDN = 40 * 48 * 1024

INV640 = 0x3ACCCCCD
EPS = 0x3727C5AC

import os
DIAG = os.environ.get("DIAG", "0") == "1"
WS_DIAG = 0x3000000
def stamp(i):
    if DIAG:
        e(f"s_memtime s[{70+2*i}:{71+2*i}]")
        e("s_waitcnt lgkmcnt(0)")
def stamp_dump(kidx, n):
    if not DIAG: return
    e("s_waitcnt vmcnt(0)")
    stamp(n)
    e(f"s_add_u32 s64, s6, {WS_DIAG + kidx*0x40000}")
    e("s_addc_u32 s65, s7, 0")
    e("s_mov_b32 s66, 0x40000")
    e("s_mov_b32 s67, 0x20000")
    e("s_lshl_b32 s68, s2, 2")
    e("s_add_u32 s68, s68, s16")
    e("s_lshl_b32 s68, s68, 8")
    e("v_mov_b32 v0, 0")
    e("s_mov_b64 exec, 1")
    for i in range(n+1):
        e(f"v_mov_b32 v2, s{70+2*i}")
        e(f"v_mov_b32 v3, s{71+2*i}")
        e(f"buffer_store_dwordx2 v[2:3], v0, s[64:67], s68 offen offset:{i*8}")
    e("s_waitcnt vmcnt(0)")

def srd(d, lo, size, off=0):
    if off:
        e(f"s_add_u32 s{d}, s{lo}, {off}")
        e(f"s_addc_u32 s{d+1}, s{lo+1}, 0")
    else:
        e(f"s_mov_b32 s{d}, s{lo}")
        e(f"s_mov_b32 s{d+1}, s{lo+1}")
    e(f"s_mov_b32 s{d+2}, {size}")
    e(f"s_mov_b32 s{d+3}, 0x20000")

def bf16r(dst, src):
    e(f"v_cvt_pk_bf16_f32 v{dst}, v{src}, v{src}")
    e(f"v_lshlrev_b32 v{dst}, 16, v{dst}")

def vr(b, n=4): return f"v[{b}:{b+n-1}]"
def ar(b, n=4): return f"a[{b}:{b+n-1}]"

def mfma(d, a, b, c=None):
    c = d if c is None else c
    if L and L[-1].split()[0] in ("v_exp_f32", "v_rcp_f32", "v_sqrt_f32", "v_rsq_f32"): e("s_nop 1")
    e(f"v_mfma_f32_16x16x32_bf16 {d}, {a}, {b}, {c}")

def kernel_begin(name):
    raw(f".globl {name}")
    raw(".p2align 8")
    raw(f".type {name},@function")
    lab(name)

def lane_setup():
    e("v_lshrrev_b32 v4, 6, v0")
    e("v_and_b32 v1, 63, v0")
    e("v_readfirstlane_b32 s16, v4")
    e("v_and_b32 v2, 15, v1")
    e("v_lshrrev_b32 v3, 4, v1")

def ln_stats(vsum, vsq, vm, vrd, t):
    e(f"v_mul_f32 v{vm}, s17, v{vsum}")
    e(f"v_mul_f32 v{t}, s17, v{vsq}")
    e(f"v_fma_f32 v{t}, -v{vm}, v{vm}, v{t}")
    e(f"v_max_f32 v{t}, 0, v{t}")
    bf16r(vm, vm)
    bf16r(t, t)
    e(f"v_add_f32 v{t}, s18, v{t}")
    bf16r(t, t)
    e(f"v_sqrt_f32 v{t}, v{t}")
    e("s_nop 0")
    bf16r(t, t)
    e(f"v_rcp_f32 v{vrd}, v{t}")
    e("s_nop 0")

def gen_k1():
    kernel_begin("k1_kernel")
    e("s_cmp_ge_u32 s2, 256")
    e("s_cbranch_scc1 k1_end")
    stamp(0)
    e("s_load_dwordx2 s[4:5], s[0:1], 0")
    e("s_load_dwordx2 s[8:9], s[0:1], 24")
    e("s_load_dwordx2 s[10:11], s[0:1], 32")
    e("s_load_dwordx2 s[6:7], s[0:1], 88")
    e("s_load_dwordx4 s[56:59], s[0:1], 8")
    lane_setup()
    e("s_and_b32 s19, s2, 3")
    e("s_lshl_b32 s19, s19, 2")
    e("s_bfe_u32 s21, s2, 0x20003")
    e("s_add_u32 s19, s19, s21")
    e("s_lshr_b32 s22, s2, 5")
    e("s_bfe_u32 s20, s2, 0x10002")
    e("s_lshl_b32 s20, s20, 3")
    e("s_add_u32 s20, s20, s22")
    e("s_add_u32 s48, s21, s22")
    e("v_lshlrev_b32 v15, 4, v1")
    e("v_lshrrev_b32 v25, 3, v1")
    e("v_and_b32 v26, 7, v1")
    e("v_xor_b32 v26, v26, v25")
    e("v_mul_u32_u24 v25, 1280, v25")
    e("v_lshl_add_u32 v25, v26, 4, v25")
    e("s_and_b32 s21, s20, 7")
    e("s_mul_i32 s21, s21, 102400")
    e("s_and_b32 s22, s16, 1")
    e("s_mul_i32 s22, s22, 51200")
    e("s_add_u32 s21, s21, s22")
    e("s_lshr_b32 s22, s16, 1")
    e("s_lshl_b32 s22, s22, 7")
    e("s_add_u32 s21, s21, s22")
    e("v_add_u32 v4, s21, v25")
    e("s_lshl_b32 s21, s19, 7")
    e("s_lshl_b32 s22, s16, 5")
    e("s_add_u32 s21, s21, s22")
    e("s_mul_i32 s21, s21, 1280")
    e("v_add_u32 v5, s21, v25")
    for j in range(1, 4):
        e(f"v_add_u32 v{5+j}, {j*10240 - j*1024}, v5")
    e("s_mul_i32 s46, s16, 12288")
    e("s_add_u32 s46, s46, 102400")
    e("s_mul_i32 s47, s16, 5120")
    e("s_mul_i32 s49, s48, 205")
    e("s_lshr_b32 s49, s49, 10")
    e("s_mul_i32 s49, s49, 5")
    e("s_sub_u32 s49, s48, s49")
    if os.environ.get("K1NOROT"): e("s_mov_b32 s49, 0")
    for sc in range(5):
        e(f"s_lshl_b32 s{50+sc}, s49, 8")
        e("s_add_u32 s49, s49, 1")
        e("s_cmp_ge_u32 s49, 5")
        e("s_cselect_b32 s49, 0, s49")
    e("s_waitcnt lgkmcnt(0)")
    srd(24, 4, 2621440)
    e("s_cmp_lt_u32 s20, 8")
    e("s_cselect_b32 s28, s8, s10")
    e("s_cselect_b32 s29, s9, s11")
    e("s_mov_b32 s30, 819200")
    e("s_mov_b32 s31, 0x20000")
    vm = VM()
    XS = 76
    def wdma(sc):
        o = []
        for u in range(5):
            o.append(f"s_add_u32 m0, s47, {sc*20480 + u*1024}")
            o.append(f"s_add_u32 s23, s{50+sc}, {u*10240}")
            o.append("buffer_load_dwordx4 v4, s[28:31], s23 offen lds")
        vm.issue(("W", sc), 5)
        return o
    def xld(c):
        if c < 3:
            o = [f"s_add_u32 m0, s46, {(c%3)*4096}", f"s_add_u32 s22, s{50+(c>>1)}, {(c&1)*128}"]
            for j in range(4):
                o.append(f"buffer_load_dwordx4 v{5+j}, s[24:27], s22 offen offset:{j*1024} lds")
        else:
            o = [f"s_add_u32 s22, s{50+(c>>1)}, {(c&1)*128}"]
            for j in range(4):
                o.append(f"buffer_load_dwordx4 {ar(XS+(c-3)*16+j*4)}, v{5+j}, s[24:27], s22 offen offset:{j*1024}")
        vm.issue(("X", c), 4)
        return o
    for l in wdma(0) + xld(0) + xld(1): e(l)
    e(f"s_mov_b32 s17, {INV640}")
    e(f"s_mov_b32 s18, {EPS}")
    e("v_and_b32 v26, 7, v2")
    e("v_xor_b32 v26, v26, v3")
    e("v_lshlrev_b32 v11, 7, v2")
    e("v_lshl_add_u32 v11, v26, 4, v11")
    e("v_xor_b32 v12, 64, v11")
    e("v_add_u32 v13, 61440, v11")
    e("v_add_u32 v14, 61440, v12")
    e("v_add_u32 v9, s46, v11")
    e("v_add_u32 v10, s46, v12")
    srd(32, 6, SZ_ABP, WS_ABP)
    TST = [int(x) for x in os.environ.get("TST", "3,3").split(",")]
    PL, PO, PA = 144, 176, 144
    e(f"v_add_u32 v{PA+8}, s46, v15")
    e("s_cmp_lt_u32 s2, 128")
    e("s_cselect_b32 s56, s56, s58")
    e("s_cselect_b32 s57, s57, s59")
    e("s_mov_b32 s58, 8388608")
    e("s_mov_b32 s59, 0x20000")
    e("s_and_b32 s21, s2, 7")
    e("s_bfe_u32 s22, s2, 0x20005")
    e("s_lshl_b32 s21, s21, 2")
    e("s_add_u32 s21, s21, s22")
    e("s_lshl_b32 s21, s21, 2")
    e("s_bfe_u32 s22, s2, 0x20003")
    e("s_add_u32 s21, s21, s22")
    e("s_lshl_b32 s21, s21, 2")
    e("s_add_u32 s21, s21, s16")
    e("s_lshl_b32 s91, s21, 14")
    e(f"v_lshlrev_b32 v{PA+10}, 7, v1")
    def touch():
        if os.environ.get("NOPF"): return []
        vm.issue("T", 1)
        return [f"buffer_load_dword v{PA+11}, v{PA+10}, s[56:59], s91 offen", "s_add_u32 s91, s91, 8192"]
    for t in TST:
        if t == -1:
            for l in touch(): e(l)
    for a in range(76):
        e(f"v_accvgpr_write_b32 a{a}, 0")
    ONES = 16
    for r in range(4):
        e(f"v_mov_b32 v{ONES+r}, 0x3f803f80")
    FB = 32
    def XF(b, st, h): return FB + b * 56 + (st * 2 + h) * 4
    def WF(b, i, h): return FB + b * 56 + 16 + (i * 2 + h) * 4
    def fread(c):
        o = []
        b = c & 1
        for h in range(2):
            for st in range(2):
                o.append(f"ds_read_b128 {vr(XF(b,st,h))}, v{9+h} offset:{(c%3)*4096 + st*2048}")
            for i in range(5):
                off = c * 10240 + i * 2048
                if off < 61440:
                    o.append(f"ds_read_b128 {vr(WF(b,i,h))}, v{11+h} offset:{off}")
                else:
                    o.append(f"ds_read_b128 {vr(WF(b,i,h))}, v{13+h} offset:{off-61440}")
        return o
    stamp(1)
    e(f"s_waitcnt vmcnt({vm.younger([('W',0),('X',0)])})")
    e("s_barrier")
    stamp(2)
    for l in fread(0): e(l)
    for c in range(10):
        b = c & 1
        need = []
        if c + 1 <= 2: need.append(("X", c + 1))
        if c + 1 < 10: need.append(("W", (c + 1) >> 1))
        if 3 <= c + 2 <= 9: need.append(("X", c + 2))
        if need and c < 8:
            e(f"s_waitcnt vmcnt({vm.younger(need)}) lgkmcnt(0)")
        else:
            e("s_waitcnt lgkmcnt(0)")
        if c in (1, 3, 5, 7): e("s_barrier")
        NM = 28
        slots = [[] for _ in range(NM)]
        if c + 1 < 10:
            for j, l in enumerate(fread(c + 1)):
                slots[j].append(l)
        if 3 <= c + 2 <= 9:
            for j in range(4):
                slots[14 + j].append(f"ds_write_b128 v{PA+8}, {ar(XS+(c-1)*16+j*4)} offset:{((c+2)%3)*4096 + j*1024}")
        lst = []
        if c < 4: lst = wdma(c + 1) + xld(2 * c + 2) + xld(2 * c + 3)
        for t in TST:
            if t == c: lst += touch()
        groups = []; grp = []
        for l in lst:
            if grp and any(x.startswith("buffer") for x in grp) and not (l.startswith("s_add_u32 s8") or l.startswith("s_add_u32 s9")):
                groups.append(grp); grp = []
            grp.append(l)
        if grp: groups.append(grp)
        for g, gl in enumerate(groups):
            slots[g] = gl + slots[g]
        ml = []
        for h in range(2):
            for i in range(5):
                for st in range(2):
                    ml.append((ar((st*5+i)*4), vr(XF(b,st,h)), vr(WF(b,i,h))))
            for st in range(2):
                ml.append((ar(40+4*st), vr(XF(b,st,h)), vr(ONES)))
                ml.append((ar(48+4*st), vr(XF(b,st,h)), vr(XF(b,st,h))))
        for k, m in enumerate(ml):
            mfma(*m)
            for l in slots[k]: e(l)
        for wv in range(4):
            e(f"s_cmp_lg_u32 s16, {wv}")
            e(f"s_cbranch_scc1 k1_ws{c}_{wv}")
            for i in range(5):
                for h in range(2):
                    if (c * 2 + i * 2 + h) % 4 == wv:
                        mfma(ar(56+4*i), vr(ONES), vr(WF(b,i,h)))
            lab(f"k1_ws{c}_{wv}")
    stamp(3)
    WX = 151552
    e("s_nop 7")
    e("s_nop 7")
    for i in range(5):
        e(f"v_accvgpr_read_b32 v{20+i}, a{56+4*i}")
    e("v_lshlrev_b32 v25, 2, v2")
    e("s_mul_i32 s21, s16, 320")
    e(f"s_add_u32 s21, s21, {WX}")
    e("v_add_u32 v26, s21, v25")
    for i in range(5):
        e(f"ds_write_b32 v26, v{20+i} offset:{i*64}")
    e("v_mul_u32_u24 v12, 80, v3")
    for st in range(2):
        for r in range(4):
            e(f"v_accvgpr_read_b32 v{32+st*4+r}, a{40+4*st+r}")
            e(f"v_accvgpr_read_b32 v{40+st*4+r}, a{48+4*st+r}")
    e("s_nop 1")
    for st in range(2):
        for r in range(4):
            e(f"ds_bpermute_b32 v{40+st*4+r}, v12, v{40+st*4+r} offset:{4*r}")
    e(f"v_add_u32 v26, {WX}, v25")
    e("s_waitcnt lgkmcnt(0)")
    e("s_barrier")
    for wv in range(4):
        for i in range(5):
            e(f"ds_read_b32 v{124+wv*5+i}, v26 offset:{wv*320 + i*64}")
    for st in range(2):
        for r in range(4):
            ln_stats(32+st*4+r, 40+st*4+r, 52+st*4+r, 60+st*4+r, 48)
    e("s_waitcnt lgkmcnt(0)")
    for i in range(5):
        e(f"v_add_f32 v{20+i}, v{124+i}, v{129+i}")
        e(f"v_add_f32 v{124+i}, v{134+i}, v{139+i}")
        e(f"v_add_f32 v{20+i}, v{20+i}, v{124+i}")
    e("v_and_b32 v26, 1, v3")
    e("v_lshlrev_b32 v26, 9, v26")
    e("v_lshrrev_b32 v27, 1, v3")
    e("v_lshl_add_u32 v26, v27, 8, v26")
    e("v_lshl_add_u32 v26, v2, 4, v26")
    e("s_mul_i32 s21, s20, 320")
    e("s_lshl_b32 s22, s19, 2")
    e("s_add_u32 s21, s21, s22")
    e("s_add_u32 s21, s21, s16")
    e("s_lshl_b32 s21, s21, 10")
    for i in range(5):
        T = 72 + (i & 1) * 16
        O = 104 + i * 4
        for st in range(2):
            for r in range(4):
                e(f"v_accvgpr_read_b32 v{T+st*4+r}, a{(st*5+i)*4+r}")
        for st in range(2):
            for r in range(4):
                e(f"v_fma_f32 v{T+st*4+r}, -v{52+st*4+r}, v{20+i}, v{T+st*4+r}")
        for st in range(2):
            for r in range(4):
                e(f"v_mul_f32 v{T+st*4+r}, v{T+st*4+r}, v{60+st*4+r}")
        for st in range(2):
            e(f"v_cvt_pk_bf16_f32 v{O+2*st}, v{T+st*4}, v{T+st*4+1}")
            e(f"v_cvt_pk_bf16_f32 v{O+2*st+1}, v{T+st*4+2}, v{T+st*4+3}")
        e("s_nop 1")
        e(f"v_permlane16_swap_b32 v{O}, v{O+2}")
        e(f"v_permlane16_swap_b32 v{O+1}, v{O+3}")
        e(f"s_add_u32 s23, s21, {i*65536}")
        e("s_nop 1")
        e(f"buffer_store_dwordx4 {vr(O)}, v26, s[32:35], s23 offen")
        vm.issue("S", 1)
    stamp(4)
    lab("k1_fin")
    stamp(5)
    stamp_dump(0, 6)
    lab("k1_end")
    e("s_endpgm")

ACC = 176
BUF = 32
def bufA(b, i): return BUF + b * 36 + i * 4
def bufB(b, n): return BUF + b * 36 + 20 + n * 4
def acc(i, n): return ACC + (i * 4 + n) * 4

def splitk_core(nsteps, srdA, srdB, shA, shB, vA, vB, mask):
    def addr():
        e("s_add_u32 s44, s40, s41")
        e(f"s_lshl_b32 s42, s44, {shA}")
        e(f"s_lshl_b32 s43, s44, {shB}")
        e("s_add_u32 s40, s40, 1")
        if mask:
            e(f"s_and_b32 s40, s40, {nsteps-1}")
        else:
            e(f"s_cmp_ge_u32 s40, {nsteps}")
            e("s_cselect_b32 s40, 0, s40")
    def loads(b):
        out = []
        for n in range(4):
            out.append(f"buffer_load_dwordx4 {vr(bufB(b,n))}, v{vB+n}, s[{srdB}:{srdB+3}], s43 offen")
        for i in range(5):
            out.append(f"buffer_load_dwordx4 {vr(bufA(b,i))}, v{vA+i}, s[{srdA}:{srdA+3}], s42 offen")
        return out
    for it in range(3):
        addr()
        for l in loads(it): e(l)
    for a in range(80):
        e(f"v_mov_b32 v{ACC+a}, 0")
    for it in range(nsteps):
        b = it % 4
        rem = min(nsteps - 1 - it, 2)
        e(f"s_waitcnt vmcnt({9*rem})")
        ld = []
        if it + 3 < nsteps:
            addr()
            ld = loads((it + 3) % 4)
        k = 0
        for i in range(5):
            for n in range(4):
                mfma(vr(acc(i,n)), vr(bufA(b,i)), vr(bufB(b,n)))
                k += 1
                if k % 2 == 0 and ld:
                    e(ld.pop(0))
        assert not ld

def splitk_exchange():
    e("s_nop 7")
    e("s_nop 7")
    e("s_mul_i32 s44, s16, 5120")
    e("v_add_u32 v9, s44, v8")
    e("v_add_u32 v10, 61440, v9")
    for n in range(4):
        for i in range(5):
            if n < 3:
                e(f"ds_write_b128 v9, {vr(acc(i,n))} offset:{(n*20+i)*1024}")
            else:
                e(f"ds_write_b128 v10, {vr(acc(i,n))} offset:{i*1024}")
    e("s_mul_i32 s44, s16, 20480")
    e("v_add_u32 v9, s44, v8")
    e("s_waitcnt lgkmcnt(0)")
    e("s_barrier")
    for src in range(4):
        for i in range(5):
            e(f"ds_read_b128 {vr(BUF+(src*5+i)*4)}, v9 offset:{(src*5+i)*1024}")


def hp_addr(vdst, s_st, s_d16base, sdst_list):
    e(f"v_lshrrev_b32 v{vdst}, 1, v3")
    e(f"v_lshlrev_b32 v{vdst}, 8, v{vdst}")
    e(f"v_lshl_add_u32 v{vdst}, v2, 4, v{vdst}")
    e("v_and_b32 v10, 1, v3")
    e(f"v_lshl_add_u32 v{vdst}, v10, 3, v{vdst}")
    e(f"s_mul_i32 s44, s{s_st}, 20480")
    for i in range(5):
        e(f"s_add_u32 s45, s{s_d16base}, {i}")
        e(f"s_lshl_b32 s45, s45, 9")
        e(f"s_add_u32 s{sdst_list[i]}, s44, s45")

def gen_k2():
    ROT = os.environ.get("K2ROT", "0") == "1"
    kernel_begin("k2_kernel")
    e("s_cmp_ge_u32 s2, 256")
    e("s_cbranch_scc1 k2_end")
    stamp(0)
    e("s_load_dwordx2 s[4:5], s[0:1], 0")
    e("s_load_dwordx2 s[8:9], s[0:1], 8")
    e("s_load_dwordx2 s[10:11], s[0:1], 16")
    e("s_load_dwordx2 s[6:7], s[0:1], 88")
    e("s_load_dwordx4 s[12:15], s[0:1], 48")
    e("s_load_dwordx2 s[60:61], s[0:1], 64")
    lane_setup()
    e("s_and_b32 s19, s2, 7")
    e("s_lshr_b32 s20, s2, 3")
    e("s_lshr_b32 s21, s20, 3")
    e("s_lshl_b32 s19, s19, 2")
    e("s_add_u32 s19, s19, s21")
    e("s_and_b32 s20, s20, 7")
    e("v_lshlrev_b32 v8, 4, v1")
    VC, VA, VB0, VB1 = 16, 24, 29, 30
    e("v_lshrrev_b32 v4, 3, v1")
    e("v_and_b32 v5, 7, v1")
    e("v_xor_b32 v5, v5, v4")
    e("v_lshlrev_b32 v4, 12, v4")
    e("v_lshl_add_u32 v4, v5, 4, v4")
    e("s_lshl_b32 s22, s19, 18")
    if os.environ.get("XC"): e("s_mov_b32 s22, 0")
    e(f"v_add_u32 v{VC}, s22, v4")
    for j in range(1, 8):
        e(f"v_add_u32 v{VC+j}, {j*32768 - (j%4)*1024}, v{VC}")
    e("s_lshr_b32 s22, s16, 1")
    e("s_mul_i32 s22, s22, 40")
    e("s_mul_i32 s23, s20, 5")
    if os.environ.get("XA"): e("s_mov_b32 s23, 0")
    e("s_add_u32 s22, s22, s23")
    e("s_lshl_b32 s22, s22, 16")
    e(f"v_add_u32 v{VA}, s22, v8")
    for i in range(1, 5):
        e(f"v_add_u32 v{VA+i}, {i*65536}, v{VA}")
    e("s_lshl_b32 s46, s16, 15")
    e("v_and_b32 v5, 7, v2")
    e("v_xor_b32 v5, v5, v3")
    e("v_lshlrev_b32 v4, 7, v2")
    e("v_lshl_add_u32 v4, v5, 4, v4")
    e(f"v_add_u32 v{VB0}, s46, v4")
    e(f"v_xor_b32 v{VB1}, 64, v{VB0}")
    e("s_and_b32 s41, s16, 1")
    e("s_lshl_b32 s47, s41, 11")
    e("s_lshl_b32 s41, s41, 15")
    if ROT:
        e("s_lshr_b32 s40, s2, 6")
        e("s_lshl_b32 s40, s40, 2")
    else:
        e("s_mov_b32 s40, 0")
    e("s_lshl_b32 s21, s19, 6")
    e("s_lshl_b32 s22, s16, 4")
    e("s_add_u32 s21, s21, s22")
    e("s_mul_i32 s22, s21, 1280")
    e("s_mul_i32 s23, s20, 160")
    e("s_add_u32 s22, s22, s23")
    e("v_mul_u32_u24 v11, 1280, v2")
    e("v_lshl_add_u32 v11, v3, 3, v11")
    e("v_add_u32 v11, s22, v11")
    e("s_waitcnt lgkmcnt(0)")
    srd(24, 4, 2621440)
    e("s_cmp_lt_u32 s16, 2")
    e("s_cselect_b32 s28, s8, s10")
    e("s_cselect_b32 s29, s9, s11")
    e("s_mov_b32 s30, 8388608")
    e("s_mov_b32 s31, 0x20000")
    srd(32, 6, SZ_ABP, WS_ABP)
    stamp(1)
    AB = 32
    BB = 192
    def A(b, h, i):
        if b < 2: return vr(AB + (b * 10 + h * 5 + i) * 4)
        return ar(96 + ((b - 2) * 10 + h * 5 + i) * 4)
    def B(b, h, n): return BB + (b * 8 + h * 4 + n) * 4
    vm = VM()
    def stage_issue(stg):
        b = stg % 4
        vm.issue(("S", stg), 18)
        o = []
        o.append("s_lshl_b32 s42, s40, 7")
        o.append("s_add_u32 s42, s42, s47")
        o.append(f"s_add_u32 m0, s46, {b*8192}")
        o.append("s_lshl_b32 s43, s40, 11")
        for j in range(4):
            o.append(f"buffer_load_dwordx4 v{VC+j}, s[28:31], s42 offen offset:{j*1024} lds")
        o.append(f"s_add_u32 m0, s46, {b*8192+4096}")
        o.append("s_add_u32 s43, s43, s41")
        for j in range(4, 8):
            o.append(f"buffer_load_dwordx4 v{VC+j}, s[28:31], s42 offen offset:{(j-4)*1024} lds")
        for h in range(2):
            for i in range(5):
                o.append(f"buffer_load_dwordx4 {A(b,h,i)}, v{VA+i}, s[32:35], s43 offen offset:{h*1024}")
        o.append("s_add_u32 s40, s40, 1")
        o.append("s_and_b32 s40, s40, 15")
        return o
    def bread(st):
        o = []
        for h in range(2):
            for n in range(4):
                o.append(f"ds_read_b128 {vr(B(st&1,h,n))}, v{VB0+h} offset:{(st%4)*8192 + n*2048}")
        return o
    if os.environ.get("ABT"):
        e("s_lshl_b32 s22, s2, 2")
        e("s_add_u32 s22, s22, s16")
        e("s_mul_i32 s22, s22, 5120")
        e("v_lshlrev_b32 v12, 7, v1")
        e("s_mov_b32 exec_hi, 0xff")
        e("buffer_load_dword a92, v12, s[32:35], s22 offen")
        e("s_mov_b32 exec_hi, -1")
    for st in range(3):
        for l in stage_issue(st): e(l)
    for i in range(5):
        e(f"buffer_load_dwordx2 a[{80+2*i}:{81+2*i}], v11, s[24:27], 0 offen offset:{i*32}")
    vm.issue("X", 5)
    PL, PO, PA = 112, 144, 176
    e("s_mul_i32 s48, s2, 3")
    e("s_add_u32 s48, s48, s16")
    e("s_cmp_ge_u32 s2, 240")
    e("s_cselect_b64 vcc, -1, 0")
    e("s_cmp_eq_u32 s16, 3")
    e("s_cselect_b64 vcc, -1, vcc")
    e("s_cbranch_vccnz k2_pdum")
    e("s_cmp_ge_u32 s48, 480")
    e("s_cbranch_scc1 k2_pdn")
    e("s_mul_i32 s49, s48, 52429")
    e("s_lshr_b32 s49, s49, 20")
    e("s_mul_i32 s92, s49, 20")
    e("s_sub_u32 s92, s48, s92")
    srd(36, 12, 1966080)
    srd(56, 14, 1966080)
    e("v_bfe_u32 v12, v1, 3, 2")
    e("v_and_b32 v13, 7, v1")
    e("v_lshrrev_b32 v14, 5, v1")
    e(f"v_mul_u32_u24 v{PA+9}, 24576, v12")
    e(f"v_lshl_add_u32 v{PA+9}, v13, 4, v{PA+9}")
    e("v_mul_u32_u24 v15, 12288, v14")
    e(f"v_add_u32 v{PA+9}, v{PA+9}, v15")
    e("s_mul_i32 s84, s92, 98304")
    e("s_lshl_b32 s85, s49, 7")
    e("s_add_u32 s84, s84, s85")
    e("s_mov_b32 s85, s84")
    e("s_mov_b32 s86, 3072")
    e("v_mul_u32_u24 v13, 1040, v13")
    e("v_lshl_add_u32 v13, v12, 8, v13")
    e(f"v_lshl_add_u32 v{PA}, v14, 3, v13")
    e("s_mov_b32 s93, 64")
    e("s_mov_b32 s94, 32")
    e("s_mul_i32 s87, s49, 163840")
    e("s_lshl_b32 s92, s92, 10")
    e("s_add_u32 s87, s87, s92")
    e(f"s_add_u32 s87, s87, {WS_WGU}")
    e("s_mov_b32 s88, 20480")
    e("s_branch k2_pk")
    lab("k2_pdn")
    e("s_sub_u32 s48, s48, 480")
    e("s_mul_i32 s49, s48, 43691")
    e("s_lshr_b32 s49, s49, 21")
    e("s_mul_i32 s92, s49, 48")
    e("s_sub_u32 s92, s48, s92")
    srd(36, 60, 1966080)
    srd(56, 60, 1966080)
    e(f"v_mul_u32_u24 v{PA+9}, 10240, v3")
    e(f"v_lshl_add_u32 v{PA+9}, v2, 4, v{PA+9}")
    e("s_mul_i32 s84, s92, 40960")
    e("s_lshl_b32 s85, s49, 8")
    e("s_add_u32 s84, s84, s85")
    e("s_add_u32 s85, s84, 5120")
    e("s_mov_b32 s86, 1280")
    e("v_lshrrev_b32 v13, 1, v2")
    e("v_mul_u32_u24 v13, 1040, v13")
    e("v_and_b32 v15, 1, v2")
    e("v_lshlrev_b32 v15, 7, v15")
    e("v_lshl_add_u32 v15, v3, 8, v15")
    e(f"v_add_u32 v{PA}, v15, v13")
    e("s_mov_b32 s93, 32")
    e("s_mov_b32 s94, 8")
    e("s_mul_i32 s87, s49, 393216")
    e("s_lshl_b32 s92, s92, 10")
    e("s_add_u32 s87, s87, s92")
    e(f"s_add_u32 s87, s87, {WS_WDN}")
    e("s_mov_b32 s88, 49152")
    lab("k2_pk")
    for which in range(2):
        for j in range(4):
            sr = 84 + which
            e(f"buffer_load_dwordx4 {vr(PL+(which*4+j)*4)}, v{PA+9}, s[{36+20*which}:{39+20*which}], s{sr} offen")
            e(f"s_add_u32 s{sr}, s{sr}, s86")
    e("s_mul_i32 s49, s16, 8320")
    e("s_add_u32 s49, s49, 131072")
    e(f"v_add_u32 v{PA}, s49, v{PA}")
    for k in range(1, 4):
        e(f"v_add_u32 v{PA+k}, s93, v{PA+k-1}")
    for k in range(4):
        e(f"v_add_u32 v{PA+4+k}, s94, v{PA+k}")
    e(f"v_add_u32 v{PA+12}, s49, v8")
    e("s_branch k2_pdone")
    lab("k2_pdum")
    def dummy(n):
        o = ["s_mov_b64 exec, 1"]
        for j in range(n):
            o.append("buffer_load_dword a90, v8, s[24:27], 0 offen")
        o.append("s_mov_b64 exec, -1")
        return o
    for l in dummy(8): e(l)
    lab("k2_pdone")
    vm.issue("P", 8)
    e("s_mov_b32 s89, 0x05040100")
    e("s_mov_b32 s90, 0x07060302")
    e("s_mov_b32 s64, s6")
    e("s_mov_b32 s65, s7")
    e(f"s_mov_b32 s66, {WS_WDN + SZ_WDN}")
    e("s_mov_b32 s67, 0x20000")
    PST = int(os.environ.get("PST", "3"))
    srd(48, 6, SZ_HP, WS_HP)
    srd(52, 6, SZ_HSTAT, WS_HSTAT)
    for a in range(80):
        e(f"v_accvgpr_write_b32 a{a}, 0")
    e(f"s_waitcnt vmcnt({vm.younger([('S', 0)])})")
    for l in bread(0): e(l)
    NS = 16
    for st in range(NS):
        b = st % 4
        if st + 1 < NS:
            allowed = vm.younger([("S", st + 1)] + (["P"] if st == PST else []))
            e(f"s_waitcnt vmcnt({allowed}) lgkmcnt(0)")
        else:
            e("s_waitcnt lgkmcnt(0)")
        if os.environ.get("K2ST") and st in (0,1,2,3,4,6,8,12): stamp(7 + (0,1,2,3,4,6,8,12).index(st))
        slots = [[] for _ in range(40)]
        if st + 1 < NS:
            for j, l in enumerate(bread(st + 1)):
                slots[1 + 2*j].append(l)
        if st + 3 < NS:
            grp = []; groups = []
            for l in stage_issue(st + 3):
                grp.append(l)
                if l.startswith("buffer"):
                    groups.append(grp); grp = []
            groups[-1] += grp
            for g, gl in enumerate(groups):
                slots[(g * 40) // len(groups)] += gl
        pk = []
        if st == PST:
            for which in range(2):
                for ee in range(8):
                    o = PO + (which*8+ee)*2
                    g = []
                    for t in range(2):
                        g.append(f"v_perm_b32 v{o+t}, v{PL+(which*4+2*t+1)*4+(ee>>1)}, v{PL+(which*4+2*t)*4+(ee>>1)}, s{89+(ee&1)}")
                    g.append(f"ds_write_b64 v{PA+which*4+(ee>>1)}, v[{o}:{o+1}] offset:{(ee&1)*16}")
                    pk.append(g)
            pk = [pk[2*i] + pk[2*i+1] for i in range(8)]
        if st == PST + 1:
            pk = [[f"ds_read_b128 {vr(PL+g*4)}, v{PA+12} offset:{g*1040}"] for g in range(8)]
        for g, gl in enumerate(pk):
            slots[18 + 2*g] += [f"s_cbranch_vccnz k2_np{st}_{g}"] + gl + [f"k2_np{st}_{g}:"]
        if st == PST + 2:
            gl = ["s_cbranch_vccnz k2_sdum"]
            for g in range(8):
                gl += [f"buffer_store_dwordx4 {vr(PL+g*4)}, v8, s[64:67], s87 offen sc1", "s_add_u32 s87, s87, s88"]
            gl += ["s_branch k2_sdone", "k2_sdum:"] + dummy(8) + ["k2_sdone:"]
            slots[39] += gl
            vm.issue("Q", 8)
        k = 0
        for h in range(2):
            for i in range(5):
                for n in range(4):
                    if not os.environ.get("NOMFMA"): mfma(ar((i*4+n)*4), A(b,h,i), vr(B(st&1,h,n)))
                    for l in slots[k]:
                        if os.environ.get("NODS") and l.startswith("ds_"): continue
                        if os.environ.get("NOA") and l.startswith("buffer") and not l.endswith("lds"): continue
                        if os.environ.get("NOC") and l.startswith("buffer") and l.endswith("lds"): continue
                        e(l)
                    k += 1
    stamp(2)
    stamp(3)
    e("s_nop 7")
    e("v_add_u32 v9, s46, v8")
    for n in range(4):
        for i in range(5):
            e(f"ds_write_b128 v9, {ar((i*4+n)*4)} offset:{(n*5+i)*1024}")
    e("s_mul_i32 s44, s16, 5120")
    e("v_add_u32 v9, s44, v8")
    e("v_add_u32 v10, 65536, v9")
    XR = 112
    for i in range(10):
        e(f"v_accvgpr_read_b32 v{XR+i}, a{80+i}")
    e("s_waitcnt lgkmcnt(0)")
    e("s_barrier")
    for src in range(4):
        for i in range(5):
            e(f"ds_read_b128 {vr(BUF+(src*5+i)*4)}, v{9 + (src>>1)} offset:{(src&1)*32768 + i*1024}")
    stamp(4)
    e("s_lshl_b32 s22, s19, 2")
    e("s_add_u32 s22, s22, s16")
    e("s_mul_i32 s23, s20, 5")
    hp_addr(11, 22, 23, [61, 62, 63, 64, 65])
    e("v_mov_b32 v17, 0")
    e("v_mov_b32 v18, 0")
    e("s_waitcnt vmcnt(0) lgkmcnt(0)")
    T = 124
    for i in range(5):
        def S(src, r): return BUF + (src*5+i)*4 + r
        for r in range(4):
            e(f"v_add_f32 v{T+r}, v{S(0,r)}, v{S(1,r)}")
            e(f"v_add_f32 v{T+4+r}, v{S(2,r)}, v{S(3,r)}")
        for r in range(4):
            bf16r(T+r, T+r)
            bf16r(T+4+r, T+4+r)
        for r in range(4):
            e(f"v_sub_f32 v{T+r}, v{T+r}, v{T+4+r}")
        for r in range(4):
            bf16r(T+r, T+r)
        e(f"v_lshlrev_b32 v{T+4}, 16, v{XR+2*i}")
        e(f"v_and_b32 v{T+5}, 0xffff0000, v{XR+2*i}")
        e(f"v_lshlrev_b32 v{T+6}, 16, v{XR+2*i+1}")
        e(f"v_and_b32 v{T+7}, 0xffff0000, v{XR+2*i+1}")
        for r in range(4):
            e(f"v_add_f32 v{T+r}, v{T+r}, v{T+4+r}")
        o = 136 + 2*i
        e(f"v_cvt_pk_bf16_f32 v{o}, v{T}, v{T+1}")
        e(f"v_cvt_pk_bf16_f32 v{o+1}, v{T+2}, v{T+3}")
        e(f"buffer_store_dwordx2 v[{o}:{o+1}], v11, s[48:51], s{61+i} offen")
        e(f"v_lshlrev_b32 v{T}, 16, v{o}")
        e(f"v_and_b32 v{T+1}, 0xffff0000, v{o}")
        e(f"v_lshlrev_b32 v{T+2}, 16, v{o+1}")
        e(f"v_and_b32 v{T+3}, 0xffff0000, v{o+1}")
        for r in range(4):
            e(f"v_add_f32 v17, v17, v{T+r}")
            e(f"v_fmac_f32 v18, v{T+r}, v{T+r}")
    e("v_xor_b32 v10, 16, v1")
    e("v_lshlrev_b32 v10, 2, v10")
    e("ds_bpermute_b32 v19, v10, v17")
    e("ds_bpermute_b32 v28, v10, v18")
    e("s_waitcnt lgkmcnt(0)")
    e("v_add_f32 v17, v17, v19")
    e("v_add_f32 v18, v18, v28")
    e("v_xor_b32 v10, 32, v1")
    e("v_lshlrev_b32 v10, 2, v10")
    e("ds_bpermute_b32 v19, v10, v17")
    e("ds_bpermute_b32 v28, v10, v18")
    e("s_waitcnt lgkmcnt(0)")
    e("v_add_f32 v30, v17, v19")
    e("v_add_f32 v31, v18, v28")
    e("s_lshl_b32 s22, s21, 3")
    e("s_lshl_b32 s23, s20, 14")
    e("s_add_u32 s22, s22, s23")
    e("v_lshlrev_b32 v10, 3, v2")
    e("s_mov_b32 exec_lo, 0x0000ffff")
    e("s_mov_b32 exec_hi, 0")
    e("buffer_store_dwordx2 v[30:31], v10, s[52:55], s22 offen")
    e("s_mov_b64 exec, -1")
    lab("k2_fin")
    stamp(5)
    stamp_dump(1, 6)
    if os.environ.get("K2ST"):
        for i in range(7, 15):
            e(f"v_mov_b32 v2, s{70+2*i}")
            e(f"v_mov_b32 v3, s{71+2*i}")
            e(f"buffer_store_dwordx2 v[2:3], v0, s[64:67], s68 offen offset:{i*8}")
        e("s_waitcnt vmcnt(0)")
    lab("k2_end")
    e("s_endpgm")

def gen_k4():
    kernel_begin("k4_kernel")
    e("s_cmp_ge_u32 s2, 256")
    e("s_cbranch_scc1 k4_end")
    stamp(0)
    e("s_load_dwordx2 s[4:5], s[0:1], 72")
    e("s_load_dwordx2 s[6:7], s[0:1], 88")
    lane_setup()
    e("s_and_b32 s19, s2, 7")
    e("s_lshr_b32 s20, s2, 3")
    e("s_lshr_b32 s21, s20, 3")
    e("s_lshl_b32 s19, s19, 2")
    e("s_add_u32 s19, s19, s21")
    e("s_and_b32 s20, s20, 7")
    e("v_lshlrev_b32 v8, 4, v1")
    e("s_mul_i32 s22, s19, 196608")
    e("v_add_u32 v4, s22, v8")
    for n in range(1, 4):
        e(f"v_add_u32 v{4+n}, {n*49152}, v4")
    e("s_mul_i32 s22, s20, 245760")
    e("v_add_u32 v12, s22, v8")
    for i in range(1, 5):
        e(f"v_add_u32 v{12+i}, {i*49152}, v12")
    e("s_mul_i32 s41, s16, 12")
    e("s_lshr_b32 s40, s2, 3")
    e("s_mul_i32 s44, s40, 43691")
    e("s_lshr_b32 s44, s44, 19")
    e("s_mul_i32 s44, s44, 12")
    e("s_sub_u32 s40, s40, s44")
    e("s_waitcnt lgkmcnt(0)")
    srd(28, 6, SZ_ACT, WS_ACT)
    srd(32, 6, SZ_WDN, WS_WDN)
    NSL, AH = 8, 7
    def slot(b, k):
        if b < 6: return vr(32 + b * 36 + k * 4)
        return ar(80 + (b - 6) * 36 + k * 4)
    vm = VM()
    def issue(t):
        o = ["s_add_u32 s44, s40, s41", "s_lshl_b32 s42, s44, 10", "s_add_u32 s40, s40, 1",
             "s_cmp_ge_u32 s40, 12", "s_cselect_b32 s40, 0, s40"]
        b = t % NSL
        for n in range(4):
            o.append(f"buffer_load_dwordx4 {slot(b,5+n)}, v{4+n}, s[28:31], s42 offen")
        for i in range(5):
            o.append(f"buffer_load_dwordx4 {slot(b,i)}, v{12+i}, s[32:35], s42 offen")
        vm.issue(("S", t), 9)
        return o
    for t in range(AH):
        for l in issue(t): e(l)
    stamp(1)
    srd(24, 4, 2621440)
    srd(48, 6, SZ_HP, WS_HP)
    for a in range(80):
        e(f"v_accvgpr_write_b32 a{a}, 0")
    e("v_lshrrev_b32 v18, 2, v1")
    e("v_and_b32 v19, 3, v1")
    e("s_lshl_b32 s22, s19, 2")
    e("s_add_u32 s22, s22, s16")
    e("s_mul_i32 s23, s22, 20480")
    e("s_mul_i32 s45, s20, 2560")
    e("s_add_u32 s45, s45, s23")
    e("v_lshlrev_b32 v20, 4, v18")
    e("v_lshl_add_u32 v20, v19, 8, v20")
    e("v_and_b32 v21, 1, v1")
    e("v_lshlrev_b32 v22, 4, v18")
    e("v_lshl_add_u32 v21, v21, 8, v22")
    e("s_mul_i32 s46, s20, 160")
    e("s_add_u32 s46, s46, s23")
    e("v_mul_u32_u24 v22, 1280, v18")
    e("v_lshl_add_u32 v22, v19, 4, v22")
    if os.environ.get("OT"):
        e("buffer_load_dword v26, v22, s[24:27], s46 offen")
        vm.issue("O", 1)
    e("s_mul_i32 s47, s16, 23040")
    e("v_mul_u32_u24 v23, 288, v3")
    e("v_lshl_add_u32 v23, v2, 4, v23")
    e("v_add_u32 v23, s47, v23")
    e("s_mul_i32 s47, s16, 5760")
    e("v_mul_u32_u24 v24, 576, v19")
    e("v_lshl_add_u32 v24, v18, 4, v24")
    e("v_add_u32 v24, s47, v24")
    e("v_add_u32 v25, 46080, v24")
    HR = 152
    for t in range(12):
        b = t % NSL
        e(f"s_waitcnt vmcnt({vm.younger([('S', t)])})")
        ld = []
        if t + AH < 12:
            ld = issue(t + AH)
        elif t == 12 - AH:
            ld = [f"buffer_load_dwordx4 {ar(HR)}, v20, s[48:51], s45 offen",
                  f"buffer_load_dwordx4 {ar(HR+4)}, v20, s[48:51], s45 offen offset:1024",
                  f"buffer_load_dwordx4 {ar(HR+8)}, v21, s[48:51], s45 offen offset:2048"]
            vm.issue("H", 3)
        grp = []; groups = []
        for l in ld:
            grp.append(l)
            if l.startswith("buffer"):
                groups.append(grp); grp = []
        k = 0
        for i in range(5):
            for n in range(4):
                mfma(ar((i*4+n)*4), slot(b, i), slot(b, 5+n))
                k += 1
                if k % 2 == 0 and groups:
                    for l in groups.pop(0): e(l)
        assert not groups
    stamp(2)
    stamp(3)
    e("s_nop 7")
    e("s_nop 7")
    for n in range(4):
        for i in range(5):
            e(f"ds_write_b128 v23, {ar((i*4+n)*4)} offset:{(n*5+i)*1152}")
    XR = 128
    e("s_waitcnt vmcnt(0)")
    for r in range(12):
        e(f"v_accvgpr_read_b32 v{XR+r}, a{HR+r}")
    e("s_waitcnt lgkmcnt(0)")
    e("s_barrier")
    def S(src, j, hf): return 32 + ((j * 4 + src) * 2 + hf) * 4
    for j in range(3):
        for src in range(4):
            for hf in range(2):
                e(f"ds_read_b128 {vr(S(src,j,hf))}, v{24 + (src>>1)} offset:{(src&1)*23040 + j*2304 + hf*288}")
    stamp(4)
    for j in range(3):
        e(f"s_waitcnt lgkmcnt({min(15,(2-j)*8)})")
        T = 144 + j * 16
        for hf in range(2):
            for p in (0, 2):
                e(f"v_pk_add_f32 v[{T+hf*4+p}:{T+hf*4+p+1}], v[{S(0,j,hf)+p}:{S(0,j,hf)+p+1}], v[{S(1,j,hf)+p}:{S(1,j,hf)+p+1}]")
                e(f"v_pk_add_f32 v[{T+8+hf*4+p}:{T+8+hf*4+p+1}], v[{S(2,j,hf)+p}:{S(2,j,hf)+p+1}], v[{S(3,j,hf)+p}:{S(3,j,hf)+p+1}]")
        for p in range(0, 8, 2):
            e(f"v_pk_add_f32 v[{T+p}:{T+p+1}], v[{T+p}:{T+p+1}], v[{T+8+p}:{T+8+p+1}]")
        for p in range(4):
            e(f"v_cvt_pk_bf16_f32 v{T+8+p}, v{T+2*p}, v{T+2*p+1}")
        for p in range(4):
            e(f"v_lshlrev_b32 v{T+2*p}, 16, v{T+8+p}")
            e(f"v_and_b32 v{T+2*p+1}, 0xffff0000, v{T+8+p}")
        for p in range(4):
            e(f"v_lshlrev_b32 v{T+8+2*p}, 16, v{XR+4*j+p}")
            e(f"v_and_b32 v{T+8+2*p+1}, 0xffff0000, v{XR+4*j+p}")
        for p in range(0, 8, 2):
            e(f"v_pk_add_f32 v[{T+p}:{T+p+1}], v[{T+p}:{T+p+1}], v[{T+8+p}:{T+8+p+1}]")
        O = 192 + 4 * j
        for p in range(4):
            e(f"v_cvt_pk_bf16_f32 v{O+p}, v{T+2*p}, v{T+2*p+1}")
        if j == 2:
            e("s_mov_b32 exec_lo, 0x33333333")
            e("s_mov_b32 exec_hi, 0x33333333")
        e(f"buffer_store_dwordx4 {vr(O)}, v22, s[24:27], s46 offen offset:{j*64}")
    e("s_mov_b64 exec, -1")
    stamp(5)
    stamp_dump(3, 6)
    lab("k4_end")
    e("s_endpgm")

class VM:
    def __init__(self): self.q = []
    def issue(self, tag, n=1): self.q += [tag] * n
    def younger(self, tags):
        last = max(i for i, t in enumerate(self.q) if t in tags)
        return min(63, len(self.q) - 1 - last)

def gen_k3():
    kernel_begin("k3_kernel")
    e("s_cmp_ge_u32 s2, 256")
    e("s_cbranch_scc1 k3_end")
    stamp(0)
    e("s_load_dwordx2 s[6:7], s[0:1], 88")
    lane_setup()
    e("s_and_b32 s19, s2, 7")
    e("s_lshr_b32 s20, s2, 3")
    e("s_and_b32 s21, s20, 1")
    e("s_lshl_b32 s19, s19, 1")
    e("s_add_u32 s19, s19, s21")
    e("s_lshr_b32 s20, s20, 1")
    e(f"s_mov_b32 s17, {INV640}")
    e(f"s_mov_b32 s18, {EPS}")
    e("s_mov_b32 s62, 0x3f803f80")
    e("v_lshlrev_b32 v8, 4, v1")
    e("s_mul_i32 s21, s20, 12")
    e("s_mul_i32 s23, s16, 3")
    e("s_add_u32 s21, s21, s23")
    e("s_mul_i32 s22, s21, 20480")
    e("v_add_u32 v4, s22, v8")
    e("v_add_u32 v5, 20480, v4")
    e("v_add_u32 v6, 40960, v4")
    e("s_mul_i32 s22, s19, 163840")
    e("s_mul_i32 s23, s16, 40960")
    e("s_add_u32 s22, s22, s23")
    e("v_lshlrev_b32 v9, 3, v1")
    e("s_lshl_b32 s48, s19, 10")
    e("s_waitcnt lgkmcnt(0)")
    srd(24, 6, SZ_HP, WS_HP)
    srd(32, 6, SZ_WGU, WS_WGU)
    srd(28, 6, SZ_HSTAT, WS_HSTAT)
    vm = VM()
    D = 6
    WB = 88
    ACC3 = 160
    def Wf(kk, i): return WB + ((kk % D) * 3 + i) * 4
    def Hf(kk, n): return ((kk & 1) * 8 + n) * 4
    HG = {"A": (0, 2), "B": (2, 5), "C": (5, 10), "D": (10, 15), "E": (15, 20)}
    def hdma_l(g, t):
        o = []
        k0, k1 = HG[g]
        for k in range(k0, k1, 4):
            base = t * 20480 + k * 1024
            o.append(f"s_add_u32 m0, s23, {base}")
            o.append(f"s_add_u32 s44, s22, {base}")
            for u in range(min(4, k1 - k)):
                o.append(f"buffer_load_dwordx4 v8, s[24:27], s44 offen offset:{u*1024} lds")
        vm.issue(("H", g), k1 - k0)
        return o
    def wload(kk):
        out = []
        if kk >= 4:
            out.append(f"s_mov_b32 s{45+(kk&1)}, {kk*1024}")
        for i in range(3):
            if kk < 4:
                out.append(f"buffer_load_dwordx4 {vr(Wf(kk,i))}, v{4+i}, s[32:35], 0 offen offset:{kk*1024}")
            else:
                out.append(f"buffer_load_dwordx4 {vr(Wf(kk,i))}, v{4+i}, s[32:35], s{45+(kk&1)} offen")
        vm.issue(("W", kk), 3)
        return out
    def sload(q):
        o = []
        for x in range(4 * q, 4 * q + 4):
            j, eb = x >> 3, x & 7
            o.append(f"s_add_u32 s47, s48, {eb*16384 + j*512}")
            o.append(f"buffer_load_dwordx2 v[{40+(j*8+eb)*2}:{41+(j*8+eb)*2}], v9, s[28:31], s47 offen")
        vm.issue("S", 4)
        return o
    def tload():
        vm.issue("P", 1)
        return ["buffer_load_dword v22, v23, s[52:55], s50 offen", "s_add_u32 s50, s50, 4096"]
    for l in hdma_l("A", 0) + hdma_l("A", 1) + wload(0) + hdma_l("B", 0) + hdma_l("B", 1) + wload(1): e(l)
    srd(36, 6, SZ_ACT, WS_ACT)
    srd(52, 6, SZ_WDN, WS_WDN)
    e("s_lshr_b32 s50, s2, 3")
    e("s_lshl_b32 s50, s50, 2")
    e("s_add_u32 s50, s50, s16")
    e("s_mul_i32 s50, s50, 15360")
    e("v_lshlrev_b32 v23, 6, v1")
    for a in range(96):
        e(f"v_mov_b32 v{ACC3+a}, 0")
    for r in range(24, 36):
        e(f"v_mov_b32 v{r}, 0")
    for r in range(16, 20):
        e(f"v_mov_b32 v{r}, 0x3f803f80")
    e("v_add_u32 v10, 65536, v8")
    e("v_add_u32 v11, 131072, v8")
    e("v_lshlrev_b32 v12, 2, v2")
    e("v_lshlrev_b32 v13, 4, v3")
    def hread(kk):
        o = []
        for n in range(8):
            off = (n * 20 + kk) * 1024
            base = 8 if off < 65536 else (10 if off < 131072 else 11)
            o.append(f"ds_read_b128 {ar(Hf(kk,n))}, v{base} offset:{off % 65536}")
        return o
    def dots(kk):
        return [f"v_dot2_f32_bf16 v{16+i}, v{Wf(kk,i)+r}, s62, v{16+i}" for r in range(4) for i in range(3)]
    sched = {0: ["W2", "HC0"], 1: ["W3", "HC1"], 2: ["W4", "W5"], 3: ["W6", "W7"], 4: ["W8", "HD0"], 5: ["W9", "HD1"],
             6: ["W10", "W11"], 7: ["W12", "HE0"], 8: ["W13", "HE1"], 9: ["W14", "S0"], 10: ["W15", "S1"], 11: ["W16", "S2"],
             12: ["W17", "S3"], 13: ["W18"], 14: ["W19"], 15: ["T"], 16: ["T"], 17: ["T"], 18: ["T"]}
    BAR = {1: "B", 4: "C", 9: "D", 14: "E"}
    def stats_code():
        sv = L[:]
        del L[:]
        for j in range(2):
            b = 40 + j * 16
            for k in (2, 4, 6, 8, 10, 12, 14):
                e(f"v_add_f32 v{b}, v{b}, v{b+k}")
                e(f"v_add_f32 v{b+1}, v{b+1}, v{b+k+1}")
            ln_stats(b, b+1, 36+2*j, 37+2*j, 20+j)
        for t in range(8):
            e(f"ds_bpermute_b32 v{72+2*t}, v12, v{36+2*(t>>2)} offset:{(t&3)*64}")
            e(f"ds_bpermute_b32 v{73+2*t}, v12, v{37+2*(t>>2)} offset:{(t&3)*64}")
            e(f"ds_bpermute_b32 v{64+t}, v12, v{20+(t>>2)} offset:{(t&3)*64}")
        o = [x.strip() for x in L]
        L[:] = sv
        return o
    stamp(1)
    e(f"s_waitcnt vmcnt({vm.younger([('H','A')])})")
    stamp(2)
    e("s_barrier")
    stamp(3)
    for l in hread(0): e(l)
    for kk in range(20):
        need = [("W", kk)]
        if kk in BAR: need.append(("H", BAR[kk]))
        if kk == 15: need.append("S")
        e(f"s_waitcnt vmcnt({vm.younger(need)}) lgkmcnt(0)")
        if kk in BAR: e("s_barrier")
        slots = [[] for _ in range(27)]
        if kk + 1 < 20:
            for j, l in enumerate(hread(kk + 1)):
                slots[j].append(l)
        lst = []
        for it in sched.get(kk, []):
            if it[0] == "W": lst += wload(int(it[1:]))
            elif it[0] == "H": lst += hdma_l(it[1], int(it[2]))
            elif it[0] == "S": lst += sload(int(it[1]))
            else: lst += tload()
        groups = []; grp = []
        for l in lst:
            if grp and any(x.startswith("buffer") for x in grp) and not l.startswith("s_add_u32 s50"):
                groups.append(grp); grp = []
            grp.append(l)
        if grp: groups.append(grp)
        for g, gl in enumerate(groups):
            slots[1 + (g * 24) // max(len(groups), 8)] += gl
        if kk == 15: sc = stats_code()
        if kk in (15, 16):
            part = sc[:54] if kk == 15 else sc[54:]
            for j, l in enumerate(part):
                slots[(j * 27) // len(part)].append(l)
        if kk == 19:
            for j, l in enumerate(["v_mul_u32_u24 v9, 49152, v3", "v_lshl_add_u32 v9, v2, 4, v9", "s_mul_i32 s22, s19, 393216", "s_lshl_b32 s23, s21, 8",
                                   "s_add_u32 s22, s22, s23", "v_mov_b32 v36, 0xbdd2d3e8", "v_mov_b32 v37, 0xc0135761"]):
                slots[j].append(l)
        k = 0
        for i in range(3):
            mfma(vr(24+4*i), vr(Wf(kk,i)), vr(16))
            for l in slots[k]: e(l)
            k += 1
        for n in range(8):
            for i in range(3):
                mfma(vr(ACC3+(i*8+n)*4), vr(Wf(kk,i)), ar(Hf(kk,n)))
                for l in slots[k]: e(l)
                k += 1
    stamp(4)
    def epi(i):
        o = []
        for hi, n0 in enumerate((0, 4)):
            TB = 40 + hi * 12
            O = TB + 8
            lists = []
            for g in range(4):
                n = n0 + g
                A = ACC3 + (i*8+n)*4
                S = 72 + 2*n
                SD = 64 + (n & ~1); sd = n & 1
                WS = 24 + i*4
                t2 = TB + g*2
                l = []
                for p in (0, 2):
                    l.append(f"v_pk_fma_f32 v[{A+p}:{A+p+1}], v[{S}:{S+1}], v[{WS+p}:{WS+p+1}], v[{A+p}:{A+p+1}] op_sel:[0,0,0] op_sel_hi:[0,1,1] neg_lo:[1,0,0] neg_hi:[1,0,0]")
                l.append(f"v_pk_mul_f32 v[{A}:{A+1}], v[{A}:{A+1}], v[{S}:{S+1}] op_sel:[0,1] op_sel_hi:[1,1]")
                l.append(f"v_pk_mul_f32 v[{t2}:{t2+1}], v[{A}:{A+1}], v[{A}:{A+1}]")
                l.append(f"v_pk_fma_f32 v[{t2}:{t2+1}], v[{t2}:{t2+1}], v[36:37], v[36:37] op_sel:[0,0,1] op_sel_hi:[1,0,1]")
                l.append(f"v_pk_mul_f32 v[{t2}:{t2+1}], v[{t2}:{t2+1}], v[{A}:{A+1}]")
                l.append(f"v_exp_f32 v{t2}, v{t2}")
                l.append(f"v_exp_f32 v{t2+1}, v{t2+1}")
                l.append(f"v_pk_mul_f32 v[{A}:{A+1}], v[{A}:{A+1}], v[{A+2}:{A+3}]")
                l.append(f"v_pk_fma_f32 v[{t2}:{t2+1}], v[{t2}:{t2+1}], v[{SD}:{SD+1}], v[{SD}:{SD+1}] op_sel:[0,{sd},{sd}] op_sel_hi:[1,{sd},{sd}]")
                l.append(f"v_rcp_f32 v{t2}, v{t2}")
                l.append(f"v_rcp_f32 v{t2+1}, v{t2+1}")
                l.append(f"v_pk_mul_f32 v[{t2}:{t2+1}], v[{t2}:{t2+1}], v[{A}:{A+1}]")
                l.append(f"v_cvt_pk_bf16_f32 v{O+g}, v{t2}, v{t2+1}")
                lists.append(l)
            for k in range(len(lists[0])):
                for g in range(4): o.append(lists[g][k])
            o.append("s_nop 1")
            o.append(f"v_permlane16_swap_b32 v{O}, v{O+1}")
            o.append(f"v_permlane16_swap_b32 v{O+2}, v{O+3}")
            o.append("s_nop 1")
            o.append(f"v_permlane32_swap_b32 v{O}, v{O+2}")
            o.append(f"v_permlane32_swap_b32 v{O+1}, v{O+3}")
            o.append(f"s_add_u32 s44, s22, {n0*49152 + i*256}")
            o.append("s_nop 1")
            o.append(f"buffer_store_dwordx4 {vr(O)}, v9, s[36:39], s44 offen")
        return o
    e("s_nop 7")
    stamp(5)
    for i in range(3):
        for l in epi(i): e(l)
    stamp(6)
    stamp_dump(2, 7)
    lab("k3_end")
    e("s_endpgm")

def descriptor(name, vgpr, accum, sgpr=102):
    raw(f".amdhsa_kernel {name}")
    raw(f"  .amdhsa_next_free_vgpr {vgpr}")
    raw(f"  .amdhsa_next_free_sgpr {sgpr}")
    raw(f"  .amdhsa_accum_offset {accum}")
    raw("  .amdhsa_group_segment_fixed_size 0")
    raw("  .amdhsa_kernarg_size 96")
    raw("  .amdhsa_user_sgpr_count 2")
    raw("  .amdhsa_user_sgpr_kernarg_segment_ptr 1")
    raw("  .amdhsa_system_sgpr_workgroup_id_x 1")
    raw(".end_amdhsa_kernel")

def main():
    raw("; 4-kernel pipeline: K1 LN1+hidden DFT GEMM, K2 seq DFT GEMM + residual, K3 LN2+gate/up GEMM+GEGLU, K4 down GEMM + residual")
    raw("; @launch kernel=k1_kernel grid=(256,1,1) block=(256,1,1) lds=152832")
    raw("; @launch kernel=k2_kernel grid=(256,1,1) block=(256,1,1) lds=156032")
    raw("; @launch kernel=k3_kernel grid=(256,1,1) block=(256,1,1) lds=163840")
    raw("; @launch kernel=k4_kernel grid=(256,1,1) block=(256,1,1) lds=94208")
    raw('.amdgcn_target "amdgcn-amd-amdhsa--gfx950"')
    raw(".text")
    gen_k1(); gen_k2(); gen_k3(); gen_k4()
    raw('.section .rodata,"a"')
    raw(".p2align 6")
    descriptor("k1_kernel", 348, 160)
    raw(".p2align 6")
    descriptor("k2_kernel", 432, 256)
    raw(".p2align 6")
    descriptor("k3_kernel", 320, 256)
    raw(".p2align 6")
    descriptor("k4_kernel", 424, 256)
    out = sys.argv[1] if len(sys.argv) > 1 else f"cdna_kernels/{NAME}.s"
    NOSC = os.environ.get("NOSC", "").split(",")
    LL = [ (l + " sc1") if ("buffer_store" in l and "s[64:67]" not in l and not any(x and x in l for x in NOSC)) else l for l in L]
    open(out, "w").write("\n".join(LL) + "\n")

main()
```

```python
import sys

L = []
def e(s): L.append("    " + s)
def lab(s): L.append(s + ":")
def raw(s): L.append(s)

NAME = "sequential_preLN__spectral_fnet__geglu_ffn__prompt"

WS_ABP = 0
SZ_ABP = 80 * 64 * 1024
WS_HP = 0x500000
SZ_HP = 128 * 20 * 1024
WS_HSTAT = 0x780000
SZ_HSTAT = 2048 * 8 * 8
WS_ACT = 0x800000
SZ_ACT = 128 * 48 * 1024
WS_WGU = 0xE00000
WSUM_OFF = 192 * 20 * 1024
SZ_WGU = WSUM_OFF + 192 * 4 * 64
WS_WDN = 0x1200000
SZ_WDN = 40 * 48 * 1024

INV640 = 0x3ACCCCCD
EPS = 0x3727C5AC

import os
DIAG = os.environ.get("DIAG", "0") == "1"
WS_DIAG = 0x3000000
def stamp(i):
    if DIAG:
        e(f"s_memtime s[{70+2*i}:{71+2*i}]")
        e("s_waitcnt lgkmcnt(0)")
def stamp_dump(kidx, n):
    if not DIAG: return
    e("s_waitcnt vmcnt(0)")
    stamp(n)
    e(f"s_add_u32 s64, s6, {WS_DIAG + kidx*0x40000}")
    e("s_addc_u32 s65, s7, 0")
    e("s_mov_b32 s66, 0x40000")
    e("s_mov_b32 s67, 0x20000")
    e("s_lshl_b32 s68, s2, 2")
    e("s_add_u32 s68, s68, s16")
    e("s_lshl_b32 s68, s68, 8")
    e("v_mov_b32 v0, 0")
    e("s_mov_b64 exec, 1")
    for i in range(n+1):
        e(f"v_mov_b32 v2, s{70+2*i}")
        e(f"v_mov_b32 v3, s{71+2*i}")
        e(f"buffer_store_dwordx2 v[2:3], v0, s[64:67], s68 offen offset:{i*8}")
    e("s_waitcnt vmcnt(0)")

def srd(d, lo, size, off=0):
    if off:
        e(f"s_add_u32 s{d}, s{lo}, {off}")
        e(f"s_addc_u32 s{d+1}, s{lo+1}, 0")
    else:
        e(f"s_mov_b32 s{d}, s{lo}")
        e(f"s_mov_b32 s{d+1}, s{lo+1}")
    e(f"s_mov_b32 s{d+2}, {size}")
    e(f"s_mov_b32 s{d+3}, 0x20000")

def bf16r(dst, src):
    e(f"v_cvt_pk_bf16_f32 v{dst}, v{src}, v{src}")
    e(f"v_lshlrev_b32 v{dst}, 16, v{dst}")

def vr(b, n=4): return f"v[{b}:{b+n-1}]"
def ar(b, n=4): return f"a[{b}:{b+n-1}]"

def mfma(d, a, b, c=None):
    c = d if c is None else c
    if L and L[-1].split()[0] in ("v_exp_f32", "v_rcp_f32", "v_sqrt_f32", "v_rsq_f32"): e("s_nop 1")
    e(f"v_mfma_f32_16x16x32_bf16 {d}, {a}, {b}, {c}")

def kernel_begin(name):
    raw(f".globl {name}")
    raw(".p2align 8")
    raw(f".type {name},@function")
    lab(name)

def lane_setup():
    e("v_lshrrev_b32 v4, 6, v0")
    e("v_and_b32 v1, 63, v0")
    e("v_readfirstlane_b32 s16, v4")
    e("v_and_b32 v2, 15, v1")
    e("v_lshrrev_b32 v3, 4, v1")

def ln_stats(vsum, vsq, vm, vrd, t):
    e(f"v_mul_f32 v{vm}, s17, v{vsum}")
    e(f"v_mul_f32 v{t}, s17, v{vsq}")
    e(f"v_fma_f32 v{t}, -v{vm}, v{vm}, v{t}")
    e(f"v_max_f32 v{t}, 0, v{t}")
    bf16r(vm, vm)
    bf16r(t, t)
    e(f"v_add_f32 v{t}, s18, v{t}")
    bf16r(t, t)
    e(f"v_sqrt_f32 v{t}, v{t}")
    e("s_nop 0")
    bf16r(t, t)
    e(f"v_rcp_f32 v{vrd}, v{t}")
    e("s_nop 0")

def gen_k1():
    kernel_begin("k1_kernel")
    e("s_cmp_ge_u32 s2, 256")
    e("s_cbranch_scc1 k1_end")
    stamp(0)
    e("s_load_dwordx2 s[4:5], s[0:1], 0")
    e("s_load_dwordx2 s[8:9], s[0:1], 24")
    e("s_load_dwordx2 s[10:11], s[0:1], 32")
    e("s_load_dwordx2 s[6:7], s[0:1], 88")
    e("s_load_dwordx4 s[56:59], s[0:1], 8")
    lane_setup()
    e("s_and_b32 s19, s2, 3")
    e("s_lshl_b32 s19, s19, 2")
    e("s_bfe_u32 s21, s2, 0x20003")
    e("s_add_u32 s19, s19, s21")
    e("s_lshr_b32 s22, s2, 5")
    e("s_bfe_u32 s20, s2, 0x10002")
    e("s_lshl_b32 s20, s20, 3")
    e("s_add_u32 s20, s20, s22")
    e("s_add_u32 s48, s21, s22")
    e("v_lshlrev_b32 v15, 4, v1")
    e("v_lshrrev_b32 v25, 3, v1")
    e("v_and_b32 v26, 7, v1")
    e("v_xor_b32 v26, v26, v25")
    e("v_mul_u32_u24 v25, 1280, v25")
    e("v_lshl_add_u32 v25, v26, 4, v25")
    e("s_and_b32 s21, s20, 7")
    e("s_mul_i32 s21, s21, 102400")
    e("s_and_b32 s22, s16, 1")
    e("s_mul_i32 s22, s22, 51200")
    e("s_add_u32 s21, s21, s22")
    e("s_lshr_b32 s22, s16, 1")
    e("s_lshl_b32 s22, s22, 7")
    e("s_add_u32 s21, s21, s22")
    e("v_add_u32 v4, s21, v25")
    e("s_lshl_b32 s21, s19, 7")
    e("s_lshl_b32 s22, s16, 5")
    e("s_add_u32 s21, s21, s22")
    e("s_mul_i32 s21, s21, 1280")
    e("v_add_u32 v5, s21, v25")
    for j in range(1, 4):
        e(f"v_add_u32 v{5+j}, {j*10240 - j*1024}, v5")
    e("s_mul_i32 s46, s16, 12288")
    e("s_add_u32 s46, s46, 102400")
    e("s_mul_i32 s47, s16, 5120")
    e("s_mul_i32 s49, s48, 205")
    e("s_lshr_b32 s49, s49, 10")
    e("s_mul_i32 s49, s49, 5")
    e("s_sub_u32 s49, s48, s49")
    if os.environ.get("K1NOROT"): e("s_mov_b32 s49, 0")
    for sc in range(5):
        e(f"s_lshl_b32 s{50+sc}, s49, 8")
        e("s_add_u32 s49, s49, 1")
        e("s_cmp_ge_u32 s49, 5")
        e("s_cselect_b32 s49, 0, s49")
    e("s_waitcnt lgkmcnt(0)")
    srd(24, 4, 2621440)
    e("s_cmp_lt_u32 s20, 8")
    e("s_cselect_b32 s28, s8, s10")
    e("s_cselect_b32 s29, s9, s11")
    e("s_mov_b32 s30, 819200")
    e("s_mov_b32 s31, 0x20000")
    vm = VM()
    XS = 76
    def wdma(sc):
        o = []
        for u in range(5):
            o.append(f"s_add_u32 m0, s47, {sc*20480 + u*1024}")
            o.append(f"s_add_u32 s23, s{50+sc}, {u*10240}")
            o.append("buffer_load_dwordx4 v4, s[28:31], s23 offen lds")
        vm.issue(("W", sc), 5)
        return o
    def xld(c):
        if c < 3:
            o = [f"s_add_u32 m0, s46, {(c%3)*4096}", f"s_add_u32 s22, s{50+(c>>1)}, {(c&1)*128}"]
            for j in range(4):
                o.append(f"buffer_load_dwordx4 v{5+j}, s[24:27], s22 offen offset:{j*1024} lds")
        else:
            o = [f"s_add_u32 s22, s{50+(c>>1)}, {(c&1)*128}"]
            for j in range(4):
                o.append(f"buffer_load_dwordx4 {ar(XS+(c-3)*16+j*4)}, v{5+j}, s[24:27], s22 offen offset:{j*1024}")
        vm.issue(("X", c), 4)
        return o
    for l in wdma(0) + xld(0) + xld(1): e(l)
    e(f"s_mov_b32 s17, {INV640}")
    e(f"s_mov_b32 s18, {EPS}")
    e("v_and_b32 v26, 7, v2")
    e("v_xor_b32 v26, v26, v3")
    e("v_lshlrev_b32 v11, 7, v2")
    e("v_lshl_add_u32 v11, v26, 4, v11")
    e("v_xor_b32 v12, 64, v11")
    e("v_add_u32 v13, 61440, v11")
    e("v_add_u32 v14, 61440, v12")
    e("v_add_u32 v9, s46, v11")
    e("v_add_u32 v10, s46, v12")
    srd(32, 6, SZ_ABP, WS_ABP)
    TST = [int(x) for x in os.environ.get("TST", "3,3").split(",")]
    PL, PO, PA = 144, 176, 144
    e(f"v_add_u32 v{PA+8}, s46, v15")
    e("s_cmp_lt_u32 s2, 128")
    e("s_cselect_b32 s56, s56, s58")
    e("s_cselect_b32 s57, s57, s59")
    e("s_mov_b32 s58, 8388608")
    e("s_mov_b32 s59, 0x20000")
    e("s_and_b32 s21, s2, 7")
    e("s_bfe_u32 s22, s2, 0x20005")
    e("s_lshl_b32 s21, s21, 2")
    e("s_add_u32 s21, s21, s22")
    e("s_lshl_b32 s21, s21, 2")
    e("s_bfe_u32 s22, s2, 0x20003")
    e("s_add_u32 s21, s21, s22")
    e("s_lshl_b32 s21, s21, 2")
    e("s_add_u32 s21, s21, s16")
    e("s_lshl_b32 s91, s21, 14")
    e(f"v_lshlrev_b32 v{PA+10}, 7, v1")
    def touch():
        if os.environ.get("NOPF"): return []
        vm.issue("T", 1)
        return [f"buffer_load_dword v{PA+11}, v{PA+10}, s[56:59], s91 offen", "s_add_u32 s91, s91, 8192"]
    for t in TST:
        if t == -1:
            for l in touch(): e(l)
    for a in range(76):
        e(f"v_accvgpr_write_b32 a{a}, 0")
    ONES = 16
    for r in range(4):
        e(f"v_mov_b32 v{ONES+r}, 0x3f803f80")
    FB = 32
    def XF(b, st, h): return FB + b * 56 + (st * 2 + h) * 4
    def WF(b, i, h): return FB + b * 56 + 16 + (i * 2 + h) * 4
    def fread(c):
        o = []
        b = c & 1
        for h in range(2):
            for st in range(2):
                o.append(f"ds_read_b128 {vr(XF(b,st,h))}, v{9+h} offset:{(c%3)*4096 + st*2048}")
            for i in range(5):
                off = c * 10240 + i * 2048
                if off < 61440:
                    o.append(f"ds_read_b128 {vr(WF(b,i,h))}, v{11+h} offset:{off}")
                else:
                    o.append(f"ds_read_b128 {vr(WF(b,i,h))}, v{13+h} offset:{off-61440}")
        return o
    stamp(1)
    e(f"s_waitcnt vmcnt({vm.younger([('W',0),('X',0)])})")
    e("s_barrier")
    stamp(2)
    for l in fread(0): e(l)
    for c in range(10):
        b = c & 1
        need = []
        if c + 1 <= 2: need.append(("X", c + 1))
        if c + 1 < 10: need.append(("W", (c + 1) >> 1))
        if 3 <= c + 2 <= 9: need.append(("X", c + 2))
        if need and c < 8:
            e(f"s_waitcnt vmcnt({vm.younger(need)}) lgkmcnt(0)")
        else:
            e("s_waitcnt lgkmcnt(0)")
        if c in (1, 3, 5, 7): e("s_barrier")
        NM = 28
        slots = [[] for _ in range(NM)]
        if c + 1 < 10:
            for j, l in enumerate(fread(c + 1)):
                slots[j].append(l)
        if 3 <= c + 2 <= 9:
            for j in range(4):
                slots[14 + j].append(f"ds_write_b128 v{PA+8}, {ar(XS+(c-1)*16+j*4)} offset:{((c+2)%3)*4096 + j*1024}")
        lst = []
        if c < 4: lst = wdma(c + 1) + xld(2 * c + 2) + xld(2 * c + 3)
        for t in TST:
            if t == c: lst += touch()
        groups = []; grp = []
        for l in lst:
            if grp and any(x.startswith("buffer") for x in grp) and not (l.startswith("s_add_u32 s8") or l.startswith("s_add_u32 s9")):
                groups.append(grp); grp = []
            grp.append(l)
        if grp: groups.append(grp)
        for g, gl in enumerate(groups):
            slots[g] = gl + slots[g]
        ml = []
        for h in range(2):
            for i in range(5):
                for st in range(2):
                    ml.append((ar((st*5+i)*4), vr(XF(b,st,h)), vr(WF(b,i,h))))
            for st in range(2):
                ml.append((ar(40+4*st), vr(XF(b,st,h)), vr(ONES)))
                ml.append((ar(48+4*st), vr(XF(b,st,h)), vr(XF(b,st,h))))
        for k, m in enumerate(ml):
            mfma(*m)
            for l in slots[k]: e(l)
        for wv in range(4):
            e(f"s_cmp_lg_u32 s16, {wv}")
            e(f"s_cbranch_scc1 k1_ws{c}_{wv}")
            for i in range(5):
                for h in range(2):
                    if (c * 2 + i * 2 + h) % 4 == wv:
                        mfma(ar(56+4*i), vr(ONES), vr(WF(b,i,h)))
            lab(f"k1_ws{c}_{wv}")
    stamp(3)
    WX = 151552
    e("s_nop 7")
    e("s_nop 7")
    for i in range(5):
        e(f"v_accvgpr_read_b32 v{20+i}, a{56+4*i}")
    e("v_lshlrev_b32 v25, 2, v2")
    e("s_mul_i32 s21, s16, 320")
    e(f"s_add_u32 s21, s21, {WX}")
    e("v_add_u32 v26, s21, v25")
    for i in range(5):
        e(f"ds_write_b32 v26, v{20+i} offset:{i*64}")
    e("v_mul_u32_u24 v12, 80, v3")
    for st in range(2):
        for r in range(4):
            e(f"v_accvgpr_read_b32 v{32+st*4+r}, a{40+4*st+r}")
            e(f"v_accvgpr_read_b32 v{40+st*4+r}, a{48+4*st+r}")
    e("s_nop 1")
    for st in range(2):
        for r in range(4):
            e(f"ds_bpermute_b32 v{40+st*4+r}, v12, v{40+st*4+r} offset:{4*r}")
    e(f"v_add_u32 v26, {WX}, v25")
    e("s_waitcnt lgkmcnt(0)")
    e("s_barrier")
    for wv in range(4):
        for i in range(5):
            e(f"ds_read_b32 v{124+wv*5+i}, v26 offset:{wv*320 + i*64}")
    for st in range(2):
        for r in range(4):
            ln_stats(32+st*4+r, 40+st*4+r, 52+st*4+r, 60+st*4+r, 48)
    e("s_waitcnt lgkmcnt(0)")
    for i in range(5):
        e(f"v_add_f32 v{20+i}, v{124+i}, v{129+i}")
        e(f"v_add_f32 v{124+i}, v{134+i}, v{139+i}")
        e(f"v_add_f32 v{20+i}, v{20+i}, v{124+i}")
    e("v_and_b32 v26, 1, v3")
    e("v_lshlrev_b32 v26, 9, v26")
    e("v_lshrrev_b32 v27, 1, v3")
    e("v_lshl_add_u32 v26, v27, 8, v26")
    e("v_lshl_add_u32 v26, v2, 4, v26")
    e("s_mul_i32 s21, s20, 320")
    e("s_lshl_b32 s22, s19, 2")
    e("s_add_u32 s21, s21, s22")
    e("s_add_u32 s21, s21, s16")
    e("s_lshl_b32 s21, s21, 10")
    for i in range(5):
        T = 72 + (i & 1) * 16
        O = 104 + i * 4
        for st in range(2):
            for r in range(4):
                e(f"v_accvgpr_read_b32 v{T+st*4+r}, a{(st*5+i)*4+r}")
        for st in range(2):
            for r in range(4):
                e(f"v_fma_f32 v{T+st*4+r}, -v{52+st*4+r}, v{20+i}, v{T+st*4+r}")
        for st in range(2):
            for r in range(4):
                e(f"v_mul_f32 v{T+st*4+r}, v{T+st*4+r}, v{60+st*4+r}")
        for st in range(2):
            e(f"v_cvt_pk_bf16_f32 v{O+2*st}, v{T+st*4}, v{T+st*4+1}")
            e(f"v_cvt_pk_bf16_f32 v{O+2*st+1}, v{T+st*4+2}, v{T+st*4+3}")
        e("s_nop 1")
        e(f"v_permlane16_swap_b32 v{O}, v{O+2}")
        e(f"v_permlane16_swap_b32 v{O+1}, v{O+3}")
        e(f"s_add_u32 s23, s21, {i*65536}")
        e("s_nop 1")
        e(f"buffer_store_dwordx4 {vr(O)}, v26, s[32:35], s23 offen")
        vm.issue("S", 1)
    stamp(4)
    lab("k1_fin")
    stamp(5)
    stamp_dump(0, 6)
    lab("k1_end")
    e("s_endpgm")

ACC = 176
BUF = 32
def bufA(b, i): return BUF + b * 36 + i * 4
def bufB(b, n): return BUF + b * 36 + 20 + n * 4
def acc(i, n): return ACC + (i * 4 + n) * 4

def splitk_core(nsteps, srdA, srdB, shA, shB, vA, vB, mask):
    def addr():
        e("s_add_u32 s44, s40, s41")
        e(f"s_lshl_b32 s42, s44, {shA}")
        e(f"s_lshl_b32 s43, s44, {shB}")
        e("s_add_u32 s40, s40, 1")
        if mask:
            e(f"s_and_b32 s40, s40, {nsteps-1}")
        else:
            e(f"s_cmp_ge_u32 s40, {nsteps}")
            e("s_cselect_b32 s40, 0, s40")
    def loads(b):
        out = []
        for n in range(4):
            out.append(f"buffer_load_dwordx4 {vr(bufB(b,n))}, v{vB+n}, s[{srdB}:{srdB+3}], s43 offen")
        for i in range(5):
            out.append(f"buffer_load_dwordx4 {vr(bufA(b,i))}, v{vA+i}, s[{srdA}:{srdA+3}], s42 offen")
        return out
    for it in range(3):
        addr()
        for l in loads(it): e(l)
    for a in range(80):
        e(f"v_mov_b32 v{ACC+a}, 0")
    for it in range(nsteps):
        b = it % 4
        rem = min(nsteps - 1 - it, 2)
        e(f"s_waitcnt vmcnt({9*rem})")
        ld = []
        if it + 3 < nsteps:
            addr()
            ld = loads((it + 3) % 4)
        k = 0
        for i in range(5):
            for n in range(4):
                mfma(vr(acc(i,n)), vr(bufA(b,i)), vr(bufB(b,n)))
                k += 1
                if k % 2 == 0 and ld:
                    e(ld.pop(0))
        assert not ld

def splitk_exchange():
    e("s_nop 7")
    e("s_nop 7")
    e("s_mul_i32 s44, s16, 5120")
    e("v_add_u32 v9, s44, v8")
    e("v_add_u32 v10, 61440, v9")
    for n in range(4):
        for i in range(5):
            if n < 3:
                e(f"ds_write_b128 v9, {vr(acc(i,n))} offset:{(n*20+i)*1024}")
            else:
                e(f"ds_write_b128 v10, {vr(acc(i,n))} offset:{i*1024}")
    e("s_mul_i32 s44, s16, 20480")
    e("v_add_u32 v9, s44, v8")
    e("s_waitcnt lgkmcnt(0)")
    e("s_barrier")
    for src in range(4):
        for i in range(5):
            e(f"ds_read_b128 {vr(BUF+(src*5+i)*4)}, v9 offset:{(src*5+i)*1024}")


def hp_addr(vdst, s_st, s_d16base, sdst_list):
    e(f"v_lshrrev_b32 v{vdst}, 1, v3")
    e(f"v_lshlrev_b32 v{vdst}, 8, v{vdst}")
    e(f"v_lshl_add_u32 v{vdst}, v2, 4, v{vdst}")
    e("v_and_b32 v10, 1, v3")
    e(f"v_lshl_add_u32 v{vdst}, v10, 3, v{vdst}")
    e(f"s_mul_i32 s44, s{s_st}, 20480")
    for i in range(5):
        e(f"s_add_u32 s45, s{s_d16base}, {i}")
        e(f"s_lshl_b32 s45, s45, 9")
        e(f"s_add_u32 s{sdst_list[i]}, s44, s45")

def gen_k2():
    ROT = os.environ.get("K2ROT", "0") == "1"
    kernel_begin("k2_kernel")
    e("s_cmp_ge_u32 s2, 256")
    e("s_cbranch_scc1 k2_end")
    stamp(0)
    e("s_load_dwordx2 s[4:5], s[0:1], 0")
    e("s_load_dwordx2 s[8:9], s[0:1], 8")
    e("s_load_dwordx2 s[10:11], s[0:1], 16")
    e("s_load_dwordx2 s[6:7], s[0:1], 88")
    e("s_load_dwordx4 s[12:15], s[0:1], 48")
    e("s_load_dwordx2 s[60:61], s[0:1], 64")
    lane_setup()
    e("s_and_b32 s19, s2, 7")
    e("s_lshr_b32 s20, s2, 3")
    e("s_lshr_b32 s21, s20, 3")
    e("s_lshl_b32 s19, s19, 2")
    e("s_add_u32 s19, s19, s21")
    e("s_and_b32 s20, s20, 7")
    e("v_lshlrev_b32 v8, 4, v1")
    VC, VA, VB0, VB1 = 16, 24, 29, 30
    e("v_lshrrev_b32 v4, 3, v1")
    e("v_and_b32 v5, 7, v1")
    e("v_xor_b32 v5, v5, v4")
    e("v_lshlrev_b32 v4, 12, v4")
    e("v_lshl_add_u32 v4, v5, 4, v4")
    e("s_lshl_b32 s22, s19, 18")
    if os.environ.get("XC"): e("s_mov_b32 s22, 0")
    e(f"v_add_u32 v{VC}, s22, v4")
    for j in range(1, 8):
        e(f"v_add_u32 v{VC+j}, {j*32768 - (j%4)*1024}, v{VC}")
    e("s_lshr_b32 s22, s16, 1")
    e("s_mul_i32 s22, s22, 40")
    e("s_mul_i32 s23, s20, 5")
    if os.environ.get("XA"): e("s_mov_b32 s23, 0")
    e("s_add_u32 s22, s22, s23")
    e("s_lshl_b32 s22, s22, 16")
    e(f"v_add_u32 v{VA}, s22, v8")
    for i in range(1, 5):
        e(f"v_add_u32 v{VA+i}, {i*65536}, v{VA}")
    e("s_lshl_b32 s46, s16, 15")
    e("v_and_b32 v5, 7, v2")
    e("v_xor_b32 v5, v5, v3")
    e("v_lshlrev_b32 v4, 7, v2")
    e("v_lshl_add_u32 v4, v5, 4, v4")
    e(f"v_add_u32 v{VB0}, s46, v4")
    e(f"v_xor_b32 v{VB1}, 64, v{VB0}")
    e("s_and_b32 s41, s16, 1")
    e("s_lshl_b32 s47, s41, 11")
    e("s_lshl_b32 s41, s41, 15")
    if ROT:
        e("s_lshr_b32 s40, s2, 6")
        e("s_lshl_b32 s40, s40, 2")
    else:
        e("s_mov_b32 s40, 0")
    e("s_lshl_b32 s21, s19, 6")
    e("s_lshl_b32 s22, s16, 4")
    e("s_add_u32 s21, s21, s22")
    e("s_mul_i32 s22, s21, 1280")
    e("s_mul_i32 s23, s20, 160")
    e("s_add_u32 s22, s22, s23")
    e("v_mul_u32_u24 v11, 1280, v2")
    e("v_lshl_add_u32 v11, v3, 3, v11")
    e("v_add_u32 v11, s22, v11")
    e("s_waitcnt lgkmcnt(0)")
    srd(24, 4, 2621440)
    e("s_cmp_lt_u32 s16, 2")
    e("s_cselect_b32 s28, s8, s10")
    e("s_cselect_b32 s29, s9, s11")
    e("s_mov_b32 s30, 8388608")
    e("s_mov_b32 s31, 0x20000")
    srd(32, 6, SZ_ABP, WS_ABP)
    stamp(1)
    AB = 32
    BB = 192
    def A(b, h, i):
        if b < 2: return vr(AB + (b * 10 + h * 5 + i) * 4)
        return ar(96 + ((b - 2) * 10 + h * 5 + i) * 4)
    def B(b, h, n): return BB + (b * 8 + h * 4 + n) * 4
    vm = VM()
    def stage_issue(stg):
        b = stg % 4
        vm.issue(("S", stg), 18)
        o = []
        o.append("s_lshl_b32 s42, s40, 7")
        o.append("s_add_u32 s42, s42, s47")
        o.append(f"s_add_u32 m0, s46, {b*8192}")
        o.append("s_lshl_b32 s43, s40, 11")
        for j in range(4):
            o.append(f"buffer_load_dwordx4 v{VC+j}, s[28:31], s42 offen offset:{j*1024} lds")
        o.append(f"s_add_u32 m0, s46, {b*8192+4096}")
        o.append("s_add_u32 s43, s43, s41")
        for j in range(4, 8):
            o.append(f"buffer_load_dwordx4 v{VC+j}, s[28:31], s42 offen offset:{(j-4)*1024} lds")
        for h in range(2):
            for i in range(5):
                o.append(f"buffer_load_dwordx4 {A(b,h,i)}, v{VA+i}, s[32:35], s43 offen offset:{h*1024}")
        o.append("s_add_u32 s40, s40, 1")
        o.append("s_and_b32 s40, s40, 15")
        return o
    def bread(st):
        o = []
        for h in range(2):
            for n in range(4):
                o.append(f"ds_read_b128 {vr(B(st&1,h,n))}, v{VB0+h} offset:{(st%4)*8192 + n*2048}")
        return o
    if os.environ.get("ABT"):
        e("s_lshl_b32 s22, s2, 2")
        e("s_add_u32 s22, s22, s16")
        e("s_mul_i32 s22, s22, 5120")
        e("v_lshlrev_b32 v12, 7, v1")
        e("s_mov_b32 exec_hi, 0xff")
        e("buffer_load_dword a92, v12, s[32:35], s22 offen")
        e("s_mov_b32 exec_hi, -1")
    for st in range(3):
        for l in stage_issue(st): e(l)
    for i in range(5):
        e(f"buffer_load_dwordx2 a[{80+2*i}:{81+2*i}], v11, s[24:27], 0 offen offset:{i*32}")
    vm.issue("X", 5)
    PL, PO, PA = 112, 144, 176
    e("s_mul_i32 s48, s2, 3")
    e("s_add_u32 s48, s48, s16")
    e("s_cmp_ge_u32 s2, 240")
    e("s_cselect_b64 vcc, -1, 0")
    e("s_cmp_eq_u32 s16, 3")
    e("s_cselect_b64 vcc, -1, vcc")
    e("s_cbranch_vccnz k2_pdum")
    e("s_cmp_ge_u32 s48, 480")
    e("s_cbranch_scc1 k2_pdn")
    e("s_mul_i32 s49, s48, 52429")
    e("s_lshr_b32 s49, s49, 20")
    e("s_mul_i32 s92, s49, 20")
    e("s_sub_u32 s92, s48, s92")
    srd(36, 12, 1966080)
    srd(56, 14, 1966080)
    e("v_bfe_u32 v12, v1, 3, 2")
    e("v_and_b32 v13, 7, v1")
    e("v_lshrrev_b32 v14, 5, v1")
    e(f"v_mul_u32_u24 v{PA+9}, 24576, v12")
    e(f"v_lshl_add_u32 v{PA+9}, v13, 4, v{PA+9}")
    e("v_mul_u32_u24 v15, 12288, v14")
    e(f"v_add_u32 v{PA+9}, v{PA+9}, v15")
    e("s_mul_i32 s84, s92, 98304")
    e("s_lshl_b32 s85, s49, 7")
    e("s_add_u32 s84, s84, s85")
    e("s_mov_b32 s85, s84")
    e("s_mov_b32 s86, 3072")
    e("v_mul_u32_u24 v13, 1040, v13")
    e("v_lshl_add_u32 v13, v12, 8, v13")
    e(f"v_lshl_add_u32 v{PA}, v14, 3, v13")
    e("s_mov_b32 s93, 64")
    e("s_mov_b32 s94, 32")
    e("s_mul_i32 s87, s49, 163840")
    e("s_lshl_b32 s92, s92, 10")
    e("s_add_u32 s87, s87, s92")
    e(f"s_add_u32 s87, s87, {WS_WGU}")
    e("s_mov_b32 s88, 20480")
    e("s_branch k2_pk")
    lab("k2_pdn")
    e("s_sub_u32 s48, s48, 480")
    e("s_mul_i32 s49, s48, 43691")
    e("s_lshr_b32 s49, s49, 21")
    e("s_mul_i32 s92, s49, 48")
    e("s_sub_u32 s92, s48, s92")
    srd(36, 60, 1966080)
    srd(56, 60, 1966080)
    e(f"v_mul_u32_u24 v{PA+9}, 10240, v3")
    e(f"v_lshl_add_u32 v{PA+9}, v2, 4, v{PA+9}")
    e("s_mul_i32 s84, s92, 40960")
    e("s_lshl_b32 s85, s49, 8")
    e("s_add_u32 s84, s84, s85")
    e("s_add_u32 s85, s84, 5120")
    e("s_mov_b32 s86, 1280")
    e("v_lshrrev_b32 v13, 1, v2")
    e("v_mul_u32_u24 v13, 1040, v13")
    e("v_and_b32 v15, 1, v2")
    e("v_lshlrev_b32 v15, 7, v15")
    e("v_lshl_add_u32 v15, v3, 8, v15")
    e(f"v_add_u32 v{PA}, v15, v13")
    e("s_mov_b32 s93, 32")
    e("s_mov_b32 s94, 8")
    e("s_mul_i32 s87, s49, 393216")
    e("s_lshl_b32 s92, s92, 10")
    e("s_add_u32 s87, s87, s92")
    e(f"s_add_u32 s87, s87, {WS_WDN}")
    e("s_mov_b32 s88, 49152")
    lab("k2_pk")
    for which in range(2):
        for j in range(4):
            sr = 84 + which
            e(f"buffer_load_dwordx4 {vr(PL+(which*4+j)*4)}, v{PA+9}, s[{36+20*which}:{39+20*which}], s{sr} offen")
            e(f"s_add_u32 s{sr}, s{sr}, s86")
    e("s_mul_i32 s49, s16, 8320")
    e("s_add_u32 s49, s49, 131072")
    e(f"v_add_u32 v{PA}, s49, v{PA}")
    for k in range(1, 4):
        e(f"v_add_u32 v{PA+k}, s93, v{PA+k-1}")
    for k in range(4):
        e(f"v_add_u32 v{PA+4+k}, s94, v{PA+k}")
    e(f"v_add_u32 v{PA+12}, s49, v8")
    e("s_branch k2_pdone")
    lab("k2_pdum")
    def dummy(n):
        o = ["s_mov_b64 exec, 1"]
        for j in range(n):
            o.append("buffer_load_dword a90, v8, s[24:27], 0 offen")
        o.append("s_mov_b64 exec, -1")
        return o
    for l in dummy(8): e(l)
    lab("k2_pdone")
    vm.issue("P", 8)
    e("s_mov_b32 s89, 0x05040100")
    e("s_mov_b32 s90, 0x07060302")
    e("s_mov_b32 s64, s6")
    e("s_mov_b32 s65, s7")
    e(f"s_mov_b32 s66, {WS_WDN + SZ_WDN}")
    e("s_mov_b32 s67, 0x20000")
    PST = int(os.environ.get("PST", "3"))
    srd(48, 6, SZ_HP, WS_HP)
    srd(52, 6, SZ_HSTAT, WS_HSTAT)
    for a in range(80):
        e(f"v_accvgpr_write_b32 a{a}, 0")
    e(f"s_waitcnt vmcnt({vm.younger([('S', 0)])})")
    for l in bread(0): e(l)
    NS = 16
    for st in range(NS):
        b = st % 4
        if st + 1 < NS:
            allowed = vm.younger([("S", st + 1)] + (["P"] if st == PST else []))
            e(f"s_waitcnt vmcnt({allowed}) lgkmcnt(0)")
        else:
            e("s_waitcnt lgkmcnt(0)")
        if os.environ.get("K2ST") and st in (0,1,2,3,4,6,8,12): stamp(7 + (0,1,2,3,4,6,8,12).index(st))
        slots = [[] for _ in range(40)]
        if st + 1 < NS:
            for j, l in enumerate(bread(st + 1)):
                slots[1 + 2*j].append(l)
        if st + 3 < NS:
            grp = []; groups = []
            for l in stage_issue(st + 3):
                grp.append(l)
                if l.startswith("buffer"):
                    groups.append(grp); grp = []
            groups[-1] += grp
            for g, gl in enumerate(groups):
                slots[(g * 40) // len(groups)] += gl
        pk = []
        if st == PST:
            for which in range(2):
                for ee in range(8):
                    o = PO + (which*8+ee)*2
                    g = []
                    for t in range(2):
                        g.append(f"v_perm_b32 v{o+t}, v{PL+(which*4+2*t+1)*4+(ee>>1)}, v{PL+(which*4+2*t)*4+(ee>>1)}, s{89+(ee&1)}")
                    g.append(f"ds_write_b64 v{PA+which*4+(ee>>1)}, v[{o}:{o+1}] offset:{(ee&1)*16}")
                    pk.append(g)
            pk = [pk[2*i] + pk[2*i+1] for i in range(8)]
        if st == PST + 1:
            pk = [[f"ds_read_b128 {vr(PL+g*4)}, v{PA+12} offset:{g*1040}"] for g in range(8)]
        for g, gl in enumerate(pk):
            slots[18 + 2*g] += [f"s_cbranch_vccnz k2_np{st}_{g}"] + gl + [f"k2_np{st}_{g}:"]
        if st == PST + 2:
            gl = ["s_cbranch_vccnz k2_sdum"]
            for g in range(8):
                gl += [f"buffer_store_dwordx4 {vr(PL+g*4)}, v8, s[64:67], s87 offen sc1", "s_add_u32 s87, s87, s88"]
            gl += ["s_branch k2_sdone", "k2_sdum:"] + dummy(8) + ["k2_sdone:"]
            slots[39] += gl
            vm.issue("Q", 8)
        k = 0
        for h in range(2):
            for i in range(5):
                for n in range(4):
                    if not os.environ.get("NOMFMA"): mfma(ar((i*4+n)*4), A(b,h,i), vr(B(st&1,h,n)))
                    for l in slots[k]:
                        if os.environ.get("NODS") and l.startswith("ds_"): continue
                        if os.environ.get("NOA") and l.startswith("buffer") and not l.endswith("lds"): continue
                        if os.environ.get("NOC") and l.startswith("buffer") and l.endswith("lds"): continue
                        e(l)
                    k += 1
    stamp(2)
    stamp(3)
    e("s_nop 7")
    e("v_add_u32 v9, s46, v8")
    for n in range(4):
        for i in range(5):
            e(f"ds_write_b128 v9, {ar((i*4+n)*4)} offset:{(n*5+i)*1024}")
    e("s_mul_i32 s44, s16, 5120")
    e("v_add_u32 v9, s44, v8")
    e("v_add_u32 v10, 65536, v9")
    XR = 112
    for i in range(10):
        e(f"v_accvgpr_read_b32 v{XR+i}, a{80+i}")
    e("s_waitcnt lgkmcnt(0)")
    e("s_barrier")
    for src in range(4):
        for i in range(5):
            e(f"ds_read_b128 {vr(BUF+(src*5+i)*4)}, v{9 + (src>>1)} offset:{(src&1)*32768 + i*1024}")
    stamp(4)
    e("s_lshl_b32 s22, s19, 2")
    e("s_add_u32 s22, s22, s16")
    e("s_mul_i32 s23, s20, 5")
    hp_addr(11, 22, 23, [61, 62, 63, 64, 65])
    e("v_mov_b32 v17, 0")
    e("v_mov_b32 v18, 0")
    e("s_waitcnt vmcnt(0) lgkmcnt(0)")
    T = 124
    for i in range(5):
        def S(src, r): return BUF + (src*5+i)*4 + r
        for r in range(4):
            e(f"v_add_f32 v{T+r}, v{S(0,r)}, v{S(1,r)}")
            e(f"v_add_f32 v{T+4+r}, v{S(2,r)}, v{S(3,r)}")
        for r in range(4):
            bf16r(T+r, T+r)
            bf16r(T+4+r, T+4+r)
        for r in range(4):
            e(f"v_sub_f32 v{T+r}, v{T+r}, v{T+4+r}")
        for r in range(4):
            bf16r(T+r, T+r)
        e(f"v_lshlrev_b32 v{T+4}, 16, v{XR+2*i}")
        e(f"v_and_b32 v{T+5}, 0xffff0000, v{XR+2*i}")
        e(f"v_lshlrev_b32 v{T+6}, 16, v{XR+2*i+1}")
        e(f"v_and_b32 v{T+7}, 0xffff0000, v{XR+2*i+1}")
        for r in range(4):
            e(f"v_add_f32 v{T+r}, v{T+r}, v{T+4+r}")
        o = 136 + 2*i
        e(f"v_cvt_pk_bf16_f32 v{o}, v{T}, v{T+1}")
        e(f"v_cvt_pk_bf16_f32 v{o+1}, v{T+2}, v{T+3}")
        e(f"buffer_store_dwordx2 v[{o}:{o+1}], v11, s[48:51], s{61+i} offen")
        e(f"v_lshlrev_b32 v{T}, 16, v{o}")
        e(f"v_and_b32 v{T+1}, 0xffff0000, v{o}")
        e(f"v_lshlrev_b32 v{T+2}, 16, v{o+1}")
        e(f"v_and_b32 v{T+3}, 0xffff0000, v{o+1}")
        for r in range(4):
            e(f"v_add_f32 v17, v17, v{T+r}")
            e(f"v_fmac_f32 v18, v{T+r}, v{T+r}")
    e("v_xor_b32 v10, 16, v1")
    e("v_lshlrev_b32 v10, 2, v10")
    e("ds_bpermute_b32 v19, v10, v17")
    e("ds_bpermute_b32 v28, v10, v18")
    e("s_waitcnt lgkmcnt(0)")
    e("v_add_f32 v17, v17, v19")
    e("v_add_f32 v18, v18, v28")
    e("v_xor_b32 v10, 32, v1")
    e("v_lshlrev_b32 v10, 2, v10")
    e("ds_bpermute_b32 v19, v10, v17")
    e("ds_bpermute_b32 v28, v10, v18")
    e("s_waitcnt lgkmcnt(0)")
    e("v_add_f32 v30, v17, v19")
    e("v_add_f32 v31, v18, v28")
    e("s_lshl_b32 s22, s21, 3")
    e("s_lshl_b32 s23, s20, 14")
    e("s_add_u32 s22, s22, s23")
    e("v_lshlrev_b32 v10, 3, v2")
    e("s_mov_b32 exec_lo, 0x0000ffff")
    e("s_mov_b32 exec_hi, 0")
    e("buffer_store_dwordx2 v[30:31], v10, s[52:55], s22 offen")
    e("s_mov_b64 exec, -1")
    lab("k2_fin")
    stamp(5)
    stamp_dump(1, 6)
    if os.environ.get("K2ST"):
        for i in range(7, 15):
            e(f"v_mov_b32 v2, s{70+2*i}")
            e(f"v_mov_b32 v3, s{71+2*i}")
            e(f"buffer_store_dwordx2 v[2:3], v0, s[64:67], s68 offen offset:{i*8}")
        e("s_waitcnt vmcnt(0)")
    lab("k2_end")
    e("s_endpgm")

def gen_k4():
    kernel_begin("k4_kernel")
    e("s_cmp_ge_u32 s2, 256")
    e("s_cbranch_scc1 k4_end")
    stamp(0)
    e("s_load_dwordx2 s[4:5], s[0:1], 72")
    e("s_load_dwordx2 s[6:7], s[0:1], 88")
    lane_setup()
    e("s_and_b32 s19, s2, 7")
    e("s_lshr_b32 s20, s2, 3")
    e("s_lshr_b32 s21, s20, 3")
    e("s_lshl_b32 s19, s19, 2")
    e("s_add_u32 s19, s19, s21")
    e("s_and_b32 s20, s20, 7")
    e("v_lshlrev_b32 v8, 4, v1")
    e("s_mul_i32 s22, s19, 196608")
    e("v_add_u32 v4, s22, v8")
    for n in range(1, 4):
        e(f"v_add_u32 v{4+n}, {n*49152}, v4")
    e("s_mul_i32 s22, s20, 245760")
    e("v_add_u32 v12, s22, v8")
    for i in range(1, 5):
        e(f"v_add_u32 v{12+i}, {i*49152}, v12")
    e("s_mul_i32 s41, s16, 12")
    e("s_lshr_b32 s40, s2, 3")
    e("s_mul_i32 s44, s40, 43691")
    e("s_lshr_b32 s44, s44, 19")
    e("s_mul_i32 s44, s44, 12")
    e("s_sub_u32 s40, s40, s44")
    e("s_waitcnt lgkmcnt(0)")
    srd(28, 6, SZ_ACT, WS_ACT)
    srd(32, 6, SZ_WDN, WS_WDN)
    NSL, AH = 8, 7
    def slot(b, k):
        if b < 6: return vr(32 + b * 36 + k * 4)
        return ar(80 + (b - 6) * 36 + k * 4)
    vm = VM()
    def issue(t):
        o = ["s_add_u32 s44, s40, s41", "s_lshl_b32 s42, s44, 10", "s_add_u32 s40, s40, 1",
             "s_cmp_ge_u32 s40, 12", "s_cselect_b32 s40, 0, s40"]
        b = t % NSL
        for n in range(4):
            o.append(f"buffer_load_dwordx4 {slot(b,5+n)}, v{4+n}, s[28:31], s42 offen")
        for i in range(5):
            o.append(f"buffer_load_dwordx4 {slot(b,i)}, v{12+i}, s[32:35], s42 offen")
        vm.issue(("S", t), 9)
        return o
    for t in range(AH):
        for l in issue(t): e(l)
    stamp(1)
    srd(24, 4, 2621440)
    srd(48, 6, SZ_HP, WS_HP)
    for a in range(80):
        e(f"v_accvgpr_write_b32 a{a}, 0")
    e("v_lshrrev_b32 v18, 2, v1")
    e("v_and_b32 v19, 3, v1")
    e("s_lshl_b32 s22, s19, 2")
    e("s_add_u32 s22, s22, s16")
    e("s_mul_i32 s23, s22, 20480")
    e("s_mul_i32 s45, s20, 2560")
    e("s_add_u32 s45, s45, s23")
    e("v_lshlrev_b32 v20, 4, v18")
    e("v_lshl_add_u32 v20, v19, 8, v20")
    e("v_and_b32 v21, 1, v1")
    e("v_lshlrev_b32 v22, 4, v18")
    e("v_lshl_add_u32 v21, v21, 8, v22")
    e("s_mul_i32 s46, s20, 160")
    e("s_add_u32 s46, s46, s23")
    e("v_mul_u32_u24 v22, 1280, v18")
    e("v_lshl_add_u32 v22, v19, 4, v22")
    if os.environ.get("OT"):
        e("buffer_load_dword v26, v22, s[24:27], s46 offen")
        vm.issue("O", 1)
    e("s_mul_i32 s47, s16, 23040")
    e("v_mul_u32_u24 v23, 288, v3")
    e("v_lshl_add_u32 v23, v2, 4, v23")
    e("v_add_u32 v23, s47, v23")
    e("s_mul_i32 s47, s16, 5760")
    e("v_mul_u32_u24 v24, 576, v19")
    e("v_lshl_add_u32 v24, v18, 4, v24")
    e("v_add_u32 v24, s47, v24")
    e("v_add_u32 v25, 46080, v24")
    HR = 152
    for t in range(12):
        b = t % NSL
        e(f"s_waitcnt vmcnt({vm.younger([('S', t)])})")
        ld = []
        if t + AH < 12:
            ld = issue(t + AH)
        elif t == 12 - AH:
            ld = [f"buffer_load_dwordx4 {ar(HR)}, v20, s[48:51], s45 offen",
                  f"buffer_load_dwordx4 {ar(HR+4)}, v20, s[48:51], s45 offen offset:1024",
                  f"buffer_load_dwordx4 {ar(HR+8)}, v21, s[48:51], s45 offen offset:2048"]
            vm.issue("H", 3)
        grp = []; groups = []
        for l in ld:
            grp.append(l)
            if l.startswith("buffer"):
                groups.append(grp); grp = []
        k = 0
        for i in range(5):
            for n in range(4):
                mfma(ar((i*4+n)*4), slot(b, i), slot(b, 5+n))
                k += 1
                if k % 2 == 0 and groups:
                    for l in groups.pop(0): e(l)
        assert not groups
    stamp(2)
    stamp(3)
    e("s_nop 7")
    e("s_nop 7")
    for n in range(4):
        for i in range(5):
            e(f"ds_write_b128 v23, {ar((i*4+n)*4)} offset:{(n*5+i)*1152}")
    XR = 128
    e("s_waitcnt vmcnt(0)")
    for r in range(12):
        e(f"v_accvgpr_read_b32 v{XR+r}, a{HR+r}")
    e("s_waitcnt lgkmcnt(0)")
    e("s_barrier")
    def S(src, j, hf): return 32 + ((j * 4 + src) * 2 + hf) * 4
    for j in range(3):
        for src in range(4):
            for hf in range(2):
                e(f"ds_read_b128 {vr(S(src,j,hf))}, v{24 + (src>>1)} offset:{(src&1)*23040 + j*2304 + hf*288}")
    stamp(4)
    for j in range(3):
        e(f"s_waitcnt lgkmcnt({min(15,(2-j)*8)})")
        T = 144 + j * 16
        for hf in range(2):
            for p in (0, 2):
                e(f"v_pk_add_f32 v[{T+hf*4+p}:{T+hf*4+p+1}], v[{S(0,j,hf)+p}:{S(0,j,hf)+p+1}], v[{S(1,j,hf)+p}:{S(1,j,hf)+p+1}]")
                e(f"v_pk_add_f32 v[{T+8+hf*4+p}:{T+8+hf*4+p+1}], v[{S(2,j,hf)+p}:{S(2,j,hf)+p+1}], v[{S(3,j,hf)+p}:{S(3,j,hf)+p+1}]")
        for p in range(0, 8, 2):
            e(f"v_pk_add_f32 v[{T+p}:{T+p+1}], v[{T+p}:{T+p+1}], v[{T+8+p}:{T+8+p+1}]")
        for p in range(4):
            e(f"v_cvt_pk_bf16_f32 v{T+8+p}, v{T+2*p}, v{T+2*p+1}")
        for p in range(4):
            e(f"v_lshlrev_b32 v{T+2*p}, 16, v{T+8+p}")
            e(f"v_and_b32 v{T+2*p+1}, 0xffff0000, v{T+8+p}")
        for p in range(4):
            e(f"v_lshlrev_b32 v{T+8+2*p}, 16, v{XR+4*j+p}")
            e(f"v_and_b32 v{T+8+2*p+1}, 0xffff0000, v{XR+4*j+p}")
        for p in range(0, 8, 2):
            e(f"v_pk_add_f32 v[{T+p}:{T+p+1}], v[{T+p}:{T+p+1}], v[{T+8+p}:{T+8+p+1}]")
        O = 192 + 4 * j
        for p in range(4):
            e(f"v_cvt_pk_bf16_f32 v{O+p}, v{T+2*p}, v{T+2*p+1}")
        if j == 2:
            e("s_mov_b32 exec_lo, 0x33333333")
            e("s_mov_b32 exec_hi, 0x33333333")
        e(f"buffer_store_dwordx4 {vr(O)}, v22, s[24:27], s46 offen offset:{j*64}")
    e("s_mov_b64 exec, -1")
    stamp(5)
    stamp_dump(3, 6)
    lab("k4_end")
    e("s_endpgm")

class VM:
    def __init__(self): self.q = []
    def issue(self, tag, n=1): self.q += [tag] * n
    def younger(self, tags):
        last = max(i for i, t in enumerate(self.q) if t in tags)
        return min(63, len(self.q) - 1 - last)

def gen_k3():
    kernel_begin("k3_kernel")
    e("s_cmp_ge_u32 s2, 256")
    e("s_cbranch_scc1 k3_end")
    stamp(0)
    e("s_load_dwordx2 s[6:7], s[0:1], 88")
    lane_setup()
    e("s_and_b32 s19, s2, 7")
    e("s_lshr_b32 s20, s2, 3")
    e("s_and_b32 s21, s20, 1")
    e("s_lshl_b32 s19, s19, 1")
    e("s_add_u32 s19, s19, s21")
    e("s_lshr_b32 s20, s20, 1")
    e(f"s_mov_b32 s17, {INV640}")
    e(f"s_mov_b32 s18, {EPS}")
    e("s_mov_b32 s62, 0x3f803f80")
    e("v_lshlrev_b32 v8, 4, v1")
    e("s_mul_i32 s21, s20, 12")
    e("s_mul_i32 s23, s16, 3")
    e("s_add_u32 s21, s21, s23")
    e("s_mul_i32 s22, s21, 20480")
    e("v_add_u32 v4, s22, v8")
    e("v_add_u32 v5, 20480, v4")
    e("v_add_u32 v6, 40960, v4")
    e("s_mul_i32 s22, s19, 163840")
    e("s_mul_i32 s23, s16, 40960")
    e("s_add_u32 s22, s22, s23")
    e("v_lshlrev_b32 v9, 3, v1")
    e("s_lshl_b32 s48, s19, 10")
    e("s_waitcnt lgkmcnt(0)")
    srd(24, 6, SZ_HP, WS_HP)
    srd(32, 6, SZ_WGU, WS_WGU)
    srd(28, 6, SZ_HSTAT, WS_HSTAT)
    vm = VM()
    D = 6
    WB = 88
    ACC3 = 160
    def Wf(kk, i): return WB + ((kk % D) * 3 + i) * 4
    def Hf(kk, n): return ((kk & 1) * 8 + n) * 4
    HGS = int(os.environ.get("HGS", "2")); LW = int(os.environ.get("LW", "3")); LH = int(os.environ.get("LH", "3"))
    HG = {chr(65 + g): (g * HGS, min(20, g * HGS + HGS)) for g in range((19 + HGS) // HGS)}
    def hdma_l(g, t):
        o = []
        k0, k1 = HG[g]
        for k in range(k0, k1, 4):
            base = t * 20480 + k * 1024
            o.append(f"s_add_u32 m0, s23, {base}")
            o.append(f"s_add_u32 s44, s22, {base}")
            for u in range(min(4, k1 - k)):
                o.append(f"buffer_load_dwordx4 v8, s[24:27], s44 offen offset:{u*1024} lds")
        vm.issue(("H", g), k1 - k0)
        return o
    def wload(kk):
        out = []
        if kk >= 4:
            out.append(f"s_mov_b32 s{45+(kk&1)}, {kk*1024}")
        for i in range(3):
            if kk < 4:
                out.append(f"buffer_load_dwordx4 {vr(Wf(kk,i))}, v{4+i}, s[32:35], 0 offen offset:{kk*1024}")
            else:
                out.append(f"buffer_load_dwordx4 {vr(Wf(kk,i))}, v{4+i}, s[32:35], s{45+(kk&1)} offen")
        vm.issue(("W", kk), 3)
        return out
    def sload(q):
        o = []
        for x in range(4 * q, 4 * q + 4):
            j, eb = x >> 3, x & 7
            o.append(f"s_add_u32 s47, s48, {eb*16384 + j*512}")
            o.append(f"buffer_load_dwordx2 v[{40+(j*8+eb)*2}:{41+(j*8+eb)*2}], v9, s[28:31], s47 offen")
        vm.issue("S", 4)
        return o
    def tload():
        vm.issue("P", 1)
        return ["buffer_load_dword v22, v23, s[52:55], s50 offen", "s_add_u32 s50, s50, 4096"]
    items = []
    for g, (k0, k1) in HG.items():
        for t in range(2):
            items.append((k0 - 1 - LH + (t if HGS > 1 else 0), k0 - 1, f"H{g}{t}"))
    for kk in range(20):
        items.append((kk - LW, kk - 0.5, f"W{kk}"))
    for q in range(4): items.append((9 + q, 30, f"S{q}"))
    last = max(it[0] for it in items)
    for q in range(4): items.append((min(19, max(15, last + 1) + q), 40, "T"))
    items.sort(key=lambda x: (max(x[0], -1), x[1]))
    sched = {}
    for it, dl, nm in items: sched.setdefault(max(it, -1), []).append(nm)
    BAR = {k0 - 1: g for g, (k0, k1) in HG.items() if k0 > 0}
    def do_items(lst_):
        lst = []
        for it in lst_:
            if it[0] == "W": lst += wload(int(it[1:]))
            elif it[0] == "H": lst += hdma_l(it[1], int(it[2]))
            elif it[0] == "S": lst += sload(int(it[1]))
            else: lst += tload()
        return lst
    for l in do_items(sched[-1]): e(l)
    srd(36, 6, SZ_ACT, WS_ACT)
    srd(52, 6, SZ_WDN, WS_WDN)
    e("s_lshr_b32 s50, s2, 3")
    e("s_lshl_b32 s50, s50, 2")
    e("s_add_u32 s50, s50, s16")
    e("s_mul_i32 s50, s50, 15360")
    e("v_lshlrev_b32 v23, 6, v1")
    for a in range(96):
        e(f"v_mov_b32 v{ACC3+a}, 0")
    for r in range(24, 36):
        e(f"v_mov_b32 v{r}, 0")
    for r in range(16, 20):
        e(f"v_mov_b32 v{r}, 0x3f803f80")
    e("v_add_u32 v10, 65536, v8")
    e("v_add_u32 v11, 131072, v8")
    e("v_lshlrev_b32 v12, 2, v2")
    e("v_lshlrev_b32 v13, 4, v3")
    def hread(kk):
        o = []
        for n in range(8):
            off = (n * 20 + kk) * 1024
            base = 8 if off < 65536 else (10 if off < 131072 else 11)
            o.append(f"ds_read_b128 {ar(Hf(kk,n))}, v{base} offset:{off % 65536}")
        return o
    def dots(kk):
        return [f"v_dot2_f32_bf16 v{16+i}, v{Wf(kk,i)+r}, s62, v{16+i}" for r in range(4) for i in range(3)]
    def stats_code():
        sv = L[:]
        del L[:]
        for j in range(2):
            b = 40 + j * 16
            for k in (2, 4, 6, 8, 10, 12, 14):
                e(f"v_add_f32 v{b}, v{b}, v{b+k}")
                e(f"v_add_f32 v{b+1}, v{b+1}, v{b+k+1}")
            ln_stats(b, b+1, 36+2*j, 37+2*j, 20+j)
        for t in range(8):
            e(f"ds_bpermute_b32 v{72+2*t}, v12, v{36+2*(t>>2)} offset:{(t&3)*64}")
            e(f"ds_bpermute_b32 v{73+2*t}, v12, v{37+2*(t>>2)} offset:{(t&3)*64}")
            e(f"ds_bpermute_b32 v{64+t}, v12, v{20+(t>>2)} offset:{(t&3)*64}")
        o = [x.strip() for x in L]
        L[:] = sv
        return o
    stamp(1)
    e(f"s_waitcnt vmcnt({vm.younger([('H','A')])})")
    stamp(2)
    e("s_barrier")
    stamp(3)
    for l in hread(0): e(l)
    for kk in range(20):
        need = [("W", kk)]
        if kk in BAR: need.append(("H", BAR[kk]))
        if kk == 15: need.append("S")
        e(f"s_waitcnt vmcnt({vm.younger(need)}) lgkmcnt(0)")
        if kk in BAR: e("s_barrier")
        slots = [[] for _ in range(27)]
        if kk + 1 < 20:
            for j, l in enumerate(hread(kk + 1)):
                slots[j].append(l)
        lst = do_items(sched.get(kk, []))
        groups = []; grp = []
        for l in lst:
            if grp and any(x.startswith("buffer") for x in grp) and not l.startswith("s_add_u32 s50"):
                groups.append(grp); grp = []
            grp.append(l)
        if grp: groups.append(grp)
        for g, gl in enumerate(groups):
            slots[1 + (g * 24) // max(len(groups), 8)] += gl
        if kk == 15: sc = stats_code()
        if kk in (15, 16):
            part = sc[:54] if kk == 15 else sc[54:]
            for j, l in enumerate(part):
                slots[(j * 27) // len(part)].append(l)
        if kk == 19:
            for j, l in enumerate(["v_mul_u32_u24 v9, 49152, v3", "v_lshl_add_u32 v9, v2, 4, v9", "s_mul_i32 s22, s19, 393216", "s_lshl_b32 s23, s21, 8",
                                   "s_add_u32 s22, s22, s23", "v_mov_b32 v36, 0xbdd2d3e8", "v_mov_b32 v37, 0xc0135761"]):
                slots[j].append(l)
        k = 0
        for i in range(3):
            mfma(vr(24+4*i), vr(Wf(kk,i)), vr(16))
            for l in slots[k]: e(l)
            k += 1
        for n in range(8):
            for i in range(3):
                mfma(vr(ACC3+(i*8+n)*4), vr(Wf(kk,i)), ar(Hf(kk,n)))
                for l in slots[k]: e(l)
                k += 1
    stamp(4)
    def epi(i):
        o = []
        for hi, n0 in enumerate((0, 4)):
            TB = 40 + hi * 12
            O = TB + 8
            lists = []
            for g in range(4):
                n = n0 + g
                A = ACC3 + (i*8+n)*4
                S = 72 + 2*n
                SD = 64 + (n & ~1); sd = n & 1
                WS = 24 + i*4
                t2 = TB + g*2
                l = []
                for p in (0, 2):
                    l.append(f"v_pk_fma_f32 v[{A+p}:{A+p+1}], v[{S}:{S+1}], v[{WS+p}:{WS+p+1}], v[{A+p}:{A+p+1}] op_sel:[0,0,0] op_sel_hi:[0,1,1] neg_lo:[1,0,0] neg_hi:[1,0,0]")
                l.append(f"v_pk_mul_f32 v[{A}:{A+1}], v[{A}:{A+1}], v[{S}:{S+1}] op_sel:[0,1] op_sel_hi:[1,1]")
                l.append(f"v_pk_mul_f32 v[{t2}:{t2+1}], v[{A}:{A+1}], v[{A}:{A+1}]")
                l.append(f"v_pk_fma_f32 v[{t2}:{t2+1}], v[{t2}:{t2+1}], v[36:37], v[36:37] op_sel:[0,0,1] op_sel_hi:[1,0,1]")
                l.append(f"v_pk_mul_f32 v[{t2}:{t2+1}], v[{t2}:{t2+1}], v[{A}:{A+1}]")
                l.append(f"v_exp_f32 v{t2}, v{t2}")
                l.append(f"v_exp_f32 v{t2+1}, v{t2+1}")
                l.append(f"v_pk_mul_f32 v[{A}:{A+1}], v[{A}:{A+1}], v[{A+2}:{A+3}]")
                l.append(f"v_pk_fma_f32 v[{t2}:{t2+1}], v[{t2}:{t2+1}], v[{SD}:{SD+1}], v[{SD}:{SD+1}] op_sel:[0,{sd},{sd}] op_sel_hi:[1,{sd},{sd}]")
                l.append(f"v_rcp_f32 v{t2}, v{t2}")
                l.append(f"v_rcp_f32 v{t2+1}, v{t2+1}")
                l.append(f"v_pk_mul_f32 v[{t2}:{t2+1}], v[{t2}:{t2+1}], v[{A}:{A+1}]")
                l.append(f"v_cvt_pk_bf16_f32 v{O+g}, v{t2}, v{t2+1}")
                lists.append(l)
            for k in range(len(lists[0])):
                for g in range(4): o.append(lists[g][k])
            o.append("s_nop 1")
            o.append(f"v_permlane16_swap_b32 v{O}, v{O+1}")
            o.append(f"v_permlane16_swap_b32 v{O+2}, v{O+3}")
            o.append("s_nop 1")
            o.append(f"v_permlane32_swap_b32 v{O}, v{O+2}")
            o.append(f"v_permlane32_swap_b32 v{O+1}, v{O+3}")
            o.append(f"s_add_u32 s44, s22, {n0*49152 + i*256}")
            o.append("s_nop 1")
            o.append(f"buffer_store_dwordx4 {vr(O)}, v9, s[36:39], s44 offen")
        return o
    e("s_nop 7")
    stamp(5)
    for i in range(3):
        for l in epi(i): e(l)
    stamp(6)
    stamp_dump(2, 7)
    lab("k3_end")
    e("s_endpgm")

def descriptor(name, vgpr, accum, sgpr=102):
    raw(f".amdhsa_kernel {name}")
    raw(f"  .amdhsa_next_free_vgpr {vgpr}")
    raw(f"  .amdhsa_next_free_sgpr {sgpr}")
    raw(f"  .amdhsa_accum_offset {accum}")
    raw("  .amdhsa_group_segment_fixed_size 0")
    raw("  .amdhsa_kernarg_size 96")
    raw("  .amdhsa_user_sgpr_count 2")
    raw("  .amdhsa_user_sgpr_kernarg_segment_ptr 1")
    raw("  .amdhsa_system_sgpr_workgroup_id_x 1")
    raw(".end_amdhsa_kernel")

def main():
    raw("; 4-kernel pipeline: K1 LN1+hidden DFT GEMM, K2 seq DFT GEMM + residual, K3 LN2+gate/up GEMM+GEGLU, K4 down GEMM + residual")
    raw("; @launch kernel=k1_kernel grid=(256,1,1) block=(256,1,1) lds=152832")
    raw("; @launch kernel=k2_kernel grid=(256,1,1) block=(256,1,1) lds=156032")
    raw("; @launch kernel=k3_kernel grid=(256,1,1) block=(256,1,1) lds=163840")
    raw("; @launch kernel=k4_kernel grid=(256,1,1) block=(256,1,1) lds=94208")
    raw('.amdgcn_target "amdgcn-amd-amdhsa--gfx950"')
    raw(".text")
    gen_k1(); gen_k2(); gen_k3(); gen_k4()
    raw('.section .rodata,"a"')
    raw(".p2align 6")
    descriptor("k1_kernel", 348, 160)
    raw(".p2align 6")
    descriptor("k2_kernel", 432, 256)
    raw(".p2align 6")
    descriptor("k3_kernel", 320, 256)
    raw(".p2align 6")
    descriptor("k4_kernel", 424, 256)
    out = sys.argv[1] if len(sys.argv) > 1 else f"cdna_kernels/{NAME}.s"
    NOSC = os.environ.get("NOSC", "").split(",")
    LL = [ (l + " sc1") if ("buffer_store" in l and "s[64:67]" not in l and not any(x and x in l for x in NOSC)) else l for l in L]
    open(out, "w").write("\n".join(LL) + "\n")

main()
```

```python
import sys

L = []
def e(s): L.append("    " + s)
def lab(s): L.append(s + ":")
def raw(s): L.append(s)

NAME = "sequential_preLN__spectral_fnet__geglu_ffn__prompt"

WS_ABP = 0
SZ_ABP = 80 * 64 * 1024
WS_HP = 0x500000
SZ_HP = 128 * 20 * 1024
WS_HSTAT = 0x780000
SZ_HSTAT = 2048 * 8 * 8
WS_ACT = 0x800000
SZ_ACT = 128 * 48 * 1024
WS_WGU = 0xE00000
WSUM_OFF = 192 * 20 * 1024
SZ_WGU = WSUM_OFF + 192 * 4 * 64
WS_WDN = 0x1200000
SZ_WDN = 40 * 48 * 1024

INV640 = 0x3ACCCCCD
EPS = 0x3727C5AC

import os
DIAG = os.environ.get("DIAG", "0") == "1"
WS_DIAG = 0x3000000
def stamp(i):
    if DIAG:
        e(f"s_memtime s[{70+2*i}:{71+2*i}]")
        e("s_waitcnt lgkmcnt(0)")
def stamp_dump(kidx, n):
    if not DIAG: return
    e("s_waitcnt vmcnt(0)")
    stamp(n)
    e(f"s_add_u32 s64, s6, {WS_DIAG + kidx*0x40000}")
    e("s_addc_u32 s65, s7, 0")
    e("s_mov_b32 s66, 0x40000")
    e("s_mov_b32 s67, 0x20000")
    e("s_lshl_b32 s68, s2, 2")
    e("s_add_u32 s68, s68, s16")
    e("s_lshl_b32 s68, s68, 8")
    e("v_mov_b32 v0, 0")
    e("s_mov_b64 exec, 1")
    for i in range(n+1):
        e(f"v_mov_b32 v2, s{70+2*i}")
        e(f"v_mov_b32 v3, s{71+2*i}")
        e(f"buffer_store_dwordx2 v[2:3], v0, s[64:67], s68 offen offset:{i*8}")
    e("s_waitcnt vmcnt(0)")

def srd(d, lo, size, off=0):
    if off:
        e(f"s_add_u32 s{d}, s{lo}, {off}")
        e(f"s_addc_u32 s{d+1}, s{lo+1}, 0")
    else:
        e(f"s_mov_b32 s{d}, s{lo}")
        e(f"s_mov_b32 s{d+1}, s{lo+1}")
    e(f"s_mov_b32 s{d+2}, {size}")
    e(f"s_mov_b32 s{d+3}, 0x20000")

def bf16r(dst, src):
    e(f"v_cvt_pk_bf16_f32 v{dst}, v{src}, v{src}")
    e(f"v_lshlrev_b32 v{dst}, 16, v{dst}")

def vr(b, n=4): return f"v[{b}:{b+n-1}]"
def ar(b, n=4): return f"a[{b}:{b+n-1}]"

def mfma(d, a, b, c=None):
    c = d if c is None else c
    if L and L[-1].split()[0] in ("v_exp_f32", "v_rcp_f32", "v_sqrt_f32", "v_rsq_f32"): e("s_nop 1")
    e(f"v_mfma_f32_16x16x32_bf16 {d}, {a}, {b}, {c}")

def kernel_begin(name):
    raw(f".globl {name}")
    raw(".p2align 8")
    raw(f".type {name},@function")
    lab(name)

CT = os.environ.get("CT", "1") == "1"
_ctn = [0]
def code_touch(target, endl, vtmp, dst, back=False, n=1):
    if not CT: return []
    _ctn[0] += 1
    u = f"ct_pc{_ctn[0]}"
    o = ["s_getpc_b64 s[96:97]", u + ":"]
    if back:
        o += [f"s_sub_u32 s96, s96, {u}-{target}", "s_subb_u32 s97, s97, 0"]
    else:
        o += [f"s_add_u32 s96, s96, {target}-{u}", "s_addc_u32 s97, s97, 0"]
    o += [f"s_mov_b32 s98, {endl}-{target}", "s_mov_b32 s99, 0x20000", f"v_lshlrev_b32 v{vtmp}, 7, v0"]
    o.append(f"buffer_load_dword {dst}, v{vtmp}, s[96:99], 0 offen")
    if n > 1:
        o.append(f"v_add_u32 v{vtmp}, 32768, v{vtmp}")
        o.append(f"buffer_load_dword {dst}, v{vtmp}, s[96:99], 0 offen")
    return o

def lane_setup():
    e("v_lshrrev_b32 v4, 6, v0")
    e("v_and_b32 v1, 63, v0")
    e("v_readfirstlane_b32 s16, v4")
    e("v_and_b32 v2, 15, v1")
    e("v_lshrrev_b32 v3, 4, v1")

def ln_stats(vsum, vsq, vm, vrd, t):
    e(f"v_mul_f32 v{vm}, s17, v{vsum}")
    e(f"v_mul_f32 v{t}, s17, v{vsq}")
    e(f"v_fma_f32 v{t}, -v{vm}, v{vm}, v{t}")
    e(f"v_max_f32 v{t}, 0, v{t}")
    bf16r(vm, vm)
    bf16r(t, t)
    e(f"v_add_f32 v{t}, s18, v{t}")
    bf16r(t, t)
    e(f"v_sqrt_f32 v{t}, v{t}")
    e("s_nop 0")
    bf16r(t, t)
    e(f"v_rcp_f32 v{vrd}, v{t}")
    e("s_nop 0")

def gen_k1():
    kernel_begin("k1_kernel")
    e("s_cmp_ge_u32 s2, 256")
    e("s_cbranch_scc1 k1_end")
    stamp(0)
    e("s_load_dwordx2 s[4:5], s[0:1], 0")
    e("s_load_dwordx2 s[8:9], s[0:1], 24")
    e("s_load_dwordx2 s[10:11], s[0:1], 32")
    e("s_load_dwordx2 s[6:7], s[0:1], 88")
    e("s_load_dwordx4 s[56:59], s[0:1], 8")
    for l in code_touch("k1_kernel", "code_end", 154, "v155", back=True, n=2): e(l)
    lane_setup()
    e("s_and_b32 s19, s2, 3")
    e("s_lshl_b32 s19, s19, 2")
    e("s_bfe_u32 s21, s2, 0x20003")
    e("s_add_u32 s19, s19, s21")
    e("s_lshr_b32 s22, s2, 5")
    e("s_bfe_u32 s20, s2, 0x10002")
    e("s_lshl_b32 s20, s20, 3")
    e("s_add_u32 s20, s20, s22")
    e("s_add_u32 s48, s21, s22")
    e("v_lshlrev_b32 v15, 4, v1")
    e("v_lshrrev_b32 v25, 3, v1")
    e("v_and_b32 v26, 7, v1")
    e("v_xor_b32 v26, v26, v25")
    e("v_mul_u32_u24 v25, 1280, v25")
    e("v_lshl_add_u32 v25, v26, 4, v25")
    e("s_and_b32 s21, s20, 7")
    e("s_mul_i32 s21, s21, 102400")
    e("s_and_b32 s22, s16, 1")
    e("s_mul_i32 s22, s22, 51200")
    e("s_add_u32 s21, s21, s22")
    e("s_lshr_b32 s22, s16, 1")
    e("s_lshl_b32 s22, s22, 7")
    e("s_add_u32 s21, s21, s22")
    e("v_add_u32 v4, s21, v25")
    e("s_lshl_b32 s21, s19, 7")
    e("s_lshl_b32 s22, s16, 5")
    e("s_add_u32 s21, s21, s22")
    e("s_mul_i32 s21, s21, 1280")
    e("v_add_u32 v5, s21, v25")
    for j in range(1, 4):
        e(f"v_add_u32 v{5+j}, {j*10240 - j*1024}, v5")
    e("s_mul_i32 s46, s16, 12288")
    e("s_add_u32 s46, s46, 102400")
    e("s_mul_i32 s47, s16, 5120")
    e("s_mul_i32 s49, s48, 205")
    e("s_lshr_b32 s49, s49, 10")
    e("s_mul_i32 s49, s49, 5")
    e("s_sub_u32 s49, s48, s49")
    if os.environ.get("K1NOROT"): e("s_mov_b32 s49, 0")
    for sc in range(5):
        e(f"s_lshl_b32 s{50+sc}, s49, 8")
        e("s_add_u32 s49, s49, 1")
        e("s_cmp_ge_u32 s49, 5")
        e("s_cselect_b32 s49, 0, s49")
    e("s_waitcnt lgkmcnt(0)")
    srd(24, 4, 2621440)
    e("s_cmp_lt_u32 s20, 8")
    e("s_cselect_b32 s28, s8, s10")
    e("s_cselect_b32 s29, s9, s11")
    e("s_mov_b32 s30, 819200")
    e("s_mov_b32 s31, 0x20000")
    vm = VM()
    XS = 76
    def wdma(sc):
        o = []
        for u in range(5):
            o.append(f"s_add_u32 m0, s47, {sc*20480 + u*1024}")
            o.append(f"s_add_u32 s23, s{50+sc}, {u*10240}")
            o.append("buffer_load_dwordx4 v4, s[28:31], s23 offen lds")
        vm.issue(("W", sc), 5)
        return o
    def xld(c):
        if c < 3:
            o = [f"s_add_u32 m0, s46, {(c%3)*4096}", f"s_add_u32 s22, s{50+(c>>1)}, {(c&1)*128}"]
            for j in range(4):
                o.append(f"buffer_load_dwordx4 v{5+j}, s[24:27], s22 offen offset:{j*1024} lds")
        else:
            o = [f"s_add_u32 s22, s{50+(c>>1)}, {(c&1)*128}"]
            for j in range(4):
                o.append(f"buffer_load_dwordx4 {ar(XS+(c-3)*16+j*4)}, v{5+j}, s[24:27], s22 offen offset:{j*1024}")
        vm.issue(("X", c), 4)
        return o
    for l in wdma(0) + xld(0) + xld(1): e(l)
    e(f"s_mov_b32 s17, {INV640}")
    e(f"s_mov_b32 s18, {EPS}")
    e("v_and_b32 v26, 7, v2")
    e("v_xor_b32 v26, v26, v3")
    e("v_lshlrev_b32 v11, 7, v2")
    e("v_lshl_add_u32 v11, v26, 4, v11")
    e("v_xor_b32 v12, 64, v11")
    e("v_add_u32 v13, 61440, v11")
    e("v_add_u32 v14, 61440, v12")
    e("v_add_u32 v9, s46, v11")
    e("v_add_u32 v10, s46, v12")
    srd(32, 6, SZ_ABP, WS_ABP)
    TST = [int(x) for x in os.environ.get("TST", "3,6").split(",")]
    PL, PO, PA = 144, 176, 144
    e(f"v_add_u32 v{PA+8}, s46, v15")
    e("s_cmp_lt_u32 s2, 128")
    e("s_cselect_b32 s56, s56, s58")
    e("s_cselect_b32 s57, s57, s59")
    e("s_mov_b32 s58, 8388608")
    e("s_mov_b32 s59, 0x20000")
    e("s_and_b32 s21, s2, 7")
    e("s_bfe_u32 s22, s2, 0x20005")
    e("s_lshl_b32 s21, s21, 2")
    e("s_add_u32 s21, s21, s22")
    e("s_lshl_b32 s21, s21, 2")
    e("s_bfe_u32 s22, s2, 0x20003")
    e("s_add_u32 s21, s21, s22")
    e("s_lshl_b32 s21, s21, 2")
    e("s_add_u32 s21, s21, s16")
    e("s_lshl_b32 s91, s21, 14")
    e(f"v_lshlrev_b32 v{PA+10}, 7, v1")
    def touch():
        if os.environ.get("NOPF"): return []
        vm.issue("T", 1)
        return [f"buffer_load_dword v{PA+11}, v{PA+10}, s[56:59], s91 offen", "s_add_u32 s91, s91, 8192"]
    for t in TST:
        if t == -1:
            for l in touch(): e(l)
    for a in range(76):
        e(f"v_accvgpr_write_b32 a{a}, 0")
    ONES = 16
    for r in range(4):
        e(f"v_mov_b32 v{ONES+r}, 0x3f803f80")
    FB = 32
    def XF(b, st, h): return FB + b * 56 + (st * 2 + h) * 4
    def WF(b, i, h): return FB + b * 56 + 16 + (i * 2 + h) * 4
    def fread(c):
        o = []
        b = c & 1
        for h in range(2):
            for st in range(2):
                o.append(f"ds_read_b128 {vr(XF(b,st,h))}, v{9+h} offset:{(c%3)*4096 + st*2048}")
            for i in range(5):
                off = c * 10240 + i * 2048
                if off < 61440:
                    o.append(f"ds_read_b128 {vr(WF(b,i,h))}, v{11+h} offset:{off}")
                else:
                    o.append(f"ds_read_b128 {vr(WF(b,i,h))}, v{13+h} offset:{off-61440}")
        return o
    stamp(1)
    e(f"s_waitcnt vmcnt({vm.younger([('W',0),('X',0)])})")
    e("s_barrier")
    stamp(2)
    for l in fread(0): e(l)
    for c in range(10):
        b = c & 1
        need = []
        if c + 1 <= 2: need.append(("X", c + 1))
        if c + 1 < 10: need.append(("W", (c + 1) >> 1))
        if 3 <= c + 2 <= 9: need.append(("X", c + 2))
        if need and c < 8:
            e(f"s_waitcnt vmcnt({vm.younger(need)}) lgkmcnt(0)")
        else:
            e("s_waitcnt lgkmcnt(0)")
        if c in (1, 3, 5, 7): e("s_barrier")
        NM = 28
        slots = [[] for _ in range(NM)]
        if c + 1 < 10:
            for j, l in enumerate(fread(c + 1)):
                slots[j].append(l)
        if 3 <= c + 2 <= 9:
            for j in range(4):
                slots[14 + j].append(f"ds_write_b128 v{PA+8}, {ar(XS+(c-1)*16+j*4)} offset:{((c+2)%3)*4096 + j*1024}")
        lst = []
        if c < 4: lst = wdma(c + 1) + xld(2 * c + 2) + xld(2 * c + 3)
        for t in TST:
            if t == c: lst += touch()
        if c == int(os.environ.get("CT1", "7")) and CT:
            slots[20] += code_touch("k2_kernel", "k3_kernel", 156, "v155")
            vm.issue("CT", 1)
        groups = []; grp = []
        for l in lst:
            if grp and any(x.startswith("buffer") for x in grp) and not (l.startswith("s_add_u32 s8") or l.startswith("s_add_u32 s9")):
                groups.append(grp); grp = []
            grp.append(l)
        if grp: groups.append(grp)
        for g, gl in enumerate(groups):
            slots[g] = gl + slots[g]
        ml = []
        for h in range(2):
            for i in range(5):
                for st in range(2):
                    ml.append((ar((st*5+i)*4), vr(XF(b,st,h)), vr(WF(b,i,h))))
            for st in range(2):
                ml.append((ar(40+4*st), vr(XF(b,st,h)), vr(ONES)))
                ml.append((ar(48+4*st), vr(XF(b,st,h)), vr(XF(b,st,h))))
        for k, m in enumerate(ml):
            mfma(*m)
            for l in slots[k]: e(l)
        for wv in range(4):
            e(f"s_cmp_lg_u32 s16, {wv}")
            e(f"s_cbranch_scc1 k1_ws{c}_{wv}")
            for i in range(5):
                for h in range(2):
                    if (c * 2 + i * 2 + h) % 4 == wv:
                        mfma(ar(56+4*i), vr(ONES), vr(WF(b,i,h)))
            lab(f"k1_ws{c}_{wv}")
    stamp(3)
    WX = 151552
    e("s_nop 7")
    e("s_nop 7")
    for i in range(5):
        e(f"v_accvgpr_read_b32 v{20+i}, a{56+4*i}")
    e("v_lshlrev_b32 v25, 2, v2")
    e("s_mul_i32 s21, s16, 320")
    e(f"s_add_u32 s21, s21, {WX}")
    e("v_add_u32 v26, s21, v25")
    for i in range(5):
        e(f"ds_write_b32 v26, v{20+i} offset:{i*64}")
    e("v_mul_u32_u24 v12, 80, v3")
    for st in range(2):
        for r in range(4):
            e(f"v_accvgpr_read_b32 v{32+st*4+r}, a{40+4*st+r}")
            e(f"v_accvgpr_read_b32 v{40+st*4+r}, a{48+4*st+r}")
    e("s_nop 1")
    for st in range(2):
        for r in range(4):
            e(f"ds_bpermute_b32 v{40+st*4+r}, v12, v{40+st*4+r} offset:{4*r}")
    e(f"v_add_u32 v26, {WX}, v25")
    e("s_waitcnt lgkmcnt(0)")
    e("s_barrier")
    for wv in range(4):
        for i in range(5):
            e(f"ds_read_b32 v{124+wv*5+i}, v26 offset:{wv*320 + i*64}")
    for st in range(2):
        for r in range(4):
            ln_stats(32+st*4+r, 40+st*4+r, 52+st*4+r, 60+st*4+r, 48)
    e("s_waitcnt lgkmcnt(0)")
    for i in range(5):
        e(f"v_add_f32 v{20+i}, v{124+i}, v{129+i}")
        e(f"v_add_f32 v{124+i}, v{134+i}, v{139+i}")
        e(f"v_add_f32 v{20+i}, v{20+i}, v{124+i}")
    e("v_and_b32 v26, 1, v3")
    e("v_lshlrev_b32 v26, 9, v26")
    e("v_lshrrev_b32 v27, 1, v3")
    e("v_lshl_add_u32 v26, v27, 8, v26")
    e("v_lshl_add_u32 v26, v2, 4, v26")
    e("s_mul_i32 s21, s20, 320")
    e("s_lshl_b32 s22, s19, 2")
    e("s_add_u32 s21, s21, s22")
    e("s_add_u32 s21, s21, s16")
    e("s_lshl_b32 s21, s21, 10")
    for i in range(5):
        T = 72 + (i & 1) * 16
        O = 104 + i * 4
        for st in range(2):
            for r in range(4):
                e(f"v_accvgpr_read_b32 v{T+st*4+r}, a{(st*5+i)*4+r}")
        for st in range(2):
            for r in range(4):
                e(f"v_fma_f32 v{T+st*4+r}, -v{52+st*4+r}, v{20+i}, v{T+st*4+r}")
        for st in range(2):
            for r in range(4):
                e(f"v_mul_f32 v{T+st*4+r}, v{T+st*4+r}, v{60+st*4+r}")
        for st in range(2):
            e(f"v_cvt_pk_bf16_f32 v{O+2*st}, v{T+st*4}, v{T+st*4+1}")
            e(f"v_cvt_pk_bf16_f32 v{O+2*st+1}, v{T+st*4+2}, v{T+st*4+3}")
        e("s_nop 1")
        e(f"v_permlane16_swap_b32 v{O}, v{O+2}")
        e(f"v_permlane16_swap_b32 v{O+1}, v{O+3}")
        e(f"s_add_u32 s23, s21, {i*65536}")
        e("s_nop 1")
        e(f"buffer_store_dwordx4 {vr(O)}, v26, s[32:35], s23 offen")
        vm.issue("S", 1)
    stamp(4)
    lab("k1_fin")
    stamp(5)
    stamp_dump(0, 6)
    lab("k1_end")
    e("s_endpgm")

ACC = 176
BUF = 32
def bufA(b, i): return BUF + b * 36 + i * 4
def bufB(b, n): return BUF + b * 36 + 20 + n * 4
def acc(i, n): return ACC + (i * 4 + n) * 4

def splitk_core(nsteps, srdA, srdB, shA, shB, vA, vB, mask):
    def addr():
        e("s_add_u32 s44, s40, s41")
        e(f"s_lshl_b32 s42, s44, {shA}")
        e(f"s_lshl_b32 s43, s44, {shB}")
        e("s_add_u32 s40, s40, 1")
        if mask:
            e(f"s_and_b32 s40, s40, {nsteps-1}")
        else:
            e(f"s_cmp_ge_u32 s40, {nsteps}")
            e("s_cselect_b32 s40, 0, s40")
    def loads(b):
        out = []
        for n in range(4):
            out.append(f"buffer_load_dwordx4 {vr(bufB(b,n))}, v{vB+n}, s[{srdB}:{srdB+3}], s43 offen")
        for i in range(5):
            out.append(f"buffer_load_dwordx4 {vr(bufA(b,i))}, v{vA+i}, s[{srdA}:{srdA+3}], s42 offen")
        return out
    for it in range(3):
        addr()
        for l in loads(it): e(l)
    for a in range(80):
        e(f"v_mov_b32 v{ACC+a}, 0")
    for it in range(nsteps):
        b = it % 4
        rem = min(nsteps - 1 - it, 2)
        e(f"s_waitcnt vmcnt({9*rem})")
        ld = []
        if it + 3 < nsteps:
            addr()
            ld = loads((it + 3) % 4)
        k = 0
        for i in range(5):
            for n in range(4):
                mfma(vr(acc(i,n)), vr(bufA(b,i)), vr(bufB(b,n)))
                k += 1
                if k % 2 == 0 and ld:
                    e(ld.pop(0))
        assert not ld

def splitk_exchange():
    e("s_nop 7")
    e("s_nop 7")
    e("s_mul_i32 s44, s16, 5120")
    e("v_add_u32 v9, s44, v8")
    e("v_add_u32 v10, 61440, v9")
    for n in range(4):
        for i in range(5):
            if n < 3:
                e(f"ds_write_b128 v9, {vr(acc(i,n))} offset:{(n*20+i)*1024}")
            else:
                e(f"ds_write_b128 v10, {vr(acc(i,n))} offset:{i*1024}")
    e("s_mul_i32 s44, s16, 20480")
    e("v_add_u32 v9, s44, v8")
    e("s_waitcnt lgkmcnt(0)")
    e("s_barrier")
    for src in range(4):
        for i in range(5):
            e(f"ds_read_b128 {vr(BUF+(src*5+i)*4)}, v9 offset:{(src*5+i)*1024}")


def hp_addr(vdst, s_st, s_d16base, sdst_list):
    e(f"v_lshrrev_b32 v{vdst}, 1, v3")
    e(f"v_lshlrev_b32 v{vdst}, 8, v{vdst}")
    e(f"v_lshl_add_u32 v{vdst}, v2, 4, v{vdst}")
    e("v_and_b32 v10, 1, v3")
    e(f"v_lshl_add_u32 v{vdst}, v10, 3, v{vdst}")
    e(f"s_mul_i32 s44, s{s_st}, 20480")
    for i in range(5):
        e(f"s_add_u32 s45, s{s_d16base}, {i}")
        e(f"s_lshl_b32 s45, s45, 9")
        e(f"s_add_u32 s{sdst_list[i]}, s44, s45")

def gen_k2():
    ROT = os.environ.get("K2ROT", "0") == "1"
    kernel_begin("k2_kernel")
    e("s_cmp_ge_u32 s2, 256")
    e("s_cbranch_scc1 k2_end")
    stamp(0)
    e("s_load_dwordx2 s[4:5], s[0:1], 0")
    e("s_load_dwordx2 s[8:9], s[0:1], 8")
    e("s_load_dwordx2 s[10:11], s[0:1], 16")
    e("s_load_dwordx2 s[6:7], s[0:1], 88")
    e("s_load_dwordx4 s[12:15], s[0:1], 48")
    e("s_load_dwordx2 s[60:61], s[0:1], 64")
    lane_setup()
    e("s_and_b32 s19, s2, 7")
    e("s_lshr_b32 s20, s2, 3")
    e("s_lshr_b32 s21, s20, 3")
    e("s_lshl_b32 s19, s19, 2")
    e("s_add_u32 s19, s19, s21")
    e("s_and_b32 s20, s20, 7")
    e("v_lshlrev_b32 v8, 4, v1")
    VC, VA, VB0, VB1 = 16, 24, 29, 30
    e("v_lshrrev_b32 v4, 3, v1")
    e("v_and_b32 v5, 7, v1")
    e("v_xor_b32 v5, v5, v4")
    e("v_lshlrev_b32 v4, 12, v4")
    e("v_lshl_add_u32 v4, v5, 4, v4")
    e("s_lshl_b32 s22, s19, 18")
    if os.environ.get("XC"): e("s_mov_b32 s22, 0")
    e(f"v_add_u32 v{VC}, s22, v4")
    for j in range(1, 8):
        e(f"v_add_u32 v{VC+j}, {j*32768 - (j%4)*1024}, v{VC}")
    e("s_lshr_b32 s22, s16, 1")
    e("s_mul_i32 s22, s22, 40")
    e("s_mul_i32 s23, s20, 5")
    if os.environ.get("XA"): e("s_mov_b32 s23, 0")
    e("s_add_u32 s22, s22, s23")
    e("s_lshl_b32 s22, s22, 16")
    e(f"v_add_u32 v{VA}, s22, v8")
    for i in range(1, 5):
        e(f"v_add_u32 v{VA+i}, {i*65536}, v{VA}")
    e("s_lshl_b32 s46, s16, 15")
    e("v_and_b32 v5, 7, v2")
    e("v_xor_b32 v5, v5, v3")
    e("v_lshlrev_b32 v4, 7, v2")
    e("v_lshl_add_u32 v4, v5, 4, v4")
    e(f"v_add_u32 v{VB0}, s46, v4")
    e(f"v_xor_b32 v{VB1}, 64, v{VB0}")
    e("s_and_b32 s41, s16, 1")
    e("s_lshl_b32 s47, s41, 11")
    e("s_lshl_b32 s41, s41, 15")
    if ROT:
        e("s_lshr_b32 s40, s2, 6")
        e("s_lshl_b32 s40, s40, 2")
    else:
        e("s_mov_b32 s40, 0")
    e("s_lshl_b32 s21, s19, 6")
    e("s_lshl_b32 s22, s16, 4")
    e("s_add_u32 s21, s21, s22")
    e("s_mul_i32 s22, s21, 1280")
    e("s_mul_i32 s23, s20, 160")
    e("s_add_u32 s22, s22, s23")
    e("v_mul_u32_u24 v11, 1280, v2")
    e("v_lshl_add_u32 v11, v3, 3, v11")
    e("v_add_u32 v11, s22, v11")
    e("s_waitcnt lgkmcnt(0)")
    srd(24, 4, 2621440)
    e("s_cmp_lt_u32 s16, 2")
    e("s_cselect_b32 s28, s8, s10")
    e("s_cselect_b32 s29, s9, s11")
    e("s_mov_b32 s30, 8388608")
    e("s_mov_b32 s31, 0x20000")
    srd(32, 6, SZ_ABP, WS_ABP)
    stamp(1)
    AB = 32
    BB = 192
    def A(b, h, i):
        if b < 2: return vr(AB + (b * 10 + h * 5 + i) * 4)
        return ar(96 + ((b - 2) * 10 + h * 5 + i) * 4)
    def B(b, h, n): return BB + (b * 8 + h * 4 + n) * 4
    vm = VM()
    def stage_issue(stg):
        b = stg % 4
        vm.issue(("S", stg), 18)
        o = []
        o.append("s_lshl_b32 s42, s40, 7")
        o.append("s_add_u32 s42, s42, s47")
        o.append(f"s_add_u32 m0, s46, {b*8192}")
        o.append("s_lshl_b32 s43, s40, 11")
        for j in range(4):
            o.append(f"buffer_load_dwordx4 v{VC+j}, s[28:31], s42 offen offset:{j*1024} lds")
        o.append(f"s_add_u32 m0, s46, {b*8192+4096}")
        o.append("s_add_u32 s43, s43, s41")
        for j in range(4, 8):
            o.append(f"buffer_load_dwordx4 v{VC+j}, s[28:31], s42 offen offset:{(j-4)*1024} lds")
        for h in range(2):
            for i in range(5):
                o.append(f"buffer_load_dwordx4 {A(b,h,i)}, v{VA+i}, s[32:35], s43 offen offset:{h*1024}")
        o.append("s_add_u32 s40, s40, 1")
        o.append("s_and_b32 s40, s40, 15")
        return o
    def bread(st):
        o = []
        for h in range(2):
            for n in range(4):
                o.append(f"ds_read_b128 {vr(B(st&1,h,n))}, v{VB0+h} offset:{(st%4)*8192 + n*2048}")
        return o
    if os.environ.get("ABT"):
        e("s_lshl_b32 s22, s2, 2")
        e("s_add_u32 s22, s22, s16")
        e("s_mul_i32 s22, s22, 5120")
        e("v_lshlrev_b32 v12, 7, v1")
        e("s_mov_b32 exec_hi, 0xff")
        e("buffer_load_dword a92, v12, s[32:35], s22 offen")
        e("s_mov_b32 exec_hi, -1")
    for st in range(3):
        for l in stage_issue(st): e(l)
    for i in range(5):
        e(f"buffer_load_dwordx2 a[{80+2*i}:{81+2*i}], v11, s[24:27], 0 offen offset:{i*32}")
    vm.issue("X", 5)
    PL, PO, PA = 112, 144, 176
    e("s_mul_i32 s48, s2, 3")
    e("s_add_u32 s48, s48, s16")
    e("s_cmp_ge_u32 s2, 240")
    e("s_cselect_b64 vcc, -1, 0")
    e("s_cmp_eq_u32 s16, 3")
    e("s_cselect_b64 vcc, -1, vcc")
    e("s_cbranch_vccnz k2_pdum")
    e("s_cmp_ge_u32 s48, 480")
    e("s_cbranch_scc1 k2_pdn")
    e("s_mul_i32 s49, s48, 52429")
    e("s_lshr_b32 s49, s49, 20")
    e("s_mul_i32 s92, s49, 20")
    e("s_sub_u32 s92, s48, s92")
    srd(36, 12, 1966080)
    srd(56, 14, 1966080)
    e("v_bfe_u32 v12, v1, 3, 2")
    e("v_and_b32 v13, 7, v1")
    e("v_lshrrev_b32 v14, 5, v1")
    e(f"v_mul_u32_u24 v{PA+9}, 24576, v12")
    e(f"v_lshl_add_u32 v{PA+9}, v13, 4, v{PA+9}")
    e("v_mul_u32_u24 v15, 12288, v14")
    e(f"v_add_u32 v{PA+9}, v{PA+9}, v15")
    e("s_mul_i32 s84, s92, 98304")
    e("s_lshl_b32 s85, s49, 7")
    e("s_add_u32 s84, s84, s85")
    e("s_mov_b32 s85, s84")
    e("s_mov_b32 s86, 3072")
    e("v_mul_u32_u24 v13, 1040, v13")
    e("v_lshl_add_u32 v13, v12, 8, v13")
    e(f"v_lshl_add_u32 v{PA}, v14, 3, v13")
    e("s_mov_b32 s93, 64")
    e("s_mov_b32 s94, 32")
    e("s_mul_i32 s87, s49, 163840")
    e("s_lshl_b32 s92, s92, 10")
    e("s_add_u32 s87, s87, s92")
    e(f"s_add_u32 s87, s87, {WS_WGU}")
    e("s_mov_b32 s88, 20480")
    e("s_branch k2_pk")
    lab("k2_pdn")
    e("s_sub_u32 s48, s48, 480")
    e("s_mul_i32 s49, s48, 43691")
    e("s_lshr_b32 s49, s49, 21")
    e("s_mul_i32 s92, s49, 48")
    e("s_sub_u32 s92, s48, s92")
    srd(36, 60, 1966080)
    srd(56, 60, 1966080)
    e(f"v_mul_u32_u24 v{PA+9}, 10240, v3")
    e(f"v_lshl_add_u32 v{PA+9}, v2, 4, v{PA+9}")
    e("s_mul_i32 s84, s92, 40960")
    e("s_lshl_b32 s85, s49, 8")
    e("s_add_u32 s84, s84, s85")
    e("s_add_u32 s85, s84, 5120")
    e("s_mov_b32 s86, 1280")
    e("v_lshrrev_b32 v13, 1, v2")
    e("v_mul_u32_u24 v13, 1040, v13")
    e("v_and_b32 v15, 1, v2")
    e("v_lshlrev_b32 v15, 7, v15")
    e("v_lshl_add_u32 v15, v3, 8, v15")
    e(f"v_add_u32 v{PA}, v15, v13")
    e("s_mov_b32 s93, 32")
    e("s_mov_b32 s94, 8")
    e("s_mul_i32 s87, s49, 393216")
    e("s_lshl_b32 s92, s92, 10")
    e("s_add_u32 s87, s87, s92")
    e(f"s_add_u32 s87, s87, {WS_WDN}")
    e("s_mov_b32 s88, 49152")
    lab("k2_pk")
    for which in range(2):
        for j in range(4):
            sr = 84 + which
            e(f"buffer_load_dwordx4 {vr(PL+(which*4+j)*4)}, v{PA+9}, s[{36+20*which}:{39+20*which}], s{sr} offen")
            e(f"s_add_u32 s{sr}, s{sr}, s86")
    e("s_mul_i32 s49, s16, 8320")
    e("s_add_u32 s49, s49, 131072")
    e(f"v_add_u32 v{PA}, s49, v{PA}")
    for k in range(1, 4):
        e(f"v_add_u32 v{PA+k}, s93, v{PA+k-1}")
    for k in range(4):
        e(f"v_add_u32 v{PA+4+k}, s94, v{PA+k}")
    e(f"v_add_u32 v{PA+12}, s49, v8")
    e("s_branch k2_pdone")
    lab("k2_pdum")
    def dummy(n):
        o = ["s_mov_b64 exec, 1"]
        for j in range(n):
            o.append("buffer_load_dword a90, v8, s[24:27], 0 offen")
        o.append("s_mov_b64 exec, -1")
        return o
    for l in dummy(8): e(l)
    lab("k2_pdone")
    vm.issue("P", 8)
    e("s_mov_b32 s89, 0x05040100")
    e("s_mov_b32 s90, 0x07060302")
    e("s_mov_b32 s64, s6")
    e("s_mov_b32 s65, s7")
    e(f"s_mov_b32 s66, {WS_WDN + SZ_WDN}")
    e("s_mov_b32 s67, 0x20000")
    PST = int(os.environ.get("PST", "3"))
    srd(48, 6, SZ_HP, WS_HP)
    srd(52, 6, SZ_HSTAT, WS_HSTAT)
    for a in range(80):
        e(f"v_accvgpr_write_b32 a{a}, 0")
    e(f"s_waitcnt vmcnt({vm.younger([('S', 0)])})")
    for l in bread(0): e(l)
    NS = 16
    for st in range(NS):
        b = st % 4
        if st + 1 < NS:
            allowed = vm.younger([("S", st + 1)] + (["P"] if st == PST else []))
            e(f"s_waitcnt vmcnt({allowed}) lgkmcnt(0)")
        else:
            e("s_waitcnt lgkmcnt(0)")
        if os.environ.get("K2ST") and st in (0,1,2,3,4,6,8,12): stamp(7 + (0,1,2,3,4,6,8,12).index(st))
        slots = [[] for _ in range(40)]
        if st + 1 < NS:
            for j, l in enumerate(bread(st + 1)):
                slots[1 + 2*j].append(l)
        if st + 3 < NS:
            grp = []; groups = []
            for l in stage_issue(st + 3):
                grp.append(l)
                if l.startswith("buffer"):
                    groups.append(grp); grp = []
            groups[-1] += grp
            for g, gl in enumerate(groups):
                slots[(g * 40) // len(groups)] += gl
        if st == int(os.environ.get("CT2", "13")) and CT:
            slots[30] += code_touch("k3_kernel", "k4_kernel", 12, "a91")
            vm.issue("CT", 1)
        pk = []
        if st == PST:
            for which in range(2):
                for ee in range(8):
                    o = PO + (which*8+ee)*2
                    g = []
                    for t in range(2):
                        g.append(f"v_perm_b32 v{o+t}, v{PL+(which*4+2*t+1)*4+(ee>>1)}, v{PL+(which*4+2*t)*4+(ee>>1)}, s{89+(ee&1)}")
                    g.append(f"ds_write_b64 v{PA+which*4+(ee>>1)}, v[{o}:{o+1}] offset:{(ee&1)*16}")
                    pk.append(g)
            pk = [pk[2*i] + pk[2*i+1] for i in range(8)]
        if st == PST + 1:
            pk = [[f"ds_read_b128 {vr(PL+g*4)}, v{PA+12} offset:{g*1040}"] for g in range(8)]
        for g, gl in enumerate(pk):
            slots[18 + 2*g] += [f"s_cbranch_vccnz k2_np{st}_{g}"] + gl + [f"k2_np{st}_{g}:"]
        if st == PST + 2:
            gl = ["s_cbranch_vccnz k2_sdum"]
            for g in range(8):
                gl += [f"buffer_store_dwordx4 {vr(PL+g*4)}, v8, s[64:67], s87 offen sc1", "s_add_u32 s87, s87, s88"]
            gl += ["s_branch k2_sdone", "k2_sdum:"] + dummy(8) + ["k2_sdone:"]
            slots[39] += gl
            vm.issue("Q", 8)
        k = 0
        for h in range(2):
            for i in range(5):
                for n in range(4):
                    if not os.environ.get("NOMFMA"): mfma(ar((i*4+n)*4), A(b,h,i), vr(B(st&1,h,n)))
                    for l in slots[k]:
                        if os.environ.get("NODS") and l.startswith("ds_"): continue
                        if os.environ.get("NOA") and l.startswith("buffer") and not l.endswith("lds"): continue
                        if os.environ.get("NOC") and l.startswith("buffer") and l.endswith("lds"): continue
                        e(l)
                    k += 1
    stamp(2)
    stamp(3)
    e("s_nop 7")
    e("v_add_u32 v9, s46, v8")
    for n in range(4):
        for i in range(5):
            e(f"ds_write_b128 v9, {ar((i*4+n)*4)} offset:{(n*5+i)*1024}")
    e("s_mul_i32 s44, s16, 5120")
    e("v_add_u32 v9, s44, v8")
    e("v_add_u32 v10, 65536, v9")
    XR = 112
    for i in range(10):
        e(f"v_accvgpr_read_b32 v{XR+i}, a{80+i}")
    e("s_waitcnt lgkmcnt(0)")
    e("s_barrier")
    for src in range(4):
        for i in range(5):
            e(f"ds_read_b128 {vr(BUF+(src*5+i)*4)}, v{9 + (src>>1)} offset:{(src&1)*32768 + i*1024}")
    stamp(4)
    e("s_lshl_b32 s22, s19, 2")
    e("s_add_u32 s22, s22, s16")
    e("s_mul_i32 s23, s20, 5")
    hp_addr(11, 22, 23, [61, 62, 63, 64, 65])
    e("v_mov_b32 v17, 0")
    e("v_mov_b32 v18, 0")
    e("s_waitcnt vmcnt(0) lgkmcnt(0)")
    T = 124
    for i in range(5):
        def S(src, r): return BUF + (src*5+i)*4 + r
        for r in range(4):
            e(f"v_add_f32 v{T+r}, v{S(0,r)}, v{S(1,r)}")
            e(f"v_add_f32 v{T+4+r}, v{S(2,r)}, v{S(3,r)}")
        for r in range(4):
            bf16r(T+r, T+r)
            bf16r(T+4+r, T+4+r)
        for r in range(4):
            e(f"v_sub_f32 v{T+r}, v{T+r}, v{T+4+r}")
        for r in range(4):
            bf16r(T+r, T+r)
        e(f"v_lshlrev_b32 v{T+4}, 16, v{XR+2*i}")
        e(f"v_and_b32 v{T+5}, 0xffff0000, v{XR+2*i}")
        e(f"v_lshlrev_b32 v{T+6}, 16, v{XR+2*i+1}")
        e(f"v_and_b32 v{T+7}, 0xffff0000, v{XR+2*i+1}")
        for r in range(4):
            e(f"v_add_f32 v{T+r}, v{T+r}, v{T+4+r}")
        o = 136 + 2*i
        e(f"v_cvt_pk_bf16_f32 v{o}, v{T}, v{T+1}")
        e(f"v_cvt_pk_bf16_f32 v{o+1}, v{T+2}, v{T+3}")
        e(f"buffer_store_dwordx2 v[{o}:{o+1}], v11, s[48:51], s{61+i} offen")
        e(f"v_lshlrev_b32 v{T}, 16, v{o}")
        e(f"v_and_b32 v{T+1}, 0xffff0000, v{o}")
        e(f"v_lshlrev_b32 v{T+2}, 16, v{o+1}")
        e(f"v_and_b32 v{T+3}, 0xffff0000, v{o+1}")
        for r in range(4):
            e(f"v_add_f32 v17, v17, v{T+r}")
            e(f"v_fmac_f32 v18, v{T+r}, v{T+r}")
    e("v_xor_b32 v10, 16, v1")
    e("v_lshlrev_b32 v10, 2, v10")
    e("ds_bpermute_b32 v19, v10, v17")
    e("ds_bpermute_b32 v28, v10, v18")
    e("s_waitcnt lgkmcnt(0)")
    e("v_add_f32 v17, v17, v19")
    e("v_add_f32 v18, v18, v28")
    e("v_xor_b32 v10, 32, v1")
    e("v_lshlrev_b32 v10, 2, v10")
    e("ds_bpermute_b32 v19, v10, v17")
    e("ds_bpermute_b32 v28, v10, v18")
    e("s_waitcnt lgkmcnt(0)")
    e("v_add_f32 v30, v17, v19")
    e("v_add_f32 v31, v18, v28")
    e("s_lshl_b32 s22, s21, 3")
    e("s_lshl_b32 s23, s20, 14")
    e("s_add_u32 s22, s22, s23")
    e("v_lshlrev_b32 v10, 3, v2")
    e("s_mov_b32 exec_lo, 0x0000ffff")
    e("s_mov_b32 exec_hi, 0")
    e("buffer_store_dwordx2 v[30:31], v10, s[52:55], s22 offen")
    e("s_mov_b64 exec, -1")
    lab("k2_fin")
    stamp(5)
    stamp_dump(1, 6)
    if os.environ.get("K2ST"):
        for i in range(7, 15):
            e(f"v_mov_b32 v2, s{70+2*i}")
            e(f"v_mov_b32 v3, s{71+2*i}")
            e(f"buffer_store_dwordx2 v[2:3], v0, s[64:67], s68 offen offset:{i*8}")
        e("s_waitcnt vmcnt(0)")
    lab("k2_end")
    e("s_endpgm")

def gen_k4():
    kernel_begin("k4_kernel")
    e("s_cmp_ge_u32 s2, 256")
    e("s_cbranch_scc1 k4_end")
    stamp(0)
    e("s_load_dwordx2 s[4:5], s[0:1], 72")
    e("s_load_dwordx2 s[6:7], s[0:1], 88")
    lane_setup()
    e("s_and_b32 s19, s2, 7")
    e("s_lshr_b32 s20, s2, 3")
    e("s_lshr_b32 s21, s20, 3")
    e("s_lshl_b32 s19, s19, 2")
    e("s_add_u32 s19, s19, s21")
    e("s_and_b32 s20, s20, 7")
    e("v_lshlrev_b32 v8, 4, v1")
    e("s_mul_i32 s22, s19, 196608")
    e("v_add_u32 v4, s22, v8")
    for n in range(1, 4):
        e(f"v_add_u32 v{4+n}, {n*49152}, v4")
    e("s_mul_i32 s22, s20, 245760")
    e("v_add_u32 v12, s22, v8")
    for i in range(1, 5):
        e(f"v_add_u32 v{12+i}, {i*49152}, v12")
    e("s_mul_i32 s41, s16, 12")
    e("s_lshr_b32 s40, s2, 3")
    e("s_mul_i32 s44, s40, 43691")
    e("s_lshr_b32 s44, s44, 19")
    e("s_mul_i32 s44, s44, 12")
    e("s_sub_u32 s40, s40, s44")
    e("s_waitcnt lgkmcnt(0)")
    srd(28, 6, SZ_ACT, WS_ACT)
    srd(32, 6, SZ_WDN, WS_WDN)
    NSL, AH = 8, 7
    def slot(b, k):
        if b < 6: return vr(32 + b * 36 + k * 4)
        return ar(80 + (b - 6) * 36 + k * 4)
    vm = VM()
    def issue(t):
        o = ["s_add_u32 s44, s40, s41", "s_lshl_b32 s42, s44, 10", "s_add_u32 s40, s40, 1",
             "s_cmp_ge_u32 s40, 12", "s_cselect_b32 s40, 0, s40"]
        b = t % NSL
        for n in range(4):
            o.append(f"buffer_load_dwordx4 {slot(b,5+n)}, v{4+n}, s[28:31], s42 offen")
        for i in range(5):
            o.append(f"buffer_load_dwordx4 {slot(b,i)}, v{12+i}, s[32:35], s42 offen")
        vm.issue(("S", t), 9)
        return o
    for t in range(AH):
        for l in issue(t): e(l)
    stamp(1)
    srd(24, 4, 2621440)
    srd(48, 6, SZ_HP, WS_HP)
    for a in range(80):
        e(f"v_accvgpr_write_b32 a{a}, 0")
    e("v_lshrrev_b32 v18, 2, v1")
    e("v_and_b32 v19, 3, v1")
    e("s_lshl_b32 s22, s19, 2")
    e("s_add_u32 s22, s22, s16")
    e("s_mul_i32 s23, s22, 20480")
    e("s_mul_i32 s45, s20, 2560")
    e("s_add_u32 s45, s45, s23")
    e("v_lshlrev_b32 v20, 4, v18")
    e("v_lshl_add_u32 v20, v19, 8, v20")
    e("v_and_b32 v21, 1, v1")
    e("v_lshlrev_b32 v22, 4, v18")
    e("v_lshl_add_u32 v21, v21, 8, v22")
    e("s_mul_i32 s46, s20, 160")
    e("s_add_u32 s46, s46, s23")
    e("v_mul_u32_u24 v22, 1280, v18")
    e("v_lshl_add_u32 v22, v19, 4, v22")
    if os.environ.get("OT"):
        e("buffer_load_dword v26, v22, s[24:27], s46 offen")
        vm.issue("O", 1)
    e("s_mul_i32 s47, s16, 23040")
    e("v_mul_u32_u24 v23, 288, v3")
    e("v_lshl_add_u32 v23, v2, 4, v23")
    e("v_add_u32 v23, s47, v23")
    e("s_mul_i32 s47, s16, 5760")
    e("v_mul_u32_u24 v24, 576, v19")
    e("v_lshl_add_u32 v24, v18, 4, v24")
    e("v_add_u32 v24, s47, v24")
    e("v_add_u32 v25, 46080, v24")
    HR = 152
    for t in range(12):
        b = t % NSL
        e(f"s_waitcnt vmcnt({vm.younger([('S', t)])})")
        ld = []
        if t + AH < 12:
            ld = issue(t + AH)
        elif t == 12 - AH:
            ld = [f"buffer_load_dwordx4 {ar(HR)}, v20, s[48:51], s45 offen",
                  f"buffer_load_dwordx4 {ar(HR+4)}, v20, s[48:51], s45 offen offset:1024",
                  f"buffer_load_dwordx4 {ar(HR+8)}, v21, s[48:51], s45 offen offset:2048"]
            vm.issue("H", 3)
        grp = []; groups = []
        for l in ld:
            grp.append(l)
            if l.startswith("buffer"):
                groups.append(grp); grp = []
        k = 0
        for i in range(5):
            for n in range(4):
                mfma(ar((i*4+n)*4), slot(b, i), slot(b, 5+n))
                k += 1
                if k % 2 == 0 and groups:
                    for l in groups.pop(0): e(l)
        assert not groups
    stamp(2)
    stamp(3)
    e("s_nop 7")
    e("s_nop 7")
    for n in range(4):
        for i in range(5):
            e(f"ds_write_b128 v23, {ar((i*4+n)*4)} offset:{(n*5+i)*1152}")
    XR = 128
    e("s_waitcnt vmcnt(0)")
    for r in range(12):
        e(f"v_accvgpr_read_b32 v{XR+r}, a{HR+r}")
    e("s_waitcnt lgkmcnt(0)")
    e("s_barrier")
    def S(src, j, hf): return 32 + ((j * 4 + src) * 2 + hf) * 4
    for j in range(3):
        for src in range(4):
            for hf in range(2):
                e(f"ds_read_b128 {vr(S(src,j,hf))}, v{24 + (src>>1)} offset:{(src&1)*23040 + j*2304 + hf*288}")
    stamp(4)
    for j in range(3):
        e(f"s_waitcnt lgkmcnt({min(15,(2-j)*8)})")
        T = 144 + j * 16
        for hf in range(2):
            for p in (0, 2):
                e(f"v_pk_add_f32 v[{T+hf*4+p}:{T+hf*4+p+1}], v[{S(0,j,hf)+p}:{S(0,j,hf)+p+1}], v[{S(1,j,hf)+p}:{S(1,j,hf)+p+1}]")
                e(f"v_pk_add_f32 v[{T+8+hf*4+p}:{T+8+hf*4+p+1}], v[{S(2,j,hf)+p}:{S(2,j,hf)+p+1}], v[{S(3,j,hf)+p}:{S(3,j,hf)+p+1}]")
        for p in range(0, 8, 2):
            e(f"v_pk_add_f32 v[{T+p}:{T+p+1}], v[{T+p}:{T+p+1}], v[{T+8+p}:{T+8+p+1}]")
        for p in range(4):
            e(f"v_cvt_pk_bf16_f32 v{T+8+p}, v{T+2*p}, v{T+2*p+1}")
        for p in range(4):
            e(f"v_lshlrev_b32 v{T+2*p}, 16, v{T+8+p}")
            e(f"v_and_b32 v{T+2*p+1}, 0xffff0000, v{T+8+p}")
        for p in range(4):
            e(f"v_lshlrev_b32 v{T+8+2*p}, 16, v{XR+4*j+p}")
            e(f"v_and_b32 v{T+8+2*p+1}, 0xffff0000, v{XR+4*j+p}")
        for p in range(0, 8, 2):
            e(f"v_pk_add_f32 v[{T+p}:{T+p+1}], v[{T+p}:{T+p+1}], v[{T+8+p}:{T+8+p+1}]")
        O = 192 + 4 * j
        for p in range(4):
            e(f"v_cvt_pk_bf16_f32 v{O+p}, v{T+2*p}, v{T+2*p+1}")
        if j == 2:
            e("s_mov_b32 exec_lo, 0x33333333")
            e("s_mov_b32 exec_hi, 0x33333333")
        e(f"buffer_store_dwordx4 {vr(O)}, v22, s[24:27], s46 offen offset:{j*64}")
    e("s_mov_b64 exec, -1")
    stamp(5)
    stamp_dump(3, 6)
    lab("k4_end")
    e("s_endpgm")

class VM:
    def __init__(self): self.q = []
    def issue(self, tag, n=1): self.q += [tag] * n
    def younger(self, tags):
        last = max(i for i, t in enumerate(self.q) if t in tags)
        return min(63, len(self.q) - 1 - last)

def gen_k3():
    kernel_begin("k3_kernel")
    e("s_cmp_ge_u32 s2, 256")
    e("s_cbranch_scc1 k3_end")
    stamp(0)
    e("s_load_dwordx2 s[6:7], s[0:1], 88")
    lane_setup()
    e("s_and_b32 s19, s2, 7")
    e("s_lshr_b32 s20, s2, 3")
    e("s_and_b32 s21, s20, 1")
    e("s_lshl_b32 s19, s19, 1")
    e("s_add_u32 s19, s19, s21")
    e("s_lshr_b32 s20, s20, 1")
    e(f"s_mov_b32 s17, {INV640}")
    e(f"s_mov_b32 s18, {EPS}")
    e("s_mov_b32 s62, 0x3f803f80")
    e("v_lshlrev_b32 v8, 4, v1")
    e("s_mul_i32 s21, s20, 12")
    e("s_mul_i32 s23, s16, 3")
    e("s_add_u32 s21, s21, s23")
    e("s_mul_i32 s22, s21, 20480")
    e("v_add_u32 v4, s22, v8")
    e("v_add_u32 v5, 20480, v4")
    e("v_add_u32 v6, 40960, v4")
    e("s_mul_i32 s22, s19, 163840")
    e("s_mul_i32 s23, s16, 40960")
    e("s_add_u32 s22, s22, s23")
    e("v_lshlrev_b32 v9, 3, v1")
    e("s_lshl_b32 s48, s19, 10")
    e("s_waitcnt lgkmcnt(0)")
    srd(24, 6, SZ_HP, WS_HP)
    srd(32, 6, SZ_WGU, WS_WGU)
    srd(28, 6, SZ_HSTAT, WS_HSTAT)
    vm = VM()
    D = 6
    WB = 88
    ACC3 = 160
    def Wf(kk, i): return WB + ((kk % D) * 3 + i) * 4
    def Hf(kk, n): return ((kk & 1) * 8 + n) * 4
    HGS = int(os.environ.get("HGS", "2")); LW = int(os.environ.get("LW", "5")); LH = int(os.environ.get("LH", "4"))
    HG = {chr(65 + g): (g * HGS, min(20, g * HGS + HGS)) for g in range((19 + HGS) // HGS)}
    def hdma_l(g, t):
        o = []
        k0, k1 = HG[g]
        for k in range(k0, k1, 4):
            base = t * 20480 + k * 1024
            o.append(f"s_add_u32 m0, s23, {base}")
            o.append(f"s_add_u32 s44, s22, {base}")
            for u in range(min(4, k1 - k)):
                o.append(f"buffer_load_dwordx4 v8, s[24:27], s44 offen offset:{u*1024} lds")
        vm.issue(("H", g), k1 - k0)
        return o
    def wload(kk):
        out = []
        if kk >= 4:
            out.append(f"s_mov_b32 s{45+(kk&1)}, {kk*1024}")
        for i in range(3):
            if kk < 4:
                out.append(f"buffer_load_dwordx4 {vr(Wf(kk,i))}, v{4+i}, s[32:35], 0 offen offset:{kk*1024}")
            else:
                out.append(f"buffer_load_dwordx4 {vr(Wf(kk,i))}, v{4+i}, s[32:35], s{45+(kk&1)} offen")
        vm.issue(("W", kk), 3)
        return out
    def sload(q):
        o = []
        for x in range(4 * q, 4 * q + 4):
            j, eb = x >> 3, x & 7
            o.append(f"s_add_u32 s47, s48, {eb*16384 + j*512}")
            o.append(f"buffer_load_dwordx2 v[{40+(j*8+eb)*2}:{41+(j*8+eb)*2}], v9, s[28:31], s47 offen")
        vm.issue("S", 4)
        return o
    def tload():
        vm.issue("P", 1)
        return ["buffer_load_dword v22, v23, s[52:55], s50 offen", "s_add_u32 s50, s50, 4096"]
    items = []
    for g, (k0, k1) in HG.items():
        for t in range(2):
            items.append((k0 - 1 - LH + (t if HGS > 1 else 0), k0 - 1, f"H{g}{t}"))
    for kk in range(20):
        items.append((kk - LW, kk - 0.5, f"W{kk}"))
    for q in range(4): items.append((9 + q, 30, f"S{q}"))
    last = max(it[0] for it in items)
    for q in range(4): items.append((min(19, max(15, last + 1) + q), 40, "T"))
    items.sort(key=lambda x: (max(x[0], -1), x[1]))
    sched = {}
    for it, dl, nm in items: sched.setdefault(max(it, -1), []).append(nm)
    BAR = {k0 - 1: g for g, (k0, k1) in HG.items() if k0 > 0}
    def do_items(lst_):
        lst = []
        for it in lst_:
            if it[0] == "W": lst += wload(int(it[1:]))
            elif it[0] == "H": lst += hdma_l(it[1], int(it[2]))
            elif it[0] == "S": lst += sload(int(it[1]))
            else: lst += tload()
        return lst
    for l in do_items(sched[-1]): e(l)
    srd(36, 6, SZ_ACT, WS_ACT)
    srd(52, 6, SZ_WDN, WS_WDN)
    e("s_lshr_b32 s50, s2, 3")
    e("s_lshl_b32 s50, s50, 2")
    e("s_add_u32 s50, s50, s16")
    e("s_mul_i32 s50, s50, 15360")
    e("v_lshlrev_b32 v23, 6, v1")
    for a in range(96):
        e(f"v_mov_b32 v{ACC3+a}, 0")
    for r in range(24, 36):
        e(f"v_mov_b32 v{r}, 0")
    for r in range(16, 20):
        e(f"v_mov_b32 v{r}, 0x3f803f80")
    e("v_add_u32 v10, 65536, v8")
    e("v_add_u32 v11, 131072, v8")
    e("v_lshlrev_b32 v12, 2, v2")
    e("v_lshlrev_b32 v13, 4, v3")
    def hread(kk):
        o = []
        for n in range(8):
            off = (n * 20 + kk) * 1024
            base = 8 if off < 65536 else (10 if off < 131072 else 11)
            o.append(f"ds_read_b128 {ar(Hf(kk,n))}, v{base} offset:{off % 65536}")
        return o
    def dots(kk):
        return [f"v_dot2_f32_bf16 v{16+i}, v{Wf(kk,i)+r}, s62, v{16+i}" for r in range(4) for i in range(3)]
    def stats_code():
        sv = L[:]
        del L[:]
        for j in range(2):
            b = 40 + j * 16
            for k in (2, 4, 6, 8, 10, 12, 14):
                e(f"v_add_f32 v{b}, v{b}, v{b+k}")
                e(f"v_add_f32 v{b+1}, v{b+1}, v{b+k+1}")
            ln_stats(b, b+1, 36+2*j, 37+2*j, 20+j)
        for t in range(8):
            e(f"ds_bpermute_b32 v{72+2*t}, v12, v{36+2*(t>>2)} offset:{(t&3)*64}")
            e(f"ds_bpermute_b32 v{73+2*t}, v12, v{37+2*(t>>2)} offset:{(t&3)*64}")
            e(f"ds_bpermute_b32 v{64+t}, v12, v{20+(t>>2)} offset:{(t&3)*64}")
        o = [x.strip() for x in L]
        L[:] = sv
        return o
    stamp(1)
    e(f"s_waitcnt vmcnt({vm.younger([('H','A')])})")
    stamp(2)
    e("s_barrier")
    stamp(3)
    for l in hread(0): e(l)
    for kk in range(20):
        need = [("W", kk)]
        if kk in BAR: need.append(("H", BAR[kk]))
        if kk == 15: need.append("S")
        e(f"s_waitcnt vmcnt({vm.younger(need)}) lgkmcnt(0)")
        if kk in BAR: e("s_barrier")
        slots = [[] for _ in range(27)]
        if kk + 1 < 20:
            for j, l in enumerate(hread(kk + 1)):
                slots[j].append(l)
        lst = do_items(sched.get(kk, []))
        groups = []; grp = []
        for l in lst:
            if grp and any(x.startswith("buffer") for x in grp) and not l.startswith("s_add_u32 s50"):
                groups.append(grp); grp = []
            grp.append(l)
        if grp: groups.append(grp)
        for g, gl in enumerate(groups):
            slots[1 + (g * 24) // max(len(groups), 8)] += gl
        if kk == int(os.environ.get("CT3", "17")) and CT:
            slots[26] += code_touch("k4_kernel", "code_end", 14, "v22")
            vm.issue("CT", 1)
        if kk == 15: sc = stats_code()
        if kk in (15, 16):
            part = sc[:54] if kk == 15 else sc[54:]
            for j, l in enumerate(part):
                slots[(j * 27) // len(part)].append(l)
        if kk == 19:
            for j, l in enumerate(["v_mul_u32_u24 v9, 49152, v3", "v_lshl_add_u32 v9, v2, 4, v9", "s_mul_i32 s22, s19, 393216", "s_lshl_b32 s23, s21, 8",
                                   "s_add_u32 s22, s22, s23", "v_mov_b32 v36, 0xbdd2d3e8", "v_mov_b32 v37, 0xc0135761"]):
                slots[j].append(l)
        k = 0
        for i in range(3):
            mfma(vr(24+4*i), vr(Wf(kk,i)), vr(16))
            for l in slots[k]: e(l)
            k += 1
        for n in range(8):
            for i in range(3):
                mfma(vr(ACC3+(i*8+n)*4), vr(Wf(kk,i)), ar(Hf(kk,n)))
                for l in slots[k]: e(l)
                k += 1
    stamp(4)
    def epi(i):
        o = []
        for hi, n0 in enumerate((0, 4)):
            TB = 40 + hi * 12
            O = TB + 8
            lists = []
            for g in range(4):
                n = n0 + g
                A = ACC3 + (i*8+n)*4
                S = 72 + 2*n
                SD = 64 + (n & ~1); sd = n & 1
                WS = 24 + i*4
                t2 = TB + g*2
                l = []
                for p in (0, 2):
                    l.append(f"v_pk_fma_f32 v[{A+p}:{A+p+1}], v[{S}:{S+1}], v[{WS+p}:{WS+p+1}], v[{A+p}:{A+p+1}] op_sel:[0,0,0] op_sel_hi:[0,1,1] neg_lo:[1,0,0] neg_hi:[1,0,0]")
                l.append(f"v_pk_mul_f32 v[{A}:{A+1}], v[{A}:{A+1}], v[{S}:{S+1}] op_sel:[0,1] op_sel_hi:[1,1]")
                l.append(f"v_pk_mul_f32 v[{t2}:{t2+1}], v[{A}:{A+1}], v[{A}:{A+1}]")
                l.append(f"v_pk_fma_f32 v[{t2}:{t2+1}], v[{t2}:{t2+1}], v[36:37], v[36:37] op_sel:[0,0,1] op_sel_hi:[1,0,1]")
                l.append(f"v_pk_mul_f32 v[{t2}:{t2+1}], v[{t2}:{t2+1}], v[{A}:{A+1}]")
                l.append(f"v_exp_f32 v{t2}, v{t2}")
                l.append(f"v_exp_f32 v{t2+1}, v{t2+1}")
                l.append(f"v_pk_mul_f32 v[{A}:{A+1}], v[{A}:{A+1}], v[{A+2}:{A+3}]")
                l.append(f"v_pk_fma_f32 v[{t2}:{t2+1}], v[{t2}:{t2+1}], v[{SD}:{SD+1}], v[{SD}:{SD+1}] op_sel:[0,{sd},{sd}] op_sel_hi:[1,{sd},{sd}]")
                l.append(f"v_rcp_f32 v{t2}, v{t2}")
                l.append(f"v_rcp_f32 v{t2+1}, v{t2+1}")
                l.append(f"v_pk_mul_f32 v[{t2}:{t2+1}], v[{t2}:{t2+1}], v[{A}:{A+1}]")
                l.append(f"v_cvt_pk_bf16_f32 v{O+g}, v{t2}, v{t2+1}")
                lists.append(l)
            for k in range(len(lists[0])):
                for g in range(4): o.append(lists[g][k])
            o.append("s_nop 1")
            o.append(f"v_permlane16_swap_b32 v{O}, v{O+1}")
            o.append(f"v_permlane16_swap_b32 v{O+2}, v{O+3}")
            o.append("s_nop 1")
            o.append(f"v_permlane32_swap_b32 v{O}, v{O+2}")
            o.append(f"v_permlane32_swap_b32 v{O+1}, v{O+3}")
            o.append(f"s_add_u32 s44, s22, {n0*49152 + i*256}")
            o.append("s_nop 1")
            o.append(f"buffer_store_dwordx4 {vr(O)}, v9, s[36:39], s44 offen")
        return o
    e("s_nop 7")
    stamp(5)
    for i in range(3):
        for l in epi(i): e(l)
    stamp(6)
    stamp_dump(2, 7)
    lab("k3_end")
    e("s_endpgm")

def descriptor(name, vgpr, accum, sgpr=102):
    raw(f".amdhsa_kernel {name}")
    raw(f"  .amdhsa_next_free_vgpr {vgpr}")
    raw(f"  .amdhsa_next_free_sgpr {sgpr}")
    raw(f"  .amdhsa_accum_offset {accum}")
    raw("  .amdhsa_group_segment_fixed_size 0")
    raw("  .amdhsa_kernarg_size 96")
    raw("  .amdhsa_user_sgpr_count 2")
    raw("  .amdhsa_user_sgpr_kernarg_segment_ptr 1")
    raw("  .amdhsa_system_sgpr_workgroup_id_x 1")
    raw(".end_amdhsa_kernel")

def main():
    raw("; 4-kernel pipeline: K1 LN1+hidden DFT GEMM, K2 seq DFT GEMM + residual, K3 LN2+gate/up GEMM+GEGLU, K4 down GEMM + residual")
    raw("; @launch kernel=k1_kernel grid=(256,1,1) block=(256,1,1) lds=152832")
    raw("; @launch kernel=k2_kernel grid=(256,1,1) block=(256,1,1) lds=156032")
    raw("; @launch kernel=k3_kernel grid=(256,1,1) block=(256,1,1) lds=163840")
    raw("; @launch kernel=k4_kernel grid=(256,1,1) block=(256,1,1) lds=94208")
    raw('.amdgcn_target "amdgcn-amd-amdhsa--gfx950"')
    raw(".text")
    gen_k1(); gen_k2(); gen_k3(); gen_k4()
    lab("code_end")
    raw('.section .rodata,"a"')
    raw(".p2align 6")
    descriptor("k1_kernel", 348, 160)
    raw(".p2align 6")
    descriptor("k2_kernel", 432, 256)
    raw(".p2align 6")
    descriptor("k3_kernel", 320, 256)
    raw(".p2align 6")
    descriptor("k4_kernel", 424, 256)
    out = sys.argv[1] if len(sys.argv) > 1 else f"cdna_kernels/{NAME}.s"
    NOSC = os.environ.get("NOSC", "").split(",")
    LL = [ (l + " sc1") if ("buffer_store" in l and "s[64:67]" not in l and not any(x and x in l for x in NOSC)) else l for l in L]
    open(out, "w").write("\n".join(LL) + "\n")

main()
```

```python
import sys

L = []
def e(s): L.append("    " + s)
def lab(s): L.append(s + ":")
def raw(s): L.append(s)

NAME = "sequential_preLN__spectral_fnet__geglu_ffn__prompt"

WS_ABP = 0
SZ_ABP = 80 * 64 * 1024
WS_HP = 0x500000
SZ_HP = 128 * 20 * 1024
WS_HSTAT = 0x780000
SZ_HSTAT = 2048 * 8 * 8
WS_ACT = 0x800000
SZ_ACT = 128 * 48 * 1024
WS_WGU = 0xE00000
WSUM_OFF = 192 * 20 * 1024
SZ_WGU = WSUM_OFF + 192 * 4 * 64
WS_WDN = 0x1200000
SZ_WDN = 40 * 48 * 1024

INV640 = 0x3ACCCCCD
EPS = 0x3727C5AC

import os
DIAG = os.environ.get("DIAG", "0") == "1"
WS_DIAG = 0x3000000
DIAG2 = os.environ.get("DIAG2", "0") == "1"
def stamp(i):
    if DIAG2 and i == 0:
        e("s_memrealtime s[70:71]")
        e("s_memtime s[72:73]")
        e("s_waitcnt lgkmcnt(0)")
    if DIAG:
        e(f"s_memtime s[{70+2*i}:{71+2*i}]")
        e("s_waitcnt lgkmcnt(0)")
def stamp_dump(kidx, n):
    if DIAG2:
        e("s_waitcnt vmcnt(0)")
        e("s_memrealtime s[74:75]")
        e("s_memtime s[76:77]")
        e("s_load_dwordx2 s[64:65], s[0:1], 80")
        e("s_waitcnt lgkmcnt(0)")
        e("s_lshl_b32 s68, s2, 2")
        e("s_add_u32 s68, s68, s16")
        e("s_cmp_lg_u32 s68, 0")
        e(f"s_cbranch_scc1 dg_skip{kidx}")
        e("s_mov_b32 s66, 256")
        e("s_mov_b32 s67, 0x20000")
        e("v_mov_b32 v0, 0")
        e("s_mov_b64 exec, 1")
        e("v_mov_b32 v2, s70")
        e("v_mov_b32 v3, s74")
        e("v_mov_b32 v4, s72")
        e("v_mov_b32 v5, s76")
        e(f"buffer_store_dwordx4 v[2:5], v0, s[64:67], 0 offen offset:{kidx*16}")
        e("s_waitcnt vmcnt(0)")
        lab(f"dg_skip{kidx}")
    if not DIAG: return
    e("s_waitcnt vmcnt(0)")
    stamp(n)
    e(f"s_add_u32 s64, s6, {WS_DIAG + kidx*0x40000}")
    e("s_addc_u32 s65, s7, 0")
    e("s_mov_b32 s66, 0x40000")
    e("s_mov_b32 s67, 0x20000")
    e("s_lshl_b32 s68, s2, 2")
    e("s_add_u32 s68, s68, s16")
    e("s_lshl_b32 s68, s68, 8")
    e("v_mov_b32 v0, 0")
    e("s_mov_b64 exec, 1")
    for i in range(n+1):
        e(f"v_mov_b32 v2, s{70+2*i}")
        e(f"v_mov_b32 v3, s{71+2*i}")
        e(f"buffer_store_dwordx2 v[2:3], v0, s[64:67], s68 offen offset:{i*8}")
    e("s_waitcnt vmcnt(0)")

def srd(d, lo, size, off=0):
    if off:
        e(f"s_add_u32 s{d}, s{lo}, {off}")
        e(f"s_addc_u32 s{d+1}, s{lo+1}, 0")
    else:
        e(f"s_mov_b32 s{d}, s{lo}")
        e(f"s_mov_b32 s{d+1}, s{lo+1}")
    e(f"s_mov_b32 s{d+2}, {size}")
    e(f"s_mov_b32 s{d+3}, 0x20000")

def bf16r(dst, src):
    e(f"v_cvt_pk_bf16_f32 v{dst}, v{src}, v{src}")
    e(f"v_lshlrev_b32 v{dst}, 16, v{dst}")

def vr(b, n=4): return f"v[{b}:{b+n-1}]"
def ar(b, n=4): return f"a[{b}:{b+n-1}]"

def mfma(d, a, b, c=None):
    c = d if c is None else c
    if L and L[-1].split()[0] in ("v_exp_f32", "v_rcp_f32", "v_sqrt_f32", "v_rsq_f32"): e("s_nop 1")
    e(f"v_mfma_f32_16x16x32_bf16 {d}, {a}, {b}, {c}")

def kernel_begin(name):
    raw(f".globl {name}")
    raw(".p2align 8")
    raw(f".type {name},@function")
    lab(name)

CT = os.environ.get("CT", "1") == "1"
_ctn = [0]
def code_touch(target, endl, vtmp, dst, back=False, n=1):
    if not CT: return []
    _ctn[0] += 1
    u = f"ct_pc{_ctn[0]}"
    o = ["s_getpc_b64 s[96:97]", u + ":"]
    if back:
        o += [f"s_sub_u32 s96, s96, {u}-{target}", "s_subb_u32 s97, s97, 0"]
    else:
        o += [f"s_add_u32 s96, s96, {target}-{u}", "s_addc_u32 s97, s97, 0"]
    o += [f"s_mov_b32 s98, {endl}-{target}", "s_mov_b32 s99, 0x20000", f"v_lshlrev_b32 v{vtmp}, 7, v0"]
    o.append(f"buffer_load_dword {dst}, v{vtmp}, s[96:99], 0 offen")
    if n > 1:
        o.append(f"v_add_u32 v{vtmp}, 32768, v{vtmp}")
        o.append(f"buffer_load_dword {dst}, v{vtmp}, s[96:99], 0 offen")
    return o

def lane_setup():
    e("v_lshrrev_b32 v4, 6, v0")
    e("v_and_b32 v1, 63, v0")
    e("v_readfirstlane_b32 s16, v4")
    e("v_and_b32 v2, 15, v1")
    e("v_lshrrev_b32 v3, 4, v1")

def ln_stats(vsum, vsq, vm, vrd, t):
    e(f"v_mul_f32 v{vm}, s17, v{vsum}")
    e(f"v_mul_f32 v{t}, s17, v{vsq}")
    e(f"v_fma_f32 v{t}, -v{vm}, v{vm}, v{t}")
    e(f"v_max_f32 v{t}, 0, v{t}")
    bf16r(vm, vm)
    bf16r(t, t)
    e(f"v_add_f32 v{t}, s18, v{t}")
    bf16r(t, t)
    e(f"v_sqrt_f32 v{t}, v{t}")
    e("s_nop 0")
    bf16r(t, t)
    e(f"v_rcp_f32 v{vrd}, v{t}")
    e("s_nop 0")

def gen_k1():
    kernel_begin("k1_kernel")
    e("s_cmp_ge_u32 s2, 256")
    e("s_cbranch_scc1 k1_end")
    stamp(0)
    e("s_load_dwordx2 s[4:5], s[0:1], 0")
    e("s_load_dwordx2 s[8:9], s[0:1], 24")
    e("s_load_dwordx2 s[10:11], s[0:1], 32")
    e("s_load_dwordx2 s[6:7], s[0:1], 88")
    e("s_load_dwordx4 s[56:59], s[0:1], 8")
    PT = int(os.environ.get("PT", "-1"))
    if PT >= 0:
        e("s_load_dwordx4 s[36:39], s[0:1], 48")
        e("s_load_dwordx4 s[40:43], s[0:1], 64")
    for l in code_touch("k1_kernel", "code_end", 154, "v155", back=True, n=2): e(l)
    lane_setup()
    e("s_and_b32 s19, s2, 3")
    e("s_lshl_b32 s19, s19, 2")
    e("s_bfe_u32 s21, s2, 0x20003")
    e("s_add_u32 s19, s19, s21")
    e("s_lshr_b32 s22, s2, 5")
    e("s_bfe_u32 s20, s2, 0x10002")
    e("s_lshl_b32 s20, s20, 3")
    e("s_add_u32 s20, s20, s22")
    e("s_add_u32 s48, s21, s22")
    e("v_lshlrev_b32 v15, 4, v1")
    e("v_lshrrev_b32 v25, 3, v1")
    e("v_and_b32 v26, 7, v1")
    e("v_xor_b32 v26, v26, v25")
    e("v_mul_u32_u24 v25, 1280, v25")
    e("v_lshl_add_u32 v25, v26, 4, v25")
    e("s_and_b32 s21, s20, 7")
    e("s_mul_i32 s21, s21, 102400")
    e("s_and_b32 s22, s16, 1")
    e("s_mul_i32 s22, s22, 51200")
    e("s_add_u32 s21, s21, s22")
    e("s_lshr_b32 s22, s16, 1")
    e("s_lshl_b32 s22, s22, 7")
    e("s_add_u32 s21, s21, s22")
    e("v_add_u32 v4, s21, v25")
    e("s_lshl_b32 s21, s19, 7")
    e("s_lshl_b32 s22, s16, 5")
    e("s_add_u32 s21, s21, s22")
    e("s_mul_i32 s21, s21, 1280")
    e("v_add_u32 v5, s21, v25")
    for j in range(1, 4):
        e(f"v_add_u32 v{5+j}, {j*10240 - j*1024}, v5")
    e("s_mul_i32 s46, s16, 12288")
    e("s_add_u32 s46, s46, 102400")
    e("s_mul_i32 s47, s16, 5120")
    e("s_mul_i32 s49, s48, 205")
    e("s_lshr_b32 s49, s49, 10")
    e("s_mul_i32 s49, s49, 5")
    e("s_sub_u32 s49, s48, s49")
    if os.environ.get("K1NOROT"): e("s_mov_b32 s49, 0")
    for sc in range(5):
        e(f"s_lshl_b32 s{50+sc}, s49, 8")
        e("s_add_u32 s49, s49, 1")
        e("s_cmp_ge_u32 s49, 5")
        e("s_cselect_b32 s49, 0, s49")
    e("s_waitcnt lgkmcnt(0)")
    srd(24, 4, 2621440)
    e("s_cmp_lt_u32 s20, 8")
    e("s_cselect_b32 s28, s8, s10")
    e("s_cselect_b32 s29, s9, s11")
    e("s_mov_b32 s30, 819200")
    e("s_mov_b32 s31, 0x20000")
    vm = VM()
    XS = 76
    def wdma(sc):
        o = []
        for u in range(5):
            o.append(f"s_add_u32 m0, s47, {sc*20480 + u*1024}")
            o.append(f"s_add_u32 s23, s{50+sc}, {u*10240}")
            o.append("buffer_load_dwordx4 v4, s[28:31], s23 offen lds")
        vm.issue(("W", sc), 5)
        return o
    def xld(c):
        if c < 3:
            o = [f"s_add_u32 m0, s46, {(c%3)*4096}", f"s_add_u32 s22, s{50+(c>>1)}, {(c&1)*128}"]
            for j in range(4):
                o.append(f"buffer_load_dwordx4 v{5+j}, s[24:27], s22 offen offset:{j*1024} lds")
        else:
            o = [f"s_add_u32 s22, s{50+(c>>1)}, {(c&1)*128}"]
            for j in range(4):
                o.append(f"buffer_load_dwordx4 {ar(XS+(c-3)*16+j*4)}, v{5+j}, s[24:27], s22 offen offset:{j*1024}")
        vm.issue(("X", c), 4)
        return o
    for l in wdma(0) + xld(0) + xld(1): e(l)
    e(f"s_mov_b32 s17, {INV640}")
    e(f"s_mov_b32 s18, {EPS}")
    e("v_and_b32 v26, 7, v2")
    e("v_xor_b32 v26, v26, v3")
    e("v_lshlrev_b32 v11, 7, v2")
    e("v_lshl_add_u32 v11, v26, 4, v11")
    e("v_xor_b32 v12, 64, v11")
    e("v_add_u32 v13, 61440, v11")
    e("v_add_u32 v14, 61440, v12")
    e("v_add_u32 v9, s46, v11")
    e("v_add_u32 v10, s46, v12")
    srd(32, 6, SZ_ABP, WS_ABP)
    TST = [int(x) for x in os.environ.get("TST", "3,6").split(",")]
    PL, PO, PA = 144, 176, 144
    e(f"v_add_u32 v{PA+8}, s46, v15")
    e("s_cmp_lt_u32 s2, 128")
    e("s_cselect_b32 s56, s56, s58")
    e("s_cselect_b32 s57, s57, s59")
    e("s_mov_b32 s58, 8388608")
    e("s_mov_b32 s59, 0x20000")
    e("s_and_b32 s21, s2, 7")
    e("s_bfe_u32 s22, s2, 0x20005")
    e("s_lshl_b32 s21, s21, 2")
    e("s_add_u32 s21, s21, s22")
    e("s_lshl_b32 s21, s21, 2")
    e("s_bfe_u32 s22, s2, 0x20003")
    e("s_add_u32 s21, s21, s22")
    e("s_lshl_b32 s21, s21, 2")
    e("s_add_u32 s21, s21, s16")
    e("s_lshl_b32 s91, s21, 14")
    e(f"v_lshlrev_b32 v{PA+10}, 7, v1")
    def touch():
        if os.environ.get("NOPF"): return []
        vm.issue("T", 1)
        return [f"buffer_load_dword v{PA+11}, v{PA+10}, s[56:59], s91 offen", "s_add_u32 s91, s91, 8192"]
    for t in TST:
        if t == -1:
            for l in touch(): e(l)
    for a in range(76):
        e(f"v_accvgpr_write_b32 a{a}, 0")
    ONES = 16
    for r in range(4):
        e(f"v_mov_b32 v{ONES+r}, 0x3f803f80")
    FB = 32
    def XF(b, st, h): return FB + b * 56 + (st * 2 + h) * 4
    def WF(b, i, h): return FB + b * 56 + 16 + (i * 2 + h) * 4
    def fread(c):
        o = []
        b = c & 1
        for h in range(2):
            for st in range(2):
                o.append(f"ds_read_b128 {vr(XF(b,st,h))}, v{9+h} offset:{(c%3)*4096 + st*2048}")
            for i in range(5):
                off = c * 10240 + i * 2048
                if off < 61440:
                    o.append(f"ds_read_b128 {vr(WF(b,i,h))}, v{11+h} offset:{off}")
                else:
                    o.append(f"ds_read_b128 {vr(WF(b,i,h))}, v{13+h} offset:{off-61440}")
        return o
    stamp(1)
    e(f"s_waitcnt vmcnt({vm.younger([('W',0),('X',0)])})")
    e("s_barrier")
    stamp(2)
    for l in fread(0): e(l)
    for c in range(10):
        b = c & 1
        need = []
        if c + 1 <= 2: need.append(("X", c + 1))
        if c + 1 < 10: need.append(("W", (c + 1) >> 1))
        if 3 <= c + 2 <= 9: need.append(("X", c + 2))
        if need and c < 8:
            e(f"s_waitcnt vmcnt({vm.younger(need)}) lgkmcnt(0)")
        else:
            e("s_waitcnt lgkmcnt(0)")
        if c in (1, 3, 5, 7): e("s_barrier")
        NM = 28
        slots = [[] for _ in range(NM)]
        if c + 1 < 10:
            for j, l in enumerate(fread(c + 1)):
                slots[j].append(l)
        if 3 <= c + 2 <= 9:
            for j in range(4):
                slots[14 + j].append(f"ds_write_b128 v{PA+8}, {ar(XS+(c-1)*16+j*4)} offset:{((c+2)%3)*4096 + j*1024}")
        lst = []
        if c < 4: lst = wdma(c + 1) + xld(2 * c + 2) + xld(2 * c + 3)
        for t in TST:
            if t == c: lst += touch()
        if c == PT:
            PSH = int(os.environ.get("PSH", "16"))
            slots[22] += ["s_add_u32 s92, s6, 0x1000000", "s_addc_u32 s93, s7, 0", "s_mov_b32 s60, s6", "s_mov_b32 s61, s7",
                          "s_mov_b32 s62, 0x1000000", "s_mov_b32 s94, 0x1000000", "s_mov_b32 s44, 18",
                          "s_cmp_eq_u32 s16, 1", "s_cselect_b32 s60, s42, s60", "s_cselect_b32 s61, s43, s61", "s_cselect_b32 s92, s36, s92", "s_cselect_b32 s93, s37, s93",
                          "s_cselect_b32 s62, 2621440, s62", "s_cselect_b32 s94, 1966080, s94", f"s_cselect_b32 s44, {PSH}, s44"]
            slots[23] += ["s_cmp_eq_u32 s16, 2", "s_cselect_b32 s60, s38, s60", "s_cselect_b32 s61, s39, s61", "s_cselect_b32 s92, s40, s92", "s_cselect_b32 s93, s41, s93",
                          "s_cselect_b32 s62, 1966080, s62", "s_cselect_b32 s94, 1966080, s94", f"s_cselect_b32 s44, {PSH}, s44",
                          "s_mov_b32 s63, 0x20000", "s_mov_b32 s95, 0x20000", "v_lshlrev_b32 v157, s44, v1",
                          "buffer_load_dword v155, v157, s[60:63], 0 offen", "buffer_load_dword v155, v157, s[92:95], 0 offen"]
            vm.issue("PT", 2)
        if c == int(os.environ.get("CT1", "7")) and CT:
            slots[20] += code_touch("k2_kernel", "k3_kernel", 156, "v155")
            vm.issue("CT", 1)
        groups = []; grp = []
        for l in lst:
            if grp and any(x.startswith("buffer") for x in grp) and not (l.startswith("s_add_u32 s8") or l.startswith("s_add_u32 s9")):
                groups.append(grp); grp = []
            grp.append(l)
        if grp: groups.append(grp)
        for g, gl in enumerate(groups):
            slots[g] = gl + slots[g]
        ml = []
        for h in range(2):
            for i in range(5):
                for st in range(2):
                    ml.append((ar((st*5+i)*4), vr(XF(b,st,h)), vr(WF(b,i,h))))
            for st in range(2):
                ml.append((ar(40+4*st), vr(XF(b,st,h)), vr(ONES)))
                ml.append((ar(48+4*st), vr(XF(b,st,h)), vr(XF(b,st,h))))
        for k, m in enumerate(ml):
            mfma(*m)
            for l in slots[k]: e(l)
        for wv in range(4):
            e(f"s_cmp_lg_u32 s16, {wv}")
            e(f"s_cbranch_scc1 k1_ws{c}_{wv}")
            for i in range(5):
                for h in range(2):
                    if (c * 2 + i * 2 + h) % 4 == wv:
                        mfma(ar(56+4*i), vr(ONES), vr(WF(b,i,h)))
            lab(f"k1_ws{c}_{wv}")
    stamp(3)
    WX = 151552
    e("s_nop 7")
    e("s_nop 7")
    for i in range(5):
        e(f"v_accvgpr_read_b32 v{20+i}, a{56+4*i}")
    e("v_lshlrev_b32 v25, 2, v2")
    e("s_mul_i32 s21, s16, 320")
    e(f"s_add_u32 s21, s21, {WX}")
    e("v_add_u32 v26, s21, v25")
    for i in range(5):
        e(f"ds_write_b32 v26, v{20+i} offset:{i*64}")
    e("v_mul_u32_u24 v12, 80, v3")
    for st in range(2):
        for r in range(4):
            e(f"v_accvgpr_read_b32 v{32+st*4+r}, a{40+4*st+r}")
            e(f"v_accvgpr_read_b32 v{40+st*4+r}, a{48+4*st+r}")
    e("s_nop 1")
    for st in range(2):
        for r in range(4):
            e(f"ds_bpermute_b32 v{40+st*4+r}, v12, v{40+st*4+r} offset:{4*r}")
    e(f"v_add_u32 v26, {WX}, v25")
    e("s_waitcnt lgkmcnt(0)")
    e("s_barrier")
    for wv in range(4):
        for i in range(5):
            e(f"ds_read_b32 v{124+wv*5+i}, v26 offset:{wv*320 + i*64}")
    for st in range(2):
        for r in range(4):
            ln_stats(32+st*4+r, 40+st*4+r, 52+st*4+r, 60+st*4+r, 48)
    e("s_waitcnt lgkmcnt(0)")
    for i in range(5):
        e(f"v_add_f32 v{20+i}, v{124+i}, v{129+i}")
        e(f"v_add_f32 v{124+i}, v{134+i}, v{139+i}")
        e(f"v_add_f32 v{20+i}, v{20+i}, v{124+i}")
    e("v_and_b32 v26, 1, v3")
    e("v_lshlrev_b32 v26, 9, v26")
    e("v_lshrrev_b32 v27, 1, v3")
    e("v_lshl_add_u32 v26, v27, 8, v26")
    e("v_lshl_add_u32 v26, v2, 4, v26")
    e("s_mul_i32 s21, s20, 320")
    e("s_lshl_b32 s22, s19, 2")
    e("s_add_u32 s21, s21, s22")
    e("s_add_u32 s21, s21, s16")
    e("s_lshl_b32 s21, s21, 10")
    for i in range(5):
        T = 72 + (i & 1) * 16
        O = 104 + i * 4
        for st in range(2):
            for r in range(4):
                e(f"v_accvgpr_read_b32 v{T+st*4+r}, a{(st*5+i)*4+r}")
        for st in range(2):
            for r in range(4):
                e(f"v_fma_f32 v{T+st*4+r}, -v{52+st*4+r}, v{20+i}, v{T+st*4+r}")
        for st in range(2):
            for r in range(4):
                e(f"v_mul_f32 v{T+st*4+r}, v{T+st*4+r}, v{60+st*4+r}")
        for st in range(2):
            e(f"v_cvt_pk_bf16_f32 v{O+2*st}, v{T+st*4}, v{T+st*4+1}")
            e(f"v_cvt_pk_bf16_f32 v{O+2*st+1}, v{T+st*4+2}, v{T+st*4+3}")
        e("s_nop 1")
        e(f"v_permlane16_swap_b32 v{O}, v{O+2}")
        e(f"v_permlane16_swap_b32 v{O+1}, v{O+3}")
        e(f"s_add_u32 s23, s21, {i*65536}")
        e("s_nop 1")
        e(f"buffer_store_dwordx4 {vr(O)}, v26, s[32:35], s23 offen")
        vm.issue("S", 1)
    stamp(4)
    lab("k1_fin")
    stamp(5)
    stamp_dump(0, 6)
    lab("k1_end")
    e("s_endpgm")

ACC = 176
BUF = 32
def bufA(b, i): return BUF + b * 36 + i * 4
def bufB(b, n): return BUF + b * 36 + 20 + n * 4
def acc(i, n): return ACC + (i * 4 + n) * 4

def splitk_core(nsteps, srdA, srdB, shA, shB, vA, vB, mask):
    def addr():
        e("s_add_u32 s44, s40, s41")
        e(f"s_lshl_b32 s42, s44, {shA}")
        e(f"s_lshl_b32 s43, s44, {shB}")
        e("s_add_u32 s40, s40, 1")
        if mask:
            e(f"s_and_b32 s40, s40, {nsteps-1}")
        else:
            e(f"s_cmp_ge_u32 s40, {nsteps}")
            e("s_cselect_b32 s40, 0, s40")
    def loads(b):
        out = []
        for n in range(4):
            out.append(f"buffer_load_dwordx4 {vr(bufB(b,n))}, v{vB+n}, s[{srdB}:{srdB+3}], s43 offen")
        for i in range(5):
            out.append(f"buffer_load_dwordx4 {vr(bufA(b,i))}, v{vA+i}, s[{srdA}:{srdA+3}], s42 offen")
        return out
    for it in range(3):
        addr()
        for l in loads(it): e(l)
    for a in range(80):
        e(f"v_mov_b32 v{ACC+a}, 0")
    for it in range(nsteps):
        b = it % 4
        rem = min(nsteps - 1 - it, 2)
        e(f"s_waitcnt vmcnt({9*rem})")
        ld = []
        if it + 3 < nsteps:
            addr()
            ld = loads((it + 3) % 4)
        k = 0
        for i in range(5):
            for n in range(4):
                mfma(vr(acc(i,n)), vr(bufA(b,i)), vr(bufB(b,n)))
                k += 1
                if k % 2 == 0 and ld:
                    e(ld.pop(0))
        assert not ld

def splitk_exchange():
    e("s_nop 7")
    e("s_nop 7")
    e("s_mul_i32 s44, s16, 5120")
    e("v_add_u32 v9, s44, v8")
    e("v_add_u32 v10, 61440, v9")
    for n in range(4):
        for i in range(5):
            if n < 3:
                e(f"ds_write_b128 v9, {vr(acc(i,n))} offset:{(n*20+i)*1024}")
            else:
                e(f"ds_write_b128 v10, {vr(acc(i,n))} offset:{i*1024}")
    e("s_mul_i32 s44, s16, 20480")
    e("v_add_u32 v9, s44, v8")
    e("s_waitcnt lgkmcnt(0)")
    e("s_barrier")
    for src in range(4):
        for i in range(5):
            e(f"ds_read_b128 {vr(BUF+(src*5+i)*4)}, v9 offset:{(src*5+i)*1024}")


def hp_addr(vdst, s_st, s_d16base, sdst_list):
    e(f"v_lshrrev_b32 v{vdst}, 1, v3")
    e(f"v_lshlrev_b32 v{vdst}, 8, v{vdst}")
    e(f"v_lshl_add_u32 v{vdst}, v2, 4, v{vdst}")
    e("v_and_b32 v10, 1, v3")
    e(f"v_lshl_add_u32 v{vdst}, v10, 3, v{vdst}")
    e(f"s_mul_i32 s44, s{s_st}, 20480")
    for i in range(5):
        e(f"s_add_u32 s45, s{s_d16base}, {i}")
        e(f"s_lshl_b32 s45, s45, 9")
        e(f"s_add_u32 s{sdst_list[i]}, s44, s45")

def gen_k2():
    ROT = os.environ.get("K2ROT", "0") == "1"
    kernel_begin("k2_kernel")
    e("s_cmp_ge_u32 s2, 256")
    e("s_cbranch_scc1 k2_end")
    stamp(0)
    e("s_load_dwordx2 s[4:5], s[0:1], 0")
    e("s_load_dwordx2 s[8:9], s[0:1], 8")
    e("s_load_dwordx2 s[10:11], s[0:1], 16")
    e("s_load_dwordx2 s[6:7], s[0:1], 88")
    e("s_load_dwordx4 s[12:15], s[0:1], 48")
    e("s_load_dwordx2 s[60:61], s[0:1], 64")
    lane_setup()
    e("s_and_b32 s19, s2, 7")
    e("s_lshr_b32 s20, s2, 3")
    e("s_lshr_b32 s21, s20, 3")
    e("s_lshl_b32 s19, s19, 2")
    e("s_add_u32 s19, s19, s21")
    e("s_and_b32 s20, s20, 7")
    e("v_lshlrev_b32 v8, 4, v1")
    VC, VA, VB0, VB1 = 16, 24, 29, 30
    e("v_lshrrev_b32 v4, 3, v1")
    e("v_and_b32 v5, 7, v1")
    e("v_xor_b32 v5, v5, v4")
    e("v_lshlrev_b32 v4, 12, v4")
    e("v_lshl_add_u32 v4, v5, 4, v4")
    e("s_lshl_b32 s22, s19, 18")
    if os.environ.get("XC"): e("s_mov_b32 s22, 0")
    e(f"v_add_u32 v{VC}, s22, v4")
    for j in range(1, 8):
        e(f"v_add_u32 v{VC+j}, {j*32768 - (j%4)*1024}, v{VC}")
    e("s_lshr_b32 s22, s16, 1")
    e("s_mul_i32 s22, s22, 40")
    e("s_mul_i32 s23, s20, 5")
    if os.environ.get("XA"): e("s_mov_b32 s23, 0")
    e("s_add_u32 s22, s22, s23")
    e("s_lshl_b32 s22, s22, 16")
    e(f"v_add_u32 v{VA}, s22, v8")
    for i in range(1, 5):
        e(f"v_add_u32 v{VA+i}, {i*65536}, v{VA}")
    e("s_lshl_b32 s46, s16, 15")
    e("v_and_b32 v5, 7, v2")
    e("v_xor_b32 v5, v5, v3")
    e("v_lshlrev_b32 v4, 7, v2")
    e("v_lshl_add_u32 v4, v5, 4, v4")
    e(f"v_add_u32 v{VB0}, s46, v4")
    e(f"v_xor_b32 v{VB1}, 64, v{VB0}")
    e("s_and_b32 s41, s16, 1")
    e("s_lshl_b32 s47, s41, 11")
    e("s_lshl_b32 s41, s41, 15")
    if ROT:
        e("s_lshr_b32 s40, s2, 6")
        e("s_lshl_b32 s40, s40, 2")
    else:
        e("s_mov_b32 s40, 0")
    e("s_lshl_b32 s21, s19, 6")
    e("s_lshl_b32 s22, s16, 4")
    e("s_add_u32 s21, s21, s22")
    e("s_mul_i32 s22, s21, 1280")
    e("s_mul_i32 s23, s20, 160")
    e("s_add_u32 s22, s22, s23")
    e("v_mul_u32_u24 v11, 1280, v2")
    e("v_lshl_add_u32 v11, v3, 3, v11")
    e("v_add_u32 v11, s22, v11")
    e("s_waitcnt lgkmcnt(0)")
    srd(24, 4, 2621440)
    e("s_cmp_lt_u32 s16, 2")
    e("s_cselect_b32 s28, s8, s10")
    e("s_cselect_b32 s29, s9, s11")
    e("s_mov_b32 s30, 8388608")
    e("s_mov_b32 s31, 0x20000")
    srd(32, 6, SZ_ABP, WS_ABP)
    stamp(1)
    AB = 32
    BB = 192
    def A(b, h, i):
        if b < 2: return vr(AB + (b * 10 + h * 5 + i) * 4)
        return ar(96 + ((b - 2) * 10 + h * 5 + i) * 4)
    def B(b, h, n): return BB + (b * 8 + h * 4 + n) * 4
    vm = VM()
    def stage_issue(stg):
        b = stg % 4
        vm.issue(("S", stg), 18)
        o = []
        o.append("s_lshl_b32 s42, s40, 7")
        o.append("s_add_u32 s42, s42, s47")
        o.append(f"s_add_u32 m0, s46, {b*8192}")
        o.append("s_lshl_b32 s43, s40, 11")
        for j in range(4):
            o.append(f"buffer_load_dwordx4 v{VC+j}, s[28:31], s42 offen offset:{j*1024} lds")
        o.append(f"s_add_u32 m0, s46, {b*8192+4096}")
        o.append("s_add_u32 s43, s43, s41")
        for j in range(4, 8):
            o.append(f"buffer_load_dwordx4 v{VC+j}, s[28:31], s42 offen offset:{(j-4)*1024} lds")
        for h in range(2):
            for i in range(5):
                o.append(f"buffer_load_dwordx4 {A(b,h,i)}, v{VA+i}, s[32:35], s43 offen offset:{h*1024}")
        o.append("s_add_u32 s40, s40, 1")
        o.append("s_and_b32 s40, s40, 15")
        return o
    def bread(st):
        o = []
        for h in range(2):
            for n in range(4):
                o.append(f"ds_read_b128 {vr(B(st&1,h,n))}, v{VB0+h} offset:{(st%4)*8192 + n*2048}")
        return o
    if os.environ.get("ABT"):
        e("s_lshl_b32 s22, s2, 2")
        e("s_add_u32 s22, s22, s16")
        e("s_mul_i32 s22, s22, 5120")
        e("v_lshlrev_b32 v12, 7, v1")
        e("s_mov_b32 exec_hi, 0xff")
        e("buffer_load_dword a92, v12, s[32:35], s22 offen")
        e("s_mov_b32 exec_hi, -1")
    for st in range(3):
        for l in stage_issue(st): e(l)
    for i in range(5):
        e(f"buffer_load_dwordx2 a[{80+2*i}:{81+2*i}], v11, s[24:27], 0 offen offset:{i*32}")
    vm.issue("X", 5)
    PL, PO, PA = 112, 144, 176
    e("s_mul_i32 s48, s2, 3")
    e("s_add_u32 s48, s48, s16")
    e("s_cmp_ge_u32 s2, 240")
    e("s_cselect_b64 vcc, -1, 0")
    e("s_cmp_eq_u32 s16, 3")
    e("s_cselect_b64 vcc, -1, vcc")
    e("s_cbranch_vccnz k2_pdum")
    e("s_cmp_ge_u32 s48, 480")
    e("s_cbranch_scc1 k2_pdn")
    e("s_mul_i32 s49, s48, 52429")
    e("s_lshr_b32 s49, s49, 20")
    e("s_mul_i32 s92, s49, 20")
    e("s_sub_u32 s92, s48, s92")
    srd(36, 12, 1966080)
    srd(56, 14, 1966080)
    e("v_bfe_u32 v12, v1, 3, 2")
    e("v_and_b32 v13, 7, v1")
    e("v_lshrrev_b32 v14, 5, v1")
    e(f"v_mul_u32_u24 v{PA+9}, 24576, v12")
    e(f"v_lshl_add_u32 v{PA+9}, v13, 4, v{PA+9}")
    e("v_mul_u32_u24 v15, 12288, v14")
    e(f"v_add_u32 v{PA+9}, v{PA+9}, v15")
    e("s_mul_i32 s84, s92, 98304")
    e("s_lshl_b32 s85, s49, 7")
    e("s_add_u32 s84, s84, s85")
    e("s_mov_b32 s85, s84")
    e("s_mov_b32 s86, 3072")
    e("v_mul_u32_u24 v13, 1040, v13")
    e("v_lshl_add_u32 v13, v12, 8, v13")
    e(f"v_lshl_add_u32 v{PA}, v14, 3, v13")
    e("s_mov_b32 s93, 64")
    e("s_mov_b32 s94, 32")
    e("s_mul_i32 s87, s49, 163840")
    e("s_lshl_b32 s92, s92, 10")
    e("s_add_u32 s87, s87, s92")
    e(f"s_add_u32 s87, s87, {WS_WGU}")
    e("s_mov_b32 s88, 20480")
    e("s_branch k2_pk")
    lab("k2_pdn")
    e("s_sub_u32 s48, s48, 480")
    e("s_mul_i32 s49, s48, 43691")
    e("s_lshr_b32 s49, s49, 21")
    e("s_mul_i32 s92, s49, 48")
    e("s_sub_u32 s92, s48, s92")
    srd(36, 60, 1966080)
    srd(56, 60, 1966080)
    e(f"v_mul_u32_u24 v{PA+9}, 10240, v3")
    e(f"v_lshl_add_u32 v{PA+9}, v2, 4, v{PA+9}")
    e("s_mul_i32 s84, s92, 40960")
    e("s_lshl_b32 s85, s49, 8")
    e("s_add_u32 s84, s84, s85")
    e("s_add_u32 s85, s84, 5120")
    e("s_mov_b32 s86, 1280")
    e("v_lshrrev_b32 v13, 1, v2")
    e("v_mul_u32_u24 v13, 1040, v13")
    e("v_and_b32 v15, 1, v2")
    e("v_lshlrev_b32 v15, 7, v15")
    e("v_lshl_add_u32 v15, v3, 8, v15")
    e(f"v_add_u32 v{PA}, v15, v13")
    e("s_mov_b32 s93, 32")
    e("s_mov_b32 s94, 8")
    e("s_mul_i32 s87, s49, 393216")
    e("s_lshl_b32 s92, s92, 10")
    e("s_add_u32 s87, s87, s92")
    e(f"s_add_u32 s87, s87, {WS_WDN}")
    e("s_mov_b32 s88, 49152")
    lab("k2_pk")
    for which in range(2):
        for j in range(4):
            sr = 84 + which
            e(f"buffer_load_dwordx4 {vr(PL+(which*4+j)*4)}, v{PA+9}, s[{36+20*which}:{39+20*which}], s{sr} offen")
            e(f"s_add_u32 s{sr}, s{sr}, s86")
    e("s_mul_i32 s49, s16, 8320")
    e("s_add_u32 s49, s49, 131072")
    e(f"v_add_u32 v{PA}, s49, v{PA}")
    for k in range(1, 4):
        e(f"v_add_u32 v{PA+k}, s93, v{PA+k-1}")
    for k in range(4):
        e(f"v_add_u32 v{PA+4+k}, s94, v{PA+k}")
    e(f"v_add_u32 v{PA+12}, s49, v8")
    e("s_branch k2_pdone")
    lab("k2_pdum")
    def dummy(n):
        o = ["s_mov_b64 exec, 1"]
        for j in range(n):
            o.append("buffer_load_dword a90, v8, s[24:27], 0 offen")
        o.append("s_mov_b64 exec, -1")
        return o
    for l in dummy(8): e(l)
    lab("k2_pdone")
    vm.issue("P", 8)
    e("s_mov_b32 s89, 0x05040100")
    e("s_mov_b32 s90, 0x07060302")
    e("s_mov_b32 s64, s6")
    e("s_mov_b32 s65, s7")
    e(f"s_mov_b32 s66, {WS_WDN + SZ_WDN}")
    e("s_mov_b32 s67, 0x20000")
    PST = int(os.environ.get("PST", "3"))
    srd(48, 6, SZ_HP, WS_HP)
    srd(52, 6, SZ_HSTAT, WS_HSTAT)
    for a in range(80):
        e(f"v_accvgpr_write_b32 a{a}, 0")
    e(f"s_waitcnt vmcnt({vm.younger([('S', 0)])})")
    for l in bread(0): e(l)
    NS = 16
    for st in range(NS):
        b = st % 4
        if st + 1 < NS:
            allowed = vm.younger([("S", st + 1)] + (["P"] if st == PST else []))
            e(f"s_waitcnt vmcnt({allowed}) lgkmcnt(0)")
        else:
            e("s_waitcnt lgkmcnt(0)")
        if os.environ.get("K2ST") and st in (0,1,2,3,4,6,8,12): stamp(7 + (0,1,2,3,4,6,8,12).index(st))
        slots = [[] for _ in range(40)]
        if st + 1 < NS:
            for j, l in enumerate(bread(st + 1)):
                slots[1 + 2*j].append(l)
        if st + 3 < NS:
            grp = []; groups = []
            for l in stage_issue(st + 3):
                grp.append(l)
                if l.startswith("buffer"):
                    groups.append(grp); grp = []
            groups[-1] += grp
            for g, gl in enumerate(groups):
                slots[(g * 40) // len(groups)] += gl
        if st == int(os.environ.get("CT2", "13")) and CT:
            slots[30] += code_touch("k3_kernel", "k4_kernel", 12, "a91")
            vm.issue("CT", 1)
        pk = []
        if st == PST:
            for which in range(2):
                for ee in range(8):
                    o = PO + (which*8+ee)*2
                    g = []
                    for t in range(2):
                        g.append(f"v_perm_b32 v{o+t}, v{PL+(which*4+2*t+1)*4+(ee>>1)}, v{PL+(which*4+2*t)*4+(ee>>1)}, s{89+(ee&1)}")
                    g.append(f"ds_write_b64 v{PA+which*4+(ee>>1)}, v[{o}:{o+1}] offset:{(ee&1)*16}")
                    pk.append(g)
            pk = [pk[2*i] + pk[2*i+1] for i in range(8)]
        if st == PST + 1:
            pk = [[f"ds_read_b128 {vr(PL+g*4)}, v{PA+12} offset:{g*1040}"] for g in range(8)]
        for g, gl in enumerate(pk):
            slots[18 + 2*g] += [f"s_cbranch_vccnz k2_np{st}_{g}"] + gl + [f"k2_np{st}_{g}:"]
        if st == PST + 2:
            gl = ["s_cbranch_vccnz k2_sdum"]
            for g in range(8):
                gl += [f"buffer_store_dwordx4 {vr(PL+g*4)}, v8, s[64:67], s87 offen sc1", "s_add_u32 s87, s87, s88"]
            gl += ["s_branch k2_sdone", "k2_sdum:"] + dummy(8) + ["k2_sdone:"]
            slots[39] += gl
            vm.issue("Q", 8)
        k = 0
        for h in range(2):
            for i in range(5):
                for n in range(4):
                    if not os.environ.get("NOMFMA"): mfma(ar((i*4+n)*4), A(b,h,i), vr(B(st&1,h,n)))
                    for l in slots[k]:
                        if os.environ.get("NODS") and l.startswith("ds_"): continue
                        if os.environ.get("NOA") and l.startswith("buffer") and not l.endswith("lds"): continue
                        if os.environ.get("NOC") and l.startswith("buffer") and l.endswith("lds"): continue
                        e(l)
                    k += 1
    stamp(2)
    stamp(3)
    e("s_nop 7")
    e("v_add_u32 v9, s46, v8")
    for n in range(4):
        for i in range(5):
            e(f"ds_write_b128 v9, {ar((i*4+n)*4)} offset:{(n*5+i)*1024}")
    e("s_mul_i32 s44, s16, 5120")
    e("v_add_u32 v9, s44, v8")
    e("v_add_u32 v10, 65536, v9")
    XR = 112
    for i in range(10):
        e(f"v_accvgpr_read_b32 v{XR+i}, a{80+i}")
    e("s_waitcnt lgkmcnt(0)")
    e("s_barrier")
    for src in range(4):
        for i in range(5):
            e(f"ds_read_b128 {vr(BUF+(src*5+i)*4)}, v{9 + (src>>1)} offset:{(src&1)*32768 + i*1024}")
    stamp(4)
    e("s_lshl_b32 s22, s19, 2")
    e("s_add_u32 s22, s22, s16")
    e("s_mul_i32 s23, s20, 5")
    hp_addr(11, 22, 23, [61, 62, 63, 64, 65])
    e("v_mov_b32 v17, 0")
    e("v_mov_b32 v18, 0")
    e("s_waitcnt vmcnt(0) lgkmcnt(0)")
    T = 124
    for i in range(5):
        def S(src, r): return BUF + (src*5+i)*4 + r
        for r in range(4):
            e(f"v_add_f32 v{T+r}, v{S(0,r)}, v{S(1,r)}")
            e(f"v_add_f32 v{T+4+r}, v{S(2,r)}, v{S(3,r)}")
        for r in range(4):
            bf16r(T+r, T+r)
            bf16r(T+4+r, T+4+r)
        for r in range(4):
            e(f"v_sub_f32 v{T+r}, v{T+r}, v{T+4+r}")
        for r in range(4):
            bf16r(T+r, T+r)
        e(f"v_lshlrev_b32 v{T+4}, 16, v{XR+2*i}")
        e(f"v_and_b32 v{T+5}, 0xffff0000, v{XR+2*i}")
        e(f"v_lshlrev_b32 v{T+6}, 16, v{XR+2*i+1}")
        e(f"v_and_b32 v{T+7}, 0xffff0000, v{XR+2*i+1}")
        for r in range(4):
            e(f"v_add_f32 v{T+r}, v{T+r}, v{T+4+r}")
        o = 136 + 2*i
        e(f"v_cvt_pk_bf16_f32 v{o}, v{T}, v{T+1}")
        e(f"v_cvt_pk_bf16_f32 v{o+1}, v{T+2}, v{T+3}")
        e(f"buffer_store_dwordx2 v[{o}:{o+1}], v11, s[48:51], s{61+i} offen")
        e(f"v_lshlrev_b32 v{T}, 16, v{o}")
        e(f"v_and_b32 v{T+1}, 0xffff0000, v{o}")
        e(f"v_lshlrev_b32 v{T+2}, 16, v{o+1}")
        e(f"v_and_b32 v{T+3}, 0xffff0000, v{o+1}")
        for r in range(4):
            e(f"v_add_f32 v17, v17, v{T+r}")
            e(f"v_fmac_f32 v18, v{T+r}, v{T+r}")
    e("v_xor_b32 v10, 16, v1")
    e("v_lshlrev_b32 v10, 2, v10")
    e("ds_bpermute_b32 v19, v10, v17")
    e("ds_bpermute_b32 v28, v10, v18")
    e("s_waitcnt lgkmcnt(0)")
    e("v_add_f32 v17, v17, v19")
    e("v_add_f32 v18, v18, v28")
    e("v_xor_b32 v10, 32, v1")
    e("v_lshlrev_b32 v10, 2, v10")
    e("ds_bpermute_b32 v19, v10, v17")
    e("ds_bpermute_b32 v28, v10, v18")
    e("s_waitcnt lgkmcnt(0)")
    e("v_add_f32 v30, v17, v19")
    e("v_add_f32 v31, v18, v28")
    e("s_lshl_b32 s22, s21, 3")
    e("s_lshl_b32 s23, s20, 14")
    e("s_add_u32 s22, s22, s23")
    e("v_lshlrev_b32 v10, 3, v2")
    e("s_mov_b32 exec_lo, 0x0000ffff")
    e("s_mov_b32 exec_hi, 0")
    e("buffer_store_dwordx2 v[30:31], v10, s[52:55], s22 offen")
    e("s_mov_b64 exec, -1")
    lab("k2_fin")
    stamp(5)
    stamp_dump(1, 6)
    if os.environ.get("K2ST"):
        for i in range(7, 15):
            e(f"v_mov_b32 v2, s{70+2*i}")
            e(f"v_mov_b32 v3, s{71+2*i}")
            e(f"buffer_store_dwordx2 v[2:3], v0, s[64:67], s68 offen offset:{i*8}")
        e("s_waitcnt vmcnt(0)")
    lab("k2_end")
    e("s_endpgm")

def gen_k4():
    kernel_begin("k4_kernel")
    e("s_cmp_ge_u32 s2, 256")
    e("s_cbranch_scc1 k4_end")
    stamp(0)
    e("s_load_dwordx2 s[4:5], s[0:1], 72")
    e("s_load_dwordx2 s[6:7], s[0:1], 88")
    lane_setup()
    e("s_and_b32 s19, s2, 7")
    e("s_lshr_b32 s20, s2, 3")
    e("s_lshr_b32 s21, s20, 3")
    e("s_lshl_b32 s19, s19, 2")
    e("s_add_u32 s19, s19, s21")
    e("s_and_b32 s20, s20, 7")
    e("v_lshlrev_b32 v8, 4, v1")
    e("s_mul_i32 s22, s19, 196608")
    e("v_add_u32 v4, s22, v8")
    for n in range(1, 4):
        e(f"v_add_u32 v{4+n}, {n*49152}, v4")
    e("s_mul_i32 s22, s20, 245760")
    e("v_add_u32 v12, s22, v8")
    for i in range(1, 5):
        e(f"v_add_u32 v{12+i}, {i*49152}, v12")
    e("s_mul_i32 s41, s16, 12")
    e("s_lshr_b32 s40, s2, 3")
    e("s_mul_i32 s44, s40, 43691")
    e("s_lshr_b32 s44, s44, 19")
    e("s_mul_i32 s44, s44, 12")
    e("s_sub_u32 s40, s40, s44")
    e("s_waitcnt lgkmcnt(0)")
    srd(28, 6, SZ_ACT, WS_ACT)
    srd(32, 6, SZ_WDN, WS_WDN)
    NSL, AH = 8, 7
    def slot(b, k):
        if b < 6: return vr(32 + b * 36 + k * 4)
        return ar(80 + (b - 6) * 36 + k * 4)
    vm = VM()
    def issue(t):
        o = ["s_add_u32 s44, s40, s41", "s_lshl_b32 s42, s44, 10", "s_add_u32 s40, s40, 1",
             "s_cmp_ge_u32 s40, 12", "s_cselect_b32 s40, 0, s40"]
        b = t % NSL
        for n in range(4):
            o.append(f"buffer_load_dwordx4 {slot(b,5+n)}, v{4+n}, s[28:31], s42 offen")
        for i in range(5):
            o.append(f"buffer_load_dwordx4 {slot(b,i)}, v{12+i}, s[32:35], s42 offen")
        vm.issue(("S", t), 9)
        return o
    for t in range(AH):
        for l in issue(t): e(l)
    stamp(1)
    srd(24, 4, 2621440)
    srd(48, 6, SZ_HP, WS_HP)
    for a in range(80):
        e(f"v_accvgpr_write_b32 a{a}, 0")
    e("v_lshrrev_b32 v18, 2, v1")
    e("v_and_b32 v19, 3, v1")
    e("s_lshl_b32 s22, s19, 2")
    e("s_add_u32 s22, s22, s16")
    e("s_mul_i32 s23, s22, 20480")
    e("s_mul_i32 s45, s20, 2560")
    e("s_add_u32 s45, s45, s23")
    e("v_lshlrev_b32 v20, 4, v18")
    e("v_lshl_add_u32 v20, v19, 8, v20")
    e("v_and_b32 v21, 1, v1")
    e("v_lshlrev_b32 v22, 4, v18")
    e("v_lshl_add_u32 v21, v21, 8, v22")
    e("s_mul_i32 s46, s20, 160")
    e("s_add_u32 s46, s46, s23")
    e("v_mul_u32_u24 v22, 1280, v18")
    e("v_lshl_add_u32 v22, v19, 4, v22")
    if os.environ.get("OT"):
        e("buffer_load_dword v26, v22, s[24:27], s46 offen")
        vm.issue("O", 1)
    e("s_mul_i32 s47, s16, 23040")
    e("v_mul_u32_u24 v23, 288, v3")
    e("v_lshl_add_u32 v23, v2, 4, v23")
    e("v_add_u32 v23, s47, v23")
    e("s_mul_i32 s47, s16, 5760")
    e("v_mul_u32_u24 v24, 576, v19")
    e("v_lshl_add_u32 v24, v18, 4, v24")
    e("v_add_u32 v24, s47, v24")
    e("v_add_u32 v25, 46080, v24")
    HR = 152
    for t in range(12):
        b = t % NSL
        e(f"s_waitcnt vmcnt({vm.younger([('S', t)])})")
        ld = []
        if t + AH < 12:
            ld = issue(t + AH)
        elif t == 12 - AH:
            ld = [f"buffer_load_dwordx4 {ar(HR)}, v20, s[48:51], s45 offen",
                  f"buffer_load_dwordx4 {ar(HR+4)}, v20, s[48:51], s45 offen offset:1024",
                  f"buffer_load_dwordx4 {ar(HR+8)}, v21, s[48:51], s45 offen offset:2048"]
            vm.issue("H", 3)
        grp = []; groups = []
        for l in ld:
            grp.append(l)
            if l.startswith("buffer"):
                groups.append(grp); grp = []
        k = 0
        for i in range(5):
            for n in range(4):
                mfma(ar((i*4+n)*4), slot(b, i), slot(b, 5+n))
                k += 1
                if k % 2 == 0 and groups:
                    for l in groups.pop(0): e(l)
        assert not groups
    stamp(2)
    stamp(3)
    e("s_nop 7")
    e("s_nop 7")
    for n in range(4):
        for i in range(5):
            e(f"ds_write_b128 v23, {ar((i*4+n)*4)} offset:{(n*5+i)*1152}")
    XR = 128
    e("s_waitcnt vmcnt(0)")
    for r in range(12):
        e(f"v_accvgpr_read_b32 v{XR+r}, a{HR+r}")
    e("s_waitcnt lgkmcnt(0)")
    e("s_barrier")
    def S(src, j, hf): return 32 + ((j * 4 + src) * 2 + hf) * 4
    for j in range(3):
        for src in range(4):
            for hf in range(2):
                e(f"ds_read_b128 {vr(S(src,j,hf))}, v{24 + (src>>1)} offset:{(src&1)*23040 + j*2304 + hf*288}")
    stamp(4)
    for j in range(3):
        e(f"s_waitcnt lgkmcnt({min(15,(2-j)*8)})")
        T = 144 + j * 16
        for hf in range(2):
            for p in (0, 2):
                e(f"v_pk_add_f32 v[{T+hf*4+p}:{T+hf*4+p+1}], v[{S(0,j,hf)+p}:{S(0,j,hf)+p+1}], v[{S(1,j,hf)+p}:{S(1,j,hf)+p+1}]")
                e(f"v_pk_add_f32 v[{T+8+hf*4+p}:{T+8+hf*4+p+1}], v[{S(2,j,hf)+p}:{S(2,j,hf)+p+1}], v[{S(3,j,hf)+p}:{S(3,j,hf)+p+1}]")
        for p in range(0, 8, 2):
            e(f"v_pk_add_f32 v[{T+p}:{T+p+1}], v[{T+p}:{T+p+1}], v[{T+8+p}:{T+8+p+1}]")
        for p in range(4):
            e(f"v_cvt_pk_bf16_f32 v{T+8+p}, v{T+2*p}, v{T+2*p+1}")
        for p in range(4):
            e(f"v_lshlrev_b32 v{T+2*p}, 16, v{T+8+p}")
            e(f"v_and_b32 v{T+2*p+1}, 0xffff0000, v{T+8+p}")
        for p in range(4):
            e(f"v_lshlrev_b32 v{T+8+2*p}, 16, v{XR+4*j+p}")
            e(f"v_and_b32 v{T+8+2*p+1}, 0xffff0000, v{XR+4*j+p}")
        for p in range(0, 8, 2):
            e(f"v_pk_add_f32 v[{T+p}:{T+p+1}], v[{T+p}:{T+p+1}], v[{T+8+p}:{T+8+p+1}]")
        O = 192 + 4 * j
        for p in range(4):
            e(f"v_cvt_pk_bf16_f32 v{O+p}, v{T+2*p}, v{T+2*p+1}")
        if j == 2:
            e("s_mov_b32 exec_lo, 0x33333333")
            e("s_mov_b32 exec_hi, 0x33333333")
        e(f"buffer_store_dwordx4 {vr(O)}, v22, s[24:27], s46 offen offset:{j*64}")
    e("s_mov_b64 exec, -1")
    stamp(5)
    stamp_dump(3, 6)
    lab("k4_end")
    e("s_endpgm")

class VM:
    def __init__(self): self.q = []
    def issue(self, tag, n=1): self.q += [tag] * n
    def younger(self, tags):
        last = max(i for i, t in enumerate(self.q) if t in tags)
        return min(63, len(self.q) - 1 - last)

def gen_k3():
    kernel_begin("k3_kernel")
    e("s_cmp_ge_u32 s2, 256")
    e("s_cbranch_scc1 k3_end")
    stamp(0)
    e("s_load_dwordx2 s[6:7], s[0:1], 88")
    lane_setup()
    e("s_and_b32 s19, s2, 7")
    e("s_lshr_b32 s20, s2, 3")
    e("s_and_b32 s21, s20, 1")
    e("s_lshl_b32 s19, s19, 1")
    e("s_add_u32 s19, s19, s21")
    e("s_lshr_b32 s20, s20, 1")
    e(f"s_mov_b32 s17, {INV640}")
    e(f"s_mov_b32 s18, {EPS}")
    e("s_mov_b32 s62, 0x3f803f80")
    e("v_lshlrev_b32 v8, 4, v1")
    e("s_mul_i32 s21, s20, 12")
    e("s_mul_i32 s23, s16, 3")
    e("s_add_u32 s21, s21, s23")
    e("s_mul_i32 s22, s21, 20480")
    e("v_add_u32 v4, s22, v8")
    e("v_add_u32 v5, 20480, v4")
    e("v_add_u32 v6, 40960, v4")
    e("s_mul_i32 s22, s19, 163840")
    e("s_mul_i32 s23, s16, 40960")
    e("s_add_u32 s22, s22, s23")
    e("v_lshlrev_b32 v9, 3, v1")
    e("s_lshl_b32 s48, s19, 10")
    e("s_waitcnt lgkmcnt(0)")
    srd(24, 6, SZ_HP, WS_HP)
    srd(32, 6, SZ_WGU, WS_WGU)
    srd(28, 6, SZ_HSTAT, WS_HSTAT)
    vm = VM()
    D = 6
    WB = 88
    ACC3 = 160
    def Wf(kk, i): return WB + ((kk % D) * 3 + i) * 4
    def Hf(kk, n): return ((kk & 1) * 8 + n) * 4
    HGS = int(os.environ.get("HGS", "2")); LW = int(os.environ.get("LW", "5")); LH = int(os.environ.get("LH", "4"))
    HG = {chr(65 + g): (g * HGS, min(20, g * HGS + HGS)) for g in range((19 + HGS) // HGS)}
    def hdma_l(g, t):
        o = []
        k0, k1 = HG[g]
        for k in range(k0, k1, 4):
            base = t * 20480 + k * 1024
            o.append(f"s_add_u32 m0, s23, {base}")
            o.append(f"s_add_u32 s44, s22, {base}")
            for u in range(min(4, k1 - k)):
                o.append(f"buffer_load_dwordx4 v8, s[24:27], s44 offen offset:{u*1024} lds")
        vm.issue(("H", g), k1 - k0)
        return o
    def wload(kk):
        out = []
        if kk >= 4:
            out.append(f"s_mov_b32 s{45+(kk&1)}, {kk*1024}")
        for i in range(3):
            if kk < 4:
                out.append(f"buffer_load_dwordx4 {vr(Wf(kk,i))}, v{4+i}, s[32:35], 0 offen offset:{kk*1024}")
            else:
                out.append(f"buffer_load_dwordx4 {vr(Wf(kk,i))}, v{4+i}, s[32:35], s{45+(kk&1)} offen")
        vm.issue(("W", kk), 3)
        return out
    def sload(q):
        o = []
        for x in range(4 * q, 4 * q + 4):
            j, eb = x >> 3, x & 7
            o.append(f"s_add_u32 s47, s48, {eb*16384 + j*512}")
            o.append(f"buffer_load_dwordx2 v[{40+(j*8+eb)*2}:{41+(j*8+eb)*2}], v9, s[28:31], s47 offen")
        vm.issue("S", 4)
        return o
    def tload():
        vm.issue("P", 1)
        return ["buffer_load_dword v22, v23, s[52:55], s50 offen", "s_add_u32 s50, s50, 4096"]
    items = []
    for g, (k0, k1) in HG.items():
        for t in range(2):
            items.append((k0 - 1 - LH + (t if HGS > 1 else 0), k0 - 1, f"H{g}{t}"))
    for kk in range(20):
        items.append((kk - LW, kk - 0.5, f"W{kk}"))
    for q in range(4): items.append((9 + q, 30, f"S{q}"))
    last = max(it[0] for it in items)
    for q in range(4): items.append((min(19, max(15, last + 1) + q), 40, "T"))
    items.sort(key=lambda x: (max(x[0], -1), x[1]))
    sched = {}
    for it, dl, nm in items: sched.setdefault(max(it, -1), []).append(nm)
    BAR = {k0 - 1: g for g, (k0, k1) in HG.items() if k0 > 0}
    def do_items(lst_):
        lst = []
        for it in lst_:
            if it[0] == "W": lst += wload(int(it[1:]))
            elif it[0] == "H": lst += hdma_l(it[1], int(it[2]))
            elif it[0] == "S": lst += sload(int(it[1]))
            else: lst += tload()
        return lst
    for l in do_items(sched[-1]): e(l)
    srd(36, 6, SZ_ACT, WS_ACT)
    srd(52, 6, SZ_WDN, WS_WDN)
    e("s_lshr_b32 s50, s2, 3")
    e("s_lshl_b32 s50, s50, 2")
    e("s_add_u32 s50, s50, s16")
    e("s_mul_i32 s50, s50, 15360")
    e("v_lshlrev_b32 v23, 6, v1")
    for a in range(96):
        e(f"v_mov_b32 v{ACC3+a}, 0")
    for r in range(24, 36):
        e(f"v_mov_b32 v{r}, 0")
    for r in range(16, 20):
        e(f"v_mov_b32 v{r}, 0x3f803f80")
    e("v_add_u32 v10, 65536, v8")
    e("v_add_u32 v11, 131072, v8")
    e("v_lshlrev_b32 v12, 2, v2")
    e("v_lshlrev_b32 v13, 4, v3")
    def hread(kk):
        o = []
        for n in range(8):
            off = (n * 20 + kk) * 1024
            base = 8 if off < 65536 else (10 if off < 131072 else 11)
            o.append(f"ds_read_b128 {ar(Hf(kk,n))}, v{base} offset:{off % 65536}")
        return o
    def dots(kk):
        return [f"v_dot2_f32_bf16 v{16+i}, v{Wf(kk,i)+r}, s62, v{16+i}" for r in range(4) for i in range(3)]
    def stats_code():
        sv = L[:]
        del L[:]
        for j in range(2):
            b = 40 + j * 16
            for k in (2, 4, 6, 8, 10, 12, 14):
                e(f"v_add_f32 v{b}, v{b}, v{b+k}")
                e(f"v_add_f32 v{b+1}, v{b+1}, v{b+k+1}")
            ln_stats(b, b+1, 36+2*j, 37+2*j, 20+j)
        for t in range(8):
            e(f"ds_bpermute_b32 v{72+2*t}, v12, v{36+2*(t>>2)} offset:{(t&3)*64}")
            e(f"ds_bpermute_b32 v{73+2*t}, v12, v{37+2*(t>>2)} offset:{(t&3)*64}")
            e(f"ds_bpermute_b32 v{64+t}, v12, v{20+(t>>2)} offset:{(t&3)*64}")
        o = [x.strip() for x in L]
        L[:] = sv
        return o
    stamp(1)
    e(f"s_waitcnt vmcnt({vm.younger([('H','A')])})")
    stamp(2)
    e("s_barrier")
    stamp(3)
    for l in hread(0): e(l)
    for kk in range(20):
        need = [("W", kk)]
        if kk in BAR: need.append(("H", BAR[kk]))
        if kk == 15: need.append("S")
        e(f"s_waitcnt vmcnt({vm.younger(need)}) lgkmcnt(0)")
        if kk in BAR: e("s_barrier")
        slots = [[] for _ in range(27)]
        if kk + 1 < 20:
            for j, l in enumerate(hread(kk + 1)):
                slots[j].append(l)
        lst = do_items(sched.get(kk, []))
        groups = []; grp = []
        for l in lst:
            if grp and any(x.startswith("buffer") for x in grp) and not l.startswith("s_add_u32 s50"):
                groups.append(grp); grp = []
            grp.append(l)
        if grp: groups.append(grp)
        for g, gl in enumerate(groups):
            slots[1 + (g * 24) // max(len(groups), 8)] += gl
        if kk == int(os.environ.get("CT3", "17")) and CT:
            slots[26] += code_touch("k4_kernel", "code_end", 14, "v22")
            vm.issue("CT", 1)
        if kk == 15: sc = stats_code()
        if kk in (15, 16):
            part = sc[:54] if kk == 15 else sc[54:]
            for j, l in enumerate(part):
                slots[(j * 27) // len(part)].append(l)
        if kk == 19:
            for j, l in enumerate(["v_mul_u32_u24 v9, 49152, v3", "v_lshl_add_u32 v9, v2, 4, v9", "s_mul_i32 s22, s19, 393216", "s_lshl_b32 s23, s21, 8",
                                   "s_add_u32 s22, s22, s23", "v_mov_b32 v36, 0xbdd2d3e8", "v_mov_b32 v37, 0xc0135761"]):
                slots[j].append(l)
        k = 0
        for i in range(3):
            mfma(vr(24+4*i), vr(Wf(kk,i)), vr(16))
            for l in slots[k]: e(l)
            k += 1
        for n in range(8):
            for i in range(3):
                mfma(vr(ACC3+(i*8+n)*4), vr(Wf(kk,i)), ar(Hf(kk,n)))
                for l in slots[k]: e(l)
                k += 1
    stamp(4)
    def epi(i):
        o = []
        for hi, n0 in enumerate((0, 4)):
            TB = 40 + hi * 12
            O = TB + 8
            lists = []
            for g in range(4):
                n = n0 + g
                A = ACC3 + (i*8+n)*4
                S = 72 + 2*n
                SD = 64 + (n & ~1); sd = n & 1
                WS = 24 + i*4
                t2 = TB + g*2
                l = []
                for p in (0, 2):
                    l.append(f"v_pk_fma_f32 v[{A+p}:{A+p+1}], v[{S}:{S+1}], v[{WS+p}:{WS+p+1}], v[{A+p}:{A+p+1}] op_sel:[0,0,0] op_sel_hi:[0,1,1] neg_lo:[1,0,0] neg_hi:[1,0,0]")
                l.append(f"v_pk_mul_f32 v[{A}:{A+1}], v[{A}:{A+1}], v[{S}:{S+1}] op_sel:[0,1] op_sel_hi:[1,1]")
                l.append(f"v_pk_mul_f32 v[{t2}:{t2+1}], v[{A}:{A+1}], v[{A}:{A+1}]")
                l.append(f"v_pk_fma_f32 v[{t2}:{t2+1}], v[{t2}:{t2+1}], v[36:37], v[36:37] op_sel:[0,0,1] op_sel_hi:[1,0,1]")
                l.append(f"v_pk_mul_f32 v[{t2}:{t2+1}], v[{t2}:{t2+1}], v[{A}:{A+1}]")
                l.append(f"v_exp_f32 v{t2}, v{t2}")
                l.append(f"v_exp_f32 v{t2+1}, v{t2+1}")
                l.append(f"v_pk_mul_f32 v[{A}:{A+1}], v[{A}:{A+1}], v[{A+2}:{A+3}]")
                l.append(f"v_pk_fma_f32 v[{t2}:{t2+1}], v[{t2}:{t2+1}], v[{SD}:{SD+1}], v[{SD}:{SD+1}] op_sel:[0,{sd},{sd}] op_sel_hi:[1,{sd},{sd}]")
                l.append(f"v_rcp_f32 v{t2}, v{t2}")
                l.append(f"v_rcp_f32 v{t2+1}, v{t2+1}")
                l.append(f"v_pk_mul_f32 v[{t2}:{t2+1}], v[{t2}:{t2+1}], v[{A}:{A+1}]")
                l.append(f"v_cvt_pk_bf16_f32 v{O+g}, v{t2}, v{t2+1}")
                lists.append(l)
            for k in range(len(lists[0])):
                for g in range(4): o.append(lists[g][k])
            o.append("s_nop 1")
            o.append(f"v_permlane16_swap_b32 v{O}, v{O+1}")
            o.append(f"v_permlane16_swap_b32 v{O+2}, v{O+3}")
            o.append("s_nop 1")
            o.append(f"v_permlane32_swap_b32 v{O}, v{O+2}")
            o.append(f"v_permlane32_swap_b32 v{O+1}, v{O+3}")
            o.append(f"s_add_u32 s44, s22, {n0*49152 + i*256}")
            o.append("s_nop 1")
            o.append(f"buffer_store_dwordx4 {vr(O)}, v9, s[36:39], s44 offen")
        return o
    e("s_nop 7")
    stamp(5)
    for i in range(3):
        for l in epi(i): e(l)
    stamp(6)
    stamp_dump(2, 7)
    lab("k3_end")
    e("s_endpgm")

def descriptor(name, vgpr, accum, sgpr=102):
    raw(f".amdhsa_kernel {name}")
    raw(f"  .amdhsa_next_free_vgpr {vgpr}")
    raw(f"  .amdhsa_next_free_sgpr {sgpr}")
    raw(f"  .amdhsa_accum_offset {accum}")
    raw("  .amdhsa_group_segment_fixed_size 0")
    raw("  .amdhsa_kernarg_size 96")
    raw("  .amdhsa_user_sgpr_count 2")
    raw("  .amdhsa_user_sgpr_kernarg_segment_ptr 1")
    raw("  .amdhsa_system_sgpr_workgroup_id_x 1")
    raw(".end_amdhsa_kernel")

def main():
    raw("; 4-kernel pipeline: K1 LN1+hidden DFT GEMM, K2 seq DFT GEMM + residual, K3 LN2+gate/up GEMM+GEGLU, K4 down GEMM + residual")
    raw("; @launch kernel=k1_kernel grid=(256,1,1) block=(256,1,1) lds=152832")
    raw("; @launch kernel=k2_kernel grid=(256,1,1) block=(256,1,1) lds=156032")
    raw("; @launch kernel=k3_kernel grid=(256,1,1) block=(256,1,1) lds=163840")
    raw("; @launch kernel=k4_kernel grid=(256,1,1) block=(256,1,1) lds=94208")
    raw('.amdgcn_target "amdgcn-amd-amdhsa--gfx950"')
    raw(".text")
    gen_k1(); gen_k2(); gen_k3(); gen_k4()
    lab("code_end")
    raw('.section .rodata,"a"')
    raw(".p2align 6")
    descriptor("k1_kernel", 348, 160)
    raw(".p2align 6")
    descriptor("k2_kernel", 432, 256)
    raw(".p2align 6")
    descriptor("k3_kernel", 320, 256)
    raw(".p2align 6")
    descriptor("k4_kernel", 424, 256)
    out = sys.argv[1] if len(sys.argv) > 1 else f"cdna_kernels/{NAME}.s"
    NOSC = os.environ.get("NOSC", "").split(",")
    LL = [ (l + " sc1") if ("buffer_store" in l and "s[64:67]" not in l and not any(x and x in l for x in NOSC)) else l for l in L]
    open(out, "w").write("\n".join(LL) + "\n")

main()
```

```python
import sys

L = []
def e(s): L.append("    " + s)
def lab(s): L.append(s + ":")
def raw(s): L.append(s)

NAME = "sequential_preLN__spectral_fnet__geglu_ffn__prompt"

WS_ABP = 0
SZ_ABP = 80 * 64 * 1024
WS_HP = 0x500000
SZ_HP = 128 * 20 * 1024
WS_HSTAT = 0x780000
SZ_HSTAT = 2048 * 8 * 8
WS_ACT = 0x800000
SZ_ACT = 128 * 48 * 1024
WS_WGU = 0xE00000
WSUM_OFF = 192 * 20 * 1024
SZ_WGU = WSUM_OFF + 192 * 4 * 64
WS_WDN = 0x1200000
SZ_WDN = 40 * 48 * 1024

INV640 = 0x3ACCCCCD
EPS = 0x3727C5AC

import os
DIAG = os.environ.get("DIAG", "0") == "1"
WS_DIAG = 0x3000000
DIAG2 = os.environ.get("DIAG2", "0") == "1"
def stamp(i):
    if DIAG2 and i == 0:
        e("s_memrealtime s[70:71]")
        e("s_memtime s[72:73]")
        e("s_waitcnt lgkmcnt(0)")
    if DIAG:
        e(f"s_memtime s[{70+2*i}:{71+2*i}]")
        e("s_waitcnt lgkmcnt(0)")
def stamp_dump(kidx, n):
    if DIAG2:
        e("s_waitcnt vmcnt(0)")
        e("s_memrealtime s[74:75]")
        e("s_memtime s[76:77]")
        e("s_load_dwordx2 s[64:65], s[0:1], 80")
        e("s_waitcnt lgkmcnt(0)")
        e("s_lshl_b32 s68, s2, 2")
        e("s_add_u32 s68, s68, s16")
        e("s_cmp_lg_u32 s68, 0")
        e(f"s_cbranch_scc1 dg_skip{kidx}")
        e("s_mov_b32 s66, 256")
        e("s_mov_b32 s67, 0x20000")
        e("v_mov_b32 v0, 0")
        e("s_mov_b64 exec, 1")
        e("v_mov_b32 v2, s70")
        e("v_mov_b32 v3, s74")
        e("v_mov_b32 v4, s72")
        e("v_mov_b32 v5, s76")
        e(f"buffer_store_dwordx4 v[2:5], v0, s[64:67], 0 offen offset:{kidx*16}")
        e("s_waitcnt vmcnt(0)")
        lab(f"dg_skip{kidx}")
    if not DIAG: return
    e("s_waitcnt vmcnt(0)")
    stamp(n)
    e(f"s_add_u32 s64, s6, {WS_DIAG + kidx*0x40000}")
    e("s_addc_u32 s65, s7, 0")
    e("s_mov_b32 s66, 0x40000")
    e("s_mov_b32 s67, 0x20000")
    e("s_lshl_b32 s68, s2, 2")
    e("s_add_u32 s68, s68, s16")
    e("s_lshl_b32 s68, s68, 8")
    e("v_mov_b32 v0, 0")
    e("s_mov_b64 exec, 1")
    for i in range(n+1):
        e(f"v_mov_b32 v2, s{70+2*i}")
        e(f"v_mov_b32 v3, s{71+2*i}")
        e(f"buffer_store_dwordx2 v[2:3], v0, s[64:67], s68 offen offset:{i*8}")
    e("s_getreg_b32 s69, hwreg(HW_REG_XCC_ID)")
    e("v_mov_b32 v2, s69")
    e("s_getreg_b32 s69, hwreg(HW_REG_HW_ID)")
    e("v_mov_b32 v3, s69")
    e(f"buffer_store_dwordx2 v[2:3], v0, s[64:67], s68 offen offset:248")
    e("s_waitcnt vmcnt(0)")

def srd(d, lo, size, off=0):
    if off:
        e(f"s_add_u32 s{d}, s{lo}, {off}")
        e(f"s_addc_u32 s{d+1}, s{lo+1}, 0")
    else:
        e(f"s_mov_b32 s{d}, s{lo}")
        e(f"s_mov_b32 s{d+1}, s{lo+1}")
    e(f"s_mov_b32 s{d+2}, {size}")
    e(f"s_mov_b32 s{d+3}, 0x20000")

def bf16r(dst, src):
    e(f"v_cvt_pk_bf16_f32 v{dst}, v{src}, v{src}")
    e(f"v_lshlrev_b32 v{dst}, 16, v{dst}")

def vr(b, n=4): return f"v[{b}:{b+n-1}]"
def ar(b, n=4): return f"a[{b}:{b+n-1}]"

def mfma(d, a, b, c=None):
    c = d if c is None else c
    if L and L[-1].split()[0] in ("v_exp_f32", "v_rcp_f32", "v_sqrt_f32", "v_rsq_f32"): e("s_nop 1")
    e(f"v_mfma_f32_16x16x32_bf16 {d}, {a}, {b}, {c}")

def kernel_begin(name):
    raw(f".globl {name}")
    raw(".p2align 8")
    raw(f".type {name},@function")
    lab(name)

CT = os.environ.get("CT", "1") == "1"
MAP34 = os.environ.get("MAP34", "1") == "1"
_ctn = [0]
def code_touch(target, endl, vtmp, dst, back=False, n=1):
    if not CT: return []
    _ctn[0] += 1
    u = f"ct_pc{_ctn[0]}"
    o = ["s_getpc_b64 s[96:97]", u + ":"]
    if back:
        o += [f"s_sub_u32 s96, s96, {u}-{target}", "s_subb_u32 s97, s97, 0"]
    else:
        o += [f"s_add_u32 s96, s96, {target}-{u}", "s_addc_u32 s97, s97, 0"]
    o += [f"s_mov_b32 s98, {endl}-{target}", "s_mov_b32 s99, 0x20000", f"v_lshlrev_b32 v{vtmp}, 7, v0"]
    o.append(f"buffer_load_dword {dst}, v{vtmp}, s[96:99], 0 offen")
    if n > 1:
        o.append(f"v_add_u32 v{vtmp}, 32768, v{vtmp}")
        o.append(f"buffer_load_dword {dst}, v{vtmp}, s[96:99], 0 offen")
    return o

def lane_setup():
    e("v_lshrrev_b32 v4, 6, v0")
    e("v_and_b32 v1, 63, v0")
    e("v_readfirstlane_b32 s16, v4")
    e("v_and_b32 v2, 15, v1")
    e("v_lshrrev_b32 v3, 4, v1")

def ln_stats(vsum, vsq, vm, vrd, t):
    e(f"v_mul_f32 v{vm}, s17, v{vsum}")
    e(f"v_mul_f32 v{t}, s17, v{vsq}")
    e(f"v_fma_f32 v{t}, -v{vm}, v{vm}, v{t}")
    e(f"v_max_f32 v{t}, 0, v{t}")
    bf16r(vm, vm)
    bf16r(t, t)
    e(f"v_add_f32 v{t}, s18, v{t}")
    bf16r(t, t)
    e(f"v_sqrt_f32 v{t}, v{t}")
    e("s_nop 0")
    bf16r(t, t)
    e(f"v_rcp_f32 v{vrd}, v{t}")
    e("s_nop 0")

def gen_k1():
    kernel_begin("k1_kernel")
    e("s_cmp_ge_u32 s2, 256")
    e("s_cbranch_scc1 k1_end")
    stamp(0)
    e("s_load_dwordx2 s[4:5], s[0:1], 0")
    e("s_load_dwordx2 s[8:9], s[0:1], 24")
    e("s_load_dwordx2 s[10:11], s[0:1], 32")
    e("s_load_dwordx2 s[6:7], s[0:1], 88")
    e("s_load_dwordx4 s[56:59], s[0:1], 8")
    PT = int(os.environ.get("PT", "-1"))
    if PT >= 0:
        e("s_load_dwordx4 s[36:39], s[0:1], 48")
        e("s_load_dwordx4 s[40:43], s[0:1], 64")
    for l in code_touch("k1_kernel", "code_end", 154, "v155", back=True, n=2): e(l)
    lane_setup()
    e("s_and_b32 s19, s2, 3")
    e("s_lshl_b32 s19, s19, 2")
    e("s_bfe_u32 s21, s2, 0x20003")
    e("s_add_u32 s19, s19, s21")
    e("s_lshr_b32 s22, s2, 5")
    e("s_bfe_u32 s20, s2, 0x10002")
    e("s_lshl_b32 s20, s20, 3")
    e("s_add_u32 s20, s20, s22")
    e("s_add_u32 s48, s21, s22")
    e("v_lshlrev_b32 v15, 4, v1")
    e("v_lshrrev_b32 v25, 3, v1")
    e("v_and_b32 v26, 7, v1")
    e("v_xor_b32 v26, v26, v25")
    e("v_mul_u32_u24 v25, 1280, v25")
    e("v_lshl_add_u32 v25, v26, 4, v25")
    e("s_and_b32 s21, s20, 7")
    e("s_mul_i32 s21, s21, 102400")
    e("s_and_b32 s22, s16, 1")
    e("s_mul_i32 s22, s22, 51200")
    e("s_add_u32 s21, s21, s22")
    e("s_lshr_b32 s22, s16, 1")
    e("s_lshl_b32 s22, s22, 7")
    e("s_add_u32 s21, s21, s22")
    e("v_add_u32 v4, s21, v25")
    e("s_lshl_b32 s21, s19, 7")
    e("s_lshl_b32 s22, s16, 5")
    e("s_add_u32 s21, s21, s22")
    e("s_mul_i32 s21, s21, 1280")
    e("v_add_u32 v5, s21, v25")
    for j in range(1, 4):
        e(f"v_add_u32 v{5+j}, {j*10240 - j*1024}, v5")
    e("s_mul_i32 s46, s16, 12288")
    e("s_add_u32 s46, s46, 102400")
    e("s_mul_i32 s47, s16, 5120")
    e("s_mul_i32 s49, s48, 205")
    e("s_lshr_b32 s49, s49, 10")
    e("s_mul_i32 s49, s49, 5")
    e("s_sub_u32 s49, s48, s49")
    if os.environ.get("K1NOROT"): e("s_mov_b32 s49, 0")
    for sc in range(5):
        e(f"s_lshl_b32 s{50+sc}, s49, 8")
        e("s_add_u32 s49, s49, 1")
        e("s_cmp_ge_u32 s49, 5")
        e("s_cselect_b32 s49, 0, s49")
    if os.environ.get("K1ST"): e("s_memtime s[84:85]")
    e("s_waitcnt lgkmcnt(0)")
    if os.environ.get("K1ST"): stamp(8)
    srd(24, 4, 2621440)
    e("s_cmp_lt_u32 s20, 8")
    e("s_cselect_b32 s28, s8, s10")
    e("s_cselect_b32 s29, s9, s11")
    e("s_mov_b32 s30, 819200")
    e("s_mov_b32 s31, 0x20000")
    vm = VM()
    XS = 76
    def wdma(sc):
        o = []
        for u in range(5):
            o.append(f"s_add_u32 m0, s47, {sc*20480 + u*1024}")
            o.append(f"s_add_u32 s23, s{50+sc}, {u*10240}")
            o.append("buffer_load_dwordx4 v4, s[28:31], s23 offen lds")
        vm.issue(("W", sc), 5)
        return o
    def xld(c):
        if c < 3:
            o = [f"s_add_u32 m0, s46, {(c%3)*4096}", f"s_add_u32 s22, s{50+(c>>1)}, {(c&1)*128}"]
            for j in range(4):
                o.append(f"buffer_load_dwordx4 v{5+j}, s[24:27], s22 offen offset:{j*1024} lds")
        else:
            o = [f"s_add_u32 s22, s{50+(c>>1)}, {(c&1)*128}"]
            for j in range(4):
                o.append(f"buffer_load_dwordx4 {ar(XS+(c-3)*16+j*4)}, v{5+j}, s[24:27], s22 offen offset:{j*1024}")
        vm.issue(("X", c), 4)
        return o
    for l in wdma(0) + xld(0) + xld(1): e(l)
    if os.environ.get("K1ST"): stamp(9)
    e(f"s_mov_b32 s17, {INV640}")
    e(f"s_mov_b32 s18, {EPS}")
    e("v_and_b32 v26, 7, v2")
    e("v_xor_b32 v26, v26, v3")
    e("v_lshlrev_b32 v11, 7, v2")
    e("v_lshl_add_u32 v11, v26, 4, v11")
    e("v_xor_b32 v12, 64, v11")
    e("v_add_u32 v13, 61440, v11")
    e("v_add_u32 v14, 61440, v12")
    e("v_add_u32 v9, s46, v11")
    e("v_add_u32 v10, s46, v12")
    srd(32, 6, SZ_ABP, WS_ABP)
    TST = [int(x) for x in os.environ.get("TST", "3,6").split(",")]
    PL, PO, PA = 144, 176, 144
    e(f"v_add_u32 v{PA+8}, s46, v15")
    e("s_cmp_lt_u32 s2, 128")
    e("s_cselect_b32 s56, s56, s58")
    e("s_cselect_b32 s57, s57, s59")
    e("s_mov_b32 s58, 8388608")
    e("s_mov_b32 s59, 0x20000")
    e("s_and_b32 s21, s2, 7")
    e("s_bfe_u32 s22, s2, 0x20005")
    e("s_lshl_b32 s21, s21, 2")
    e("s_add_u32 s21, s21, s22")
    e("s_lshl_b32 s21, s21, 2")
    e("s_bfe_u32 s22, s2, 0x20003")
    e("s_add_u32 s21, s21, s22")
    e("s_lshl_b32 s21, s21, 2")
    e("s_add_u32 s21, s21, s16")
    e("s_lshl_b32 s91, s21, 14")
    e(f"v_lshlrev_b32 v{PA+10}, 7, v1")
    def touch():
        if os.environ.get("NOPF"): return []
        vm.issue("T", 1)
        return [f"buffer_load_dword v{PA+11}, v{PA+10}, s[56:59], s91 offen", "s_add_u32 s91, s91, 8192"]
    for t in TST:
        if t == -1:
            for l in touch(): e(l)
    for a in range(76):
        e(f"v_accvgpr_write_b32 a{a}, 0")
    ONES = 16
    for r in range(4):
        e(f"v_mov_b32 v{ONES+r}, 0x3f803f80")
    FB = 32
    def XF(b, st, h): return FB + b * 56 + (st * 2 + h) * 4
    def WF(b, i, h): return FB + b * 56 + 16 + (i * 2 + h) * 4
    def fread(c):
        o = []
        b = c & 1
        for h in range(2):
            for st in range(2):
                o.append(f"ds_read_b128 {vr(XF(b,st,h))}, v{9+h} offset:{(c%3)*4096 + st*2048}")
            for i in range(5):
                off = c * 10240 + i * 2048
                if off < 61440:
                    o.append(f"ds_read_b128 {vr(WF(b,i,h))}, v{11+h} offset:{off}")
                else:
                    o.append(f"ds_read_b128 {vr(WF(b,i,h))}, v{13+h} offset:{off-61440}")
        return o
    stamp(1)
    e(f"s_waitcnt vmcnt({vm.younger([('W',0),('X',0)])})")
    e("s_barrier")
    stamp(2)
    for l in fread(0): e(l)
    for c in range(10):
        b = c & 1
        need = []
        if c + 1 <= 2: need.append(("X", c + 1))
        if c + 1 < 10: need.append(("W", (c + 1) >> 1))
        if 3 <= c + 2 <= 9: need.append(("X", c + 2))
        if need and c < 8:
            e(f"s_waitcnt vmcnt({vm.younger(need)}) lgkmcnt(0)")
        else:
            e("s_waitcnt lgkmcnt(0)")
        if c in (1, 3, 5, 7): e("s_barrier")
        NM = 28
        slots = [[] for _ in range(NM)]
        if c + 1 < 10:
            for j, l in enumerate(fread(c + 1)):
                slots[j].append(l)
        if 3 <= c + 2 <= 9:
            for j in range(4):
                slots[14 + j].append(f"ds_write_b128 v{PA+8}, {ar(XS+(c-1)*16+j*4)} offset:{((c+2)%3)*4096 + j*1024}")
        lst = []
        if c < 4: lst = wdma(c + 1) + xld(2 * c + 2) + xld(2 * c + 3)
        for t in TST:
            if t == c: lst += touch()
        if c == PT:
            PSH = int(os.environ.get("PSH", "16"))
            slots[22] += ["s_add_u32 s92, s6, 0x1000000", "s_addc_u32 s93, s7, 0", "s_mov_b32 s60, s6", "s_mov_b32 s61, s7",
                          "s_mov_b32 s62, 0x1000000", "s_mov_b32 s94, 0x1000000", "s_mov_b32 s44, 18",
                          "s_cmp_eq_u32 s16, 1", "s_cselect_b32 s60, s42, s60", "s_cselect_b32 s61, s43, s61", "s_cselect_b32 s92, s36, s92", "s_cselect_b32 s93, s37, s93",
                          "s_cselect_b32 s62, 2621440, s62", "s_cselect_b32 s94, 1966080, s94", f"s_cselect_b32 s44, {PSH}, s44"]
            slots[23] += ["s_cmp_eq_u32 s16, 2", "s_cselect_b32 s60, s38, s60", "s_cselect_b32 s61, s39, s61", "s_cselect_b32 s92, s40, s92", "s_cselect_b32 s93, s41, s93",
                          "s_cselect_b32 s62, 1966080, s62", "s_cselect_b32 s94, 1966080, s94", f"s_cselect_b32 s44, {PSH}, s44",
                          "s_mov_b32 s63, 0x20000", "s_mov_b32 s95, 0x20000", "v_lshlrev_b32 v157, s44, v1",
                          "buffer_load_dword v155, v157, s[60:63], 0 offen", "buffer_load_dword v155, v157, s[92:95], 0 offen"]
            vm.issue("PT", 2)
        if c == int(os.environ.get("CT1", "7")) and CT:
            slots[20] += code_touch("k2_kernel", "k3_kernel", 156, "v155")
            vm.issue("CT", 1)
        groups = []; grp = []
        for l in lst:
            if grp and any(x.startswith("buffer") for x in grp) and not (l.startswith("s_add_u32 s8") or l.startswith("s_add_u32 s9")):
                groups.append(grp); grp = []
            grp.append(l)
        if grp: groups.append(grp)
        for g, gl in enumerate(groups):
            slots[g] = gl + slots[g]
        ml = []
        for h in range(2):
            for i in range(5):
                for st in range(2):
                    ml.append((ar((st*5+i)*4), vr(XF(b,st,h)), vr(WF(b,i,h))))
            for st in range(2):
                ml.append((ar(40+4*st), vr(XF(b,st,h)), vr(ONES)))
                ml.append((ar(48+4*st), vr(XF(b,st,h)), vr(XF(b,st,h))))
        for k, m in enumerate(ml):
            mfma(*m)
            for l in slots[k]: e(l)
        for wv in range(4):
            e(f"s_cmp_lg_u32 s16, {wv}")
            e(f"s_cbranch_scc1 k1_ws{c}_{wv}")
            for i in range(5):
                for h in range(2):
                    if (c * 2 + i * 2 + h) % 4 == wv:
                        mfma(ar(56+4*i), vr(ONES), vr(WF(b,i,h)))
            lab(f"k1_ws{c}_{wv}")
    stamp(3)
    WX = 151552
    e("s_nop 7")
    e("s_nop 7")
    for i in range(5):
        e(f"v_accvgpr_read_b32 v{20+i}, a{56+4*i}")
    e("v_lshlrev_b32 v25, 2, v2")
    e("s_mul_i32 s21, s16, 320")
    e(f"s_add_u32 s21, s21, {WX}")
    e("v_add_u32 v26, s21, v25")
    for i in range(5):
        e(f"ds_write_b32 v26, v{20+i} offset:{i*64}")
    e("v_mul_u32_u24 v12, 80, v3")
    for st in range(2):
        for r in range(4):
            e(f"v_accvgpr_read_b32 v{32+st*4+r}, a{40+4*st+r}")
            e(f"v_accvgpr_read_b32 v{40+st*4+r}, a{48+4*st+r}")
    e("s_nop 1")
    for st in range(2):
        for r in range(4):
            e(f"ds_bpermute_b32 v{40+st*4+r}, v12, v{40+st*4+r} offset:{4*r}")
    e(f"v_add_u32 v26, {WX}, v25")
    e("s_waitcnt lgkmcnt(0)")
    e("s_barrier")
    for wv in range(4):
        for i in range(5):
            e(f"ds_read_b32 v{124+wv*5+i}, v26 offset:{wv*320 + i*64}")
    for st in range(2):
        for r in range(4):
            ln_stats(32+st*4+r, 40+st*4+r, 52+st*4+r, 60+st*4+r, 48)
    e("s_waitcnt lgkmcnt(0)")
    for i in range(5):
        e(f"v_add_f32 v{20+i}, v{124+i}, v{129+i}")
        e(f"v_add_f32 v{124+i}, v{134+i}, v{139+i}")
        e(f"v_add_f32 v{20+i}, v{20+i}, v{124+i}")
    e("v_and_b32 v26, 1, v3")
    e("v_lshlrev_b32 v26, 9, v26")
    e("v_lshrrev_b32 v27, 1, v3")
    e("v_lshl_add_u32 v26, v27, 8, v26")
    e("v_lshl_add_u32 v26, v2, 4, v26")
    e("s_mul_i32 s21, s20, 320")
    e("s_lshl_b32 s22, s19, 2")
    e("s_add_u32 s21, s21, s22")
    e("s_add_u32 s21, s21, s16")
    e("s_lshl_b32 s21, s21, 10")
    for i in range(5):
        T = 72 + (i & 1) * 16
        O = 104 + i * 4
        for st in range(2):
            for r in range(4):
                e(f"v_accvgpr_read_b32 v{T+st*4+r}, a{(st*5+i)*4+r}")
        for st in range(2):
            for r in range(4):
                e(f"v_fma_f32 v{T+st*4+r}, -v{52+st*4+r}, v{20+i}, v{T+st*4+r}")
        for st in range(2):
            for r in range(4):
                e(f"v_mul_f32 v{T+st*4+r}, v{T+st*4+r}, v{60+st*4+r}")
        for st in range(2):
            e(f"v_cvt_pk_bf16_f32 v{O+2*st}, v{T+st*4}, v{T+st*4+1}")
            e(f"v_cvt_pk_bf16_f32 v{O+2*st+1}, v{T+st*4+2}, v{T+st*4+3}")
        e("s_nop 1")
        e(f"v_permlane16_swap_b32 v{O}, v{O+2}")
        e(f"v_permlane16_swap_b32 v{O+1}, v{O+3}")
        e(f"s_add_u32 s23, s21, {i*65536}")
        e("s_nop 1")
        e(f"buffer_store_dwordx4 {vr(O)}, v26, s[32:35], s23 offen")
        vm.issue("S", 1)
    stamp(4)
    lab("k1_fin")
    stamp(5)
    stamp_dump(0, 6)
    if os.environ.get("K1ST"):
        for i in range(7, 10):
            e(f"v_mov_b32 v2, s{70+2*i}")
            e(f"v_mov_b32 v3, s{71+2*i}")
            e(f"buffer_store_dwordx2 v[2:3], v0, s[64:67], s68 offen offset:{i*8}")
        e("s_waitcnt vmcnt(0)")
    lab("k1_end")
    e("s_endpgm")

ACC = 176
BUF = 32
def bufA(b, i): return BUF + b * 36 + i * 4
def bufB(b, n): return BUF + b * 36 + 20 + n * 4
def acc(i, n): return ACC + (i * 4 + n) * 4

def splitk_core(nsteps, srdA, srdB, shA, shB, vA, vB, mask):
    def addr():
        e("s_add_u32 s44, s40, s41")
        e(f"s_lshl_b32 s42, s44, {shA}")
        e(f"s_lshl_b32 s43, s44, {shB}")
        e("s_add_u32 s40, s40, 1")
        if mask:
            e(f"s_and_b32 s40, s40, {nsteps-1}")
        else:
            e(f"s_cmp_ge_u32 s40, {nsteps}")
            e("s_cselect_b32 s40, 0, s40")
    def loads(b):
        out = []
        for n in range(4):
            out.append(f"buffer_load_dwordx4 {vr(bufB(b,n))}, v{vB+n}, s[{srdB}:{srdB+3}], s43 offen")
        for i in range(5):
            out.append(f"buffer_load_dwordx4 {vr(bufA(b,i))}, v{vA+i}, s[{srdA}:{srdA+3}], s42 offen")
        return out
    for it in range(3):
        addr()
        for l in loads(it): e(l)
    for a in range(80):
        e(f"v_mov_b32 v{ACC+a}, 0")
    for it in range(nsteps):
        b = it % 4
        rem = min(nsteps - 1 - it, 2)
        e(f"s_waitcnt vmcnt({9*rem})")
        ld = []
        if it + 3 < nsteps:
            addr()
            ld = loads((it + 3) % 4)
        k = 0
        for i in range(5):
            for n in range(4):
                mfma(vr(acc(i,n)), vr(bufA(b,i)), vr(bufB(b,n)))
                k += 1
                if k % 2 == 0 and ld:
                    e(ld.pop(0))
        assert not ld

def splitk_exchange():
    e("s_nop 7")
    e("s_nop 7")
    e("s_mul_i32 s44, s16, 5120")
    e("v_add_u32 v9, s44, v8")
    e("v_add_u32 v10, 61440, v9")
    for n in range(4):
        for i in range(5):
            if n < 3:
                e(f"ds_write_b128 v9, {vr(acc(i,n))} offset:{(n*20+i)*1024}")
            else:
                e(f"ds_write_b128 v10, {vr(acc(i,n))} offset:{i*1024}")
    e("s_mul_i32 s44, s16, 20480")
    e("v_add_u32 v9, s44, v8")
    e("s_waitcnt lgkmcnt(0)")
    e("s_barrier")
    for src in range(4):
        for i in range(5):
            e(f"ds_read_b128 {vr(BUF+(src*5+i)*4)}, v9 offset:{(src*5+i)*1024}")


def hp_addr(vdst, s_st, s_d16base, sdst_list):
    e(f"v_lshrrev_b32 v{vdst}, 1, v3")
    e(f"v_lshlrev_b32 v{vdst}, 8, v{vdst}")
    e(f"v_lshl_add_u32 v{vdst}, v2, 4, v{vdst}")
    e("v_and_b32 v10, 1, v3")
    e(f"v_lshl_add_u32 v{vdst}, v10, 3, v{vdst}")
    e(f"s_mul_i32 s44, s{s_st}, 20480")
    for i in range(5):
        e(f"s_add_u32 s45, s{s_d16base}, {i}")
        e(f"s_lshl_b32 s45, s45, 9")
        e(f"s_add_u32 s{sdst_list[i]}, s44, s45")

def gen_k2():
    ROT = os.environ.get("K2ROT", "0") == "1"
    kernel_begin("k2_kernel")
    e("s_cmp_ge_u32 s2, 256")
    e("s_cbranch_scc1 k2_end")
    stamp(0)
    e("s_load_dwordx2 s[4:5], s[0:1], 0")
    e("s_load_dwordx2 s[8:9], s[0:1], 8")
    e("s_load_dwordx2 s[10:11], s[0:1], 16")
    e("s_load_dwordx2 s[6:7], s[0:1], 88")
    e("s_load_dwordx4 s[12:15], s[0:1], 48")
    e("s_load_dwordx2 s[60:61], s[0:1], 64")
    lane_setup()
    e("s_and_b32 s19, s2, 7")
    e("s_lshr_b32 s20, s2, 3")
    e("s_lshr_b32 s21, s20, 3")
    e("s_lshl_b32 s19, s19, 2")
    e("s_add_u32 s19, s19, s21")
    e("s_and_b32 s20, s20, 7")
    e("v_lshlrev_b32 v8, 4, v1")
    VC, VA, VB0, VB1 = 16, 24, 29, 30
    e("v_lshrrev_b32 v4, 3, v1")
    e("v_and_b32 v5, 7, v1")
    e("v_xor_b32 v5, v5, v4")
    e("v_lshlrev_b32 v4, 12, v4")
    e("v_lshl_add_u32 v4, v5, 4, v4")
    e("s_lshl_b32 s22, s19, 18")
    if os.environ.get("XC"): e("s_mov_b32 s22, 0")
    e(f"v_add_u32 v{VC}, s22, v4")
    for j in range(1, 8):
        e(f"v_add_u32 v{VC+j}, {j*32768 - (j%4)*1024}, v{VC}")
    e("s_lshr_b32 s22, s16, 1")
    e("s_mul_i32 s22, s22, 40")
    e("s_mul_i32 s23, s20, 5")
    if os.environ.get("XA"): e("s_mov_b32 s23, 0")
    e("s_add_u32 s22, s22, s23")
    e("s_lshl_b32 s22, s22, 16")
    e(f"v_add_u32 v{VA}, s22, v8")
    for i in range(1, 5):
        e(f"v_add_u32 v{VA+i}, {i*65536}, v{VA}")
    e("s_lshl_b32 s46, s16, 15")
    e("v_and_b32 v5, 7, v2")
    e("v_xor_b32 v5, v5, v3")
    e("v_lshlrev_b32 v4, 7, v2")
    e("v_lshl_add_u32 v4, v5, 4, v4")
    e(f"v_add_u32 v{VB0}, s46, v4")
    e(f"v_xor_b32 v{VB1}, 64, v{VB0}")
    e("s_and_b32 s41, s16, 1")
    e("s_lshl_b32 s47, s41, 11")
    e("s_lshl_b32 s41, s41, 15")
    if ROT:
        e("s_lshr_b32 s40, s2, 6")
        e("s_lshl_b32 s40, s40, 2")
    elif os.environ.get("K2ROT", "0") == "2":
        e("s_and_b32 s40, s2, 7")
        e("s_lshl_b32 s40, s40, 1")
    elif os.environ.get("K2ROT", "0") == "3":
        e("s_and_b32 s40, s2, 3")
        e("s_lshl_b32 s40, s40, 2")
    else:
        e("s_mov_b32 s40, 0")
    e("s_lshl_b32 s21, s19, 6")
    e("s_lshl_b32 s22, s16, 4")
    e("s_add_u32 s21, s21, s22")
    e("s_mul_i32 s22, s21, 1280")
    e("s_mul_i32 s23, s20, 160")
    e("s_add_u32 s22, s22, s23")
    e("v_mul_u32_u24 v11, 1280, v2")
    e("v_lshl_add_u32 v11, v3, 3, v11")
    e("v_add_u32 v11, s22, v11")
    e("s_waitcnt lgkmcnt(0)")
    srd(24, 4, 2621440)
    e("s_cmp_lt_u32 s16, 2")
    e("s_cselect_b32 s28, s8, s10")
    e("s_cselect_b32 s29, s9, s11")
    e("s_mov_b32 s30, 8388608")
    e("s_mov_b32 s31, 0x20000")
    srd(32, 6, SZ_ABP, WS_ABP)
    stamp(1)
    AB = 32
    BB = 192
    def A(b, h, i):
        if b < 2: return vr(AB + (b * 10 + h * 5 + i) * 4)
        return ar(96 + ((b - 2) * 10 + h * 5 + i) * 4)
    def B(b, h, n): return BB + (b * 8 + h * 4 + n) * 4
    vm = VM()
    def stage_issue(stg):
        b = stg % 4
        vm.issue(("S", stg), 18)
        o = []
        o.append("s_lshl_b32 s42, s40, 7")
        o.append("s_add_u32 s42, s42, s47")
        o.append(f"s_add_u32 m0, s46, {b*8192}")
        o.append("s_lshl_b32 s43, s40, 11")
        for j in range(4):
            o.append(f"buffer_load_dwordx4 v{VC+j}, s[28:31], s42 offen offset:{j*1024} lds")
        o.append(f"s_add_u32 m0, s46, {b*8192+4096}")
        o.append("s_add_u32 s43, s43, s41")
        for j in range(4, 8):
            o.append(f"buffer_load_dwordx4 v{VC+j}, s[28:31], s42 offen offset:{(j-4)*1024} lds")
        for h in range(2):
            for i in range(5):
                o.append(f"buffer_load_dwordx4 {A(b,h,i)}, v{VA+i}, s[32:35], s43 offen offset:{h*1024}")
        o.append("s_add_u32 s40, s40, 1")
        o.append("s_and_b32 s40, s40, 15")
        return o
    def bread(st):
        o = []
        for h in range(2):
            for n in range(4):
                o.append(f"ds_read_b128 {vr(B(st&1,h,n))}, v{VB0+h} offset:{(st%4)*8192 + n*2048}")
        return o
    if os.environ.get("ABT"):
        e("s_lshl_b32 s22, s2, 2")
        e("s_add_u32 s22, s22, s16")
        e("s_mul_i32 s22, s22, 5120")
        e("v_lshlrev_b32 v12, 7, v1")
        e("s_mov_b32 exec_hi, 0xff")
        e("buffer_load_dword a92, v12, s[32:35], s22 offen")
        e("s_mov_b32 exec_hi, -1")
    for st in range(3):
        for l in stage_issue(st): e(l)
    for i in range(5):
        e(f"buffer_load_dwordx2 a[{80+2*i}:{81+2*i}], v11, s[24:27], 0 offen offset:{i*32}")
    vm.issue("X", 5)
    PL, PO, PA = 112, 144, 176
    e("s_mul_i32 s48, s2, 3")
    e("s_add_u32 s48, s48, s16")
    e("s_cmp_ge_u32 s2, 240")
    e("s_cselect_b64 vcc, -1, 0")
    e("s_cmp_eq_u32 s16, 3")
    e("s_cselect_b64 vcc, -1, vcc")
    e("s_cbranch_vccnz k2_pdum")
    e("s_cmp_ge_u32 s48, 480")
    e("s_cbranch_scc1 k2_pdn")
    e("s_mul_i32 s49, s48, 52429")
    e("s_lshr_b32 s49, s49, 20")
    e("s_mul_i32 s92, s49, 20")
    e("s_sub_u32 s92, s48, s92")
    srd(36, 12, 1966080)
    srd(56, 14, 1966080)
    e("v_bfe_u32 v12, v1, 3, 2")
    e("v_and_b32 v13, 7, v1")
    e("v_lshrrev_b32 v14, 5, v1")
    e(f"v_mul_u32_u24 v{PA+9}, 24576, v12")
    e(f"v_lshl_add_u32 v{PA+9}, v13, 4, v{PA+9}")
    e("v_mul_u32_u24 v15, 12288, v14")
    e(f"v_add_u32 v{PA+9}, v{PA+9}, v15")
    e("s_mul_i32 s84, s92, 98304")
    e("s_lshl_b32 s85, s49, 7")
    e("s_add_u32 s84, s84, s85")
    e("s_mov_b32 s85, s84")
    e("s_mov_b32 s86, 3072")
    e("v_mul_u32_u24 v13, 1040, v13")
    e("v_lshl_add_u32 v13, v12, 8, v13")
    e(f"v_lshl_add_u32 v{PA}, v14, 3, v13")
    e("s_mov_b32 s93, 64")
    e("s_mov_b32 s94, 32")
    e("s_mul_i32 s87, s49, 163840")
    e("s_lshl_b32 s92, s92, 10")
    e("s_add_u32 s87, s87, s92")
    e(f"s_add_u32 s87, s87, {WS_WGU}")
    e("s_mov_b32 s88, 20480")
    e("s_branch k2_pk")
    lab("k2_pdn")
    e("s_sub_u32 s48, s48, 480")
    e("s_mul_i32 s49, s48, 43691")
    e("s_lshr_b32 s49, s49, 21")
    e("s_mul_i32 s92, s49, 48")
    e("s_sub_u32 s92, s48, s92")
    srd(36, 60, 1966080)
    srd(56, 60, 1966080)
    e(f"v_mul_u32_u24 v{PA+9}, 10240, v3")
    e(f"v_lshl_add_u32 v{PA+9}, v2, 4, v{PA+9}")
    e("s_mul_i32 s84, s92, 40960")
    e("s_lshl_b32 s85, s49, 8")
    e("s_add_u32 s84, s84, s85")
    e("s_add_u32 s85, s84, 5120")
    e("s_mov_b32 s86, 1280")
    e("v_lshrrev_b32 v13, 1, v2")
    e("v_mul_u32_u24 v13, 1040, v13")
    e("v_and_b32 v15, 1, v2")
    e("v_lshlrev_b32 v15, 7, v15")
    e("v_lshl_add_u32 v15, v3, 8, v15")
    e(f"v_add_u32 v{PA}, v15, v13")
    e("s_mov_b32 s93, 32")
    e("s_mov_b32 s94, 8")
    e("s_mul_i32 s87, s49, 393216")
    e("s_lshl_b32 s92, s92, 10")
    e("s_add_u32 s87, s87, s92")
    e(f"s_add_u32 s87, s87, {WS_WDN}")
    e("s_mov_b32 s88, 49152")
    lab("k2_pk")
    for which in range(2):
        for j in range(4):
            sr = 84 + which
            e(f"buffer_load_dwordx4 {vr(PL+(which*4+j)*4)}, v{PA+9}, s[{36+20*which}:{39+20*which}], s{sr} offen")
            e(f"s_add_u32 s{sr}, s{sr}, s86")
    e("s_mul_i32 s49, s16, 8320")
    e("s_add_u32 s49, s49, 131072")
    e(f"v_add_u32 v{PA}, s49, v{PA}")
    for k in range(1, 4):
        e(f"v_add_u32 v{PA+k}, s93, v{PA+k-1}")
    for k in range(4):
        e(f"v_add_u32 v{PA+4+k}, s94, v{PA+k}")
    e(f"v_add_u32 v{PA+12}, s49, v8")
    e("s_branch k2_pdone")
    lab("k2_pdum")
    def dummy(n):
        o = ["s_mov_b64 exec, 1"]
        for j in range(n):
            o.append("buffer_load_dword a90, v8, s[24:27], 0 offen")
        o.append("s_mov_b64 exec, -1")
        return o
    for l in dummy(8): e(l)
    lab("k2_pdone")
    vm.issue("P", 8)
    e("s_mov_b32 s89, 0x05040100")
    e("s_mov_b32 s90, 0x07060302")
    e("s_mov_b32 s64, s6")
    e("s_mov_b32 s65, s7")
    e(f"s_mov_b32 s66, {WS_WDN + SZ_WDN}")
    e("s_mov_b32 s67, 0x20000")
    PST = int(os.environ.get("PST", "3"))
    srd(48, 6, SZ_HP, WS_HP)
    srd(52, 6, SZ_HSTAT, WS_HSTAT)
    for a in range(80):
        e(f"v_accvgpr_write_b32 a{a}, 0")
    e(f"s_waitcnt vmcnt({vm.younger([('S', 0)])})")
    for l in bread(0): e(l)
    NS = 16
    for st in range(NS):
        b = st % 4
        if st + 1 < NS:
            allowed = vm.younger([("S", st + 1)] + (["P"] if st == PST else []))
            e(f"s_waitcnt vmcnt({allowed}) lgkmcnt(0)")
        else:
            e("s_waitcnt lgkmcnt(0)")
        if os.environ.get("K2ST") and st in (0,1,2,3,4,6,8,12): stamp(7 + (0,1,2,3,4,6,8,12).index(st))
        slots = [[] for _ in range(40)]
        if st + 1 < NS:
            for j, l in enumerate(bread(st + 1)):
                slots[1 + 2*j].append(l)
        if st + 3 < NS:
            grp = []; groups = []
            for l in stage_issue(st + 3):
                grp.append(l)
                if l.startswith("buffer"):
                    groups.append(grp); grp = []
            groups[-1] += grp
            for g, gl in enumerate(groups):
                slots[(g * 40) // len(groups)] += gl
        if st == int(os.environ.get("CT2", "13")) and CT:
            slots[30] += code_touch("k3_kernel", "k4_kernel", 12, "a91")
            vm.issue("CT", 1)
        pk = []
        if st == PST:
            for which in range(2):
                for ee in range(8):
                    o = PO + (which*8+ee)*2
                    g = []
                    for t in range(2):
                        g.append(f"v_perm_b32 v{o+t}, v{PL+(which*4+2*t+1)*4+(ee>>1)}, v{PL+(which*4+2*t)*4+(ee>>1)}, s{89+(ee&1)}")
                    g.append(f"ds_write_b64 v{PA+which*4+(ee>>1)}, v[{o}:{o+1}] offset:{(ee&1)*16}")
                    pk.append(g)
            pk = [pk[2*i] + pk[2*i+1] for i in range(8)]
        if st == PST + 1:
            pk = [[f"ds_read_b128 {vr(PL+g*4)}, v{PA+12} offset:{g*1040}"] for g in range(8)]
        for g, gl in enumerate(pk):
            slots[18 + 2*g] += [f"s_cbranch_vccnz k2_np{st}_{g}"] + gl + [f"k2_np{st}_{g}:"]
        if st == PST + 2:
            gl = ["s_cbranch_vccnz k2_sdum"]
            for g in range(8):
                gl += [f"buffer_store_dwordx4 {vr(PL+g*4)}, v8, s[64:67], s87 offen sc1", "s_add_u32 s87, s87, s88"]
            gl += ["s_branch k2_sdone", "k2_sdum:"] + dummy(8) + ["k2_sdone:"]
            slots[39] += gl
            vm.issue("Q", 8)
        k = 0
        for h in range(2):
            for i in range(5):
                for n in range(4):
                    if not os.environ.get("NOMFMA"): mfma(ar((i*4+n)*4), A(b,h,i), vr(B(st&1,h,n)))
                    for l in slots[k]:
                        if os.environ.get("NODS") and l.startswith("ds_"): continue
                        if os.environ.get("NOA") and l.startswith("buffer") and not l.endswith("lds"): continue
                        if os.environ.get("NOC") and l.startswith("buffer") and l.endswith("lds"): continue
                        e(l)
                    k += 1
    stamp(2)
    stamp(3)
    e("s_nop 7")
    e("v_add_u32 v9, s46, v8")
    for n in range(4):
        for i in range(5):
            e(f"ds_write_b128 v9, {ar((i*4+n)*4)} offset:{(n*5+i)*1024}")
    e("s_mul_i32 s44, s16, 5120")
    e("v_add_u32 v9, s44, v8")
    e("v_add_u32 v10, 65536, v9")
    XR = 112
    for i in range(10):
        e(f"v_accvgpr_read_b32 v{XR+i}, a{80+i}")
    e("s_waitcnt lgkmcnt(0)")
    e("s_barrier")
    for src in range(4):
        for i in range(5):
            e(f"ds_read_b128 {vr(BUF+(src*5+i)*4)}, v{9 + (src>>1)} offset:{(src&1)*32768 + i*1024}")
    stamp(4)
    e("s_lshl_b32 s22, s19, 2")
    e("s_add_u32 s22, s22, s16")
    e("s_mul_i32 s23, s20, 5")
    hp_addr(11, 22, 23, [61, 62, 63, 64, 65])
    e("v_mov_b32 v17, 0")
    e("v_mov_b32 v18, 0")
    e("s_waitcnt vmcnt(0) lgkmcnt(0)")
    T = 124
    for i in range(5):
        def S(src, r): return BUF + (src*5+i)*4 + r
        for r in range(4):
            e(f"v_add_f32 v{T+r}, v{S(0,r)}, v{S(1,r)}")
            e(f"v_add_f32 v{T+4+r}, v{S(2,r)}, v{S(3,r)}")
        for r in range(4):
            bf16r(T+r, T+r)
            bf16r(T+4+r, T+4+r)
        for r in range(4):
            e(f"v_sub_f32 v{T+r}, v{T+r}, v{T+4+r}")
        for r in range(4):
            bf16r(T+r, T+r)
        e(f"v_lshlrev_b32 v{T+4}, 16, v{XR+2*i}")
        e(f"v_and_b32 v{T+5}, 0xffff0000, v{XR+2*i}")
        e(f"v_lshlrev_b32 v{T+6}, 16, v{XR+2*i+1}")
        e(f"v_and_b32 v{T+7}, 0xffff0000, v{XR+2*i+1}")
        for r in range(4):
            e(f"v_add_f32 v{T+r}, v{T+r}, v{T+4+r}")
        o = 136 + 2*i
        e(f"v_cvt_pk_bf16_f32 v{o}, v{T}, v{T+1}")
        e(f"v_cvt_pk_bf16_f32 v{o+1}, v{T+2}, v{T+3}")
        e(f"buffer_store_dwordx2 v[{o}:{o+1}], v11, s[48:51], s{61+i} offen")
        e(f"v_lshlrev_b32 v{T}, 16, v{o}")
        e(f"v_and_b32 v{T+1}, 0xffff0000, v{o}")
        e(f"v_lshlrev_b32 v{T+2}, 16, v{o+1}")
        e(f"v_and_b32 v{T+3}, 0xffff0000, v{o+1}")
        for r in range(4):
            e(f"v_add_f32 v17, v17, v{T+r}")
            e(f"v_fmac_f32 v18, v{T+r}, v{T+r}")
    e("v_xor_b32 v10, 16, v1")
    e("v_lshlrev_b32 v10, 2, v10")
    e("ds_bpermute_b32 v19, v10, v17")
    e("ds_bpermute_b32 v28, v10, v18")
    e("s_waitcnt lgkmcnt(0)")
    e("v_add_f32 v17, v17, v19")
    e("v_add_f32 v18, v18, v28")
    e("v_xor_b32 v10, 32, v1")
    e("v_lshlrev_b32 v10, 2, v10")
    e("ds_bpermute_b32 v19, v10, v17")
    e("ds_bpermute_b32 v28, v10, v18")
    e("s_waitcnt lgkmcnt(0)")
    e("v_add_f32 v30, v17, v19")
    e("v_add_f32 v31, v18, v28")
    e("s_lshl_b32 s22, s21, 3")
    e("s_lshl_b32 s23, s20, 14")
    e("s_add_u32 s22, s22, s23")
    e("v_lshlrev_b32 v10, 3, v2")
    e("s_mov_b32 exec_lo, 0x0000ffff")
    e("s_mov_b32 exec_hi, 0")
    e("buffer_store_dwordx2 v[30:31], v10, s[52:55], s22 offen")
    e("s_mov_b64 exec, -1")
    lab("k2_fin")
    stamp(5)
    stamp_dump(1, 6)
    if os.environ.get("K2ST"):
        for i in range(7, 15):
            e(f"v_mov_b32 v2, s{70+2*i}")
            e(f"v_mov_b32 v3, s{71+2*i}")
            e(f"buffer_store_dwordx2 v[2:3], v0, s[64:67], s68 offen offset:{i*8}")
        e("s_waitcnt vmcnt(0)")
    lab("k2_end")
    e("s_endpgm")

def gen_k4():
    kernel_begin("k4_kernel")
    e("s_cmp_ge_u32 s2, 256")
    e("s_cbranch_scc1 k4_end")
    stamp(0)
    e("s_load_dwordx2 s[4:5], s[0:1], 72")
    e("s_load_dwordx2 s[6:7], s[0:1], 88")
    lane_setup()
    if MAP34:
        e("s_bfe_u32 s19, s2, 0x20001")
        e("s_bfe_u32 s21, s2, 0x30003")
        e("s_lshl_b32 s19, s19, 3")
        e("s_add_u32 s19, s19, s21")
        e("s_and_b32 s20, s2, 1")
        e("s_lshl_b32 s20, s20, 2")
        e("s_lshr_b32 s21, s2, 6")
        e("s_add_u32 s20, s20, s21")
    else:
        e("s_and_b32 s19, s2, 7")
        e("s_lshr_b32 s20, s2, 3")
        e("s_lshr_b32 s21, s20, 3")
        e("s_lshl_b32 s19, s19, 2")
        e("s_add_u32 s19, s19, s21")
        e("s_and_b32 s20, s20, 7")
    e("v_lshlrev_b32 v8, 4, v1")
    e("s_mul_i32 s22, s19, 196608")
    e("v_add_u32 v4, s22, v8")
    for n in range(1, 4):
        e(f"v_add_u32 v{4+n}, {n*49152}, v4")
    e("s_mul_i32 s22, s20, 245760")
    e("v_add_u32 v12, s22, v8")
    for i in range(1, 5):
        e(f"v_add_u32 v{12+i}, {i*49152}, v12")
    e("s_mul_i32 s41, s16, 12")
    e("s_lshr_b32 s40, s2, 3")
    e("s_mul_i32 s44, s40, 43691")
    e("s_lshr_b32 s44, s44, 19")
    e("s_mul_i32 s44, s44, 12")
    e("s_sub_u32 s40, s40, s44")
    e("s_waitcnt lgkmcnt(0)")
    srd(28, 6, SZ_ACT, WS_ACT)
    srd(32, 6, SZ_WDN, WS_WDN)
    NSL, AH = 8, 7
    def slot(b, k):
        if b < 6: return vr(32 + b * 36 + k * 4)
        return ar(80 + (b - 6) * 36 + k * 4)
    vm = VM()
    def issue(t):
        o = ["s_add_u32 s44, s40, s41", "s_lshl_b32 s42, s44, 10", "s_add_u32 s40, s40, 1",
             "s_cmp_ge_u32 s40, 12", "s_cselect_b32 s40, 0, s40"]
        b = t % NSL
        for n in range(4):
            o.append(f"buffer_load_dwordx4 {slot(b,5+n)}, v{4+n}, s[28:31], s42 offen")
        for i in range(5):
            o.append(f"buffer_load_dwordx4 {slot(b,i)}, v{12+i}, s[32:35], s42 offen")
        vm.issue(("S", t), 9)
        return o
    for t in range(AH):
        for l in issue(t): e(l)
    stamp(1)
    srd(24, 4, 2621440)
    srd(48, 6, SZ_HP, WS_HP)
    for a in range(80):
        e(f"v_accvgpr_write_b32 a{a}, 0")
    e("v_lshrrev_b32 v18, 2, v1")
    e("v_and_b32 v19, 3, v1")
    e("s_lshl_b32 s22, s19, 2")
    e("s_add_u32 s22, s22, s16")
    e("s_mul_i32 s23, s22, 20480")
    e("s_mul_i32 s45, s20, 2560")
    e("s_add_u32 s45, s45, s23")
    e("v_lshlrev_b32 v20, 4, v18")
    e("v_lshl_add_u32 v20, v19, 8, v20")
    e("v_and_b32 v21, 1, v1")
    e("v_lshlrev_b32 v22, 4, v18")
    e("v_lshl_add_u32 v21, v21, 8, v22")
    e("s_mul_i32 s46, s20, 160")
    e("s_add_u32 s46, s46, s23")
    e("v_mul_u32_u24 v22, 1280, v18")
    e("v_lshl_add_u32 v22, v19, 4, v22")
    if os.environ.get("OT"):
        e("buffer_load_dword v26, v22, s[24:27], s46 offen")
        vm.issue("O", 1)
    e("s_mul_i32 s47, s16, 23040")
    e("v_mul_u32_u24 v23, 288, v3")
    e("v_lshl_add_u32 v23, v2, 4, v23")
    e("v_add_u32 v23, s47, v23")
    e("s_mul_i32 s47, s16, 5760")
    e("v_mul_u32_u24 v24, 576, v19")
    e("v_lshl_add_u32 v24, v18, 4, v24")
    e("v_add_u32 v24, s47, v24")
    e("v_add_u32 v25, 46080, v24")
    HR = 152
    for t in range(12):
        b = t % NSL
        e(f"s_waitcnt vmcnt({vm.younger([('S', t)])})")
        ld = []
        if t + AH < 12:
            ld = issue(t + AH)
        elif t == 12 - AH:
            ld = [f"buffer_load_dwordx4 {ar(HR)}, v20, s[48:51], s45 offen",
                  f"buffer_load_dwordx4 {ar(HR+4)}, v20, s[48:51], s45 offen offset:1024",
                  f"buffer_load_dwordx4 {ar(HR+8)}, v21, s[48:51], s45 offen offset:2048"]
            vm.issue("H", 3)
        grp = []; groups = []
        for l in ld:
            grp.append(l)
            if l.startswith("buffer"):
                groups.append(grp); grp = []
        k = 0
        for i in range(5):
            for n in range(4):
                mfma(ar((i*4+n)*4), slot(b, i), slot(b, 5+n))
                k += 1
                if k % 2 == 0 and groups:
                    for l in groups.pop(0): e(l)
        assert not groups
    stamp(2)
    stamp(3)
    e("s_nop 7")
    e("s_nop 7")
    for n in range(4):
        for i in range(5):
            e(f"ds_write_b128 v23, {ar((i*4+n)*4)} offset:{(n*5+i)*1152}")
    XR = 128
    e("s_waitcnt vmcnt(0)")
    for r in range(12):
        e(f"v_accvgpr_read_b32 v{XR+r}, a{HR+r}")
    e("s_waitcnt lgkmcnt(0)")
    e("s_barrier")
    def S(src, j, hf): return 32 + ((j * 4 + src) * 2 + hf) * 4
    for j in range(3):
        for src in range(4):
            for hf in range(2):
                e(f"ds_read_b128 {vr(S(src,j,hf))}, v{24 + (src>>1)} offset:{(src&1)*23040 + j*2304 + hf*288}")
    stamp(4)
    for j in range(3):
        e(f"s_waitcnt lgkmcnt({min(15,(2-j)*8)})")
        T = 144 + j * 16
        for hf in range(2):
            for p in (0, 2):
                e(f"v_pk_add_f32 v[{T+hf*4+p}:{T+hf*4+p+1}], v[{S(0,j,hf)+p}:{S(0,j,hf)+p+1}], v[{S(1,j,hf)+p}:{S(1,j,hf)+p+1}]")
                e(f"v_pk_add_f32 v[{T+8+hf*4+p}:{T+8+hf*4+p+1}], v[{S(2,j,hf)+p}:{S(2,j,hf)+p+1}], v[{S(3,j,hf)+p}:{S(3,j,hf)+p+1}]")
        for p in range(0, 8, 2):
            e(f"v_pk_add_f32 v[{T+p}:{T+p+1}], v[{T+p}:{T+p+1}], v[{T+8+p}:{T+8+p+1}]")
        for p in range(4):
            e(f"v_cvt_pk_bf16_f32 v{T+8+p}, v{T+2*p}, v{T+2*p+1}")
        for p in range(4):
            e(f"v_lshlrev_b32 v{T+2*p}, 16, v{T+8+p}")
            e(f"v_and_b32 v{T+2*p+1}, 0xffff0000, v{T+8+p}")
        for p in range(4):
            e(f"v_lshlrev_b32 v{T+8+2*p}, 16, v{XR+4*j+p}")
            e(f"v_and_b32 v{T+8+2*p+1}, 0xffff0000, v{XR+4*j+p}")
        for p in range(0, 8, 2):
            e(f"v_pk_add_f32 v[{T+p}:{T+p+1}], v[{T+p}:{T+p+1}], v[{T+8+p}:{T+8+p+1}]")
        O = 192 + 4 * j
        for p in range(4):
            e(f"v_cvt_pk_bf16_f32 v{O+p}, v{T+2*p}, v{T+2*p+1}")
        if j == 2:
            e("s_mov_b32 exec_lo, 0x33333333")
            e("s_mov_b32 exec_hi, 0x33333333")
        e(f"buffer_store_dwordx4 {vr(O)}, v22, s[24:27], s46 offen offset:{j*64}")
    e("s_mov_b64 exec, -1")
    stamp(5)
    stamp_dump(3, 6)
    lab("k4_end")
    e("s_endpgm")

class VM:
    def __init__(self): self.q = []
    def issue(self, tag, n=1): self.q += [tag] * n
    def younger(self, tags):
        last = max(i for i, t in enumerate(self.q) if t in tags)
        return min(63, len(self.q) - 1 - last)

def gen_k3():
    kernel_begin("k3_kernel")
    e("s_cmp_ge_u32 s2, 256")
    e("s_cbranch_scc1 k3_end")
    stamp(0)
    e("s_load_dwordx2 s[6:7], s[0:1], 88")
    lane_setup()
    if MAP34:
        e("s_bfe_u32 s19, s2, 0x20001")
        e("s_bfe_u32 s21, s2, 0x20003")
        e("s_lshl_b32 s19, s19, 2")
        e("s_add_u32 s19, s19, s21")
        e("s_and_b32 s20, s2, 1")
        e("s_lshl_b32 s20, s20, 3")
        e("s_lshr_b32 s21, s2, 5")
        e("s_add_u32 s20, s20, s21")
    else:
        e("s_and_b32 s19, s2, 7")
        e("s_lshr_b32 s20, s2, 3")
        e("s_and_b32 s21, s20, 1")
        e("s_lshl_b32 s19, s19, 1")
        e("s_add_u32 s19, s19, s21")
        e("s_lshr_b32 s20, s20, 1")
    e(f"s_mov_b32 s17, {INV640}")
    e(f"s_mov_b32 s18, {EPS}")
    e("s_mov_b32 s62, 0x3f803f80")
    e("v_lshlrev_b32 v8, 4, v1")
    e("s_mul_i32 s21, s20, 12")
    e("s_mul_i32 s23, s16, 3")
    e("s_add_u32 s21, s21, s23")
    e("s_mul_i32 s22, s21, 20480")
    e("v_add_u32 v4, s22, v8")
    e("v_add_u32 v5, 20480, v4")
    e("v_add_u32 v6, 40960, v4")
    e("s_mul_i32 s22, s19, 163840")
    e("s_mul_i32 s23, s16, 40960")
    e("s_add_u32 s22, s22, s23")
    e("v_lshlrev_b32 v9, 3, v1")
    e("s_lshl_b32 s48, s19, 10")
    e("s_waitcnt lgkmcnt(0)")
    srd(24, 6, SZ_HP, WS_HP)
    srd(32, 6, SZ_WGU, WS_WGU)
    srd(28, 6, SZ_HSTAT, WS_HSTAT)
    vm = VM()
    D = 6
    WB = 88
    ACC3 = 160
    def Wf(kk, i): return WB + ((kk % D) * 3 + i) * 4
    def Hf(kk, n): return ((kk & 1) * 8 + n) * 4
    HGS = int(os.environ.get("HGS", "2")); LW = int(os.environ.get("LW", "3")); LH = int(os.environ.get("LH", "3"))
    HG = {chr(65 + g): (g * HGS, min(20, g * HGS + HGS)) for g in range((19 + HGS) // HGS)}
    def hdma_l(g, t):
        o = []
        k0, k1 = HG[g]
        for k in range(k0, k1, 4):
            base = t * 20480 + k * 1024
            o.append(f"s_add_u32 m0, s23, {base}")
            o.append(f"s_add_u32 s44, s22, {base}")
            for u in range(min(4, k1 - k)):
                o.append(f"buffer_load_dwordx4 v8, s[24:27], s44 offen offset:{u*1024} lds")
        vm.issue(("H", g), k1 - k0)
        return o
    def wload(kk):
        out = []
        if kk >= 4:
            out.append(f"s_mov_b32 s{45+(kk&1)}, {kk*1024}")
        for i in range(3):
            if kk < 4:
                out.append(f"buffer_load_dwordx4 {vr(Wf(kk,i))}, v{4+i}, s[32:35], 0 offen offset:{kk*1024}")
            else:
                out.append(f"buffer_load_dwordx4 {vr(Wf(kk,i))}, v{4+i}, s[32:35], s{45+(kk&1)} offen")
        vm.issue(("W", kk), 3)
        return out
    def sload(q):
        o = []
        for x in range(4 * q, 4 * q + 4):
            j, eb = x >> 3, x & 7
            o.append(f"s_add_u32 s47, s48, {eb*16384 + j*512}")
            o.append(f"buffer_load_dwordx2 v[{40+(j*8+eb)*2}:{41+(j*8+eb)*2}], v9, s[28:31], s47 offen")
        vm.issue("S", 4)
        return o
    def tload():
        vm.issue("P", 1)
        return ["buffer_load_dword v22, v23, s[52:55], s50 offen", "s_add_u32 s50, s50, 4096"]
    items = []
    for g, (k0, k1) in HG.items():
        for t in range(2):
            items.append((k0 - 1 - LH + (t if HGS > 1 else 0), k0 - 1, f"H{g}{t}"))
    for kk in range(20):
        items.append((kk - LW, kk - 0.5, f"W{kk}"))
    for q in range(4): items.append((9 + q, 30, f"S{q}"))
    last = max(it[0] for it in items)
    for q in range(1 if MAP34 else 4): items.append((min(19, max(15, last + 1) + q), 40, "T"))
    items.sort(key=lambda x: (max(x[0], -1), x[1]))
    sched = {}
    for it, dl, nm in items: sched.setdefault(max(it, -1), []).append(nm)
    BAR = {k0 - 1: g for g, (k0, k1) in HG.items() if k0 > 0}
    def do_items(lst_):
        lst = []
        for it in lst_:
            if it[0] == "W": lst += wload(int(it[1:]))
            elif it[0] == "H": lst += hdma_l(it[1], int(it[2]))
            elif it[0] == "S": lst += sload(int(it[1]))
            else: lst += tload()
        return lst
    for l in do_items(sched[-1]): e(l)
    srd(36, 6, SZ_ACT, WS_ACT)
    srd(52, 6, SZ_WDN, WS_WDN)
    e("s_lshr_b32 s50, s2, 3")
    e("s_lshl_b32 s50, s50, 2")
    e("s_add_u32 s50, s50, s16")
    if MAP34:
        e("s_mul_i32 s50, s50, 7680")
        e("s_and_b32 s51, s2, 1")
        e("s_mul_i32 s51, s51, 983040")
        e("s_add_u32 s50, s50, s51")
        e("v_lshlrev_b32 v23, 7, v1")
    else:
        e("s_mul_i32 s50, s50, 15360")
        e("v_lshlrev_b32 v23, 6, v1")
    for a in range(96):
        e(f"v_mov_b32 v{ACC3+a}, 0")
    for r in range(24, 36):
        e(f"v_mov_b32 v{r}, 0")
    for r in range(16, 20):
        e(f"v_mov_b32 v{r}, 0x3f803f80")
    e("v_add_u32 v10, 65536, v8")
    e("v_add_u32 v11, 131072, v8")
    e("v_lshlrev_b32 v12, 2, v2")
    e("v_lshlrev_b32 v13, 4, v3")
    def hread(kk):
        o = []
        for n in range(8):
            off = (n * 20 + kk) * 1024
            base = 8 if off < 65536 else (10 if off < 131072 else 11)
            o.append(f"ds_read_b128 {ar(Hf(kk,n))}, v{base} offset:{off % 65536}")
        return o
    def dots(kk):
        return [f"v_dot2_f32_bf16 v{16+i}, v{Wf(kk,i)+r}, s62, v{16+i}" for r in range(4) for i in range(3)]
    def stats_code():
        sv = L[:]
        del L[:]
        for j in range(2):
            b = 40 + j * 16
            for k in (2, 4, 6, 8, 10, 12, 14):
                e(f"v_add_f32 v{b}, v{b}, v{b+k}")
                e(f"v_add_f32 v{b+1}, v{b+1}, v{b+k+1}")
            ln_stats(b, b+1, 36+2*j, 37+2*j, 20+j)
        for t in range(8):
            e(f"ds_bpermute_b32 v{72+2*t}, v12, v{36+2*(t>>2)} offset:{(t&3)*64}")
            e(f"ds_bpermute_b32 v{73+2*t}, v12, v{37+2*(t>>2)} offset:{(t&3)*64}")
            e(f"ds_bpermute_b32 v{64+t}, v12, v{20+(t>>2)} offset:{(t&3)*64}")
        o = [x.strip() for x in L]
        L[:] = sv
        return o
    stamp(1)
    e(f"s_waitcnt vmcnt({vm.younger([('H','A')])})")
    stamp(2)
    e("s_barrier")
    stamp(3)
    for l in hread(0): e(l)
    for kk in range(20):
        need = [("W", kk)]
        if kk in BAR: need.append(("H", BAR[kk]))
        if kk == 15: need.append("S")
        e(f"s_waitcnt vmcnt({vm.younger(need)}) lgkmcnt(0)")
        if kk in BAR and "r" not in os.environ.get("K3X", ""): e("s_barrier")
        slots = [[] for _ in range(27)]
        if kk + 1 < 20:
            for j, l in enumerate(hread(kk + 1)):
                slots[(j * int(os.environ.get("HRS", "2"))) // 2].append(l)
        lst = do_items(sched.get(kk, []))
        groups = []; grp = []
        for l in lst:
            if grp and any(x.startswith("buffer") for x in grp) and not l.startswith("s_add_u32 s50"):
                groups.append(grp); grp = []
            grp.append(l)
        if grp: groups.append(grp)
        for g, gl in enumerate(groups):
            slots[1 + (g * 24) // max(len(groups), 8)] += gl
        if kk == int(os.environ.get("CT3", "17")) and CT:
            slots[26] += code_touch("k4_kernel", "code_end", 14, "v22")
            vm.issue("CT", 1)
        if kk == 15: sc = stats_code()
        if kk in (15, 16):
            part = sc[:54] if kk == 15 else sc[54:]
            for j, l in enumerate(part):
                slots[(j * 27) // len(part)].append(l)
        if kk == 19:
            for j, l in enumerate(["v_mul_u32_u24 v9, 49152, v3", "v_lshl_add_u32 v9, v2, 4, v9", "s_mul_i32 s22, s19, 393216", "s_lshl_b32 s23, s21, 8",
                                   "s_add_u32 s22, s22, s23", "v_mov_b32 v36, 0xbdd2d3e8", "v_mov_b32 v37, 0xc0135761"]):
                slots[j].append(l)
        K3X = os.environ.get("K3X", "")
        if "d" in K3X: slots = [[l for l in sl if not l.startswith("ds_read")] for sl in slots]
        if "b" in K3X: slots = [[l for l in sl if not l.startswith("buffer")] for sl in slots]
        if "s" in K3X: slots = [[l for l in sl if not l.startswith("s_")] for sl in slots]
        if "v" in K3X: slots = [[l for l in sl if not (l.startswith("v_") or l.startswith("ds_bp"))] for sl in slots]
        k = 0
        for i in range(3):
            mfma(vr(24+4*i), vr(Wf(kk,i)), vr(16))
            for l in slots[k]: e(l)
            k += 1
        for n in range(8):
            for i in range(3):
                mfma(vr(ACC3+(i*8+n)*4), vr(Wf(kk,i)), ar(Hf(kk,n)))
                for l in slots[k]: e(l)
                k += 1
    stamp(4)
    def epi(i):
        o = []
        for hi, n0 in enumerate((0, 4)):
            TB = 40 + hi * 12
            O = TB + 8
            lists = []
            for g in range(4):
                n = n0 + g
                A = ACC3 + (i*8+n)*4
                S = 72 + 2*n
                SD = 64 + (n & ~1); sd = n & 1
                WS = 24 + i*4
                t2 = TB + g*2
                l = []
                for p in (0, 2):
                    l.append(f"v_pk_fma_f32 v[{A+p}:{A+p+1}], v[{S}:{S+1}], v[{WS+p}:{WS+p+1}], v[{A+p}:{A+p+1}] op_sel:[0,0,0] op_sel_hi:[0,1,1] neg_lo:[1,0,0] neg_hi:[1,0,0]")
                l.append(f"v_pk_mul_f32 v[{A}:{A+1}], v[{A}:{A+1}], v[{S}:{S+1}] op_sel:[0,1] op_sel_hi:[1,1]")
                l.append(f"v_pk_mul_f32 v[{t2}:{t2+1}], v[{A}:{A+1}], v[{A}:{A+1}]")
                l.append(f"v_pk_fma_f32 v[{t2}:{t2+1}], v[{t2}:{t2+1}], v[36:37], v[36:37] op_sel:[0,0,1] op_sel_hi:[1,0,1]")
                l.append(f"v_pk_mul_f32 v[{t2}:{t2+1}], v[{t2}:{t2+1}], v[{A}:{A+1}]")
                l.append(f"v_exp_f32 v{t2}, v{t2}")
                l.append(f"v_exp_f32 v{t2+1}, v{t2+1}")
                l.append(f"v_pk_mul_f32 v[{A}:{A+1}], v[{A}:{A+1}], v[{A+2}:{A+3}]")
                l.append(f"v_pk_fma_f32 v[{t2}:{t2+1}], v[{t2}:{t2+1}], v[{SD}:{SD+1}], v[{SD}:{SD+1}] op_sel:[0,{sd},{sd}] op_sel_hi:[1,{sd},{sd}]")
                l.append(f"v_rcp_f32 v{t2}, v{t2}")
                l.append(f"v_rcp_f32 v{t2+1}, v{t2+1}")
                l.append(f"v_pk_mul_f32 v[{t2}:{t2+1}], v[{t2}:{t2+1}], v[{A}:{A+1}]")
                l.append(f"v_cvt_pk_bf16_f32 v{O+g}, v{t2}, v{t2+1}")
                lists.append(l)
            for k in range(len(lists[0])):
                for g in range(4): o.append(lists[g][k])
            o.append("s_nop 1")
            o.append(f"v_permlane16_swap_b32 v{O}, v{O+1}")
            o.append(f"v_permlane16_swap_b32 v{O+2}, v{O+3}")
            o.append("s_nop 1")
            o.append(f"v_permlane32_swap_b32 v{O}, v{O+2}")
            o.append(f"v_permlane32_swap_b32 v{O+1}, v{O+3}")
            o.append(f"s_add_u32 s44, s22, {n0*49152 + i*256}")
            o.append("s_nop 1")
            o.append(f"buffer_store_dwordx4 {vr(O)}, v9, s[36:39], s44 offen")
        return o
    e("s_nop 7")
    stamp(5)
    for i in range(3):
        for l in epi(i): e(l)
    stamp(6)
    stamp_dump(2, 7)
    lab("k3_end")
    e("s_endpgm")

def descriptor(name, vgpr, accum, sgpr=102):
    raw(f".amdhsa_kernel {name}")
    raw(f"  .amdhsa_next_free_vgpr {vgpr}")
    raw(f"  .amdhsa_next_free_sgpr {sgpr}")
    raw(f"  .amdhsa_accum_offset {accum}")
    raw("  .amdhsa_group_segment_fixed_size 0")
    raw("  .amdhsa_kernarg_size 96")
    raw("  .amdhsa_user_sgpr_count 2")
    raw("  .amdhsa_user_sgpr_kernarg_segment_ptr 1")
    raw("  .amdhsa_system_sgpr_workgroup_id_x 1")
    raw(".end_amdhsa_kernel")

def main():
    raw("; 4-kernel pipeline: K1 LN1+hidden DFT GEMM, K2 seq DFT GEMM + residual, K3 LN2+gate/up GEMM+GEGLU, K4 down GEMM + residual")
    raw("; @launch kernel=k1_kernel grid=(256,1,1) block=(256,1,1) lds=152832")
    raw("; @launch kernel=k2_kernel grid=(256,1,1) block=(256,1,1) lds=156032")
    raw("; @launch kernel=k3_kernel grid=(256,1,1) block=(256,1,1) lds=163840")
    raw("; @launch kernel=k4_kernel grid=(256,1,1) block=(256,1,1) lds=94208")
    raw('.amdgcn_target "amdgcn-amd-amdhsa--gfx950"')
    raw(".text")
    gen_k1(); gen_k2(); gen_k3(); gen_k4()
    lab("code_end")
    raw('.section .rodata,"a"')
    raw(".p2align 6")
    descriptor("k1_kernel", 348, 160)
    raw(".p2align 6")
    descriptor("k2_kernel", 432, 256)
    raw(".p2align 6")
    descriptor("k3_kernel", 320, 256)
    raw(".p2align 6")
    descriptor("k4_kernel", 424, 256)
    out = sys.argv[1] if len(sys.argv) > 1 else f"cdna_kernels/{NAME}.s"
    NOSC = os.environ.get("NOSC", "").split(",")
    LL = [ (l + " sc1") if ("buffer_store" in l and "s[64:67]" not in l and not any(x and x in l for x in NOSC)) else l for l in L]
    open(out, "w").write("\n".join(LL) + "\n")

main()
```

```python
import sys

L = []
def e(s): L.append("    " + s)
def lab(s): L.append(s + ":")
def raw(s): L.append(s)

NAME = "sequential_preLN__spectral_fnet__geglu_ffn__prompt"

import os
ES = 65536 + int(os.environ.get("EPAD", "0"))
WS_ABP = 0 if ES == 65536 else 0x1800000
SZ_ABP = 80 * ES
WS_HP = 0x500000
SZ_HP = 128 * 20 * 1024
WS_HSTAT = 0x780000
SZ_HSTAT = 2048 * 8 * 8
WS_ACT = 0x800000
SZ_ACT = 128 * 48 * 1024
WS_WGU = 0xE00000
WSUM_OFF = 192 * 20 * 1024
SZ_WGU = WSUM_OFF + 192 * 4 * 64
WS_WDN = 0x1200000
SZ_WDN = 40 * 48 * 1024

INV640 = 0x3ACCCCCD
EPS = 0x3727C5AC

import os
DIAG = os.environ.get("DIAG", "0") == "1"
WS_DIAG = 0x3000000
DIAG2 = os.environ.get("DIAG2", "0") == "1"
def stamp(i):
    if DIAG2 and i == 0:
        e("s_memrealtime s[70:71]")
        e("s_memtime s[72:73]")
        e("s_waitcnt lgkmcnt(0)")
    if DIAG:
        e(f"s_memtime s[{70+2*i}:{71+2*i}]")
        e("s_waitcnt lgkmcnt(0)")
def stamp_dump(kidx, n):
    if DIAG2:
        e("s_waitcnt vmcnt(0)")
        e("s_memrealtime s[74:75]")
        e("s_memtime s[76:77]")
        e("s_load_dwordx2 s[64:65], s[0:1], 80")
        e("s_waitcnt lgkmcnt(0)")
        e("s_lshl_b32 s68, s2, 2")
        e("s_add_u32 s68, s68, s16")
        e("s_cmp_lg_u32 s68, 0")
        e(f"s_cbranch_scc1 dg_skip{kidx}")
        e("s_mov_b32 s66, 256")
        e("s_mov_b32 s67, 0x20000")
        e("v_mov_b32 v0, 0")
        e("s_mov_b64 exec, 1")
        e("v_mov_b32 v2, s70")
        e("v_mov_b32 v3, s74")
        e("v_mov_b32 v4, s72")
        e("v_mov_b32 v5, s76")
        e(f"buffer_store_dwordx4 v[2:5], v0, s[64:67], 0 offen offset:{kidx*16}")
        e("s_waitcnt vmcnt(0)")
        lab(f"dg_skip{kidx}")
    if not DIAG: return
    e("s_waitcnt vmcnt(0)")
    stamp(n)
    e(f"s_add_u32 s64, s6, {WS_DIAG + kidx*0x40000}")
    e("s_addc_u32 s65, s7, 0")
    e("s_mov_b32 s66, 0x40000")
    e("s_mov_b32 s67, 0x20000")
    e("s_lshl_b32 s68, s2, 2")
    e("s_add_u32 s68, s68, s16")
    e("s_lshl_b32 s68, s68, 8")
    e("v_mov_b32 v0, 0")
    e("s_mov_b64 exec, 1")
    for i in range(n+1):
        e(f"v_mov_b32 v2, s{70+2*i}")
        e(f"v_mov_b32 v3, s{71+2*i}")
        e(f"buffer_store_dwordx2 v[2:3], v0, s[64:67], s68 offen offset:{i*8}")
    e("s_getreg_b32 s69, hwreg(HW_REG_XCC_ID)")
    e("v_mov_b32 v2, s69")
    e("s_getreg_b32 s69, hwreg(HW_REG_HW_ID)")
    e("v_mov_b32 v3, s69")
    e(f"buffer_store_dwordx2 v[2:3], v0, s[64:67], s68 offen offset:248")
    e("s_waitcnt vmcnt(0)")

def srd(d, lo, size, off=0):
    if off:
        e(f"s_add_u32 s{d}, s{lo}, {off}")
        e(f"s_addc_u32 s{d+1}, s{lo+1}, 0")
    else:
        e(f"s_mov_b32 s{d}, s{lo}")
        e(f"s_mov_b32 s{d+1}, s{lo+1}")
    e(f"s_mov_b32 s{d+2}, {size}")
    e(f"s_mov_b32 s{d+3}, 0x20000")

def bf16r(dst, src):
    e(f"v_cvt_pk_bf16_f32 v{dst}, v{src}, v{src}")
    e(f"v_lshlrev_b32 v{dst}, 16, v{dst}")

def vr(b, n=4): return f"v[{b}:{b+n-1}]"
def ar(b, n=4): return f"a[{b}:{b+n-1}]"

def mfma(d, a, b, c=None):
    c = d if c is None else c
    if L and L[-1].split()[0] in ("v_exp_f32", "v_rcp_f32", "v_sqrt_f32", "v_rsq_f32"): e("s_nop 1")
    e(f"v_mfma_f32_16x16x32_bf16 {d}, {a}, {b}, {c}")

def kernel_begin(name):
    raw(f".globl {name}")
    raw(".p2align 8")
    raw(f".type {name},@function")
    lab(name)

CT = os.environ.get("CT", "1") == "1"
MAP34 = os.environ.get("MAP34", "1") == "1"
CTS = os.environ.get("CTS", "1") == "1"
_ctn = [0]
def code_touch(target, endl, vtmp, dst, back=False, n=1):
    if not CT: return []
    _ctn[0] += 1
    u = f"ct_pc{_ctn[0]}"
    o = ["s_getpc_b64 s[96:97]", u + ":"]
    if back:
        o += [f"s_sub_u32 s96, s96, {u}-{target}", "s_subb_u32 s97, s97, 0"]
    else:
        o += [f"s_add_u32 s96, s96, {target}-{u}", "s_addc_u32 s97, s97, 0"]
    o += [f"s_mov_b32 s98, {endl}-{target}", "s_mov_b32 s99, 0x20000", f"v_lshlrev_b32 v{vtmp}, 7, v0"]
    o.append(f"buffer_load_dword {dst}, v{vtmp}, s[96:99], 0 offen")
    if n > 1:
        o.append(f"v_add_u32 v{vtmp}, 32768, v{vtmp}")
        o.append(f"buffer_load_dword {dst}, v{vtmp}, s[96:99], 0 offen")
    return o

def lane_setup():
    e("v_lshrrev_b32 v4, 6, v0")
    e("v_and_b32 v1, 63, v0")
    e("v_readfirstlane_b32 s16, v4")
    e("v_and_b32 v2, 15, v1")
    e("v_lshrrev_b32 v3, 4, v1")

def ln_stats(vsum, vsq, vm, vrd, t):
    e(f"v_mul_f32 v{vm}, s17, v{vsum}")
    e(f"v_mul_f32 v{t}, s17, v{vsq}")
    e(f"v_fma_f32 v{t}, -v{vm}, v{vm}, v{t}")
    e(f"v_max_f32 v{t}, 0, v{t}")
    bf16r(vm, vm)
    bf16r(t, t)
    e(f"v_add_f32 v{t}, s18, v{t}")
    bf16r(t, t)
    e(f"v_sqrt_f32 v{t}, v{t}")
    e("s_nop 0")
    bf16r(t, t)
    e(f"v_rcp_f32 v{vrd}, v{t}")
    e("s_nop 0")

def gen_k1():
    kernel_begin("k1_kernel")
    e("s_cmp_ge_u32 s2, 256")
    e("s_cbranch_scc1 k1_end")
    stamp(0)
    e("s_load_dwordx2 s[4:5], s[0:1], 0")
    e("s_load_dwordx2 s[8:9], s[0:1], 24")
    e("s_load_dwordx2 s[10:11], s[0:1], 32")
    e("s_load_dwordx2 s[6:7], s[0:1], 88")
    e("s_load_dwordx4 s[56:59], s[0:1], 8")
    PT = int(os.environ.get("PT", "-1"))
    if PT >= 0:
        e("s_load_dwordx4 s[36:39], s[0:1], 48")
        e("s_load_dwordx4 s[40:43], s[0:1], 64")
    for l in code_touch("k1_kernel", "code_end", 154, "v155", back=True, n=2): e(l)
    lane_setup()
    e("s_and_b32 s19, s2, 3")
    e("s_lshl_b32 s19, s19, 2")
    e("s_bfe_u32 s21, s2, 0x20003")
    e("s_add_u32 s19, s19, s21")
    e("s_lshr_b32 s22, s2, 5")
    e("s_bfe_u32 s20, s2, 0x10002")
    e("s_lshl_b32 s20, s20, 3")
    e("s_add_u32 s20, s20, s22")
    e("s_add_u32 s48, s21, s22")
    e("v_lshlrev_b32 v15, 4, v1")
    e("v_lshrrev_b32 v25, 3, v1")
    e("v_and_b32 v26, 7, v1")
    e("v_xor_b32 v26, v26, v25")
    e("v_mul_u32_u24 v25, 1280, v25")
    e("v_lshl_add_u32 v25, v26, 4, v25")
    e("s_and_b32 s21, s20, 7")
    e("s_mul_i32 s21, s21, 102400")
    e("s_and_b32 s22, s16, 1")
    e("s_mul_i32 s22, s22, 51200")
    e("s_add_u32 s21, s21, s22")
    e("s_lshr_b32 s22, s16, 1")
    e("s_lshl_b32 s22, s22, 7")
    e("s_add_u32 s21, s21, s22")
    e("v_add_u32 v4, s21, v25")
    e("s_lshl_b32 s21, s19, 7")
    e("s_lshl_b32 s22, s16, 5")
    e("s_add_u32 s21, s21, s22")
    e("s_mul_i32 s21, s21, 1280")
    e("v_add_u32 v5, s21, v25")
    for j in range(1, 4):
        e(f"v_add_u32 v{5+j}, {j*10240 - j*1024}, v5")
    e("s_mul_i32 s46, s16, 12288")
    e("s_add_u32 s46, s46, 102400")
    e("s_mul_i32 s47, s16, 5120")
    e("s_mul_i32 s49, s48, 205")
    e("s_lshr_b32 s49, s49, 10")
    e("s_mul_i32 s49, s49, 5")
    e("s_sub_u32 s49, s48, s49")
    if os.environ.get("K1NOROT"): e("s_mov_b32 s49, 0")
    for sc in range(5):
        e(f"s_lshl_b32 s{50+sc}, s49, 8")
        e("s_add_u32 s49, s49, 1")
        e("s_cmp_ge_u32 s49, 5")
        e("s_cselect_b32 s49, 0, s49")
    if os.environ.get("K1ST"): e("s_memtime s[84:85]")
    e("s_waitcnt lgkmcnt(0)")
    if os.environ.get("K1ST"): stamp(8)
    srd(24, 4, 2621440)
    e("s_cmp_lt_u32 s20, 8")
    e("s_cselect_b32 s28, s8, s10")
    e("s_cselect_b32 s29, s9, s11")
    e("s_mov_b32 s30, 819200")
    e("s_mov_b32 s31, 0x20000")
    vm = VM()
    XS = 76
    def wdma(sc):
        o = []
        for u in range(5):
            o.append(f"s_add_u32 m0, s47, {sc*20480 + u*1024}")
            o.append(f"s_add_u32 s23, s{50+sc}, {u*10240}")
            o.append("buffer_load_dwordx4 v4, s[28:31], s23 offen lds")
        vm.issue(("W", sc), 5)
        return o
    def xld(c):
        if c < 3:
            o = [f"s_add_u32 m0, s46, {(c%3)*4096}", f"s_add_u32 s22, s{50+(c>>1)}, {(c&1)*128}"]
            for j in range(4):
                o.append(f"buffer_load_dwordx4 v{5+j}, s[24:27], s22 offen offset:{j*1024} lds")
        else:
            o = [f"s_add_u32 s22, s{50+(c>>1)}, {(c&1)*128}"]
            for j in range(4):
                o.append(f"buffer_load_dwordx4 {ar(XS+(c-3)*16+j*4)}, v{5+j}, s[24:27], s22 offen offset:{j*1024}")
        vm.issue(("X", c), 4)
        return o
    for l in wdma(0) + xld(0) + xld(1): e(l)
    if os.environ.get("K1ST"): stamp(9)
    e(f"s_mov_b32 s17, {INV640}")
    e(f"s_mov_b32 s18, {EPS}")
    e("v_and_b32 v26, 7, v2")
    e("v_xor_b32 v26, v26, v3")
    e("v_lshlrev_b32 v11, 7, v2")
    e("v_lshl_add_u32 v11, v26, 4, v11")
    e("v_xor_b32 v12, 64, v11")
    e("v_add_u32 v13, 61440, v11")
    e("v_add_u32 v14, 61440, v12")
    e("v_add_u32 v9, s46, v11")
    e("v_add_u32 v10, s46, v12")
    srd(32, 6, SZ_ABP, WS_ABP)
    TST = [int(x) for x in os.environ.get("TST", "3,6").split(",")]
    PL, PO, PA = 144, 176, 144
    e(f"v_add_u32 v{PA+8}, s46, v15")
    e("s_cmp_lt_u32 s2, 128")
    e("s_cselect_b32 s56, s56, s58")
    e("s_cselect_b32 s57, s57, s59")
    e("s_mov_b32 s58, 8388608")
    e("s_mov_b32 s59, 0x20000")
    if os.environ.get("TSH"):
        e("s_add_u32 s21, s2, 3")
        e("s_and_b32 s21, s21, 7")
    else:
        e("s_and_b32 s21, s2, 7")
    e("s_bfe_u32 s22, s2, 0x20005")
    e("s_lshl_b32 s21, s21, 2")
    e("s_add_u32 s21, s21, s22")
    e("s_lshl_b32 s21, s21, 2")
    e("s_bfe_u32 s22, s2, 0x20003")
    e("s_add_u32 s21, s21, s22")
    e("s_lshl_b32 s21, s21, 2")
    e("s_add_u32 s21, s21, s16")
    e("s_lshl_b32 s91, s21, 14")
    e(f"v_lshlrev_b32 v{PA+10}, 7, v1")
    def touch():
        if os.environ.get("NOPF"): return []
        vm.issue("T", 1)
        return [f"buffer_load_dword v{PA+11}, v{PA+10}, s[56:59], s91 offen", "s_add_u32 s91, s91, 8192"]
    for t in TST:
        if t == -1:
            for l in touch(): e(l)
    for a in range(76):
        e(f"v_accvgpr_write_b32 a{a}, 0")
    ONES = 16
    for r in range(4):
        e(f"v_mov_b32 v{ONES+r}, 0x3f803f80")
    FB = 32
    def XF(b, st, h): return FB + b * 56 + (st * 2 + h) * 4
    def WF(b, i, h): return FB + b * 56 + 16 + (i * 2 + h) * 4
    def fread(c):
        o = []
        b = c & 1
        for h in range(2):
            for st in range(2):
                o.append(f"ds_read_b128 {vr(XF(b,st,h))}, v{9+h} offset:{(c%3)*4096 + st*2048}")
            for i in range(5):
                off = c * 10240 + i * 2048
                if off < 61440:
                    o.append(f"ds_read_b128 {vr(WF(b,i,h))}, v{11+h} offset:{off}")
                else:
                    o.append(f"ds_read_b128 {vr(WF(b,i,h))}, v{13+h} offset:{off-61440}")
        return o
    stamp(1)
    e(f"s_waitcnt vmcnt({vm.younger([('W',0),('X',0)])})")
    e("s_barrier")
    stamp(2)
    for l in fread(0): e(l)
    for c in range(10):
        b = c & 1
        need = []
        if c + 1 <= 2: need.append(("X", c + 1))
        if c + 1 < 10: need.append(("W", (c + 1) >> 1))
        if 3 <= c + 2 <= 9: need.append(("X", c + 2))
        if need and c < 8:
            e(f"s_waitcnt vmcnt({vm.younger(need)}) lgkmcnt(0)")
        else:
            e("s_waitcnt lgkmcnt(0)")
        if c in (1, 3, 5, 7): e("s_barrier")
        NM = 28
        slots = [[] for _ in range(NM)]
        if c + 1 < 10:
            for j, l in enumerate(fread(c + 1)):
                slots[j].append(l)
        if 3 <= c + 2 <= 9:
            for j in range(4):
                slots[14 + j].append(f"ds_write_b128 v{PA+8}, {ar(XS+(c-1)*16+j*4)} offset:{((c+2)%3)*4096 + j*1024}")
        lst = []
        if c < 4: lst = wdma(c + 1) + xld(2 * c + 2) + xld(2 * c + 3)
        for t in TST:
            if t == c: lst += touch()
        if c == PT:
            PSH = int(os.environ.get("PSH", "16"))
            slots[22] += ["s_add_u32 s92, s6, 0x1000000", "s_addc_u32 s93, s7, 0", "s_mov_b32 s60, s6", "s_mov_b32 s61, s7",
                          "s_mov_b32 s62, 0x1000000", "s_mov_b32 s94, 0x1000000", "s_mov_b32 s44, 18",
                          "s_cmp_eq_u32 s16, 1", "s_cselect_b32 s60, s42, s60", "s_cselect_b32 s61, s43, s61", "s_cselect_b32 s92, s36, s92", "s_cselect_b32 s93, s37, s93",
                          "s_cselect_b32 s62, 2621440, s62", "s_cselect_b32 s94, 1966080, s94", f"s_cselect_b32 s44, {PSH}, s44"]
            slots[23] += ["s_cmp_eq_u32 s16, 2", "s_cselect_b32 s60, s38, s60", "s_cselect_b32 s61, s39, s61", "s_cselect_b32 s92, s40, s92", "s_cselect_b32 s93, s41, s93",
                          "s_cselect_b32 s62, 1966080, s62", "s_cselect_b32 s94, 1966080, s94", f"s_cselect_b32 s44, {PSH}, s44",
                          "s_mov_b32 s63, 0x20000", "s_mov_b32 s95, 0x20000", "v_lshlrev_b32 v157, s44, v1",
                          "buffer_load_dword v155, v157, s[60:63], 0 offen", "buffer_load_dword v155, v157, s[92:95], 0 offen"]
            vm.issue("PT", 2)
        if c == int(os.environ.get("CT1", "-1")) and CT:
            slots[20] += code_touch("k2_kernel", "k3_kernel", 156, "v155")
            vm.issue("CT", 1)
        groups = []; grp = []
        for l in lst:
            if grp and any(x.startswith("buffer") for x in grp) and not (l.startswith("s_add_u32 s8") or l.startswith("s_add_u32 s9")):
                groups.append(grp); grp = []
            grp.append(l)
        if grp: groups.append(grp)
        for g, gl in enumerate(groups):
            slots[g] = gl + slots[g]
        ml = []
        for h in range(2):
            for i in range(5):
                for st in range(2):
                    ml.append((ar((st*5+i)*4), vr(XF(b,st,h)), vr(WF(b,i,h))))
            for st in range(2):
                ml.append((ar(40+4*st), vr(XF(b,st,h)), vr(ONES)))
                ml.append((ar(48+4*st), vr(XF(b,st,h)), vr(XF(b,st,h))))
        for k, m in enumerate(ml):
            mfma(*m)
            for l in slots[k]: e(l)
        for wv in range(4):
            e(f"s_cmp_lg_u32 s16, {wv}")
            e(f"s_cbranch_scc1 k1_ws{c}_{wv}")
            for i in range(5):
                for h in range(2):
                    if (c * 2 + i * 2 + h) % 4 == wv:
                        mfma(ar(56+4*i), vr(ONES), vr(WF(b,i,h)))
            lab(f"k1_ws{c}_{wv}")
    stamp(3)
    WX = 151552
    e("s_nop 7")
    e("s_nop 7")
    for i in range(5):
        e(f"v_accvgpr_read_b32 v{20+i}, a{56+4*i}")
    e("v_lshlrev_b32 v25, 2, v2")
    e("s_mul_i32 s21, s16, 320")
    e(f"s_add_u32 s21, s21, {WX}")
    e("v_add_u32 v26, s21, v25")
    for i in range(5):
        e(f"ds_write_b32 v26, v{20+i} offset:{i*64}")
    e("v_mul_u32_u24 v12, 80, v3")
    for st in range(2):
        for r in range(4):
            e(f"v_accvgpr_read_b32 v{32+st*4+r}, a{40+4*st+r}")
            e(f"v_accvgpr_read_b32 v{40+st*4+r}, a{48+4*st+r}")
    e("s_nop 1")
    for st in range(2):
        for r in range(4):
            e(f"ds_bpermute_b32 v{40+st*4+r}, v12, v{40+st*4+r} offset:{4*r}")
    e(f"v_add_u32 v26, {WX}, v25")
    e("s_waitcnt lgkmcnt(0)")
    e("s_barrier")
    for wv in range(4):
        for i in range(5):
            e(f"ds_read_b32 v{124+wv*5+i}, v26 offset:{wv*320 + i*64}")
    for st in range(2):
        for r in range(4):
            ln_stats(32+st*4+r, 40+st*4+r, 52+st*4+r, 60+st*4+r, 48)
    e("s_waitcnt lgkmcnt(0)")
    for i in range(5):
        e(f"v_add_f32 v{20+i}, v{124+i}, v{129+i}")
        e(f"v_add_f32 v{124+i}, v{134+i}, v{139+i}")
        e(f"v_add_f32 v{20+i}, v{20+i}, v{124+i}")
    e("v_and_b32 v26, 1, v3")
    e("v_lshlrev_b32 v26, 9, v26")
    e("v_lshrrev_b32 v27, 1, v3")
    e("v_lshl_add_u32 v26, v27, 8, v26")
    e("v_lshl_add_u32 v26, v2, 4, v26")
    e("s_lshl_b32 s22, s19, 2")
    e("s_add_u32 s21, s22, s16")
    e("s_lshl_b32 s21, s21, 10")
    e(f"s_mul_i32 s22, s20, {5*ES}")
    e("s_add_u32 s21, s21, s22")
    for i in range(5):
        T = 72 + (i & 1) * 16
        O = 104 + i * 4
        for st in range(2):
            for r in range(4):
                e(f"v_accvgpr_read_b32 v{T+st*4+r}, a{(st*5+i)*4+r}")
        for st in range(2):
            for r in range(4):
                e(f"v_fma_f32 v{T+st*4+r}, -v{52+st*4+r}, v{20+i}, v{T+st*4+r}")
        for st in range(2):
            for r in range(4):
                e(f"v_mul_f32 v{T+st*4+r}, v{T+st*4+r}, v{60+st*4+r}")
        for st in range(2):
            e(f"v_cvt_pk_bf16_f32 v{O+2*st}, v{T+st*4}, v{T+st*4+1}")
            e(f"v_cvt_pk_bf16_f32 v{O+2*st+1}, v{T+st*4+2}, v{T+st*4+3}")
        e("s_nop 1")
        e(f"v_permlane16_swap_b32 v{O}, v{O+2}")
        e(f"v_permlane16_swap_b32 v{O+1}, v{O+3}")
        e(f"s_add_u32 s23, s21, {i*ES}")
        e("s_nop 1")
        e(f"buffer_store_dwordx4 {vr(O)}, v26, s[32:35], s23 offen")
        vm.issue("S", 1)
    stamp(4)
    lab("k1_fin")
    stamp(5)
    stamp_dump(0, 6)
    if os.environ.get("K1ST"):
        for i in range(7, 10):
            e(f"v_mov_b32 v2, s{70+2*i}")
            e(f"v_mov_b32 v3, s{71+2*i}")
            e(f"buffer_store_dwordx2 v[2:3], v0, s[64:67], s68 offen offset:{i*8}")
        e("s_waitcnt vmcnt(0)")
    lab("k1_end")
    e("s_endpgm")

ACC = 176
BUF = 32
def bufA(b, i): return BUF + b * 36 + i * 4
def bufB(b, n): return BUF + b * 36 + 20 + n * 4
def acc(i, n): return ACC + (i * 4 + n) * 4

def splitk_core(nsteps, srdA, srdB, shA, shB, vA, vB, mask):
    def addr():
        e("s_add_u32 s44, s40, s41")
        e(f"s_lshl_b32 s42, s44, {shA}")
        e(f"s_lshl_b32 s43, s44, {shB}")
        e("s_add_u32 s40, s40, 1")
        if mask:
            e(f"s_and_b32 s40, s40, {nsteps-1}")
        else:
            e(f"s_cmp_ge_u32 s40, {nsteps}")
            e("s_cselect_b32 s40, 0, s40")
    def loads(b):
        out = []
        for n in range(4):
            out.append(f"buffer_load_dwordx4 {vr(bufB(b,n))}, v{vB+n}, s[{srdB}:{srdB+3}], s43 offen")
        for i in range(5):
            out.append(f"buffer_load_dwordx4 {vr(bufA(b,i))}, v{vA+i}, s[{srdA}:{srdA+3}], s42 offen")
        return out
    for it in range(3):
        addr()
        for l in loads(it): e(l)
    for a in range(80):
        e(f"v_mov_b32 v{ACC+a}, 0")
    for it in range(nsteps):
        b = it % 4
        rem = min(nsteps - 1 - it, 2)
        e(f"s_waitcnt vmcnt({9*rem})")
        ld = []
        if it + 3 < nsteps:
            addr()
            ld = loads((it + 3) % 4)
        k = 0
        for i in range(5):
            for n in range(4):
                mfma(vr(acc(i,n)), vr(bufA(b,i)), vr(bufB(b,n)))
                k += 1
                if k % 2 == 0 and ld:
                    e(ld.pop(0))
        assert not ld

def splitk_exchange():
    e("s_nop 7")
    e("s_nop 7")
    e("s_mul_i32 s44, s16, 5120")
    e("v_add_u32 v9, s44, v8")
    e("v_add_u32 v10, 61440, v9")
    for n in range(4):
        for i in range(5):
            if n < 3:
                e(f"ds_write_b128 v9, {vr(acc(i,n))} offset:{(n*20+i)*1024}")
            else:
                e(f"ds_write_b128 v10, {vr(acc(i,n))} offset:{i*1024}")
    e("s_mul_i32 s44, s16, 20480")
    e("v_add_u32 v9, s44, v8")
    e("s_waitcnt lgkmcnt(0)")
    e("s_barrier")
    for src in range(4):
        for i in range(5):
            e(f"ds_read_b128 {vr(BUF+(src*5+i)*4)}, v9 offset:{(src*5+i)*1024}")


def hp_addr(vdst, s_st, s_d16base, sdst_list):
    e(f"v_lshrrev_b32 v{vdst}, 1, v3")
    e(f"v_lshlrev_b32 v{vdst}, 8, v{vdst}")
    e(f"v_lshl_add_u32 v{vdst}, v2, 4, v{vdst}")
    e("v_and_b32 v10, 1, v3")
    e(f"v_lshl_add_u32 v{vdst}, v10, 3, v{vdst}")
    e(f"s_mul_i32 s44, s{s_st}, 20480")
    for i in range(5):
        e(f"s_add_u32 s45, s{s_d16base}, {i}")
        e(f"s_lshl_b32 s45, s45, 9")
        e(f"s_add_u32 s{sdst_list[i]}, s44, s45")

def gen_k2():
    ROT = os.environ.get("K2ROT", "0") == "1"
    kernel_begin("k2_kernel")
    e("s_cmp_ge_u32 s2, 256")
    e("s_cbranch_scc1 k2_end")
    stamp(0)
    e("s_load_dwordx2 s[4:5], s[0:1], 0")
    e("s_load_dwordx2 s[8:9], s[0:1], 8")
    e("s_load_dwordx2 s[10:11], s[0:1], 16")
    e("s_load_dwordx2 s[6:7], s[0:1], 88")
    e("s_load_dwordx4 s[12:15], s[0:1], 48")
    e("s_load_dwordx2 s[60:61], s[0:1], 64")
    if CTS:
        for l in code_touch("k2_kernel", "k3_kernel", 12, "a91", back=True): e(l)
    lane_setup()
    if os.environ.get("MAP2", "1") == "1":
        e("s_bfe_u32 s19, s2, 0x20001")
        e("s_bfe_u32 s21, s2, 0x30003")
        e("s_lshl_b32 s19, s19, 3")
        e("s_add_u32 s19, s19, s21")
        e("s_and_b32 s20, s2, 1")
        e("s_lshl_b32 s20, s20, 2")
        e("s_lshr_b32 s21, s2, 6")
        e("s_add_u32 s20, s20, s21")
    else:
        e("s_and_b32 s19, s2, 7")
        e("s_lshr_b32 s20, s2, 3")
        e("s_lshr_b32 s21, s20, 3")
        e("s_lshl_b32 s19, s19, 2")
        e("s_add_u32 s19, s19, s21")
        e("s_and_b32 s20, s20, 7")
    e("v_lshlrev_b32 v8, 4, v1")
    VC, VA, VB0, VB1 = 16, 24, 29, 30
    e("v_lshrrev_b32 v4, 3, v1")
    e("v_and_b32 v5, 7, v1")
    e("v_xor_b32 v5, v5, v4")
    e("v_lshlrev_b32 v4, 12, v4")
    e("v_lshl_add_u32 v4, v5, 4, v4")
    e("s_lshl_b32 s22, s19, 18")
    if os.environ.get("XC"): e("s_mov_b32 s22, 0")
    e(f"v_add_u32 v{VC}, s22, v4")
    for j in range(1, 8):
        e(f"v_add_u32 v{VC+j}, {j*32768 - (j%4)*1024}, v{VC}")
    e("s_lshr_b32 s22, s16, 1")
    e("s_mul_i32 s22, s22, 40")
    e("s_mul_i32 s23, s20, 5")
    if os.environ.get("XA"): e("s_mov_b32 s23, 0")
    e("s_add_u32 s22, s22, s23")
    e(f"s_mul_i32 s22, s22, {ES}")
    e(f"v_add_u32 v{VA}, s22, v8")
    for i in range(1, 5):
        e(f"v_add_u32 v{VA+i}, {i*ES}, v{VA}")
    e("s_lshl_b32 s46, s16, 15")
    e("v_and_b32 v5, 7, v2")
    e("v_xor_b32 v5, v5, v3")
    e("v_lshlrev_b32 v4, 7, v2")
    e("v_lshl_add_u32 v4, v5, 4, v4")
    e(f"v_add_u32 v{VB0}, s46, v4")
    e(f"v_xor_b32 v{VB1}, 64, v{VB0}")
    e("s_and_b32 s41, s16, 1")
    e("s_lshl_b32 s47, s41, 11")
    e("s_lshl_b32 s41, s41, 15")
    if ROT:
        e("s_lshr_b32 s40, s2, 6")
        e("s_lshl_b32 s40, s40, 2")
    elif os.environ.get("K2ROT", "0") == "2":
        e("s_and_b32 s40, s2, 7")
        e("s_lshl_b32 s40, s40, 1")
    elif os.environ.get("K2ROT", "0") == "3":
        e("s_and_b32 s40, s2, 3")
        e("s_lshl_b32 s40, s40, 2")
    else:
        e("s_mov_b32 s40, 0")
    LEAD = int(os.environ.get("LEAD", "0"))
    LM = os.environ.get("LM", "me")
    e("s_mov_b32 s95, 0")
    if "m" in LM: e("s_lshr_b32 s95, s2, 6")
    if "e" in LM: e("s_add_u32 s95, s95, s20")
    e("s_and_b32 s95, s95, 3")
    e("s_lshl_b32 s21, s19, 6")
    e("s_lshl_b32 s22, s16, 4")
    e("s_add_u32 s21, s21, s22")
    e("s_mul_i32 s22, s21, 1280")
    e("s_mul_i32 s23, s20, 160")
    e("s_add_u32 s22, s22, s23")
    e("v_mul_u32_u24 v11, 1280, v2")
    e("v_lshl_add_u32 v11, v3, 3, v11")
    e("v_add_u32 v11, s22, v11")
    e("s_waitcnt lgkmcnt(0)")
    srd(24, 4, 2621440)
    e("s_cmp_lt_u32 s16, 2")
    e("s_cselect_b32 s28, s8, s10")
    e("s_cselect_b32 s29, s9, s11")
    e("s_mov_b32 s30, 8388608")
    e("s_mov_b32 s31, 0x20000")
    srd(32, 6, SZ_ABP, WS_ABP)
    stamp(1)
    AB = 32
    BB = 192
    def A(b, h, i):
        if b < 2: return vr(AB + (b * 10 + h * 5 + i) * 4)
        return ar(96 + ((b - 2) * 10 + h * 5 + i) * 4)
    def B(b, h, n): return BB + (b * 8 + h * 4 + n) * 4
    vm = VM()
    def stage_issue(stg):
        b = stg % 4
        vm.issue(("S", stg), 18)
        o = []
        if LEAD:
            o.append(f"s_cmp_eq_u32 s95, {stg & 3}")
            o.append(f"s_cselect_b32 s40, {(stg + LEAD) & 15}, {stg}")
        o.append("s_lshl_b32 s42, s40, 7")
        o.append("s_add_u32 s42, s42, s47")
        o.append(f"s_add_u32 m0, s46, {b*8192}")
        o.append("s_lshl_b32 s43, s40, 11")
        for j in range(4):
            o.append(f"buffer_load_dwordx4 v{VC+j}, s[28:31], s42 offen offset:{j*1024} lds")
        o.append(f"s_add_u32 m0, s46, {b*8192+4096}")
        o.append("s_add_u32 s43, s43, s41")
        for j in range(4, 8):
            o.append(f"buffer_load_dwordx4 v{VC+j}, s[28:31], s42 offen offset:{(j-4)*1024} lds")
        for h in range(2):
            for i in range(5):
                o.append(f"buffer_load_dwordx4 {A(b,h,i)}, v{VA+i}, s[32:35], s43 offen offset:{h*1024}")
        o.append("s_add_u32 s40, s40, 1")
        o.append(f"s_and_b32 s40, s40, {os.environ.get('XK', '15')}")
        return o
    def bread(st):
        o = []
        for h in range(2):
            for n in range(4):
                o.append(f"ds_read_b128 {vr(B(st&1,h,n))}, v{VB0+h} offset:{(st%4)*8192 + n*2048}")
        return o
    if os.environ.get("ABT"):
        e("s_lshl_b32 s22, s2, 2")
        e("s_add_u32 s22, s22, s16")
        e("s_mul_i32 s22, s22, 5120")
        e("v_lshlrev_b32 v12, 7, v1")
        e("s_mov_b32 exec_hi, 0xff")
        e("buffer_load_dword a92, v12, s[32:35], s22 offen")
        e("s_mov_b32 exec_hi, -1")
    for st in range(3):
        for l in stage_issue(st): e(l)
    for i in range(5):
        e(f"buffer_load_dwordx2 a[{80+2*i}:{81+2*i}], v11, s[24:27], 0 offen offset:{i*32}")
    vm.issue("X", 5)
    PL, PO, PA = 112, 144, 176
    e("s_mul_i32 s48, s2, 3")
    e("s_add_u32 s48, s48, s16")
    e("s_cmp_ge_u32 s2, 240")
    e("s_cselect_b64 vcc, -1, 0")
    e("s_cmp_eq_u32 s16, 3")
    e("s_cselect_b64 vcc, -1, vcc")
    e("s_cbranch_vccnz k2_pdum")
    e("s_cmp_ge_u32 s48, 480")
    e("s_cbranch_scc1 k2_pdn")
    e("s_mul_i32 s49, s48, 52429")
    e("s_lshr_b32 s49, s49, 20")
    e("s_mul_i32 s92, s49, 20")
    e("s_sub_u32 s92, s48, s92")
    srd(36, 12, 1966080)
    srd(56, 14, 1966080)
    e("v_bfe_u32 v12, v1, 3, 2")
    e("v_and_b32 v13, 7, v1")
    e("v_lshrrev_b32 v14, 5, v1")
    e(f"v_mul_u32_u24 v{PA+9}, 24576, v12")
    e(f"v_lshl_add_u32 v{PA+9}, v13, 4, v{PA+9}")
    e("v_mul_u32_u24 v15, 12288, v14")
    e(f"v_add_u32 v{PA+9}, v{PA+9}, v15")
    e("s_mul_i32 s84, s92, 98304")
    e("s_lshl_b32 s85, s49, 7")
    e("s_add_u32 s84, s84, s85")
    e("s_mov_b32 s85, s84")
    e("s_mov_b32 s86, 3072")
    e("v_mul_u32_u24 v13, 1040, v13")
    e("v_lshl_add_u32 v13, v12, 8, v13")
    e(f"v_lshl_add_u32 v{PA}, v14, 3, v13")
    e("s_mov_b32 s93, 64")
    e("s_mov_b32 s94, 32")
    e("s_mul_i32 s87, s49, 163840")
    e("s_lshl_b32 s92, s92, 10")
    e("s_add_u32 s87, s87, s92")
    e(f"s_add_u32 s87, s87, {WS_WGU}")
    e("s_mov_b32 s88, 20480")
    e("s_branch k2_pk")
    lab("k2_pdn")
    e("s_sub_u32 s48, s48, 480")
    e("s_mul_i32 s49, s48, 43691")
    e("s_lshr_b32 s49, s49, 21")
    e("s_mul_i32 s92, s49, 48")
    e("s_sub_u32 s92, s48, s92")
    srd(36, 60, 1966080)
    srd(56, 60, 1966080)
    e(f"v_mul_u32_u24 v{PA+9}, 10240, v3")
    e(f"v_lshl_add_u32 v{PA+9}, v2, 4, v{PA+9}")
    e("s_mul_i32 s84, s92, 40960")
    e("s_lshl_b32 s85, s49, 8")
    e("s_add_u32 s84, s84, s85")
    e("s_add_u32 s85, s84, 5120")
    e("s_mov_b32 s86, 1280")
    e("v_lshrrev_b32 v13, 1, v2")
    e("v_mul_u32_u24 v13, 1040, v13")
    e("v_and_b32 v15, 1, v2")
    e("v_lshlrev_b32 v15, 7, v15")
    e("v_lshl_add_u32 v15, v3, 8, v15")
    e(f"v_add_u32 v{PA}, v15, v13")
    e("s_mov_b32 s93, 32")
    e("s_mov_b32 s94, 8")
    e("s_mul_i32 s87, s49, 393216")
    e("s_lshl_b32 s92, s92, 10")
    e("s_add_u32 s87, s87, s92")
    e(f"s_add_u32 s87, s87, {WS_WDN}")
    e("s_mov_b32 s88, 49152")
    lab("k2_pk")
    for which in range(2):
        for j in range(4):
            sr = 84 + which
            e(f"buffer_load_dwordx4 {vr(PL+(which*4+j)*4)}, v{PA+9}, s[{36+20*which}:{39+20*which}], s{sr} offen")
            e(f"s_add_u32 s{sr}, s{sr}, s86")
    e("s_mul_i32 s49, s16, 8320")
    e("s_add_u32 s49, s49, 131072")
    e(f"v_add_u32 v{PA}, s49, v{PA}")
    for k in range(1, 4):
        e(f"v_add_u32 v{PA+k}, s93, v{PA+k-1}")
    for k in range(4):
        e(f"v_add_u32 v{PA+4+k}, s94, v{PA+k}")
    e(f"v_add_u32 v{PA+12}, s49, v8")
    e("s_branch k2_pdone")
    lab("k2_pdum")
    def dummy(n):
        o = ["s_mov_b64 exec, 1"]
        for j in range(n):
            o.append("buffer_load_dword a90, v8, s[24:27], 0 offen")
        o.append("s_mov_b64 exec, -1")
        return o
    for l in dummy(8): e(l)
    lab("k2_pdone")
    vm.issue("P", 8)
    e("s_mov_b32 s89, 0x05040100")
    e("s_mov_b32 s90, 0x07060302")
    e("s_mov_b32 s64, s6")
    e("s_mov_b32 s65, s7")
    e(f"s_mov_b32 s66, {WS_WDN + SZ_WDN}")
    e("s_mov_b32 s67, 0x20000")
    PST = int(os.environ.get("PST", "3"))
    srd(48, 6, SZ_HP, WS_HP)
    srd(52, 6, SZ_HSTAT, WS_HSTAT)
    for a in range(80):
        e(f"v_accvgpr_write_b32 a{a}, 0")
    e(f"s_waitcnt vmcnt({vm.younger([('S', 0)])})")
    for l in bread(0): e(l)
    NS = 16
    for st in range(NS):
        b = st % 4
        if st + 1 < NS:
            allowed = vm.younger([("S", st + 1)] + (["P"] if st == PST else []))
            e(f"s_waitcnt vmcnt({allowed}) lgkmcnt(0)")
        else:
            e("s_waitcnt lgkmcnt(0)")
        if os.environ.get("K2ST") and st in (0,1,2,3,4,6,8,12): stamp(7 + (0,1,2,3,4,6,8,12).index(st))
        slots = [[] for _ in range(40)]
        if st + 1 < NS:
            for j, l in enumerate(bread(st + 1)):
                slots[1 + 2*j].append(l)
        if st + 3 < NS:
            grp = []; groups = []
            for l in stage_issue(st + 3):
                grp.append(l)
                if l.startswith("buffer"):
                    groups.append(grp); grp = []
            groups[-1] += grp
            for g, gl in enumerate(groups):
                slots[(g * 40) // len(groups)] += gl
        if st == int(os.environ.get("CT2", "-1")) and CT:
            slots[30] += code_touch("k3_kernel", "k4_kernel", 12, "a91")
            vm.issue("CT", 1)
        pk = []
        if st == PST:
            for which in range(2):
                for ee in range(8):
                    o = PO + (which*8+ee)*2
                    g = []
                    for t in range(2):
                        g.append(f"v_perm_b32 v{o+t}, v{PL+(which*4+2*t+1)*4+(ee>>1)}, v{PL+(which*4+2*t)*4+(ee>>1)}, s{89+(ee&1)}")
                    g.append(f"ds_write_b64 v{PA+which*4+(ee>>1)}, v[{o}:{o+1}] offset:{(ee&1)*16}")
                    pk.append(g)
            pk = [pk[2*i] + pk[2*i+1] for i in range(8)]
        if st == PST + 1:
            pk = [[f"ds_read_b128 {vr(PL+g*4)}, v{PA+12} offset:{g*1040}"] for g in range(8)]
        for g, gl in enumerate(pk):
            slots[18 + 2*g] += [f"s_cbranch_vccnz k2_np{st}_{g}"] + gl + [f"k2_np{st}_{g}:"]
        if st == PST + 2:
            gl = ["s_cbranch_vccnz k2_sdum"]
            for g in range(8):
                gl += [f"buffer_store_dwordx4 {vr(PL+g*4)}, v8, s[64:67], s87 offen sc1", "s_add_u32 s87, s87, s88"]
            gl += ["s_branch k2_sdone", "k2_sdum:"] + dummy(8) + ["k2_sdone:"]
            slots[39] += gl
            vm.issue("Q", 8)
        k = 0
        for h in range(2):
            for i in range(5):
                for n in range(4):
                    if not os.environ.get("NOMFMA"): mfma(ar((i*4+n)*4), A(b,h,i), vr(B(st&1,h,n)))
                    for l in slots[k]:
                        if os.environ.get("NODS") and l.startswith("ds_"): continue
                        if os.environ.get("NOA") and l.startswith("buffer") and not l.endswith("lds"): continue
                        if os.environ.get("NOC") and l.startswith("buffer") and l.endswith("lds"): continue
                        e(l)
                    k += 1
    stamp(2)
    stamp(3)
    e("s_nop 7")
    e("v_add_u32 v9, s46, v8")
    for n in range(4):
        for i in range(5):
            e(f"ds_write_b128 v9, {ar((i*4+n)*4)} offset:{(n*5+i)*1024}")
    e("s_mul_i32 s44, s16, 5120")
    e("v_add_u32 v9, s44, v8")
    e("v_add_u32 v10, 65536, v9")
    XR = 112
    for i in range(10):
        e(f"v_accvgpr_read_b32 v{XR+i}, a{80+i}")
    e("s_waitcnt lgkmcnt(0)")
    e("s_barrier")
    for src in range(4):
        for i in range(5):
            e(f"ds_read_b128 {vr(BUF+(src*5+i)*4)}, v{9 + (src>>1)} offset:{(src&1)*32768 + i*1024}")
    stamp(4)
    e("s_lshl_b32 s22, s19, 2")
    e("s_add_u32 s22, s22, s16")
    e("s_mul_i32 s23, s20, 5")
    hp_addr(11, 22, 23, [61, 62, 63, 64, 65])
    e("v_mov_b32 v17, 0")
    e("v_mov_b32 v18, 0")
    e("s_waitcnt vmcnt(0) lgkmcnt(0)")
    T = 124
    for i in range(5):
        def S(src, r): return BUF + (src*5+i)*4 + r
        for r in range(4):
            e(f"v_add_f32 v{T+r}, v{S(0,r)}, v{S(1,r)}")
            e(f"v_add_f32 v{T+4+r}, v{S(2,r)}, v{S(3,r)}")
        for r in range(4):
            bf16r(T+r, T+r)
            bf16r(T+4+r, T+4+r)
        for r in range(4):
            e(f"v_sub_f32 v{T+r}, v{T+r}, v{T+4+r}")
        for r in range(4):
            bf16r(T+r, T+r)
        e(f"v_lshlrev_b32 v{T+4}, 16, v{XR+2*i}")
        e(f"v_and_b32 v{T+5}, 0xffff0000, v{XR+2*i}")
        e(f"v_lshlrev_b32 v{T+6}, 16, v{XR+2*i+1}")
        e(f"v_and_b32 v{T+7}, 0xffff0000, v{XR+2*i+1}")
        for r in range(4):
            e(f"v_add_f32 v{T+r}, v{T+r}, v{T+4+r}")
        o = 136 + 2*i
        e(f"v_cvt_pk_bf16_f32 v{o}, v{T}, v{T+1}")
        e(f"v_cvt_pk_bf16_f32 v{o+1}, v{T+2}, v{T+3}")
        e(f"buffer_store_dwordx2 v[{o}:{o+1}], v11, s[48:51], s{61+i} offen")
        e(f"v_lshlrev_b32 v{T}, 16, v{o}")
        e(f"v_and_b32 v{T+1}, 0xffff0000, v{o}")
        e(f"v_lshlrev_b32 v{T+2}, 16, v{o+1}")
        e(f"v_and_b32 v{T+3}, 0xffff0000, v{o+1}")
        for r in range(4):
            e(f"v_add_f32 v17, v17, v{T+r}")
            e(f"v_fmac_f32 v18, v{T+r}, v{T+r}")
    e("v_xor_b32 v10, 16, v1")
    e("v_lshlrev_b32 v10, 2, v10")
    e("ds_bpermute_b32 v19, v10, v17")
    e("ds_bpermute_b32 v28, v10, v18")
    e("s_waitcnt lgkmcnt(0)")
    e("v_add_f32 v17, v17, v19")
    e("v_add_f32 v18, v18, v28")
    e("v_xor_b32 v10, 32, v1")
    e("v_lshlrev_b32 v10, 2, v10")
    e("ds_bpermute_b32 v19, v10, v17")
    e("ds_bpermute_b32 v28, v10, v18")
    e("s_waitcnt lgkmcnt(0)")
    e("v_add_f32 v30, v17, v19")
    e("v_add_f32 v31, v18, v28")
    e("s_lshl_b32 s22, s21, 3")
    e("s_lshl_b32 s23, s20, 14")
    e("s_add_u32 s22, s22, s23")
    e("v_lshlrev_b32 v10, 3, v2")
    e("s_mov_b32 exec_lo, 0x0000ffff")
    e("s_mov_b32 exec_hi, 0")
    e("buffer_store_dwordx2 v[30:31], v10, s[52:55], s22 offen")
    e("s_mov_b64 exec, -1")
    lab("k2_fin")
    stamp(5)
    stamp_dump(1, 6)
    if os.environ.get("K2ST"):
        for i in range(7, 15):
            e(f"v_mov_b32 v2, s{70+2*i}")
            e(f"v_mov_b32 v3, s{71+2*i}")
            e(f"buffer_store_dwordx2 v[2:3], v0, s[64:67], s68 offen offset:{i*8}")
        e("s_waitcnt vmcnt(0)")
    lab("k2_end")
    e("s_endpgm")

def gen_k4():
    kernel_begin("k4_kernel")
    e("s_cmp_ge_u32 s2, 256")
    e("s_cbranch_scc1 k4_end")
    stamp(0)
    e("s_load_dwordx2 s[4:5], s[0:1], 72")
    e("s_load_dwordx2 s[6:7], s[0:1], 88")
    if CTS:
        for l in code_touch("k4_kernel", "code_end", 26, "v27", back=True): e(l)
    lane_setup()
    if MAP34:
        e("s_bfe_u32 s19, s2, 0x20001")
        e("s_bfe_u32 s21, s2, 0x30003")
        e("s_lshl_b32 s19, s19, 3")
        e("s_add_u32 s19, s19, s21")
        e("s_and_b32 s20, s2, 1")
        e("s_lshl_b32 s20, s20, 2")
        e("s_lshr_b32 s21, s2, 6")
        e("s_add_u32 s20, s20, s21")
    else:
        e("s_and_b32 s19, s2, 7")
        e("s_lshr_b32 s20, s2, 3")
        e("s_lshr_b32 s21, s20, 3")
        e("s_lshl_b32 s19, s19, 2")
        e("s_add_u32 s19, s19, s21")
        e("s_and_b32 s20, s20, 7")
    e("v_lshlrev_b32 v8, 4, v1")
    e("s_mul_i32 s22, s19, 196608")
    e("v_add_u32 v4, s22, v8")
    for n in range(1, 4):
        e(f"v_add_u32 v{4+n}, {n*49152}, v4")
    e("s_mul_i32 s22, s20, 245760")
    e("v_add_u32 v12, s22, v8")
    for i in range(1, 5):
        e(f"v_add_u32 v{12+i}, {i*49152}, v12")
    e("s_mul_i32 s41, s16, 12")
    e("s_lshr_b32 s40, s2, 3")
    e("s_mul_i32 s44, s40, 43691")
    e("s_lshr_b32 s44, s44, 19")
    e("s_mul_i32 s44, s44, 12")
    e("s_sub_u32 s40, s40, s44")
    e("s_waitcnt lgkmcnt(0)")
    srd(28, 6, SZ_ACT, WS_ACT)
    srd(32, 6, SZ_WDN, WS_WDN)
    NSL, AH = 8, 7
    def slot(b, k):
        if b < 6: return vr(32 + b * 36 + k * 4)
        return ar(80 + (b - 6) * 36 + k * 4)
    vm = VM()
    def issue(t):
        o = ["s_add_u32 s44, s40, s41", "s_lshl_b32 s42, s44, 10", "s_add_u32 s40, s40, 1",
             "s_cmp_ge_u32 s40, 12", "s_cselect_b32 s40, 0, s40"]
        b = t % NSL
        for n in range(4):
            o.append(f"buffer_load_dwordx4 {slot(b,5+n)}, v{4+n}, s[28:31], s42 offen")
        for i in range(5):
            o.append(f"buffer_load_dwordx4 {slot(b,i)}, v{12+i}, s[32:35], s42 offen")
        vm.issue(("S", t), 9)
        return o
    for t in range(AH):
        for l in issue(t): e(l)
    stamp(1)
    srd(24, 4, 2621440)
    srd(48, 6, SZ_HP, WS_HP)
    for a in range(80):
        e(f"v_accvgpr_write_b32 a{a}, 0")
    e("v_lshrrev_b32 v18, 2, v1")
    e("v_and_b32 v19, 3, v1")
    e("s_lshl_b32 s22, s19, 2")
    e("s_add_u32 s22, s22, s16")
    e("s_mul_i32 s23, s22, 20480")
    e("s_mul_i32 s45, s20, 2560")
    e("s_add_u32 s45, s45, s23")
    e("v_lshlrev_b32 v20, 4, v18")
    e("v_lshl_add_u32 v20, v19, 8, v20")
    e("v_and_b32 v21, 1, v1")
    e("v_lshlrev_b32 v22, 4, v18")
    e("v_lshl_add_u32 v21, v21, 8, v22")
    e("s_mul_i32 s46, s20, 160")
    e("s_add_u32 s46, s46, s23")
    e("v_mul_u32_u24 v22, 1280, v18")
    e("v_lshl_add_u32 v22, v19, 4, v22")
    if os.environ.get("OT"):
        e("buffer_load_dword v26, v22, s[24:27], s46 offen")
        vm.issue("O", 1)
    e("s_mul_i32 s47, s16, 23040")
    e("v_mul_u32_u24 v23, 288, v3")
    e("v_lshl_add_u32 v23, v2, 4, v23")
    e("v_add_u32 v23, s47, v23")
    e("s_mul_i32 s47, s16, 5760")
    e("v_mul_u32_u24 v24, 576, v19")
    e("v_lshl_add_u32 v24, v18, 4, v24")
    e("v_add_u32 v24, s47, v24")
    e("v_add_u32 v25, 46080, v24")
    HR = 152
    for t in range(12):
        b = t % NSL
        e(f"s_waitcnt vmcnt({vm.younger([('S', t)])})")
        ld = []
        if t + AH < 12:
            ld = issue(t + AH)
        elif t == 12 - AH:
            ld = [f"buffer_load_dwordx4 {ar(HR)}, v20, s[48:51], s45 offen",
                  f"buffer_load_dwordx4 {ar(HR+4)}, v20, s[48:51], s45 offen offset:1024",
                  f"buffer_load_dwordx4 {ar(HR+8)}, v21, s[48:51], s45 offen offset:2048"]
            vm.issue("H", 3)
        grp = []; groups = []
        for l in ld:
            grp.append(l)
            if l.startswith("buffer"):
                groups.append(grp); grp = []
        k = 0
        for i in range(5):
            for n in range(4):
                mfma(ar((i*4+n)*4), slot(b, i), slot(b, 5+n))
                k += 1
                if k % 2 == 0 and groups:
                    for l in groups.pop(0): e(l)
        assert not groups
    stamp(2)
    stamp(3)
    e("s_nop 7")
    e("s_nop 7")
    for n in range(4):
        for i in range(5):
            e(f"ds_write_b128 v23, {ar((i*4+n)*4)} offset:{(n*5+i)*1152}")
    XR = 128
    e("s_waitcnt vmcnt(0)")
    for r in range(12):
        e(f"v_accvgpr_read_b32 v{XR+r}, a{HR+r}")
    e("s_waitcnt lgkmcnt(0)")
    e("s_barrier")
    def S(src, j, hf): return 32 + ((j * 4 + src) * 2 + hf) * 4
    for j in range(3):
        for src in range(4):
            for hf in range(2):
                e(f"ds_read_b128 {vr(S(src,j,hf))}, v{24 + (src>>1)} offset:{(src&1)*23040 + j*2304 + hf*288}")
    stamp(4)
    for j in range(3):
        e(f"s_waitcnt lgkmcnt({min(15,(2-j)*8)})")
        T = 144 + j * 16
        for hf in range(2):
            for p in (0, 2):
                e(f"v_pk_add_f32 v[{T+hf*4+p}:{T+hf*4+p+1}], v[{S(0,j,hf)+p}:{S(0,j,hf)+p+1}], v[{S(1,j,hf)+p}:{S(1,j,hf)+p+1}]")
                e(f"v_pk_add_f32 v[{T+8+hf*4+p}:{T+8+hf*4+p+1}], v[{S(2,j,hf)+p}:{S(2,j,hf)+p+1}], v[{S(3,j,hf)+p}:{S(3,j,hf)+p+1}]")
        for p in range(0, 8, 2):
            e(f"v_pk_add_f32 v[{T+p}:{T+p+1}], v[{T+p}:{T+p+1}], v[{T+8+p}:{T+8+p+1}]")
        for p in range(4):
            e(f"v_cvt_pk_bf16_f32 v{T+8+p}, v{T+2*p}, v{T+2*p+1}")
        for p in range(4):
            e(f"v_lshlrev_b32 v{T+2*p}, 16, v{T+8+p}")
            e(f"v_and_b32 v{T+2*p+1}, 0xffff0000, v{T+8+p}")
        for p in range(4):
            e(f"v_lshlrev_b32 v{T+8+2*p}, 16, v{XR+4*j+p}")
            e(f"v_and_b32 v{T+8+2*p+1}, 0xffff0000, v{XR+4*j+p}")
        for p in range(0, 8, 2):
            e(f"v_pk_add_f32 v[{T+p}:{T+p+1}], v[{T+p}:{T+p+1}], v[{T+8+p}:{T+8+p+1}]")
        O = 192 + 4 * j
        for p in range(4):
            e(f"v_cvt_pk_bf16_f32 v{O+p}, v{T+2*p}, v{T+2*p+1}")
        if j == 2:
            e("s_mov_b32 exec_lo, 0x33333333")
            e("s_mov_b32 exec_hi, 0x33333333")
        e(f"buffer_store_dwordx4 {vr(O)}, v22, s[24:27], s46 offen offset:{j*64}")
    e("s_mov_b64 exec, -1")
    stamp(5)
    stamp_dump(3, 6)
    lab("k4_end")
    e("s_endpgm")

class VM:
    def __init__(self): self.q = []
    def issue(self, tag, n=1): self.q += [tag] * n
    def younger(self, tags):
        last = max(i for i, t in enumerate(self.q) if t in tags)
        return min(63, len(self.q) - 1 - last)

def gen_k3():
    kernel_begin("k3_kernel")
    e("s_cmp_ge_u32 s2, 256")
    e("s_cbranch_scc1 k3_end")
    stamp(0)
    e("s_load_dwordx2 s[6:7], s[0:1], 88")
    if CTS:
        for l in code_touch("k3_kernel", "k4_kernel", 14, "v22", back=True): e(l)
    lane_setup()
    if os.environ.get("MAP3", "1") == "1":
        e("s_and_b32 s19, s2, 1")
        e("s_bfe_u32 s21, s2, 0x30003")
        e("s_lshl_b32 s19, s19, 3")
        e("s_add_u32 s19, s19, s21")
        e("s_bfe_u32 s20, s2, 0x20001")
        e("s_lshl_b32 s20, s20, 2")
        e("s_lshr_b32 s21, s2, 6")
        e("s_add_u32 s20, s20, s21")
    elif MAP34:
        e("s_bfe_u32 s19, s2, 0x20001")
        e("s_bfe_u32 s21, s2, 0x20003")
        e("s_lshl_b32 s19, s19, 2")
        e("s_add_u32 s19, s19, s21")
        e("s_and_b32 s20, s2, 1")
        e("s_lshl_b32 s20, s20, 3")
        e("s_lshr_b32 s21, s2, 5")
        e("s_add_u32 s20, s20, s21")
    else:
        e("s_and_b32 s19, s2, 7")
        e("s_lshr_b32 s20, s2, 3")
        e("s_and_b32 s21, s20, 1")
        e("s_lshl_b32 s19, s19, 1")
        e("s_add_u32 s19, s19, s21")
        e("s_lshr_b32 s20, s20, 1")
    e(f"s_mov_b32 s17, {INV640}")
    e(f"s_mov_b32 s18, {EPS}")
    e("s_mov_b32 s62, 0x3f803f80")
    e("v_lshlrev_b32 v8, 4, v1")
    e("s_mul_i32 s21, s20, 12")
    e("s_mul_i32 s23, s16, 3")
    e("s_add_u32 s21, s21, s23")
    e("s_mul_i32 s22, s21, 20480")
    e("v_add_u32 v4, s22, v8")
    e("v_add_u32 v5, 20480, v4")
    e("v_add_u32 v6, 40960, v4")
    e("s_mul_i32 s22, s19, 163840")
    e("s_mul_i32 s23, s16, 40960")
    e("s_add_u32 s22, s22, s23")
    e("v_lshlrev_b32 v9, 3, v1")
    e("s_lshl_b32 s48, s19, 10")
    e("s_waitcnt lgkmcnt(0)")
    srd(24, 6, SZ_HP, WS_HP)
    srd(32, 6, SZ_WGU, WS_WGU)
    srd(28, 6, SZ_HSTAT, WS_HSTAT)
    vm = VM()
    D = 6
    WB = 88
    ACC3 = 160
    def Wf(kk, i): return WB + ((kk % D) * 3 + i) * 4
    def Hf(kk, n): return ((kk & 1) * 8 + n) * 4
    HGS = int(os.environ.get("HGS", "2")); LW = int(os.environ.get("LW", "3")); LH = int(os.environ.get("LH", "3"))
    HG = {chr(65 + g): (g * HGS, min(20, g * HGS + HGS)) for g in range((19 + HGS) // HGS)}
    def hdma_l(g, t):
        o = []
        k0, k1 = HG[g]
        for k in range(k0, k1, 4):
            base = t * 20480 + k * 1024
            o.append(f"s_add_u32 m0, s23, {base}")
            o.append(f"s_add_u32 s44, s22, {base}")
            for u in range(min(4, k1 - k)):
                o.append(f"buffer_load_dwordx4 v8, s[24:27], s44 offen offset:{u*1024} lds")
        vm.issue(("H", g), k1 - k0)
        return o
    def wload(kk):
        out = []
        if kk >= 4:
            out.append(f"s_mov_b32 s{45+(kk&1)}, {kk*1024}")
        for i in range(3):
            if kk < 4:
                out.append(f"buffer_load_dwordx4 {vr(Wf(kk,i))}, v{4+i}, s[32:35], 0 offen offset:{kk*1024}")
            else:
                out.append(f"buffer_load_dwordx4 {vr(Wf(kk,i))}, v{4+i}, s[32:35], s{45+(kk&1)} offen")
        vm.issue(("W", kk), 3)
        return out
    def sload(q):
        o = []
        for x in range(4 * q, 4 * q + 4):
            j, eb = x >> 3, x & 7
            o.append(f"s_add_u32 s47, s48, {eb*16384 + j*512}")
            o.append(f"buffer_load_dwordx2 v[{40+(j*8+eb)*2}:{41+(j*8+eb)*2}], v9, s[28:31], s47 offen")
        vm.issue("S", 4)
        return o
    def tload():
        vm.issue("P", 1)
        return ["buffer_load_dword v22, v23, s[52:55], s50 offen", "s_add_u32 s50, s50, 4096"]
    items = []
    for g, (k0, k1) in HG.items():
        for t in range(2):
            items.append((k0 - 1 - LH + (t if HGS > 1 else 0), k0 - 1, f"H{g}{t}"))
    for kk in range(20):
        items.append((kk - LW, kk - 0.5, f"W{kk}"))
    for q in range(4): items.append((9 + q, 30, f"S{q}"))
    last = max(it[0] for it in items)
    for q in range(0 if os.environ.get("NOT3", "0") == "1" else (1 if MAP34 else 4)): items.append((min(19, max(15, last + 1) + q), 40, "T"))
    items.sort(key=lambda x: (max(x[0], -1), x[1]))
    sched = {}
    for it, dl, nm in items: sched.setdefault(max(it, -1), []).append(nm)
    BAR = {k0 - 1: g for g, (k0, k1) in HG.items() if k0 > 0}
    def do_items(lst_):
        lst = []
        for it in lst_:
            if it[0] == "W": lst += wload(int(it[1:]))
            elif it[0] == "H": lst += hdma_l(it[1], int(it[2]))
            elif it[0] == "S": lst += sload(int(it[1]))
            else: lst += tload()
        return lst
    for l in do_items(sched[-1]): e(l)
    srd(36, 6, SZ_ACT, WS_ACT)
    srd(52, 6, SZ_WDN, WS_WDN)
    e("s_lshr_b32 s50, s2, 3")
    e("s_lshl_b32 s50, s50, 2")
    e("s_add_u32 s50, s50, s16")
    if MAP34:
        e("s_mul_i32 s50, s50, 7680")
        e("s_and_b32 s51, s2, 1")
        if os.environ.get("TX3"): e("s_xor_b32 s51, s51, 1")
        e("s_mul_i32 s51, s51, 983040")
        e("s_add_u32 s50, s50, s51")
        e("v_lshlrev_b32 v23, 7, v1")
    else:
        e("s_mul_i32 s50, s50, 15360")
        e("v_lshlrev_b32 v23, 6, v1")
    for a in range(96):
        e(f"v_mov_b32 v{ACC3+a}, 0")
    for r in range(24, 36):
        e(f"v_mov_b32 v{r}, 0")
    for r in range(16, 20):
        e(f"v_mov_b32 v{r}, 0x3f803f80")
    e("v_add_u32 v10, 65536, v8")
    e("v_add_u32 v11, 131072, v8")
    e("v_lshlrev_b32 v12, 2, v2")
    e("v_lshlrev_b32 v13, 4, v3")
    def hread(kk):
        o = []
        for n in range(8):
            off = (n * 20 + kk) * 1024
            base = 8 if off < 65536 else (10 if off < 131072 else 11)
            o.append(f"ds_read_b128 {ar(Hf(kk,n))}, v{base} offset:{off % 65536}")
        return o
    def dots(kk):
        return [f"v_dot2_f32_bf16 v{16+i}, v{Wf(kk,i)+r}, s62, v{16+i}" for r in range(4) for i in range(3)]
    def stats_code():
        sv = L[:]
        del L[:]
        for j in range(2):
            b = 40 + j * 16
            for k in (2, 4, 6, 8, 10, 12, 14):
                e(f"v_add_f32 v{b}, v{b}, v{b+k}")
                e(f"v_add_f32 v{b+1}, v{b+1}, v{b+k+1}")
            ln_stats(b, b+1, 36+2*j, 37+2*j, 20+j)
        for t in range(8):
            e(f"ds_bpermute_b32 v{72+2*t}, v12, v{36+2*(t>>2)} offset:{(t&3)*64}")
            e(f"ds_bpermute_b32 v{73+2*t}, v12, v{37+2*(t>>2)} offset:{(t&3)*64}")
            e(f"ds_bpermute_b32 v{64+t}, v12, v{20+(t>>2)} offset:{(t&3)*64}")
        o = [x.strip() for x in L]
        L[:] = sv
        return o
    stamp(1)
    e(f"s_waitcnt vmcnt({vm.younger([('H','A')])})")
    stamp(2)
    e("s_barrier")
    stamp(3)
    for l in hread(0): e(l)
    for kk in range(20):
        need = [("W", kk)]
        if kk in BAR: need.append(("H", BAR[kk]))
        if kk == 15: need.append("S")
        e(f"s_waitcnt vmcnt({vm.younger(need)}) lgkmcnt(0)")
        if kk in BAR and "r" not in os.environ.get("K3X", ""): e("s_barrier")
        slots = [[] for _ in range(27)]
        if kk + 1 < 20:
            for j, l in enumerate(hread(kk + 1)):
                slots[(j * int(os.environ.get("HRS", "2"))) // 2].append(l)
        lst = do_items(sched.get(kk, []))
        groups = []; grp = []
        for l in lst:
            if grp and any(x.startswith("buffer") for x in grp) and not l.startswith("s_add_u32 s50"):
                groups.append(grp); grp = []
            grp.append(l)
        if grp: groups.append(grp)
        for g, gl in enumerate(groups):
            slots[1 + (g * 24) // max(len(groups), 8)] += gl
        if kk == int(os.environ.get("CT3", "-1")) and CT:
            slots[26] += code_touch("k4_kernel", "code_end", 14, "v22")
            vm.issue("CT", 1)
        if kk == 15: sc = stats_code()
        if kk in (15, 16):
            part = sc[:54] if kk == 15 else sc[54:]
            for j, l in enumerate(part):
                slots[(j * 27) // len(part)].append(l)
        if kk == 19:
            for j, l in enumerate(["v_mul_u32_u24 v9, 49152, v3", "v_lshl_add_u32 v9, v2, 4, v9", "s_mul_i32 s22, s19, 393216", "s_lshl_b32 s23, s21, 8",
                                   "s_add_u32 s22, s22, s23", "v_mov_b32 v36, 0xbdd2d3e8", "v_mov_b32 v37, 0xc0135761"]):
                slots[j].append(l)
        K3X = os.environ.get("K3X", "")
        if "d" in K3X: slots = [[l for l in sl if not l.startswith("ds_read")] for sl in slots]
        if "b" in K3X: slots = [[l for l in sl if not l.startswith("buffer")] for sl in slots]
        if "s" in K3X: slots = [[l for l in sl if not l.startswith("s_")] for sl in slots]
        if "v" in K3X: slots = [[l for l in sl if not (l.startswith("v_") or l.startswith("ds_bp"))] for sl in slots]
        k = 0
        for i in range(3):
            mfma(vr(24+4*i), vr(Wf(kk,i)), vr(16))
            for l in slots[k]: e(l)
            k += 1
        for n in range(8):
            for i in range(3):
                mfma(vr(ACC3+(i*8+n)*4), vr(Wf(kk,i)), ar(Hf(kk,n)))
                for l in slots[k]: e(l)
                k += 1
    stamp(4)
    def epi(i):
        o = []
        for hi, n0 in enumerate((0, 4)):
            TB = 40 + hi * 12
            O = TB + 8
            lists = []
            for g in range(4):
                n = n0 + g
                A = ACC3 + (i*8+n)*4
                S = 72 + 2*n
                SD = 64 + (n & ~1); sd = n & 1
                WS = 24 + i*4
                t2 = TB + g*2
                l = []
                for p in (0, 2):
                    l.append(f"v_pk_fma_f32 v[{A+p}:{A+p+1}], v[{S}:{S+1}], v[{WS+p}:{WS+p+1}], v[{A+p}:{A+p+1}] op_sel:[0,0,0] op_sel_hi:[0,1,1] neg_lo:[1,0,0] neg_hi:[1,0,0]")
                l.append(f"v_pk_mul_f32 v[{A}:{A+1}], v[{A}:{A+1}], v[{S}:{S+1}] op_sel:[0,1] op_sel_hi:[1,1]")
                l.append(f"v_pk_mul_f32 v[{t2}:{t2+1}], v[{A}:{A+1}], v[{A}:{A+1}]")
                l.append(f"v_pk_fma_f32 v[{t2}:{t2+1}], v[{t2}:{t2+1}], v[36:37], v[36:37] op_sel:[0,0,1] op_sel_hi:[1,0,1]")
                l.append(f"v_pk_mul_f32 v[{t2}:{t2+1}], v[{t2}:{t2+1}], v[{A}:{A+1}]")
                l.append(f"v_exp_f32 v{t2}, v{t2}")
                l.append(f"v_exp_f32 v{t2+1}, v{t2+1}")
                l.append(f"v_pk_mul_f32 v[{A}:{A+1}], v[{A}:{A+1}], v[{A+2}:{A+3}]")
                l.append(f"v_pk_fma_f32 v[{t2}:{t2+1}], v[{t2}:{t2+1}], v[{SD}:{SD+1}], v[{SD}:{SD+1}] op_sel:[0,{sd},{sd}] op_sel_hi:[1,{sd},{sd}]")
                l.append(f"v_rcp_f32 v{t2}, v{t2}")
                l.append(f"v_rcp_f32 v{t2+1}, v{t2+1}")
                l.append(f"v_pk_mul_f32 v[{t2}:{t2+1}], v[{t2}:{t2+1}], v[{A}:{A+1}]")
                l.append(f"v_cvt_pk_bf16_f32 v{O+g}, v{t2}, v{t2+1}")
                lists.append(l)
            for k in range(len(lists[0])):
                for g in range(4): o.append(lists[g][k])
            o.append("s_nop 1")
            o.append(f"v_permlane16_swap_b32 v{O}, v{O+1}")
            o.append(f"v_permlane16_swap_b32 v{O+2}, v{O+3}")
            o.append("s_nop 1")
            o.append(f"v_permlane32_swap_b32 v{O}, v{O+2}")
            o.append(f"v_permlane32_swap_b32 v{O+1}, v{O+3}")
            o.append(f"s_add_u32 s44, s22, {n0*49152 + i*256}")
            o.append("s_nop 1")
            o.append(f"buffer_store_dwordx4 {vr(O)}, v9, s[36:39], s44 offen")
        return o
    e("s_nop 7")
    stamp(5)
    for i in range(3):
        for l in epi(i): e(l)
    stamp(6)
    stamp_dump(2, 7)
    lab("k3_end")
    e("s_endpgm")

def descriptor(name, vgpr, accum, sgpr=102):
    raw(f".amdhsa_kernel {name}")
    raw(f"  .amdhsa_next_free_vgpr {vgpr}")
    raw(f"  .amdhsa_next_free_sgpr {sgpr}")
    raw(f"  .amdhsa_accum_offset {accum}")
    raw("  .amdhsa_group_segment_fixed_size 0")
    raw("  .amdhsa_kernarg_size 96")
    raw("  .amdhsa_user_sgpr_count 2")
    raw("  .amdhsa_user_sgpr_kernarg_segment_ptr 1")
    raw("  .amdhsa_system_sgpr_workgroup_id_x 1")
    raw(".end_amdhsa_kernel")

def main():
    raw("; 4-kernel pipeline: K1 LN1+hidden DFT GEMM, K2 seq DFT GEMM + residual, K3 LN2+gate/up GEMM+GEGLU, K4 down GEMM + residual")
    raw("; @launch kernel=k1_kernel grid=(256,1,1) block=(256,1,1) lds=152832")
    raw("; @launch kernel=k2_kernel grid=(256,1,1) block=(256,1,1) lds=156032")
    raw("; @launch kernel=k3_kernel grid=(256,1,1) block=(256,1,1) lds=163840")
    raw("; @launch kernel=k4_kernel grid=(256,1,1) block=(256,1,1) lds=94208")
    raw('.amdgcn_target "amdgcn-amd-amdhsa--gfx950"')
    raw(".text")
    gen_k1(); gen_k2(); gen_k3(); gen_k4()
    lab("code_end")
    raw('.section .rodata,"a"')
    raw(".p2align 6")
    descriptor("k1_kernel", 348, 160)
    raw(".p2align 6")
    descriptor("k2_kernel", 432, 256)
    raw(".p2align 6")
    descriptor("k3_kernel", 320, 256)
    raw(".p2align 6")
    descriptor("k4_kernel", 424, 256)
    out = sys.argv[1] if len(sys.argv) > 1 else f"cdna_kernels/{NAME}.s"
    NOSC = os.environ.get("NOSC", "").split(",")
    LL = [ (l + " sc1") if ("buffer_store" in l and "s[64:67]" not in l and not any(x and x in l for x in NOSC)) else l for l in L]
    open(out, "w").write("\n".join(LL) + "\n")

main()
```

```python
import sys

L = []
def e(s): L.append("    " + s)
def lab(s): L.append(s + ":")
def raw(s): L.append(s)

NAME = "sequential_preLN__spectral_fnet__geglu_ffn__prompt"

import os
ES = 65536 + int(os.environ.get("EPAD", "0"))
WS_ABP = 0 if ES == 65536 else 0x1800000
SZ_ABP = 80 * ES
WS_HP = 0x500000
SZ_HP = 128 * 20 * 1024
WS_HSTAT = 0x780000
SZ_HSTAT = 2048 * 8 * 8
WS_ACT = 0x800000
SZ_ACT = 128 * 48 * 1024
WS_WGU = 0xE00000
WSUM_OFF = 192 * 20 * 1024
SZ_WGU = WSUM_OFF + 192 * 4 * 64
WS_WDN = 0x1200000
SZ_WDN = 40 * 48 * 1024

WS_XB = 0x1400000
SZ_XB = 0x800000
K2OLD = os.environ.get("K2OLD", "0") == "1"
INV640 = 0x3ACCCCCD
EPS = 0x3727C5AC

import os
DIAG = os.environ.get("DIAG", "0") == "1"
WS_DIAG = 0x3000000
DIAG2 = os.environ.get("DIAG2", "0") == "1"
def stamp(i):
    if DIAG2 and i == 0:
        e("s_memrealtime s[70:71]")
        e("s_memtime s[72:73]")
        e("s_waitcnt lgkmcnt(0)")
    if DIAG:
        e(f"s_memtime s[{70+2*i}:{71+2*i}]")
        e("s_waitcnt lgkmcnt(0)")
def stamp_dump(kidx, n):
    if DIAG2:
        e("s_waitcnt vmcnt(0)")
        e("s_memrealtime s[74:75]")
        e("s_memtime s[76:77]")
        e("s_load_dwordx2 s[64:65], s[0:1], 80")
        e("s_waitcnt lgkmcnt(0)")
        e("s_lshl_b32 s68, s2, 2")
        e("s_add_u32 s68, s68, s16")
        e("s_cmp_lg_u32 s68, 0")
        e(f"s_cbranch_scc1 dg_skip{kidx}")
        e("s_mov_b32 s66, 256")
        e("s_mov_b32 s67, 0x20000")
        e("v_mov_b32 v0, 0")
        e("s_mov_b64 exec, 1")
        e("v_mov_b32 v2, s70")
        e("v_mov_b32 v3, s74")
        e("v_mov_b32 v4, s72")
        e("v_mov_b32 v5, s76")
        e(f"buffer_store_dwordx4 v[2:5], v0, s[64:67], 0 offen offset:{kidx*16}")
        e("s_waitcnt vmcnt(0)")
        lab(f"dg_skip{kidx}")
    if not DIAG: return
    e("s_waitcnt vmcnt(0)")
    stamp(n)
    e(f"s_add_u32 s64, s6, {WS_DIAG + kidx*0x40000}")
    e("s_addc_u32 s65, s7, 0")
    e("s_mov_b32 s66, 0x40000")
    e("s_mov_b32 s67, 0x20000")
    e("s_lshl_b32 s68, s2, 2")
    e("s_add_u32 s68, s68, s16")
    e("s_lshl_b32 s68, s68, 8")
    e("v_mov_b32 v0, 0")
    e("s_mov_b64 exec, 1")
    for i in range(n+1):
        e(f"v_mov_b32 v2, s{70+2*i}")
        e(f"v_mov_b32 v3, s{71+2*i}")
        e(f"buffer_store_dwordx2 v[2:3], v0, s[64:67], s68 offen offset:{i*8}")
    e("s_getreg_b32 s69, hwreg(HW_REG_XCC_ID)")
    e("v_mov_b32 v2, s69")
    e("s_getreg_b32 s69, hwreg(HW_REG_HW_ID)")
    e("v_mov_b32 v3, s69")
    e(f"buffer_store_dwordx2 v[2:3], v0, s[64:67], s68 offen offset:248")
    e("s_waitcnt vmcnt(0)")

def srd(d, lo, size, off=0):
    if off:
        e(f"s_add_u32 s{d}, s{lo}, {off}")
        e(f"s_addc_u32 s{d+1}, s{lo+1}, 0")
    else:
        e(f"s_mov_b32 s{d}, s{lo}")
        e(f"s_mov_b32 s{d+1}, s{lo+1}")
    e(f"s_mov_b32 s{d+2}, {size}")
    e(f"s_mov_b32 s{d+3}, 0x20000")

def bf16r(dst, src):
    e(f"v_cvt_pk_bf16_f32 v{dst}, v{src}, v{src}")
    e(f"v_lshlrev_b32 v{dst}, 16, v{dst}")

def vr(b, n=4): return f"v[{b}:{b+n-1}]"
def ar(b, n=4): return f"a[{b}:{b+n-1}]"

def mfma(d, a, b, c=None):
    c = d if c is None else c
    if L and L[-1].split()[0] in ("v_exp_f32", "v_rcp_f32", "v_sqrt_f32", "v_rsq_f32"): e("s_nop 1")
    e(f"v_mfma_f32_16x16x32_bf16 {d}, {a}, {b}, {c}")

def kernel_begin(name):
    raw(f".globl {name}")
    raw(".p2align 8")
    raw(f".type {name},@function")
    lab(name)

CT = os.environ.get("CT", "1") == "1"
MAP34 = os.environ.get("MAP34", "1") == "1"
CTS = os.environ.get("CTS", "1") == "1"
_ctn = [0]
def code_touch(target, endl, vtmp, dst, back=False, n=1):
    if not CT: return []
    _ctn[0] += 1
    u = f"ct_pc{_ctn[0]}"
    o = ["s_getpc_b64 s[96:97]", u + ":"]
    if back:
        o += [f"s_sub_u32 s96, s96, {u}-{target}", "s_subb_u32 s97, s97, 0"]
    else:
        o += [f"s_add_u32 s96, s96, {target}-{u}", "s_addc_u32 s97, s97, 0"]
    o += [f"s_mov_b32 s98, {endl}-{target}", "s_mov_b32 s99, 0x20000", f"v_lshlrev_b32 v{vtmp}, 7, v0"]
    o.append(f"buffer_load_dword {dst}, v{vtmp}, s[96:99], 0 offen")
    if n > 1:
        o.append(f"v_add_u32 v{vtmp}, 32768, v{vtmp}")
        o.append(f"buffer_load_dword {dst}, v{vtmp}, s[96:99], 0 offen")
    return o

def lane_setup():
    e("v_lshrrev_b32 v4, 6, v0")
    e("v_and_b32 v1, 63, v0")
    e("v_readfirstlane_b32 s16, v4")
    e("v_and_b32 v2, 15, v1")
    e("v_lshrrev_b32 v3, 4, v1")

def ln_stats(vsum, vsq, vm, vrd, t):
    e(f"v_mul_f32 v{vm}, s17, v{vsum}")
    e(f"v_mul_f32 v{t}, s17, v{vsq}")
    e(f"v_fma_f32 v{t}, -v{vm}, v{vm}, v{t}")
    e(f"v_max_f32 v{t}, 0, v{t}")
    bf16r(vm, vm)
    bf16r(t, t)
    e(f"v_add_f32 v{t}, s18, v{t}")
    bf16r(t, t)
    e(f"v_sqrt_f32 v{t}, v{t}")
    e("s_nop 0")
    bf16r(t, t)
    e(f"v_rcp_f32 v{vrd}, v{t}")
    e("s_nop 0")

def gen_k1():
    kernel_begin("k1_kernel")
    e("s_cmp_ge_u32 s2, 256")
    e("s_cbranch_scc1 k1_end")
    stamp(0)
    e("s_load_dwordx2 s[4:5], s[0:1], 0")
    e("s_load_dwordx2 s[8:9], s[0:1], 24")
    e("s_load_dwordx2 s[10:11], s[0:1], 32")
    e("s_load_dwordx2 s[6:7], s[0:1], 88")
    e("s_load_dwordx4 s[56:59], s[0:1], 8")
    PT = int(os.environ.get("PT", "-1"))
    if PT >= 0:
        e("s_load_dwordx4 s[36:39], s[0:1], 48")
        e("s_load_dwordx4 s[40:43], s[0:1], 64")
    for l in code_touch("k1_kernel", "code_end", 154, "v155", back=True, n=2): e(l)
    lane_setup()
    e("s_and_b32 s19, s2, 3")
    e("s_lshl_b32 s19, s19, 2")
    e("s_bfe_u32 s21, s2, 0x20003")
    e("s_add_u32 s19, s19, s21")
    e("s_lshr_b32 s22, s2, 5")
    e("s_bfe_u32 s20, s2, 0x10002")
    e("s_lshl_b32 s20, s20, 3")
    e("s_add_u32 s20, s20, s22")
    e("s_add_u32 s48, s21, s22")
    e("v_lshlrev_b32 v15, 4, v1")
    e("v_lshrrev_b32 v25, 3, v1")
    e("v_and_b32 v26, 7, v1")
    e("v_xor_b32 v26, v26, v25")
    e("v_mul_u32_u24 v25, 1280, v25")
    e("v_lshl_add_u32 v25, v26, 4, v25")
    e("s_and_b32 s21, s20, 7")
    e("s_mul_i32 s21, s21, 102400")
    e("s_and_b32 s22, s16, 1")
    e("s_mul_i32 s22, s22, 51200")
    e("s_add_u32 s21, s21, s22")
    e("s_lshr_b32 s22, s16, 1")
    e("s_lshl_b32 s22, s22, 7")
    e("s_add_u32 s21, s21, s22")
    e("v_add_u32 v4, s21, v25")
    e("s_lshl_b32 s21, s19, 7")
    e("s_lshl_b32 s22, s16, 5")
    e("s_add_u32 s21, s21, s22")
    e("s_mul_i32 s21, s21, 1280")
    e("v_add_u32 v5, s21, v25")
    for j in range(1, 4):
        e(f"v_add_u32 v{5+j}, {j*10240 - j*1024}, v5")
    e("s_mul_i32 s46, s16, 12288")
    e("s_add_u32 s46, s46, 102400")
    e("s_mul_i32 s47, s16, 5120")
    e("s_mul_i32 s49, s48, 205")
    e("s_lshr_b32 s49, s49, 10")
    e("s_mul_i32 s49, s49, 5")
    e("s_sub_u32 s49, s48, s49")
    if os.environ.get("K1NOROT"): e("s_mov_b32 s49, 0")
    for sc in range(5):
        e(f"s_lshl_b32 s{50+sc}, s49, 8")
        e("s_add_u32 s49, s49, 1")
        e("s_cmp_ge_u32 s49, 5")
        e("s_cselect_b32 s49, 0, s49")
    if os.environ.get("K1ST"): e("s_memtime s[84:85]")
    e("s_waitcnt lgkmcnt(0)")
    if os.environ.get("K1ST"): stamp(8)
    srd(24, 4, 2621440)
    e("s_cmp_lt_u32 s20, 8")
    e("s_cselect_b32 s28, s8, s10")
    e("s_cselect_b32 s29, s9, s11")
    e("s_mov_b32 s30, 819200")
    e("s_mov_b32 s31, 0x20000")
    vm = VM()
    XS = 76
    def wdma(sc):
        o = []
        for u in range(5):
            o.append(f"s_add_u32 m0, s47, {sc*20480 + u*1024}")
            o.append(f"s_add_u32 s23, s{50+sc}, {u*10240}")
            o.append("buffer_load_dwordx4 v4, s[28:31], s23 offen lds")
        vm.issue(("W", sc), 5)
        return o
    def xld(c):
        if c < 3:
            o = [f"s_add_u32 m0, s46, {(c%3)*4096}", f"s_add_u32 s22, s{50+(c>>1)}, {(c&1)*128}"]
            for j in range(4):
                o.append(f"buffer_load_dwordx4 v{5+j}, s[24:27], s22 offen offset:{j*1024} lds")
        else:
            o = [f"s_add_u32 s22, s{50+(c>>1)}, {(c&1)*128}"]
            for j in range(4):
                o.append(f"buffer_load_dwordx4 {ar(XS+(c-3)*16+j*4)}, v{5+j}, s[24:27], s22 offen offset:{j*1024}")
        vm.issue(("X", c), 4)
        return o
    for l in wdma(0) + xld(0) + xld(1): e(l)
    if os.environ.get("K1ST"): stamp(9)
    e(f"s_mov_b32 s17, {INV640}")
    e(f"s_mov_b32 s18, {EPS}")
    e("v_and_b32 v26, 7, v2")
    e("v_xor_b32 v26, v26, v3")
    e("v_lshlrev_b32 v11, 7, v2")
    e("v_lshl_add_u32 v11, v26, 4, v11")
    e("v_xor_b32 v12, 64, v11")
    e("v_add_u32 v13, 61440, v11")
    e("v_add_u32 v14, 61440, v12")
    e("v_add_u32 v9, s46, v11")
    e("v_add_u32 v10, s46, v12")
    srd(32, 6, SZ_ABP, WS_ABP)
    if not K2OLD:
        srd(60, 6, SZ_XB, WS_XB)
        for r in range(4): e(f"v_mov_b32 v{156+r}, -1")
    TST = [int(x) for x in os.environ.get("TST", "3,6").split(",")]
    PL, PO, PA = 144, 176, 144
    e(f"v_add_u32 v{PA+8}, s46, v15")
    e("s_cmp_lt_u32 s2, 128")
    e("s_cselect_b32 s56, s56, s58")
    e("s_cselect_b32 s57, s57, s59")
    e("s_mov_b32 s58, 8388608")
    e("s_mov_b32 s59, 0x20000")
    if os.environ.get("TSH"):
        e("s_add_u32 s21, s2, 3")
        e("s_and_b32 s21, s21, 7")
    else:
        e("s_and_b32 s21, s2, 7")
    e("s_bfe_u32 s22, s2, 0x20005")
    e("s_lshl_b32 s21, s21, 2")
    e("s_add_u32 s21, s21, s22")
    e("s_lshl_b32 s21, s21, 2")
    e("s_bfe_u32 s22, s2, 0x20003")
    e("s_add_u32 s21, s21, s22")
    e("s_lshl_b32 s21, s21, 2")
    e("s_add_u32 s21, s21, s16")
    e("s_lshl_b32 s91, s21, 14")
    e(f"v_lshlrev_b32 v{PA+10}, 7, v1")
    def touch():
        if os.environ.get("NOPF"): return []
        vm.issue("T", 1)
        return [f"buffer_load_dword v{PA+11}, v{PA+10}, s[56:59], s91 offen", "s_add_u32 s91, s91, 8192"]
    for t in TST:
        if t == -1:
            for l in touch(): e(l)
    for a in range(76):
        e(f"v_accvgpr_write_b32 a{a}, 0")
    ONES = 16
    for r in range(4):
        e(f"v_mov_b32 v{ONES+r}, 0x3f803f80")
    FB = 32
    def XF(b, st, h): return FB + b * 56 + (st * 2 + h) * 4
    def WF(b, i, h): return FB + b * 56 + 16 + (i * 2 + h) * 4
    def fread(c):
        o = []
        b = c & 1
        for h in range(2):
            for st in range(2):
                o.append(f"ds_read_b128 {vr(XF(b,st,h))}, v{9+h} offset:{(c%3)*4096 + st*2048}")
            for i in range(5):
                off = c * 10240 + i * 2048
                if off < 61440:
                    o.append(f"ds_read_b128 {vr(WF(b,i,h))}, v{11+h} offset:{off}")
                else:
                    o.append(f"ds_read_b128 {vr(WF(b,i,h))}, v{13+h} offset:{off-61440}")
        return o
    stamp(1)
    e(f"s_waitcnt vmcnt({vm.younger([('W',0),('X',0)])})")
    e("s_barrier")
    stamp(2)
    for l in fread(0): e(l)
    for c in range(10):
        b = c & 1
        need = []
        if c + 1 <= 2: need.append(("X", c + 1))
        if c + 1 < 10: need.append(("W", (c + 1) >> 1))
        if 3 <= c + 2 <= 9: need.append(("X", c + 2))
        if need and c < 8:
            e(f"s_waitcnt vmcnt({vm.younger(need)}) lgkmcnt(0)")
        else:
            e("s_waitcnt lgkmcnt(0)")
        if c in (1, 3, 5, 7): e("s_barrier")
        NM = 28
        slots = [[] for _ in range(NM)]
        if c + 1 < 10:
            for j, l in enumerate(fread(c + 1)):
                slots[j].append(l)
        if 3 <= c + 2 <= 9:
            for j in range(4):
                slots[14 + j].append(f"ds_write_b128 v{PA+8}, {ar(XS+(c-1)*16+j*4)} offset:{((c+2)%3)*4096 + j*1024}")
        lst = []
        if c < 4: lst = wdma(c + 1) + xld(2 * c + 2) + xld(2 * c + 3)
        for t in TST:
            if t == c: lst += touch()
        if c == int(os.environ.get("PFC", "5")) and not K2OLD:
            slots[21] += ["s_lshl_b32 s44, s2, 2", "s_add_u32 s44, s44, s16", "s_lshl_b32 s44, s44, 12"]
            for q in range(3):
                slots[22 + q] += [f"buffer_store_dwordx4 v[156:159], v15, s[60:63], s44 offen offset:{q*1024}"]
            slots[25] += ["s_mov_b64 exec, 1", "buffer_store_dword v156, v15, s[60:63], s44 offen offset:3072", "s_mov_b64 exec, -1"]
            vm.issue("PF", 4)
        if c == PT:
            PSH = int(os.environ.get("PSH", "16"))
            slots[22] += ["s_add_u32 s92, s6, 0x1000000", "s_addc_u32 s93, s7, 0", "s_mov_b32 s60, s6", "s_mov_b32 s61, s7",
                          "s_mov_b32 s62, 0x1000000", "s_mov_b32 s94, 0x1000000", "s_mov_b32 s44, 18",
                          "s_cmp_eq_u32 s16, 1", "s_cselect_b32 s60, s42, s60", "s_cselect_b32 s61, s43, s61", "s_cselect_b32 s92, s36, s92", "s_cselect_b32 s93, s37, s93",
                          "s_cselect_b32 s62, 2621440, s62", "s_cselect_b32 s94, 1966080, s94", f"s_cselect_b32 s44, {PSH}, s44"]
            slots[23] += ["s_cmp_eq_u32 s16, 2", "s_cselect_b32 s60, s38, s60", "s_cselect_b32 s61, s39, s61", "s_cselect_b32 s92, s40, s92", "s_cselect_b32 s93, s41, s93",
                          "s_cselect_b32 s62, 1966080, s62", "s_cselect_b32 s94, 1966080, s94", f"s_cselect_b32 s44, {PSH}, s44",
                          "s_mov_b32 s63, 0x20000", "s_mov_b32 s95, 0x20000", "v_lshlrev_b32 v157, s44, v1",
                          "buffer_load_dword v155, v157, s[60:63], 0 offen", "buffer_load_dword v155, v157, s[92:95], 0 offen"]
            vm.issue("PT", 2)
        if c == int(os.environ.get("CT1", "-1")) and CT:
            slots[20] += code_touch("k2_kernel", "k3_kernel", 156, "v155")
            vm.issue("CT", 1)
        groups = []; grp = []
        for l in lst:
            if grp and any(x.startswith("buffer") for x in grp) and not (l.startswith("s_add_u32 s8") or l.startswith("s_add_u32 s9")):
                groups.append(grp); grp = []
            grp.append(l)
        if grp: groups.append(grp)
        for g, gl in enumerate(groups):
            slots[g] = gl + slots[g]
        ml = []
        for h in range(2):
            for i in range(5):
                for st in range(2):
                    ml.append((ar((st*5+i)*4), vr(XF(b,st,h)), vr(WF(b,i,h))))
            for st in range(2):
                ml.append((ar(40+4*st), vr(XF(b,st,h)), vr(ONES)))
                ml.append((ar(48+4*st), vr(XF(b,st,h)), vr(XF(b,st,h))))
        for k, m in enumerate(ml):
            mfma(*m)
            for l in slots[k]: e(l)
        for wv in range(4):
            e(f"s_cmp_lg_u32 s16, {wv}")
            e(f"s_cbranch_scc1 k1_ws{c}_{wv}")
            for i in range(5):
                for h in range(2):
                    if (c * 2 + i * 2 + h) % 4 == wv:
                        mfma(ar(56+4*i), vr(ONES), vr(WF(b,i,h)))
            lab(f"k1_ws{c}_{wv}")
    stamp(3)
    WX = 151552
    e("s_nop 7")
    e("s_nop 7")
    for i in range(5):
        e(f"v_accvgpr_read_b32 v{20+i}, a{56+4*i}")
    e("v_lshlrev_b32 v25, 2, v2")
    e("s_mul_i32 s21, s16, 320")
    e(f"s_add_u32 s21, s21, {WX}")
    e("v_add_u32 v26, s21, v25")
    for i in range(5):
        e(f"ds_write_b32 v26, v{20+i} offset:{i*64}")
    e("v_mul_u32_u24 v12, 80, v3")
    for st in range(2):
        for r in range(4):
            e(f"v_accvgpr_read_b32 v{32+st*4+r}, a{40+4*st+r}")
            e(f"v_accvgpr_read_b32 v{40+st*4+r}, a{48+4*st+r}")
    e("s_nop 1")
    for st in range(2):
        for r in range(4):
            e(f"ds_bpermute_b32 v{40+st*4+r}, v12, v{40+st*4+r} offset:{4*r}")
    e(f"v_add_u32 v26, {WX}, v25")
    e("s_waitcnt lgkmcnt(0)")
    e("s_barrier")
    for wv in range(4):
        for i in range(5):
            e(f"ds_read_b32 v{124+wv*5+i}, v26 offset:{wv*320 + i*64}")
    for st in range(2):
        for r in range(4):
            ln_stats(32+st*4+r, 40+st*4+r, 52+st*4+r, 60+st*4+r, 48)
    e("s_waitcnt lgkmcnt(0)")
    for i in range(5):
        e(f"v_add_f32 v{20+i}, v{124+i}, v{129+i}")
        e(f"v_add_f32 v{124+i}, v{134+i}, v{139+i}")
        e(f"v_add_f32 v{20+i}, v{20+i}, v{124+i}")
    e("v_and_b32 v26, 1, v3")
    e("v_lshlrev_b32 v26, 9, v26")
    e("v_lshrrev_b32 v27, 1, v3")
    e("v_lshl_add_u32 v26, v27, 8, v26")
    e("v_lshl_add_u32 v26, v2, 4, v26")
    e("s_lshl_b32 s22, s19, 2")
    e("s_add_u32 s21, s22, s16")
    e("s_lshl_b32 s21, s21, 10")
    e(f"s_mul_i32 s22, s20, {5*ES}")
    e("s_add_u32 s21, s21, s22")
    for i in range(5):
        T = 72 + (i & 1) * 16
        O = 104 + i * 4
        for st in range(2):
            for r in range(4):
                e(f"v_accvgpr_read_b32 v{T+st*4+r}, a{(st*5+i)*4+r}")
        for st in range(2):
            for r in range(4):
                e(f"v_fma_f32 v{T+st*4+r}, -v{52+st*4+r}, v{20+i}, v{T+st*4+r}")
        for st in range(2):
            for r in range(4):
                e(f"v_mul_f32 v{T+st*4+r}, v{T+st*4+r}, v{60+st*4+r}")
        for st in range(2):
            e(f"v_cvt_pk_bf16_f32 v{O+2*st}, v{T+st*4}, v{T+st*4+1}")
            e(f"v_cvt_pk_bf16_f32 v{O+2*st+1}, v{T+st*4+2}, v{T+st*4+3}")
        e("s_nop 1")
        e(f"v_permlane16_swap_b32 v{O}, v{O+2}")
        e(f"v_permlane16_swap_b32 v{O+1}, v{O+3}")
        e(f"s_add_u32 s23, s21, {i*ES}")
        e("s_nop 1")
        e(f"buffer_store_dwordx4 {vr(O)}, v26, s[32:35], s23 offen")
        vm.issue("S", 1)
    stamp(4)
    lab("k1_fin")
    stamp(5)
    stamp_dump(0, 6)
    if os.environ.get("K1ST"):
        for i in range(7, 10):
            e(f"v_mov_b32 v2, s{70+2*i}")
            e(f"v_mov_b32 v3, s{71+2*i}")
            e(f"buffer_store_dwordx2 v[2:3], v0, s[64:67], s68 offen offset:{i*8}")
        e("s_waitcnt vmcnt(0)")
    lab("k1_end")
    e("s_endpgm")

ACC = 176
BUF = 32
def bufA(b, i): return BUF + b * 36 + i * 4
def bufB(b, n): return BUF + b * 36 + 20 + n * 4
def acc(i, n): return ACC + (i * 4 + n) * 4

def splitk_core(nsteps, srdA, srdB, shA, shB, vA, vB, mask):
    def addr():
        e("s_add_u32 s44, s40, s41")
        e(f"s_lshl_b32 s42, s44, {shA}")
        e(f"s_lshl_b32 s43, s44, {shB}")
        e("s_add_u32 s40, s40, 1")
        if mask:
            e(f"s_and_b32 s40, s40, {nsteps-1}")
        else:
            e(f"s_cmp_ge_u32 s40, {nsteps}")
            e("s_cselect_b32 s40, 0, s40")
    def loads(b):
        out = []
        for n in range(4):
            out.append(f"buffer_load_dwordx4 {vr(bufB(b,n))}, v{vB+n}, s[{srdB}:{srdB+3}], s43 offen")
        for i in range(5):
            out.append(f"buffer_load_dwordx4 {vr(bufA(b,i))}, v{vA+i}, s[{srdA}:{srdA+3}], s42 offen")
        return out
    for it in range(3):
        addr()
        for l in loads(it): e(l)
    for a in range(80):
        e(f"v_mov_b32 v{ACC+a}, 0")
    for it in range(nsteps):
        b = it % 4
        rem = min(nsteps - 1 - it, 2)
        e(f"s_waitcnt vmcnt({9*rem})")
        ld = []
        if it + 3 < nsteps:
            addr()
            ld = loads((it + 3) % 4)
        k = 0
        for i in range(5):
            for n in range(4):
                mfma(vr(acc(i,n)), vr(bufA(b,i)), vr(bufB(b,n)))
                k += 1
                if k % 2 == 0 and ld:
                    e(ld.pop(0))
        assert not ld

def splitk_exchange():
    e("s_nop 7")
    e("s_nop 7")
    e("s_mul_i32 s44, s16, 5120")
    e("v_add_u32 v9, s44, v8")
    e("v_add_u32 v10, 61440, v9")
    for n in range(4):
        for i in range(5):
            if n < 3:
                e(f"ds_write_b128 v9, {vr(acc(i,n))} offset:{(n*20+i)*1024}")
            else:
                e(f"ds_write_b128 v10, {vr(acc(i,n))} offset:{i*1024}")
    e("s_mul_i32 s44, s16, 20480")
    e("v_add_u32 v9, s44, v8")
    e("s_waitcnt lgkmcnt(0)")
    e("s_barrier")
    for src in range(4):
        for i in range(5):
            e(f"ds_read_b128 {vr(BUF+(src*5+i)*4)}, v9 offset:{(src*5+i)*1024}")


def hp_addr(vdst, s_st, s_d16base, sdst_list):
    e(f"v_lshrrev_b32 v{vdst}, 1, v3")
    e(f"v_lshlrev_b32 v{vdst}, 8, v{vdst}")
    e(f"v_lshl_add_u32 v{vdst}, v2, 4, v{vdst}")
    e("v_and_b32 v10, 1, v3")
    e(f"v_lshl_add_u32 v{vdst}, v10, 3, v{vdst}")
    e(f"s_mul_i32 s44, s{s_st}, 20480")
    for i in range(5):
        e(f"s_add_u32 s45, s{s_d16base}, {i}")
        e(f"s_lshl_b32 s45, s45, 9")
        e(f"s_add_u32 s{sdst_list[i]}, s44, s45")

def gen_k2_old():
    ROT = os.environ.get("K2ROT", "0") == "1"
    kernel_begin("k2_kernel")
    e("s_cmp_ge_u32 s2, 256")
    e("s_cbranch_scc1 k2_end")
    stamp(0)
    e("s_load_dwordx2 s[4:5], s[0:1], 0")
    e("s_load_dwordx2 s[8:9], s[0:1], 8")
    e("s_load_dwordx2 s[10:11], s[0:1], 16")
    e("s_load_dwordx2 s[6:7], s[0:1], 88")
    e("s_load_dwordx4 s[12:15], s[0:1], 48")
    e("s_load_dwordx2 s[60:61], s[0:1], 64")
    if CTS:
        for l in code_touch("k2_kernel", "k3_kernel", 12, "a91", back=True): e(l)
    lane_setup()
    if os.environ.get("MAP2", "1") == "1":
        e("s_bfe_u32 s19, s2, 0x20001")
        e("s_bfe_u32 s21, s2, 0x30003")
        e("s_lshl_b32 s19, s19, 3")
        e("s_add_u32 s19, s19, s21")
        e("s_and_b32 s20, s2, 1")
        e("s_lshl_b32 s20, s20, 2")
        e("s_lshr_b32 s21, s2, 6")
        e("s_add_u32 s20, s20, s21")
    else:
        e("s_and_b32 s19, s2, 7")
        e("s_lshr_b32 s20, s2, 3")
        e("s_lshr_b32 s21, s20, 3")
        e("s_lshl_b32 s19, s19, 2")
        e("s_add_u32 s19, s19, s21")
        e("s_and_b32 s20, s20, 7")
    e("v_lshlrev_b32 v8, 4, v1")
    VC, VA, VB0, VB1 = 16, 24, 29, 30
    e("v_lshrrev_b32 v4, 3, v1")
    e("v_and_b32 v5, 7, v1")
    e("v_xor_b32 v5, v5, v4")
    e("v_lshlrev_b32 v4, 12, v4")
    e("v_lshl_add_u32 v4, v5, 4, v4")
    e("s_lshl_b32 s22, s19, 18")
    if os.environ.get("XC"): e("s_mov_b32 s22, 0")
    e(f"v_add_u32 v{VC}, s22, v4")
    for j in range(1, 8):
        e(f"v_add_u32 v{VC+j}, {j*32768 - (j%4)*1024}, v{VC}")
    e("s_lshr_b32 s22, s16, 1")
    e("s_mul_i32 s22, s22, 40")
    e("s_mul_i32 s23, s20, 5")
    if os.environ.get("XA"): e("s_mov_b32 s23, 0")
    e("s_add_u32 s22, s22, s23")
    e(f"s_mul_i32 s22, s22, {ES}")
    e(f"v_add_u32 v{VA}, s22, v8")
    for i in range(1, 5):
        e(f"v_add_u32 v{VA+i}, {i*ES}, v{VA}")
    e("s_lshl_b32 s46, s16, 15")
    e("v_and_b32 v5, 7, v2")
    e("v_xor_b32 v5, v5, v3")
    e("v_lshlrev_b32 v4, 7, v2")
    e("v_lshl_add_u32 v4, v5, 4, v4")
    e(f"v_add_u32 v{VB0}, s46, v4")
    e(f"v_xor_b32 v{VB1}, 64, v{VB0}")
    e("s_and_b32 s41, s16, 1")
    e("s_lshl_b32 s47, s41, 11")
    e("s_lshl_b32 s41, s41, 15")
    if os.environ.get("SAMEA"): e("s_mov_b32 s41, 0")
    if os.environ.get("SAMEC"): e("s_mov_b32 s47, 0")
    if os.environ.get("HALFWG"):
        e("s_bitcmp1_b32 s2, 3")
        e("s_cbranch_scc1 k2_end")
    if ROT:
        e("s_lshr_b32 s40, s2, 6")
        e("s_lshl_b32 s40, s40, 2")
    elif os.environ.get("K2ROT", "0") == "2":
        e("s_and_b32 s40, s2, 7")
        e("s_lshl_b32 s40, s40, 1")
    elif os.environ.get("K2ROT", "0") == "3":
        e("s_and_b32 s40, s2, 3")
        e("s_lshl_b32 s40, s40, 2")
    else:
        e("s_mov_b32 s40, 0")
    LEAD = int(os.environ.get("LEAD", "0"))
    LM = os.environ.get("LM", "me")
    e("s_mov_b32 s95, 0")
    if "m" in LM: e("s_lshr_b32 s95, s2, 6")
    if "e" in LM: e("s_add_u32 s95, s95, s20")
    e("s_and_b32 s95, s95, 3")
    e("s_lshl_b32 s21, s19, 6")
    e("s_lshl_b32 s22, s16, 4")
    e("s_add_u32 s21, s21, s22")
    e("s_mul_i32 s22, s21, 1280")
    e("s_mul_i32 s23, s20, 160")
    e("s_add_u32 s22, s22, s23")
    e("v_mul_u32_u24 v11, 1280, v2")
    e("v_lshl_add_u32 v11, v3, 3, v11")
    e("v_add_u32 v11, s22, v11")
    e("s_waitcnt lgkmcnt(0)")
    srd(24, 4, 2621440)
    e("s_cmp_lt_u32 s16, 2")
    e("s_cselect_b32 s28, s8, s10")
    e("s_cselect_b32 s29, s9, s11")
    e("s_mov_b32 s30, 8388608")
    e("s_mov_b32 s31, 0x20000")
    srd(32, 6, SZ_ABP, WS_ABP)
    stamp(1)
    AB = 32
    BB = 192
    def A(b, h, i):
        if b < 2: return vr(AB + (b * 10 + h * 5 + i) * 4)
        return ar(96 + ((b - 2) * 10 + h * 5 + i) * 4)
    def B(b, h, n): return BB + (b * 8 + h * 4 + n) * 4
    vm = VM()
    def stage_issue(stg):
        b = stg % 4
        HALFA = os.environ.get("HALFA") and (stg & 1)
        HALFC = os.environ.get("HALFC") and (stg & 1)
        vm.issue(("S", stg), 18 - (10 if HALFA else 0) - (8 if HALFC else 0))
        o = []
        if LEAD:
            o.append(f"s_cmp_eq_u32 s95, {stg & 3}")
            o.append(f"s_cselect_b32 s40, {(stg + LEAD) & 15}, {stg}")
        o.append("s_lshl_b32 s42, s40, 7")
        o.append("s_add_u32 s42, s42, s47")
        o.append(f"s_add_u32 m0, s46, {b*8192}")
        o.append("s_lshl_b32 s43, s40, 11")
        for j in range(4):
            if not HALFC: o.append(f"buffer_load_dwordx4 v{VC+j}, s[28:31], s42 offen offset:{j*1024} lds")
        o.append(f"s_add_u32 m0, s46, {b*8192+4096}")
        o.append("s_add_u32 s43, s43, s41")
        for j in range(4, 8):
            if not HALFC: o.append(f"buffer_load_dwordx4 v{VC+j}, s[28:31], s42 offen offset:{(j-4)*1024} lds")
        for h in range(2):
            for i in range(5):
                if not HALFA: o.append(f"buffer_load_dwordx4 {A(b,h,i)}, v{VA+i}, s[32:35], s43 offen offset:{h*1024}")
        o.append("s_add_u32 s40, s40, 1")
        o.append(f"s_and_b32 s40, s40, {os.environ.get('XK', '15')}")
        return o
    def bread(st):
        o = []
        for h in range(2):
            for n in range(4):
                o.append(f"ds_read_b128 {vr(B(st&1,h,n))}, v{VB0+h} offset:{(st%4)*8192 + n*2048}")
        return o
    if os.environ.get("ABT"):
        e("s_lshl_b32 s22, s2, 2")
        e("s_add_u32 s22, s22, s16")
        e("s_mul_i32 s22, s22, 5120")
        e("v_lshlrev_b32 v12, 7, v1")
        e("s_mov_b32 exec_hi, 0xff")
        e("buffer_load_dword a92, v12, s[32:35], s22 offen")
        e("s_mov_b32 exec_hi, -1")
    for st in range(3):
        for l in stage_issue(st): e(l)
    for i in range(5):
        e(f"buffer_load_dwordx2 a[{80+2*i}:{81+2*i}], v11, s[24:27], 0 offen offset:{i*32}")
    vm.issue("X", 5)
    PL, PO, PA = 112, 144, 176
    e("s_mul_i32 s48, s2, 3")
    e("s_add_u32 s48, s48, s16")
    e("s_cmp_ge_u32 s2, 240")
    e("s_cselect_b64 vcc, -1, 0")
    e("s_cmp_eq_u32 s16, 3")
    e("s_cselect_b64 vcc, -1, vcc")
    e("s_cbranch_vccnz k2_pdum")
    e("s_cmp_ge_u32 s48, 480")
    e("s_cbranch_scc1 k2_pdn")
    e("s_mul_i32 s49, s48, 52429")
    e("s_lshr_b32 s49, s49, 20")
    e("s_mul_i32 s92, s49, 20")
    e("s_sub_u32 s92, s48, s92")
    srd(36, 12, 1966080)
    srd(56, 14, 1966080)
    e("v_bfe_u32 v12, v1, 3, 2")
    e("v_and_b32 v13, 7, v1")
    e("v_lshrrev_b32 v14, 5, v1")
    e(f"v_mul_u32_u24 v{PA+9}, 24576, v12")
    e(f"v_lshl_add_u32 v{PA+9}, v13, 4, v{PA+9}")
    e("v_mul_u32_u24 v15, 12288, v14")
    e(f"v_add_u32 v{PA+9}, v{PA+9}, v15")
    e("s_mul_i32 s84, s92, 98304")
    e("s_lshl_b32 s85, s49, 7")
    e("s_add_u32 s84, s84, s85")
    e("s_mov_b32 s85, s84")
    e("s_mov_b32 s86, 3072")
    e("v_mul_u32_u24 v13, 1040, v13")
    e("v_lshl_add_u32 v13, v12, 8, v13")
    e(f"v_lshl_add_u32 v{PA}, v14, 3, v13")
    e("s_mov_b32 s93, 64")
    e("s_mov_b32 s94, 32")
    e("s_mul_i32 s87, s49, 163840")
    e("s_lshl_b32 s92, s92, 10")
    e("s_add_u32 s87, s87, s92")
    e(f"s_add_u32 s87, s87, {WS_WGU}")
    e("s_mov_b32 s88, 20480")
    e("s_branch k2_pk")
    lab("k2_pdn")
    e("s_sub_u32 s48, s48, 480")
    e("s_mul_i32 s49, s48, 43691")
    e("s_lshr_b32 s49, s49, 21")
    e("s_mul_i32 s92, s49, 48")
    e("s_sub_u32 s92, s48, s92")
    srd(36, 60, 1966080)
    srd(56, 60, 1966080)
    e(f"v_mul_u32_u24 v{PA+9}, 10240, v3")
    e(f"v_lshl_add_u32 v{PA+9}, v2, 4, v{PA+9}")
    e("s_mul_i32 s84, s92, 40960")
    e("s_lshl_b32 s85, s49, 8")
    e("s_add_u32 s84, s84, s85")
    e("s_add_u32 s85, s84, 5120")
    e("s_mov_b32 s86, 1280")
    e("v_lshrrev_b32 v13, 1, v2")
    e("v_mul_u32_u24 v13, 1040, v13")
    e("v_and_b32 v15, 1, v2")
    e("v_lshlrev_b32 v15, 7, v15")
    e("v_lshl_add_u32 v15, v3, 8, v15")
    e(f"v_add_u32 v{PA}, v15, v13")
    e("s_mov_b32 s93, 32")
    e("s_mov_b32 s94, 8")
    e("s_mul_i32 s87, s49, 393216")
    e("s_lshl_b32 s92, s92, 10")
    e("s_add_u32 s87, s87, s92")
    e(f"s_add_u32 s87, s87, {WS_WDN}")
    e("s_mov_b32 s88, 49152")
    lab("k2_pk")
    for which in range(2):
        for j in range(4):
            sr = 84 + which
            e(f"buffer_load_dwordx4 {vr(PL+(which*4+j)*4)}, v{PA+9}, s[{36+20*which}:{39+20*which}], s{sr} offen")
            e(f"s_add_u32 s{sr}, s{sr}, s86")
    e("s_mul_i32 s49, s16, 8320")
    e("s_add_u32 s49, s49, 131072")
    e(f"v_add_u32 v{PA}, s49, v{PA}")
    for k in range(1, 4):
        e(f"v_add_u32 v{PA+k}, s93, v{PA+k-1}")
    for k in range(4):
        e(f"v_add_u32 v{PA+4+k}, s94, v{PA+k}")
    e(f"v_add_u32 v{PA+12}, s49, v8")
    e("s_branch k2_pdone")
    lab("k2_pdum")
    def dummy(n):
        o = ["s_mov_b64 exec, 1"]
        for j in range(n):
            o.append("buffer_load_dword a90, v8, s[24:27], 0 offen")
        o.append("s_mov_b64 exec, -1")
        return o
    for l in dummy(8): e(l)
    lab("k2_pdone")
    vm.issue("P", 8)
    e("s_mov_b32 s89, 0x05040100")
    e("s_mov_b32 s90, 0x07060302")
    e("s_mov_b32 s64, s6")
    e("s_mov_b32 s65, s7")
    e(f"s_mov_b32 s66, {WS_WDN + SZ_WDN}")
    e("s_mov_b32 s67, 0x20000")
    PST = int(os.environ.get("PST", "3"))
    srd(48, 6, SZ_HP, WS_HP)
    srd(52, 6, SZ_HSTAT, WS_HSTAT)
    for a in range(80):
        e(f"v_accvgpr_write_b32 a{a}, 0")
    e(f"s_waitcnt vmcnt({vm.younger([('S', 0)])})")
    for l in bread(0): e(l)
    NS = 16
    for st in range(NS):
        b = st % 4
        if st + 1 < NS:
            allowed = vm.younger([("S", st + 1)] + (["P"] if st == PST else []))
            e(f"s_waitcnt vmcnt({allowed}) lgkmcnt(0)")
        else:
            e("s_waitcnt lgkmcnt(0)")
        if os.environ.get("K2ST") and st in (0,1,2,3,4,6,8,12): stamp(7 + (0,1,2,3,4,6,8,12).index(st))
        slots = [[] for _ in range(40)]
        if st + 1 < NS:
            for j, l in enumerate(bread(st + 1)):
                slots[1 + 2*j].append(l)
        if st + 3 < NS:
            grp = []; groups = []
            for l in stage_issue(st + 3):
                grp.append(l)
                if l.startswith("buffer"):
                    groups.append(grp); grp = []
            groups[-1] += grp
            for g, gl in enumerate(groups):
                slots[(g * 40) // len(groups)] += gl
        if st == int(os.environ.get("CT2", "-1")) and CT:
            slots[30] += code_touch("k3_kernel", "k4_kernel", 12, "a91")
            vm.issue("CT", 1)
        pk = []
        if st == PST:
            for which in range(2):
                for ee in range(8):
                    o = PO + (which*8+ee)*2
                    g = []
                    for t in range(2):
                        g.append(f"v_perm_b32 v{o+t}, v{PL+(which*4+2*t+1)*4+(ee>>1)}, v{PL+(which*4+2*t)*4+(ee>>1)}, s{89+(ee&1)}")
                    g.append(f"ds_write_b64 v{PA+which*4+(ee>>1)}, v[{o}:{o+1}] offset:{(ee&1)*16}")
                    pk.append(g)
            pk = [pk[2*i] + pk[2*i+1] for i in range(8)]
        if st == PST + 1:
            pk = [[f"ds_read_b128 {vr(PL+g*4)}, v{PA+12} offset:{g*1040}"] for g in range(8)]
        for g, gl in enumerate(pk):
            slots[18 + 2*g] += [f"s_cbranch_vccnz k2_np{st}_{g}"] + gl + [f"k2_np{st}_{g}:"]
        if st == PST + 2:
            gl = ["s_cbranch_vccnz k2_sdum"]
            for g in range(8):
                gl += [f"buffer_store_dwordx4 {vr(PL+g*4)}, v8, s[64:67], s87 offen sc1", "s_add_u32 s87, s87, s88"]
            gl += ["s_branch k2_sdone", "k2_sdum:"] + dummy(8) + ["k2_sdone:"]
            slots[39] += gl
            vm.issue("Q", 8)
        k = 0
        for h in range(2):
            for i in range(5):
                for n in range(4):
                    if not os.environ.get("NOMFMA"): mfma(ar((i*4+n)*4), A(b,h,i), vr(B(st&1,h,n)))
                    for l in slots[k]:
                        if os.environ.get("NODS") and l.startswith("ds_"): continue
                        if os.environ.get("NOA") and l.startswith("buffer") and not l.endswith("lds"): continue
                        if os.environ.get("NOC") and l.startswith("buffer") and l.endswith("lds"): continue
                        e(l)
                    k += 1
    stamp(2)
    stamp(3)
    e("s_nop 7")
    e("v_add_u32 v9, s46, v8")
    for n in range(4):
        for i in range(5):
            e(f"ds_write_b128 v9, {ar((i*4+n)*4)} offset:{(n*5+i)*1024}")
    e("s_mul_i32 s44, s16, 5120")
    e("v_add_u32 v9, s44, v8")
    e("v_add_u32 v10, 65536, v9")
    XR = 112
    for i in range(10):
        e(f"v_accvgpr_read_b32 v{XR+i}, a{80+i}")
    e("s_waitcnt lgkmcnt(0)")
    e("s_barrier")
    for src in range(4):
        for i in range(5):
            e(f"ds_read_b128 {vr(BUF+(src*5+i)*4)}, v{9 + (src>>1)} offset:{(src&1)*32768 + i*1024}")
    stamp(4)
    e("s_lshl_b32 s22, s19, 2")
    e("s_add_u32 s22, s22, s16")
    e("s_mul_i32 s23, s20, 5")
    hp_addr(11, 22, 23, [61, 62, 63, 64, 65])
    e("v_mov_b32 v17, 0")
    e("v_mov_b32 v18, 0")
    e("s_waitcnt vmcnt(0) lgkmcnt(0)")
    T = 124
    for i in range(5):
        def S(src, r): return BUF + (src*5+i)*4 + r
        for r in range(4):
            e(f"v_add_f32 v{T+r}, v{S(0,r)}, v{S(1,r)}")
            e(f"v_add_f32 v{T+4+r}, v{S(2,r)}, v{S(3,r)}")
        for r in range(4):
            bf16r(T+r, T+r)
            bf16r(T+4+r, T+4+r)
        for r in range(4):
            e(f"v_sub_f32 v{T+r}, v{T+r}, v{T+4+r}")
        for r in range(4):
            bf16r(T+r, T+r)
        e(f"v_lshlrev_b32 v{T+4}, 16, v{XR+2*i}")
        e(f"v_and_b32 v{T+5}, 0xffff0000, v{XR+2*i}")
        e(f"v_lshlrev_b32 v{T+6}, 16, v{XR+2*i+1}")
        e(f"v_and_b32 v{T+7}, 0xffff0000, v{XR+2*i+1}")
        for r in range(4):
            e(f"v_add_f32 v{T+r}, v{T+r}, v{T+4+r}")
        o = 136 + 2*i
        e(f"v_cvt_pk_bf16_f32 v{o}, v{T}, v{T+1}")
        e(f"v_cvt_pk_bf16_f32 v{o+1}, v{T+2}, v{T+3}")
        e(f"buffer_store_dwordx2 v[{o}:{o+1}], v11, s[48:51], s{61+i} offen")
        e(f"v_lshlrev_b32 v{T}, 16, v{o}")
        e(f"v_and_b32 v{T+1}, 0xffff0000, v{o}")
        e(f"v_lshlrev_b32 v{T+2}, 16, v{o+1}")
        e(f"v_and_b32 v{T+3}, 0xffff0000, v{o+1}")
        for r in range(4):
            e(f"v_add_f32 v17, v17, v{T+r}")
            e(f"v_fmac_f32 v18, v{T+r}, v{T+r}")
    e("v_xor_b32 v10, 16, v1")
    e("v_lshlrev_b32 v10, 2, v10")
    e("ds_bpermute_b32 v19, v10, v17")
    e("ds_bpermute_b32 v28, v10, v18")
    e("s_waitcnt lgkmcnt(0)")
    e("v_add_f32 v17, v17, v19")
    e("v_add_f32 v18, v18, v28")
    e("v_xor_b32 v10, 32, v1")
    e("v_lshlrev_b32 v10, 2, v10")
    e("ds_bpermute_b32 v19, v10, v17")
    e("ds_bpermute_b32 v28, v10, v18")
    e("s_waitcnt lgkmcnt(0)")
    e("v_add_f32 v30, v17, v19")
    e("v_add_f32 v31, v18, v28")
    e("s_lshl_b32 s22, s21, 3")
    e("s_lshl_b32 s23, s20, 14")
    e("s_add_u32 s22, s22, s23")
    e("v_lshlrev_b32 v10, 3, v2")
    e("s_mov_b32 exec_lo, 0x0000ffff")
    e("s_mov_b32 exec_hi, 0")
    e("buffer_store_dwordx2 v[30:31], v10, s[52:55], s22 offen")
    e("s_mov_b64 exec, -1")
    lab("k2_fin")
    stamp(5)
    stamp_dump(1, 6)
    if os.environ.get("K2ST"):
        for i in range(7, 15):
            e(f"v_mov_b32 v2, s{70+2*i}")
            e(f"v_mov_b32 v3, s{71+2*i}")
            e(f"buffer_store_dwordx2 v[2:3], v0, s[64:67], s68 offen offset:{i*8}")
        e("s_waitcnt vmcnt(0)")
    lab("k2_end")
    e("s_endpgm")


def gen_k2():
    WST = 39936
    NRETRY = int(os.environ.get("NRETRY", "24"))
    FORCE = os.environ.get("FORCE", "")
    kernel_begin("k2_kernel")
    e("s_cmp_ge_u32 s2, 256")
    e("s_cbranch_scc1 k2_end")
    stamp(0)
    e("s_load_dwordx2 s[4:5], s[0:1], 0")
    e("s_load_dwordx2 s[8:9], s[0:1], 8")
    e("s_load_dwordx2 s[10:11], s[0:1], 16")
    e("s_load_dwordx2 s[6:7], s[0:1], 88")
    e("s_load_dwordx4 s[12:15], s[0:1], 48")
    e("s_load_dwordx2 s[60:61], s[0:1], 64")
    if CTS:
        for l in code_touch("k2_kernel", "k3_kernel", 12, "a251", back=True): e(l)
    lane_setup()
    e("s_and_b32 s17, s2, 1")
    if os.environ.get("MAP2", "1") == "1":
        e("s_bfe_u32 s19, s2, 0x20001")
        e("s_bfe_u32 s21, s2, 0x20003")
        e("s_lshl_b32 s19, s19, 2")
        e("s_add_u32 s19, s19, s21")
        e("s_lshr_b32 s20, s2, 5")
    else:
        e("s_bfe_u32 s19, s2, 0x10002")
        e("s_bfe_u32 s21, s2, 0x30003")
        e("s_lshl_b32 s19, s19, 3")
        e("s_add_u32 s19, s19, s21")
        e("s_bfe_u32 s20, s2, 0x10001")
        e("s_lshl_b32 s20, s20, 2")
        e("s_lshr_b32 s21, s2, 6")
        e("s_add_u32 s20, s20, s21")
    e("v_lshlrev_b32 v8, 4, v1")
    VC, VA, VB0, VB1 = 16, 24, 29, 30
    e("v_lshrrev_b32 v4, 3, v1")
    e("v_and_b32 v5, 7, v1")
    e("v_xor_b32 v5, v5, v4")
    e("v_lshlrev_b32 v4, 12, v4")
    e("v_lshl_add_u32 v4, v5, 4, v4")
    e("s_lshl_b32 s22, s19, 19")
    e("v_add_u32 v4, s22, v4")
    e("s_lshl_b32 s23, s16, 1")
    for j in range(8):
        e(f"s_add_u32 s22, s23, {j+2}")
        e("s_and_b32 s22, s22, 7")
        e("s_lshl_b32 s22, s22, 15")
        e(f"s_add_u32 s22, s22, {4096 - (j%4)*1024}")
        e(f"v_add_u32 v{VC+j}, s22, v4")
    e("s_mul_i32 s22, s17, 40")
    e("s_mul_i32 s23, s20, 5")
    e("s_add_u32 s22, s22, s23")
    e(f"s_mul_i32 s22, s22, {ES}")
    e(f"v_add_u32 v{VA}, s22, v8")
    for i in range(1, 5):
        e(f"v_add_u32 v{VA+i}, {i*ES}, v{VA}")
    e(f"s_mul_i32 s46, s16, {WST}")
    e("s_lshl_b32 s41, s17, 18")
    e("s_xor_b32 s40, s41, 0x40000")
    e("s_lshl_b32 s22, s16, 10")
    e("s_add_u32 s40, s40, s22")
    e("s_add_u32 s41, s41, s22")
    e("s_lshl_b32 s47, s16, 14")
    e("s_waitcnt lgkmcnt(0)")
    e("s_cmp_eq_u32 s17, 0")
    e("s_cselect_b32 s28, s8, s10")
    e("s_cselect_b32 s29, s9, s11")
    e("s_sub_u32 s28, s28, 4096")
    e("s_subb_u32 s29, s29, 0")
    e(f"s_mov_b32 s30, {8388608 + 4096}")
    e("s_mov_b32 s31, 0x20000")
    srd(32, 6, SZ_ABP, WS_ABP)
    stamp(1)
    BB = 192
    def A(u, h, i):
        b = u % 4
        if b < 2: return vr(32 + (b * 10 + h * 5 + i) * 4)
        return ar(160 + ((b - 2) * 10 + h * 5 + i) * 4)
    def B(b, h, n): return BB + (b * 8 + h * 4 + n) * 4
    def AC(c, i, n): return (c * 20 + i * 4 + n) * 4
    seq = []
    for u in range(5): seq += [(u, 0), (u, 1)]
    seq += [(5, 0), (6, 0), (7, 0), (5, 1), (6, 1), (7, 1)]
    vm = VM()
    def cld(s):
        u, c = seq[s]
        b = s % 4
        o = [f"s_add_u32 s42, s{40+c}, {u*128}", f"s_add_u32 m0, s46, {b*8192}"]
        for j in range(4):
            o.append(f"buffer_load_dwordx4 v{VC+j}, s[28:31], s42 offen offset:{j*1024} lds")
        o.append(f"s_add_u32 m0, s46, {b*8192+4096}")
        for j in range(4, 8):
            o.append(f"buffer_load_dwordx4 v{VC+j}, s[28:31], s42 offen offset:{(j-4)*1024} lds")
        vm.issue(("C", s), 8)
        return o
    def ald(u, h):
        o = [f"s_add_u32 s43, s47, {u*2048}"]
        for i in range(5):
            o.append(f"buffer_load_dwordx4 {A(u,h,i)}, v{VA+i}, s[32:35], s43 offen offset:{h*1024}")
        vm.issue(("A", u), 5)
        return o
    def bread(s):
        o = []
        for h in range(2):
            for n in range(4):
                o.append(f"ds_read_b128 {vr(B(s&1,h,n))}, v{VB0+h} offset:{(s%4)*8192 + n*2048}")
        return o
    def items(lst):
        o = []
        for it in lst:
            if it[0] == "C": o += cld(int(it[1:]))
            else: o += ald(int(it[1]), int(it[2]))
        return o
    for l in items(["C0", "A00", "A01", "C1", "C2", "A10", "A11", "C3"]): e(l)
    plan = {0: ["C4", "A20"], 1: ["A21", "C5"], 2: ["C6", "A30"], 3: ["A31", "C7"], 4: ["C8", "A40"], 5: ["A41", "C9"],
            6: ["C10", "A50"], 7: ["A51", "C11", "A60"], 8: ["A61", "C12", "A70"], 9: ["A71", "C13"], 10: ["C14"], 11: ["C15"]}
    e("v_and_b32 v5, 7, v2")
    e("v_xor_b32 v5, v5, v3")
    e("v_lshlrev_b32 v4, 7, v2")
    e("v_lshl_add_u32 v4, v5, 4, v4")
    e(f"v_add_u32 v{VB0}, s46, v4")
    e(f"v_xor_b32 v{VB1}, 64, v{VB0}")
    srd(24, 4, 2621440)
    e("v_add_u32 v9, s46, v8")
    for n in range(3):
        e(f"s_sub_u32 s22, s16, {n+1}")
        e("s_and_b32 s22, s22, 3")
        e(f"s_mul_i32 s22, s22, {WST}")
        e(f"v_add_u32 v{4+n}, s22, v8")
    e("s_lshl_b32 s21, s19, 3")
    e("s_lshl_b32 s22, s17, 2")
    e("s_add_u32 s21, s21, s22")
    e("s_add_u32 s21, s21, s16")
    e("v_mul_u32_u24 v11, 1280, v2")
    e("v_lshl_add_u32 v11, v3, 3, v11")
    e("v_lshrrev_b32 v7, 1, v3")
    e("v_lshlrev_b32 v7, 8, v7")
    e("v_lshl_add_u32 v7, v2, 4, v7")
    e("v_and_b32 v10, 1, v3")
    e("v_lshl_add_u32 v7, v10, 3, v7")
    e("s_lshl_b32 s63, s19, 3")
    e("s_add_u32 s63, s63, s20")
    e("s_lshl_b32 s63, s63, 2")
    e("s_add_u32 s63, s63, s16")
    e("s_lshl_b32 s63, s63, 1")
    e("s_add_u32 s63, s63, s17")
    e("s_lshl_b32 s63, s63, 12")
    e("s_xor_b32 s68, s63, 4096")
    e(f"s_mov_b32 s69, {NRETRY}")
    srd(96, 6, SZ_XB, WS_XB)
    e("s_mul_i32 s18, s17, 0x80008000")
    PL, PO, PA = 112, 144, 176
    e("s_mul_i32 s48, s2, 3")
    e("s_add_u32 s48, s48, s16")
    e("s_mov_b32 s95, 1")
    e("s_cmp_ge_u32 s2, 240")
    e("s_cbranch_scc1 k2_pdone")
    e("s_cmp_eq_u32 s16, 3")
    e("s_cbranch_scc1 k2_pdone")
    e("s_mov_b32 s95, 0")
    e("s_cmp_ge_u32 s48, 480")
    e("s_cbranch_scc1 k2_pdn")
    e("s_mul_i32 s49, s48, 52429")
    e("s_lshr_b32 s49, s49, 20")
    e("s_mul_i32 s92, s49, 20")
    e("s_sub_u32 s92, s48, s92")
    srd(36, 12, 1966080)
    srd(56, 14, 1966080)
    e("v_bfe_u32 v12, v1, 3, 2")
    e("v_and_b32 v13, 7, v1")
    e("v_lshrrev_b32 v14, 5, v1")
    e(f"v_mul_u32_u24 v{PA+9}, 24576, v12")
    e(f"v_lshl_add_u32 v{PA+9}, v13, 4, v{PA+9}")
    e("v_mul_u32_u24 v15, 12288, v14")
    e(f"v_add_u32 v{PA+9}, v{PA+9}, v15")
    e("s_mul_i32 s84, s92, 98304")
    e("s_lshl_b32 s85, s49, 7")
    e("s_add_u32 s84, s84, s85")
    e("s_mov_b32 s85, s84")
    e("s_mov_b32 s86, 3072")
    e("v_mul_u32_u24 v13, 1040, v13")
    e("v_lshl_add_u32 v13, v12, 8, v13")
    e(f"v_lshl_add_u32 v{PA}, v14, 3, v13")
    e("s_mov_b32 s93, 64")
    e("s_mov_b32 s94, 32")
    e("s_mul_i32 s87, s49, 163840")
    e("s_lshl_b32 s92, s92, 10")
    e("s_add_u32 s87, s87, s92")
    e(f"s_add_u32 s87, s87, {WS_WGU}")
    e("s_mov_b32 s88, 20480")
    e("s_branch k2_pk")
    lab("k2_pdn")
    e("s_sub_u32 s48, s48, 480")
    e("s_mul_i32 s49, s48, 43691")
    e("s_lshr_b32 s49, s49, 21")
    e("s_mul_i32 s92, s49, 48")
    e("s_sub_u32 s92, s48, s92")
    srd(36, 60, 1966080)
    srd(56, 60, 1966080)
    e(f"v_mul_u32_u24 v{PA+9}, 10240, v3")
    e(f"v_lshl_add_u32 v{PA+9}, v2, 4, v{PA+9}")
    e("s_mul_i32 s84, s92, 40960")
    e("s_lshl_b32 s85, s49, 8")
    e("s_add_u32 s84, s84, s85")
    e("s_add_u32 s85, s84, 5120")
    e("s_mov_b32 s86, 1280")
    e("v_lshrrev_b32 v13, 1, v2")
    e("v_mul_u32_u24 v13, 1040, v13")
    e("v_and_b32 v15, 1, v2")
    e("v_lshlrev_b32 v15, 7, v15")
    e("v_lshl_add_u32 v15, v3, 8, v15")
    e(f"v_add_u32 v{PA}, v15, v13")
    e("s_mov_b32 s93, 32")
    e("s_mov_b32 s94, 8")
    e("s_mul_i32 s87, s49, 393216")
    e("s_lshl_b32 s92, s92, 10")
    e("s_add_u32 s87, s87, s92")
    e(f"s_add_u32 s87, s87, {WS_WDN}")
    e("s_mov_b32 s88, 49152")
    lab("k2_pk")
    e("s_add_u32 s49, s46, 23552")
    e(f"v_add_u32 v{PA}, s49, v{PA}")
    for k in range(1, 4):
        e(f"v_add_u32 v{PA+k}, s93, v{PA+k-1}")
    for k in range(4):
        e(f"v_add_u32 v{PA+4+k}, s94, v{PA+k}")
    e(f"v_add_u32 v{PA+12}, s49, v8")
    lab("k2_pdone")
    def dummy(n):
        o = ["s_mov_b64 exec, 1"]
        for j in range(n):
            o.append("buffer_load_dword a250, v8, s[24:27], 0 offen")
        o.append("s_mov_b64 exec, -1")
        return o
    e("s_mov_b32 s89, 0x05040100")
    e("s_mov_b32 s90, 0x07060302")
    e("s_mov_b32 s64, s6")
    e("s_mov_b32 s65, s7")
    e(f"s_mov_b32 s66, {WS_WDN + SZ_WDN}")
    e("s_mov_b32 s67, 0x20000")
    srd(48, 6, SZ_HP, WS_HP)
    srd(52, 6, SZ_HSTAT, WS_HSTAT)
    def xaddr(sST, dX, dH, dS):
        return [f"s_mul_i32 s{dX}, s{sST}, 20480", f"s_mul_i32 s{dH}, s20, 2560", f"s_add_u32 s{dH}, s{dH}, s{dX}",
                "s_mul_i32 s22, s20, 160", f"s_add_u32 s{dX}, s{dX}, s22",
                f"s_lshl_b32 s{dS}, s{sST}, 7", "s_lshl_b32 s22, s20, 14", f"s_add_u32 s{dS}, s{dS}, s22"]
    for l in xaddr(21, 44, 62, 45): e(l)
    for a in range(160):
        e(f"v_accvgpr_write_b32 a{a}, 0")
    e(f"s_waitcnt vmcnt({vm.younger([('C', 0)])})")
    for l in bread(0): e(l)
    PP, PD = 16, 72
    def RT(k): return (32 + k * 4) if k < 10 else (144 + (k - 10) * 4)
    def RO(k): return (32 + k * 4) if k < 10 else (84 + (k - 10) * 4)
    def xoff(k): return k * 1024 if k < 8 else 32768 + (k - 8) * 1024
    def poll(): return [f"buffer_load_dwordx4 {vr(PD+4*q)}, v8, s[96:99], s68 offen offset:{q*1024} sc1" for q in range(3)]
    PKS = int(os.environ.get("PKS", "12"))
    POLLP = int(os.environ.get("POLLP", "1"))
    RSP = int(os.environ.get("RSP", "36"))
    for st in range(16):
        u, c = seq[st]
        need = []
        if st + 1 < 16: need.append(("C", st + 1))
        if c == 0: need.append(("A", u))
        if st == 15: need.append("PK")
        e(f"s_waitcnt vmcnt({vm.younger(need)}) lgkmcnt(0)")
        if st == 13: e("s_barrier")
        slots = [[] for _ in range(40)]
        pre = []
        if st == 13:
            for k in range(15):
                slots[k].append(f"ds_read_b128 {vr(RT(k))}, v{4 + k//5} offset:{xoff(k)}")
        if st + 1 < 16:
            for j, l in enumerate(bread(st + 1)):
                slots[(1 + 2*j) if st != 13 else (15 + j)].append(l)
        lst = items(plan.get(st, []))
        grp = []; groups = []
        for l in lst:
            grp.append(l)
            if l.startswith("buffer"):
                groups.append(grp); grp = []
        for g, gl in enumerate(groups):
            slots[(g * 40) // len(groups)] += gl
        if st == PKS:
            for i in range(5):
                slots[2*i] += [f"buffer_load_dwordx2 a[{240+2*i}:{241+2*i}], v11, s[24:27], s44 offen offset:{i*32}"]
            vm.issue("X", 5)
            for which in range(2):
                gl = ["s_cmp_lg_u32 s95, 0", f"s_cbranch_scc1 k2_ld{which}"]
                for j in range(4):
                    sr = 84 + which
                    gl += [f"buffer_load_dwordx4 {vr(PL+(which*4+j)*4)}, v{PA+9}, s[{36+20*which}:{39+20*which}], s{sr} offen",
                           f"s_add_u32 s{sr}, s{sr}, s86"]
                gl += [f"s_branch k2_le{which}", f"k2_ld{which}:"] + dummy(4) + [f"k2_le{which}:"]
                slots[10 + 8*which] += gl
            vm.issue("PK", 8)
        nmaj = st in (12, 15)
        if nmaj:
            for g in range(3):
                for i in range(5):
                    k = g * 5 + i
                    off = xoff(k) if st == 12 else 8192 + k * 1024
                    slots[10*(g+1) + 2 + i].append(f"ds_write_b128 v9, {ar(AC(c,i,g))} offset:{off}")
        if st == 14:
            ops = []
            for i in range(5):
                t = 164 + (i % 3) * 4
                for r in range(4): ops.append(f"v_accvgpr_read_b32 v{t+r}, a{AC(0,i,3)+r}")
                for r in range(4): ops.append(f"v_add_f32 v{RT(i)+r}, v{RT(i)+r}, v{RT(5+i)+r}")
                for r in range(4): ops.append(f"v_add_f32 v{t+r}, v{t+r}, v{RT(10+i)+r}")
                for r in range(4): ops.append(f"v_add_f32 v{t+r}, v{t+r}, v{RT(i)+r}")
                ops.append(f"v_cvt_pk_bf16_f32 v{PP+2*i}, v{t}, v{t+1}")
                ops.append(f"v_cvt_pk_bf16_f32 v{PP+2*i+1}, v{t+2}, v{t+3}")
                if i == 4: ops += [f"v_mov_b32 v{PP+10}, 0", f"v_mov_b32 v{PP+11}, 0"]
                if i in (1, 3, 4):
                    q = i // 2
                    ops.append(f"buffer_store_dwordx4 {vr(PP+4*q)}, v8, s[96:99], s63 offen offset:{q*1024}")
            vm.issue("P", 3)
            for j, l in enumerate(ops):
                slots[(j * RSP) // len(ops)].append(l)
        if st == 15:
            pk = []
            for which in range(2):
                for ee in range(8):
                    o = PO + (which*8+ee)*2
                    g = []
                    for t in range(2):
                        g.append(f"v_perm_b32 v{o+t}, v{PL+(which*4+2*t+1)*4+(ee>>1)}, v{PL+(which*4+2*t)*4+(ee>>1)}, s{89+(ee&1)}")
                    g.append(f"ds_write_b64 v{PA+which*4+(ee>>1)}, v[{o}:{o+1}] offset:{(ee&1)*16}")
                    pk.append(g)
            pk = [pk[2*i] + pk[2*i+1] for i in range(8)]
            for g, gl in enumerate(pk):
                slots[(0, 3, 6, 9, 18, 21, 28, 30)[g]] += ["s_cmp_lg_u32 s95, 0", f"s_cbranch_scc1 k2_np{g}"] + gl + [f"k2_np{g}:"]
            if POLLP == 0:
                slots[38] += poll()
        order = [(h, i, n) for n in range(4) for h in range(2) for i in range(5)] if nmaj else \
                [(h, i, n) for h in range(2) for i in range(5) for n in range(4)]
        for k, (h, i, n) in enumerate(order):
            mfma(ar(AC(c,i,n)), A(u,h,i), vr(B(st&1,h,n)))
            for l in slots[k]: e(l)
    stamp(2)
    e("s_waitcnt lgkmcnt(0)")
    e("s_barrier")
    if POLLP == 1:
        for l in poll(): e(l)
    for k in range(15):
        e(f"ds_read_b128 {vr(RO(k))}, v{4 + k//5} offset:{8192 + k*1024}")
    if POLLP == 2:
        for l in poll(): e(l)
    e("s_cmp_lg_u32 s95, 0")
    e("s_cbranch_scc1 k2_npr")
    for g in range(8):
        e(f"ds_read_b128 {vr(PL+g*4)}, v{PA+12} offset:{g*1040}")
    lab("k2_npr")
    stamp(4)
    XU, MU, T, OP, XP = 192, 212, 232, 144, 156
    NS = 168
    def partX():
        o = []
        for i in range(10): o.append(f"v_accvgpr_read_b32 v{XP+i}, a{240+i}")
        for i in range(10):
            o.append(f"v_lshlrev_b32 v{XU+2*i}, 16, v{XP+i}")
            o.append(f"v_and_b32 v{XU+2*i+1}, 0xffff0000, v{XP+i}")
        return o
    def partM(MP):
        o = []
        for i in range(10):
            o.append(f"v_xor_b32 v{T}, s18, v{MP+i}")
            o.append(f"v_lshlrev_b32 v{MU+2*i}, 16, v{T}")
            o.append(f"v_and_b32 v{MU+2*i+1}, 0xffff0000, v{T}")
        return o
    def partB(sH, sS):
        HO = 104
        for i in range(5):
            t = T + (i & 1) * 8
            e(f"v_lshlrev_b32 v{t}, 16, v{PD+2*i}")
            e(f"v_and_b32 v{t+1}, 0xffff0000, v{PD+2*i}")
            e(f"v_lshlrev_b32 v{t+2}, 16, v{PD+2*i+1}")
            e(f"v_and_b32 v{t+3}, 0xffff0000, v{PD+2*i+1}")
            for p in (0, 2):
                e(f"v_pk_fma_f32 v[{t+p}:{t+p+1}], v[{t+p}:{t+p+1}], v[{NS}:{NS+1}], v[{MU+4*i+p}:{MU+4*i+p+1}]")
            e(f"v_cvt_pk_bf16_f32 v{t+4}, v{t}, v{t+1}")
            e(f"v_cvt_pk_bf16_f32 v{t+5}, v{t+2}, v{t+3}")
            e(f"v_lshlrev_b32 v{t}, 16, v{t+4}")
            e(f"v_and_b32 v{t+1}, 0xffff0000, v{t+4}")
            e(f"v_lshlrev_b32 v{t+2}, 16, v{t+5}")
            e(f"v_and_b32 v{t+3}, 0xffff0000, v{t+5}")
            for p in (0, 2):
                e(f"v_pk_add_f32 v[{t+p}:{t+p+1}], v[{t+p}:{t+p+1}], v[{XU+4*i+p}:{XU+4*i+p+1}]")
            o = 32 + 2*i
            e(f"v_cvt_pk_bf16_f32 v{o}, v{t}, v{t+1}")
            e(f"v_cvt_pk_bf16_f32 v{o+1}, v{t+2}, v{t+3}")
            e(f"buffer_store_dwordx2 v[{o}:{o+1}], v7, s[48:51], s{sH} offen offset:{i*512}")
        e("v_mov_b32 v44, 0")
        e("v_mov_b32 v45, 0")
        e("s_mov_b32 s23, 0x3f803f80")
        for i in range(10):
            e(f"v_dot2_f32_bf16 v44, v{32+i}, s23, v44")
            e(f"v_dot2_f32_bf16 v45, v{32+i}, v{32+i}, v45")
        for sw in ("v_permlane16_swap_b32", "v_permlane32_swap_b32"):
            e("s_nop 3")
            e("v_mov_b32 v46, v44")
            e("v_mov_b32 v47, v45")
            e("s_nop 1")
            e(f"{sw} v44, v46")
            e(f"{sw} v45, v47")
            e("s_nop 1")
            e("v_add_f32 v44, v44, v46")
            e("v_add_f32 v45, v45, v47")
        e("v_lshlrev_b32 v10, 3, v2")
        e("s_mov_b64 exec, 0xffff")
        e(f"buffer_store_dwordx2 v[44:45], v10, s[52:55], s{sS} offen")
        e("s_mov_b64 exec, -1")
    def check():
        e(f"v_max3_u32 v{T}, v{PD}, v{PD+1}, v{PD+2}")
        e(f"v_max3_u32 v{T+1}, v{PD+3}, v{PD+4}, v{PD+5}")
        e(f"v_max3_u32 v{T+2}, v{PD+6}, v{PD+7}, v{PD+8}")
        e(f"v_max3_u32 v{T}, v{T}, v{T+1}, v{PD+9}")
        e(f"v_max_u32 v{T}, v{T}, v{T+2}")
        e(f"v_cmp_eq_u32 vcc, -1, v{T}")
    def atomic(dst, soff):
        e(f"v_mov_b32 v{dst}, 1")
        e("s_mov_b64 exec, 1")
        e(f"buffer_atomic_add v{dst}, v8, s[96:99], s{soff} offen offset:3072 sc0")
        e("s_mov_b64 exec, -1")
    for l in partX(): e(l)
    e("s_lshl_b32 s22, s17, 31")
    e("s_xor_b32 s22, s22, 0xbf800000")
    e(f"v_mov_b32 v{NS}, s22")
    e(f"v_mov_b32 v{NS+1}, s22")
    for i in range(5):
        for r in range(4): e(f"v_accvgpr_read_b32 v{MU+4*i+r}, a{AC(1,i,3)+r}")
    if POLLP == 3:
        for l in poll(): e(l)
    e("s_waitcnt lgkmcnt(0)")
    for i in range(5):
        for p in (0, 2):
            e(f"v_pk_add_f32 v[{RO(i)+p}:{RO(i)+p+1}], v[{RO(i)+p}:{RO(i)+p+1}], v[{RO(5+i)+p}:{RO(5+i)+p+1}]")
            e(f"v_pk_add_f32 v[{MU+4*i+p}:{MU+4*i+p+1}], v[{MU+4*i+p}:{MU+4*i+p+1}], v[{RO(10+i)+p}:{RO(10+i)+p+1}]")
        for p in (0, 2):
            e(f"v_pk_add_f32 v[{MU+4*i+p}:{MU+4*i+p+1}], v[{MU+4*i+p}:{MU+4*i+p+1}], v[{RO(i)+p}:{RO(i)+p+1}]")
        e(f"v_cvt_pk_bf16_f32 v{OP+2*i}, v{MU+4*i}, v{MU+4*i+1}")
        e(f"v_cvt_pk_bf16_f32 v{OP+2*i+1}, v{MU+4*i+2}, v{MU+4*i+3}")
    for l in partM(OP): e(l)
    e("s_waitcnt vmcnt(0)")
    atomic(170, 63)
    e("s_cmp_lg_u32 s95, 0")
    e("s_cbranch_scc1 k2_nq")
    for g in range(8):
        e(f"buffer_store_dwordx4 {vr(PL+g*4)}, v8, s[64:67], s87 offen sc1")
        e("s_add_u32 s87, s87, s88")
    lab("k2_nq")
    check()
    if FORCE:
        e(f"s_cmp_eq_u32 s17, {FORCE[0]}" if FORCE[0] in "01" else "s_cmp_eq_u32 s17, s17")
        e("s_cbranch_scc1 k2_giveup")
    e("s_cbranch_vccnz k2_retry")
    lab("k2_own")
    partB(62, 45)
    lab("k2_after")
    e("s_waitcnt vmcnt(0)")
    e("v_readfirstlane_b32 s22, v170")
    e("s_cmp_eq_u32 s22, 0")
    e("s_cbranch_scc1 k2_help")
    lab("k2_fin")
    stamp(5)
    if DIAG:
        e("s_mov_b32 s76, s69")
        e("s_mov_b32 s77, 0")
    stamp_dump(1, 6)
    lab("k2_end")
    e("s_endpgm")
    lab("k2_retry")
    e("s_sub_u32 s69, s69, 1")
    e("s_cbranch_scc1 k2_giveup")
    for l in poll(): e(l)
    e("s_waitcnt vmcnt(0)")
    check()
    e("s_cbranch_vccnz k2_retry")
    e("s_branch k2_own")
    lab("k2_giveup")
    e(f"s_add_u32 s22, s68, {SZ_XB//2}")
    for q in range(3):
        e(f"buffer_store_dwordx4 {vr(OP+4*q)}, v8, s[96:99], s22 offen offset:{q*1024}")
    e("s_waitcnt vmcnt(0)")
    atomic(171, 68)
    e("s_waitcnt vmcnt(0)")
    e("v_readfirstlane_b32 s22, v171")
    e("s_cmp_lg_u32 s22, 0")
    e("s_cbranch_scc1 k2_after")
    e("s_mov_b32 s69, 8")
    lab("k2_g2")
    for l in poll(): e(l)
    e("s_waitcnt vmcnt(0)")
    check()
    e("s_cbranch_vccz k2_own")
    e("s_sub_u32 s69, s69, 1")
    e("s_cbranch_scc0 k2_g2")
    e("s_branch k2_own")
    lab("k2_help")
    e("s_xor_b32 s21, s21, 4")
    for l in xaddr(21, 44, 62, 45): e(l)
    e(f"s_add_u32 s68, s63, {SZ_XB//2}")
    for l in poll(): e(l)
    for i in range(5):
        e(f"buffer_load_dwordx2 a[{240+2*i}:{241+2*i}], v11, s[24:27], s44 offen offset:{i*32}")
    e("s_waitcnt vmcnt(0)")
    for l in partX() + partM(PP): e(l)
    partB(62, 45)
    e("s_branch k2_fin")

def gen_k4():
    kernel_begin("k4_kernel")
    e("s_cmp_ge_u32 s2, 256")
    e("s_cbranch_scc1 k4_end")
    stamp(0)
    e("s_load_dwordx2 s[4:5], s[0:1], 72")
    e("s_load_dwordx2 s[6:7], s[0:1], 88")
    if CTS:
        for l in code_touch("k4_kernel", "code_end", 26, "v27", back=True): e(l)
    lane_setup()
    if MAP34:
        e("s_bfe_u32 s19, s2, 0x20001")
        e("s_bfe_u32 s21, s2, 0x30003")
        e("s_lshl_b32 s19, s19, 3")
        e("s_add_u32 s19, s19, s21")
        e("s_and_b32 s20, s2, 1")
        e("s_lshl_b32 s20, s20, 2")
        e("s_lshr_b32 s21, s2, 6")
        e("s_add_u32 s20, s20, s21")
    else:
        e("s_and_b32 s19, s2, 7")
        e("s_lshr_b32 s20, s2, 3")
        e("s_lshr_b32 s21, s20, 3")
        e("s_lshl_b32 s19, s19, 2")
        e("s_add_u32 s19, s19, s21")
        e("s_and_b32 s20, s20, 7")
    e("v_lshlrev_b32 v8, 4, v1")
    e("s_mul_i32 s22, s19, 196608")
    e("v_add_u32 v4, s22, v8")
    for n in range(1, 4):
        e(f"v_add_u32 v{4+n}, {n*49152}, v4")
    e("s_mul_i32 s22, s20, 245760")
    e("v_add_u32 v12, s22, v8")
    for i in range(1, 5):
        e(f"v_add_u32 v{12+i}, {i*49152}, v12")
    e("s_mul_i32 s41, s16, 12")
    e("s_lshr_b32 s40, s2, 3")
    e("s_mul_i32 s44, s40, 43691")
    e("s_lshr_b32 s44, s44, 19")
    e("s_mul_i32 s44, s44, 12")
    e("s_sub_u32 s40, s40, s44")
    e("s_waitcnt lgkmcnt(0)")
    srd(28, 6, SZ_ACT, WS_ACT)
    srd(32, 6, SZ_WDN, WS_WDN)
    NSL, AH = 8, 7
    def slot(b, k):
        if b < 6: return vr(32 + b * 36 + k * 4)
        return ar(80 + (b - 6) * 36 + k * 4)
    vm = VM()
    def issue(t):
        o = ["s_add_u32 s44, s40, s41", "s_lshl_b32 s42, s44, 10", "s_add_u32 s40, s40, 1",
             "s_cmp_ge_u32 s40, 12", "s_cselect_b32 s40, 0, s40"]
        b = t % NSL
        for n in range(4):
            o.append(f"buffer_load_dwordx4 {slot(b,5+n)}, v{4+n}, s[28:31], s42 offen")
        for i in range(5):
            o.append(f"buffer_load_dwordx4 {slot(b,i)}, v{12+i}, s[32:35], s42 offen")
        vm.issue(("S", t), 9)
        return o
    for t in range(AH):
        for l in issue(t): e(l)
    stamp(1)
    srd(24, 4, 2621440)
    srd(48, 6, SZ_HP, WS_HP)
    for a in range(80):
        e(f"v_accvgpr_write_b32 a{a}, 0")
    e("v_lshrrev_b32 v18, 2, v1")
    e("v_and_b32 v19, 3, v1")
    e("s_lshl_b32 s22, s19, 2")
    e("s_add_u32 s22, s22, s16")
    e("s_mul_i32 s23, s22, 20480")
    e("s_mul_i32 s45, s20, 2560")
    e("s_add_u32 s45, s45, s23")
    e("v_lshlrev_b32 v20, 4, v18")
    e("v_lshl_add_u32 v20, v19, 8, v20")
    e("v_and_b32 v21, 1, v1")
    e("v_lshlrev_b32 v22, 4, v18")
    e("v_lshl_add_u32 v21, v21, 8, v22")
    e("s_mul_i32 s46, s20, 160")
    e("s_add_u32 s46, s46, s23")
    e("v_mul_u32_u24 v22, 1280, v18")
    e("v_lshl_add_u32 v22, v19, 4, v22")
    if os.environ.get("OT"):
        e("buffer_load_dword v26, v22, s[24:27], s46 offen")
        vm.issue("O", 1)
    e("s_mul_i32 s47, s16, 23040")
    e("v_mul_u32_u24 v23, 288, v3")
    e("v_lshl_add_u32 v23, v2, 4, v23")
    e("v_add_u32 v23, s47, v23")
    e("s_mul_i32 s47, s16, 5760")
    e("v_mul_u32_u24 v24, 576, v19")
    e("v_lshl_add_u32 v24, v18, 4, v24")
    e("v_add_u32 v24, s47, v24")
    e("v_add_u32 v25, 46080, v24")
    HR = 152
    for t in range(12):
        b = t % NSL
        e(f"s_waitcnt vmcnt({vm.younger([('S', t)])})")
        ld = []
        if t + AH < 12:
            ld = issue(t + AH)
        elif t == 12 - AH:
            ld = [f"buffer_load_dwordx4 {ar(HR)}, v20, s[48:51], s45 offen",
                  f"buffer_load_dwordx4 {ar(HR+4)}, v20, s[48:51], s45 offen offset:1024",
                  f"buffer_load_dwordx4 {ar(HR+8)}, v21, s[48:51], s45 offen offset:2048"]
            vm.issue("H", 3)
        grp = []; groups = []
        for l in ld:
            grp.append(l)
            if l.startswith("buffer"):
                groups.append(grp); grp = []
        k = 0
        for i in range(5):
            for n in range(4):
                mfma(ar((i*4+n)*4), slot(b, i), slot(b, 5+n))
                k += 1
                if k % 2 == 0 and groups:
                    for l in groups.pop(0): e(l)
        assert not groups
    stamp(2)
    stamp(3)
    e("s_nop 7")
    e("s_nop 7")
    for n in range(4):
        for i in range(5):
            e(f"ds_write_b128 v23, {ar((i*4+n)*4)} offset:{(n*5+i)*1152}")
    XR = 128
    e("s_waitcnt vmcnt(0)")
    for r in range(12):
        e(f"v_accvgpr_read_b32 v{XR+r}, a{HR+r}")
    e("s_waitcnt lgkmcnt(0)")
    e("s_barrier")
    def S(src, j, hf): return 32 + ((j * 4 + src) * 2 + hf) * 4
    for j in range(3):
        for src in range(4):
            for hf in range(2):
                e(f"ds_read_b128 {vr(S(src,j,hf))}, v{24 + (src>>1)} offset:{(src&1)*23040 + j*2304 + hf*288}")
    stamp(4)
    for j in range(3):
        e(f"s_waitcnt lgkmcnt({min(15,(2-j)*8)})")
        T = 144 + j * 16
        for hf in range(2):
            for p in (0, 2):
                e(f"v_pk_add_f32 v[{T+hf*4+p}:{T+hf*4+p+1}], v[{S(0,j,hf)+p}:{S(0,j,hf)+p+1}], v[{S(1,j,hf)+p}:{S(1,j,hf)+p+1}]")
                e(f"v_pk_add_f32 v[{T+8+hf*4+p}:{T+8+hf*4+p+1}], v[{S(2,j,hf)+p}:{S(2,j,hf)+p+1}], v[{S(3,j,hf)+p}:{S(3,j,hf)+p+1}]")
        for p in range(0, 8, 2):
            e(f"v_pk_add_f32 v[{T+p}:{T+p+1}], v[{T+p}:{T+p+1}], v[{T+8+p}:{T+8+p+1}]")
        for p in range(4):
            e(f"v_cvt_pk_bf16_f32 v{T+8+p}, v{T+2*p}, v{T+2*p+1}")
        for p in range(4):
            e(f"v_lshlrev_b32 v{T+2*p}, 16, v{T+8+p}")
            e(f"v_and_b32 v{T+2*p+1}, 0xffff0000, v{T+8+p}")
        for p in range(4):
            e(f"v_lshlrev_b32 v{T+8+2*p}, 16, v{XR+4*j+p}")
            e(f"v_and_b32 v{T+8+2*p+1}, 0xffff0000, v{XR+4*j+p}")
        for p in range(0, 8, 2):
            e(f"v_pk_add_f32 v[{T+p}:{T+p+1}], v[{T+p}:{T+p+1}], v[{T+8+p}:{T+8+p+1}]")
        O = 192 + 4 * j
        for p in range(4):
            e(f"v_cvt_pk_bf16_f32 v{O+p}, v{T+2*p}, v{T+2*p+1}")
        if j == 2:
            e("s_mov_b32 exec_lo, 0x33333333")
            e("s_mov_b32 exec_hi, 0x33333333")
        e(f"buffer_store_dwordx4 {vr(O)}, v22, s[24:27], s46 offen offset:{j*64}")
    e("s_mov_b64 exec, -1")
    stamp(5)
    stamp_dump(3, 6)
    lab("k4_end")
    e("s_endpgm")

class VM:
    def __init__(self): self.q = []
    def issue(self, tag, n=1): self.q += [tag] * n
    def younger(self, tags):
        last = max(i for i, t in enumerate(self.q) if t in tags)
        return min(63, len(self.q) - 1 - last)

def gen_k3():
    kernel_begin("k3_kernel")
    e("s_cmp_ge_u32 s2, 256")
    e("s_cbranch_scc1 k3_end")
    stamp(0)
    e("s_load_dwordx2 s[6:7], s[0:1], 88")
    if CTS:
        for l in code_touch("k3_kernel", "k4_kernel", 14, "v22", back=True): e(l)
    lane_setup()
    if os.environ.get("MAP3", "1") == "1":
        e("s_and_b32 s19, s2, 1")
        e("s_bfe_u32 s21, s2, 0x30003")
        e("s_lshl_b32 s19, s19, 3")
        e("s_add_u32 s19, s19, s21")
        e("s_bfe_u32 s20, s2, 0x20001")
        e("s_lshl_b32 s20, s20, 2")
        e("s_lshr_b32 s21, s2, 6")
        e("s_add_u32 s20, s20, s21")
    elif MAP34:
        e("s_bfe_u32 s19, s2, 0x20001")
        e("s_bfe_u32 s21, s2, 0x20003")
        e("s_lshl_b32 s19, s19, 2")
        e("s_add_u32 s19, s19, s21")
        e("s_and_b32 s20, s2, 1")
        e("s_lshl_b32 s20, s20, 3")
        e("s_lshr_b32 s21, s2, 5")
        e("s_add_u32 s20, s20, s21")
    else:
        e("s_and_b32 s19, s2, 7")
        e("s_lshr_b32 s20, s2, 3")
        e("s_and_b32 s21, s20, 1")
        e("s_lshl_b32 s19, s19, 1")
        e("s_add_u32 s19, s19, s21")
        e("s_lshr_b32 s20, s20, 1")
    e(f"s_mov_b32 s17, {INV640}")
    e(f"s_mov_b32 s18, {EPS}")
    e("s_mov_b32 s62, 0x3f803f80")
    e("v_lshlrev_b32 v8, 4, v1")
    e("s_mul_i32 s21, s20, 12")
    e("s_mul_i32 s23, s16, 3")
    e("s_add_u32 s21, s21, s23")
    e("s_mul_i32 s22, s21, 20480")
    e("v_add_u32 v4, s22, v8")
    e("v_add_u32 v5, 20480, v4")
    e("v_add_u32 v6, 40960, v4")
    e("s_mul_i32 s22, s19, 163840")
    e("s_mul_i32 s23, s16, 40960")
    e("s_add_u32 s22, s22, s23")
    e("v_lshlrev_b32 v9, 3, v1")
    e("s_lshl_b32 s48, s19, 10")
    e("s_waitcnt lgkmcnt(0)")
    srd(24, 6, SZ_HP, WS_HP)
    srd(32, 6, SZ_WGU, WS_WGU)
    srd(28, 6, SZ_HSTAT, WS_HSTAT)
    vm = VM()
    D = 6
    WB = 88
    ACC3 = 160
    def Wf(kk, i): return WB + ((kk % D) * 3 + i) * 4
    def Hf(kk, n): return ((kk & 1) * 8 + n) * 4
    HGS = int(os.environ.get("HGS", "2")); LW = int(os.environ.get("LW", "3")); LH = int(os.environ.get("LH", "3"))
    HG = {chr(65 + g): (g * HGS, min(20, g * HGS + HGS)) for g in range((19 + HGS) // HGS)}
    def hdma_l(g, t):
        o = []
        k0, k1 = HG[g]
        for k in range(k0, k1, 4):
            base = t * 20480 + k * 1024
            o.append(f"s_add_u32 m0, s23, {base}")
            o.append(f"s_add_u32 s44, s22, {base}")
            for u in range(min(4, k1 - k)):
                o.append(f"buffer_load_dwordx4 v8, s[24:27], s44 offen offset:{u*1024} lds")
        vm.issue(("H", g), k1 - k0)
        return o
    def wload(kk):
        out = []
        if kk >= 4:
            out.append(f"s_mov_b32 s{45+(kk&1)}, {kk*1024}")
        for i in range(3):
            if kk < 4:
                out.append(f"buffer_load_dwordx4 {vr(Wf(kk,i))}, v{4+i}, s[32:35], 0 offen offset:{kk*1024}")
            else:
                out.append(f"buffer_load_dwordx4 {vr(Wf(kk,i))}, v{4+i}, s[32:35], s{45+(kk&1)} offen")
        vm.issue(("W", kk), 3)
        return out
    def sload(q):
        o = []
        for x in range(4 * q, 4 * q + 4):
            j, eb = x >> 3, x & 7
            o.append(f"s_add_u32 s47, s48, {eb*16384 + j*512}")
            o.append(f"buffer_load_dwordx2 v[{40+(j*8+eb)*2}:{41+(j*8+eb)*2}], v9, s[28:31], s47 offen")
        vm.issue("S", 4)
        return o
    def tload():
        vm.issue("P", 1)
        return ["buffer_load_dword v22, v23, s[52:55], s50 offen", "s_add_u32 s50, s50, 4096"]
    items = []
    for g, (k0, k1) in HG.items():
        for t in range(2):
            items.append((k0 - 1 - LH + (t if HGS > 1 else 0), k0 - 1, f"H{g}{t}"))
    for kk in range(20):
        items.append((kk - LW, kk - 0.5, f"W{kk}"))
    for q in range(4): items.append((9 + q, 30, f"S{q}"))
    last = max(it[0] for it in items)
    for q in range(0 if os.environ.get("NOT3", "0") == "1" else (1 if MAP34 else 4)): items.append((min(19, max(15, last + 1) + q), 40, "T"))
    items.sort(key=lambda x: (max(x[0], -1), x[1]))
    sched = {}
    for it, dl, nm in items: sched.setdefault(max(it, -1), []).append(nm)
    BAR = {k0 - 1: g for g, (k0, k1) in HG.items() if k0 > 0}
    def do_items(lst_):
        lst = []
        for it in lst_:
            if it[0] == "W": lst += wload(int(it[1:]))
            elif it[0] == "H": lst += hdma_l(it[1], int(it[2]))
            elif it[0] == "S": lst += sload(int(it[1]))
            else: lst += tload()
        return lst
    for l in do_items(sched[-1]): e(l)
    srd(36, 6, SZ_ACT, WS_ACT)
    srd(52, 6, SZ_WDN, WS_WDN)
    e("s_lshr_b32 s50, s2, 3")
    e("s_lshl_b32 s50, s50, 2")
    e("s_add_u32 s50, s50, s16")
    if MAP34:
        e("s_mul_i32 s50, s50, 7680")
        e("s_and_b32 s51, s2, 1")
        if os.environ.get("TX3"): e("s_xor_b32 s51, s51, 1")
        e("s_mul_i32 s51, s51, 983040")
        e("s_add_u32 s50, s50, s51")
        e("v_lshlrev_b32 v23, 7, v1")
    else:
        e("s_mul_i32 s50, s50, 15360")
        e("v_lshlrev_b32 v23, 6, v1")
    for a in range(96):
        e(f"v_mov_b32 v{ACC3+a}, 0")
    for r in range(24, 36):
        e(f"v_mov_b32 v{r}, 0")
    for r in range(16, 20):
        e(f"v_mov_b32 v{r}, 0x3f803f80")
    e("v_add_u32 v10, 65536, v8")
    e("v_add_u32 v11, 131072, v8")
    e("v_lshlrev_b32 v12, 2, v2")
    e("v_lshlrev_b32 v13, 4, v3")
    def hread(kk):
        o = []
        for n in range(8):
            off = (n * 20 + kk) * 1024
            base = 8 if off < 65536 else (10 if off < 131072 else 11)
            o.append(f"ds_read_b128 {ar(Hf(kk,n))}, v{base} offset:{off % 65536}")
        return o
    def dots(kk):
        return [f"v_dot2_f32_bf16 v{16+i}, v{Wf(kk,i)+r}, s62, v{16+i}" for r in range(4) for i in range(3)]
    def stats_code():
        sv = L[:]
        del L[:]
        for j in range(2):
            b = 40 + j * 16
            for k in (2, 4, 6, 8, 10, 12, 14):
                e(f"v_add_f32 v{b}, v{b}, v{b+k}")
                e(f"v_add_f32 v{b+1}, v{b+1}, v{b+k+1}")
            ln_stats(b, b+1, 36+2*j, 37+2*j, 20+j)
        for t in range(8):
            e(f"ds_bpermute_b32 v{72+2*t}, v12, v{36+2*(t>>2)} offset:{(t&3)*64}")
            e(f"ds_bpermute_b32 v{73+2*t}, v12, v{37+2*(t>>2)} offset:{(t&3)*64}")
            e(f"ds_bpermute_b32 v{64+t}, v12, v{20+(t>>2)} offset:{(t&3)*64}")
        o = [x.strip() for x in L]
        L[:] = sv
        return o
    stamp(1)
    e(f"s_waitcnt vmcnt({vm.younger([('H','A')])})")
    stamp(2)
    e("s_barrier")
    stamp(3)
    for l in hread(0): e(l)
    for kk in range(20):
        need = [("W", kk)]
        if kk in BAR: need.append(("H", BAR[kk]))
        if kk == 15: need.append("S")
        e(f"s_waitcnt vmcnt({vm.younger(need)}) lgkmcnt(0)")
        if kk in BAR and "r" not in os.environ.get("K3X", ""): e("s_barrier")
        slots = [[] for _ in range(27)]
        if kk + 1 < 20:
            for j, l in enumerate(hread(kk + 1)):
                slots[(j * int(os.environ.get("HRS", "2"))) // 2].append(l)
        lst = do_items(sched.get(kk, []))
        groups = []; grp = []
        for l in lst:
            if grp and any(x.startswith("buffer") for x in grp) and not l.startswith("s_add_u32 s50"):
                groups.append(grp); grp = []
            grp.append(l)
        if grp: groups.append(grp)
        for g, gl in enumerate(groups):
            slots[1 + (g * 24) // max(len(groups), 8)] += gl
        if kk == int(os.environ.get("CT3", "-1")) and CT:
            slots[26] += code_touch("k4_kernel", "code_end", 14, "v22")
            vm.issue("CT", 1)
        if kk == 15: sc = stats_code()
        if kk in (15, 16):
            part = sc[:54] if kk == 15 else sc[54:]
            for j, l in enumerate(part):
                slots[(j * 27) // len(part)].append(l)
        if kk == 19:
            for j, l in enumerate(["v_mul_u32_u24 v9, 49152, v3", "v_lshl_add_u32 v9, v2, 4, v9", "s_mul_i32 s22, s19, 393216", "s_lshl_b32 s23, s21, 8",
                                   "s_add_u32 s22, s22, s23", "v_mov_b32 v36, 0xbdd2d3e8", "v_mov_b32 v37, 0xc0135761"]):
                slots[j].append(l)
        K3X = os.environ.get("K3X", "")
        if "d" in K3X: slots = [[l for l in sl if not l.startswith("ds_read")] for sl in slots]
        if "b" in K3X: slots = [[l for l in sl if not l.startswith("buffer")] for sl in slots]
        if "s" in K3X: slots = [[l for l in sl if not l.startswith("s_")] for sl in slots]
        if "v" in K3X: slots = [[l for l in sl if not (l.startswith("v_") or l.startswith("ds_bp"))] for sl in slots]
        k = 0
        for i in range(3):
            mfma(vr(24+4*i), vr(Wf(kk,i)), vr(16))
            for l in slots[k]: e(l)
            k += 1
        for n in range(8):
            for i in range(3):
                mfma(vr(ACC3+(i*8+n)*4), vr(Wf(kk,i)), ar(Hf(kk,n)))
                for l in slots[k]: e(l)
                k += 1
    stamp(4)
    def epi(i):
        o = []
        for hi, n0 in enumerate((0, 4)):
            TB = 40 + hi * 12
            O = TB + 8
            lists = []
            for g in range(4):
                n = n0 + g
                A = ACC3 + (i*8+n)*4
                S = 72 + 2*n
                SD = 64 + (n & ~1); sd = n & 1
                WS = 24 + i*4
                t2 = TB + g*2
                l = []
                for p in (0, 2):
                    l.append(f"v_pk_fma_f32 v[{A+p}:{A+p+1}], v[{S}:{S+1}], v[{WS+p}:{WS+p+1}], v[{A+p}:{A+p+1}] op_sel:[0,0,0] op_sel_hi:[0,1,1] neg_lo:[1,0,0] neg_hi:[1,0,0]")
                l.append(f"v_pk_mul_f32 v[{A}:{A+1}], v[{A}:{A+1}], v[{S}:{S+1}] op_sel:[0,1] op_sel_hi:[1,1]")
                l.append(f"v_pk_mul_f32 v[{t2}:{t2+1}], v[{A}:{A+1}], v[{A}:{A+1}]")
                l.append(f"v_pk_fma_f32 v[{t2}:{t2+1}], v[{t2}:{t2+1}], v[36:37], v[36:37] op_sel:[0,0,1] op_sel_hi:[1,0,1]")
                l.append(f"v_pk_mul_f32 v[{t2}:{t2+1}], v[{t2}:{t2+1}], v[{A}:{A+1}]")
                l.append(f"v_exp_f32 v{t2}, v{t2}")
                l.append(f"v_exp_f32 v{t2+1}, v{t2+1}")
                l.append(f"v_pk_mul_f32 v[{A}:{A+1}], v[{A}:{A+1}], v[{A+2}:{A+3}]")
                l.append(f"v_pk_fma_f32 v[{t2}:{t2+1}], v[{t2}:{t2+1}], v[{SD}:{SD+1}], v[{SD}:{SD+1}] op_sel:[0,{sd},{sd}] op_sel_hi:[1,{sd},{sd}]")
                l.append(f"v_rcp_f32 v{t2}, v{t2}")
                l.append(f"v_rcp_f32 v{t2+1}, v{t2+1}")
                l.append(f"v_pk_mul_f32 v[{t2}:{t2+1}], v[{t2}:{t2+1}], v[{A}:{A+1}]")
                l.append(f"v_cvt_pk_bf16_f32 v{O+g}, v{t2}, v{t2+1}")
                lists.append(l)
            for k in range(len(lists[0])):
                for g in range(4): o.append(lists[g][k])
            o.append("s_nop 1")
            o.append(f"v_permlane16_swap_b32 v{O}, v{O+1}")
            o.append(f"v_permlane16_swap_b32 v{O+2}, v{O+3}")
            o.append("s_nop 1")
            o.append(f"v_permlane32_swap_b32 v{O}, v{O+2}")
            o.append(f"v_permlane32_swap_b32 v{O+1}, v{O+3}")
            o.append(f"s_add_u32 s44, s22, {n0*49152 + i*256}")
            o.append("s_nop 1")
            o.append(f"buffer_store_dwordx4 {vr(O)}, v9, s[36:39], s44 offen")
        return o
    e("s_nop 7")
    stamp(5)
    for i in range(3):
        for l in epi(i): e(l)
    stamp(6)
    stamp_dump(2, 7)
    lab("k3_end")
    e("s_endpgm")

def descriptor(name, vgpr, accum, sgpr=102):
    raw(f".amdhsa_kernel {name}")
    raw(f"  .amdhsa_next_free_vgpr {vgpr}")
    raw(f"  .amdhsa_next_free_sgpr {sgpr}")
    raw(f"  .amdhsa_accum_offset {accum}")
    raw("  .amdhsa_group_segment_fixed_size 0")
    raw("  .amdhsa_kernarg_size 96")
    raw("  .amdhsa_user_sgpr_count 2")
    raw("  .amdhsa_user_sgpr_kernarg_segment_ptr 1")
    raw("  .amdhsa_system_sgpr_workgroup_id_x 1")
    raw(".end_amdhsa_kernel")

def main():
    raw("; 4-kernel pipeline: K1 LN1+hidden DFT GEMM, K2 seq DFT GEMM + residual, K3 LN2+gate/up GEMM+GEGLU, K4 down GEMM + residual")
    raw("; @launch kernel=k1_kernel grid=(256,1,1) block=(256,1,1) lds=152832")
    raw(f"; @launch kernel=k2_kernel grid=(256,1,1) block=(256,1,1) lds={156032 if K2OLD else 159744}")
    raw("; @launch kernel=k3_kernel grid=(256,1,1) block=(256,1,1) lds=163840")
    raw("; @launch kernel=k4_kernel grid=(256,1,1) block=(256,1,1) lds=94208")
    raw('.amdgcn_target "amdgcn-amd-amdhsa--gfx950"')
    raw(".text")
    gen_k1(); (gen_k2_old if K2OLD else gen_k2)(); gen_k3(); gen_k4()
    lab("code_end")
    raw('.section .rodata,"a"')
    raw(".p2align 6")
    descriptor("k1_kernel", 348, 160)
    raw(".p2align 6")
    descriptor("k2_kernel", 432 if K2OLD else 512, 256)
    raw(".p2align 6")
    descriptor("k3_kernel", 320, 256)
    raw(".p2align 6")
    descriptor("k4_kernel", 424, 256)
    out = sys.argv[1] if len(sys.argv) > 1 else f"cdna_kernels/{NAME}.s"
    NOSC = os.environ.get("NOSC", "").split(",")
    LL = [ (l + " sc1") if ("buffer_store" in l and "s[64:67]" not in l and not any(x and x in l for x in NOSC)) else l for l in L]
    open(out, "w").write("\n".join(LL) + "\n")

main()
```

```python
import sys

L = []
def e(s): L.append("    " + s)
def lab(s): L.append(s + ":")
def raw(s): L.append(s)

NAME = "sequential_preLN__spectral_fnet__geglu_ffn__prompt"

import os
ES = 65536 + int(os.environ.get("EPAD", "0"))
WS_ABP = 0 if ES == 65536 else 0x1800000
SZ_ABP = 80 * ES
WS_HP = 0x500000
SZ_HP = 128 * 20 * 1024
WS_HSTAT = 0x780000
SZ_HSTAT = 2048 * 8 * 8
WS_ACT = 0x800000
SZ_ACT = 128 * 48 * 1024
WS_WGU = 0xE00000
WSUM_OFF = 192 * 20 * 1024
SZ_WGU = WSUM_OFF + 192 * 4 * 64
WS_WDN = 0x1200000
SZ_WDN = 40 * 48 * 1024

WS_XB = 0x1400000
SZ_XB = 0x800000
K2OLD = os.environ.get("K2OLD", "0") == "1"
FUSE34 = os.environ.get("FUSE34", "1") == "1"
INV640 = 0x3ACCCCCD
EPS = 0x3727C5AC

import os
DIAG = os.environ.get("DIAG", "0") == "1"
WS_DIAG = 0x3000000
DIAG2 = os.environ.get("DIAG2", "0") == "1"
def stamp(i):
    if DIAG2 and i == 0:
        e("s_memrealtime s[70:71]")
        e("s_memtime s[72:73]")
        e("s_waitcnt lgkmcnt(0)")
    if DIAG:
        if os.environ.get("RT"): e(f"s_memrealtime s[{70+2*i}:{71+2*i}]")
        else: e(f"s_memtime s[{70+2*i}:{71+2*i}]")
        e("s_waitcnt lgkmcnt(0)")
def stamp_dump(kidx, n):
    if DIAG2:
        e("s_waitcnt vmcnt(0)")
        e("s_memrealtime s[74:75]")
        e("s_memtime s[76:77]")
        e("s_load_dwordx2 s[64:65], s[0:1], 80")
        e("s_waitcnt lgkmcnt(0)")
        e("s_lshl_b32 s68, s2, 2")
        e("s_add_u32 s68, s68, s16")
        e("s_cmp_lg_u32 s68, 0")
        e(f"s_cbranch_scc1 dg_skip{kidx}")
        e("s_mov_b32 s66, 256")
        e("s_mov_b32 s67, 0x20000")
        e("v_mov_b32 v0, 0")
        e("s_mov_b64 exec, 1")
        e("v_mov_b32 v2, s70")
        e("v_mov_b32 v3, s74")
        e("v_mov_b32 v4, s72")
        e("v_mov_b32 v5, s76")
        e(f"buffer_store_dwordx4 v[2:5], v0, s[64:67], 0 offen offset:{kidx*16}")
        e("s_waitcnt vmcnt(0)")
        lab(f"dg_skip{kidx}")
    if not DIAG: return
    e("s_waitcnt vmcnt(0)")
    stamp(n)
    e(f"s_add_u32 s64, s6, {WS_DIAG + kidx*0x40000}")
    e("s_addc_u32 s65, s7, 0")
    e("s_mov_b32 s66, 0x40000")
    e("s_mov_b32 s67, 0x20000")
    e("s_lshl_b32 s68, s2, 2")
    e("s_add_u32 s68, s68, s16")
    e("s_lshl_b32 s68, s68, 8")
    e("v_mov_b32 v0, 0")
    e("s_mov_b64 exec, 1")
    for i in range(n+1):
        e(f"v_mov_b32 v2, s{70+2*i}")
        e(f"v_mov_b32 v3, s{71+2*i}")
        e(f"buffer_store_dwordx2 v[2:3], v0, s[64:67], s68 offen offset:{i*8}")
    e("s_getreg_b32 s69, hwreg(HW_REG_XCC_ID)")
    e("v_mov_b32 v2, s69")
    e("s_getreg_b32 s69, hwreg(HW_REG_HW_ID)")
    e("v_mov_b32 v3, s69")
    e(f"buffer_store_dwordx2 v[2:3], v0, s[64:67], s68 offen offset:248")
    e("s_waitcnt vmcnt(0)")

def srd(d, lo, size, off=0):
    if off:
        e(f"s_add_u32 s{d}, s{lo}, {off}")
        e(f"s_addc_u32 s{d+1}, s{lo+1}, 0")
    else:
        e(f"s_mov_b32 s{d}, s{lo}")
        e(f"s_mov_b32 s{d+1}, s{lo+1}")
    e(f"s_mov_b32 s{d+2}, {size}")
    e(f"s_mov_b32 s{d+3}, 0x20000")

def bf16r(dst, src):
    e(f"v_cvt_pk_bf16_f32 v{dst}, v{src}, v{src}")
    e(f"v_lshlrev_b32 v{dst}, 16, v{dst}")

def vr(b, n=4): return f"v[{b}:{b+n-1}]"
def ar(b, n=4): return f"a[{b}:{b+n-1}]"

def mfma(d, a, b, c=None):
    c = d if c is None else c
    if L and L[-1].split()[0] in ("v_exp_f32", "v_rcp_f32", "v_sqrt_f32", "v_rsq_f32"): e("s_nop 1")
    e(f"v_mfma_f32_16x16x32_bf16 {d}, {a}, {b}, {c}")

def kernel_begin(name):
    raw(f".globl {name}")
    raw(".p2align 8")
    raw(f".type {name},@function")
    lab(name)

CT = os.environ.get("CT", "1") == "1"
MAP34 = os.environ.get("MAP34", "1") == "1"
CTS = os.environ.get("CTS", "1") == "1"
_ctn = [0]
def code_touch(target, endl, vtmp, dst, back=False, n=1):
    if not CT: return []
    _ctn[0] += 1
    u = f"ct_pc{_ctn[0]}"
    o = ["s_getpc_b64 s[96:97]", u + ":"]
    if back:
        o += [f"s_sub_u32 s96, s96, {u}-{target}", "s_subb_u32 s97, s97, 0"]
    else:
        o += [f"s_add_u32 s96, s96, {target}-{u}", "s_addc_u32 s97, s97, 0"]
    o += [f"s_mov_b32 s98, {endl}-{target}", "s_mov_b32 s99, 0x20000", f"v_lshlrev_b32 v{vtmp}, 7, v0"]
    o.append(f"buffer_load_dword {dst}, v{vtmp}, s[96:99], 0 offen")
    if n > 1:
        o.append(f"v_add_u32 v{vtmp}, 32768, v{vtmp}")
        o.append(f"buffer_load_dword {dst}, v{vtmp}, s[96:99], 0 offen")
    return o

def lane_setup():
    e("v_lshrrev_b32 v4, 6, v0")
    e("v_and_b32 v1, 63, v0")
    e("v_readfirstlane_b32 s16, v4")
    e("v_and_b32 v2, 15, v1")
    e("v_lshrrev_b32 v3, 4, v1")

def ln_stats(vsum, vsq, vm, vrd, t):
    e(f"v_mul_f32 v{vm}, s17, v{vsum}")
    e(f"v_mul_f32 v{t}, s17, v{vsq}")
    e(f"v_fma_f32 v{t}, -v{vm}, v{vm}, v{t}")
    e(f"v_max_f32 v{t}, 0, v{t}")
    bf16r(vm, vm)
    bf16r(t, t)
    e(f"v_add_f32 v{t}, s18, v{t}")
    bf16r(t, t)
    e(f"v_sqrt_f32 v{t}, v{t}")
    e("s_nop 0")
    bf16r(t, t)
    e(f"v_rcp_f32 v{vrd}, v{t}")
    e("s_nop 0")

def gen_k1():
    kernel_begin("k1_kernel")
    e("s_cmp_ge_u32 s2, 256")
    e("s_cbranch_scc1 k1_end")
    stamp(0)
    e("s_load_dwordx2 s[4:5], s[0:1], 0")
    e("s_load_dwordx2 s[8:9], s[0:1], 24")
    e("s_load_dwordx2 s[10:11], s[0:1], 32")
    e("s_load_dwordx2 s[6:7], s[0:1], 88")
    e("s_load_dwordx4 s[56:59], s[0:1], 8")
    PT = int(os.environ.get("PT", "-1"))
    if PT >= 0:
        e("s_load_dwordx4 s[36:39], s[0:1], 48")
        e("s_load_dwordx4 s[40:43], s[0:1], 64")
    for l in code_touch("k1_kernel", "code_end", 154, "v155", back=True, n=2): e(l)
    lane_setup()
    e("s_and_b32 s19, s2, 3")
    e("s_lshl_b32 s19, s19, 2")
    e("s_bfe_u32 s21, s2, 0x20003")
    e("s_add_u32 s19, s19, s21")
    e("s_lshr_b32 s22, s2, 5")
    e("s_bfe_u32 s20, s2, 0x10002")
    e("s_lshl_b32 s20, s20, 3")
    e("s_add_u32 s20, s20, s22")
    e("s_add_u32 s48, s21, s22")
    e("v_lshlrev_b32 v15, 4, v1")
    e("v_lshrrev_b32 v25, 3, v1")
    e("v_and_b32 v26, 7, v1")
    e("v_xor_b32 v26, v26, v25")
    e("v_mul_u32_u24 v25, 1280, v25")
    e("v_lshl_add_u32 v25, v26, 4, v25")
    e("s_and_b32 s21, s20, 7")
    e("s_mul_i32 s21, s21, 102400")
    e("s_and_b32 s22, s16, 1")
    e("s_mul_i32 s22, s22, 51200")
    e("s_add_u32 s21, s21, s22")
    e("s_lshr_b32 s22, s16, 1")
    e("s_lshl_b32 s22, s22, 7")
    e("s_add_u32 s21, s21, s22")
    e("v_add_u32 v4, s21, v25")
    e("s_lshl_b32 s21, s19, 7")
    e("s_lshl_b32 s22, s16, 5")
    e("s_add_u32 s21, s21, s22")
    e("s_mul_i32 s21, s21, 1280")
    e("v_add_u32 v5, s21, v25")
    for j in range(1, 4):
        e(f"v_add_u32 v{5+j}, {j*10240 - j*1024}, v5")
    e("s_mul_i32 s46, s16, 12288")
    e("s_add_u32 s46, s46, 102400")
    e("s_mul_i32 s47, s16, 5120")
    e("s_mul_i32 s49, s48, 205")
    e("s_lshr_b32 s49, s49, 10")
    e("s_mul_i32 s49, s49, 5")
    e("s_sub_u32 s49, s48, s49")
    if os.environ.get("K1NOROT"): e("s_mov_b32 s49, 0")
    for sc in range(5):
        e(f"s_lshl_b32 s{50+sc}, s49, 8")
        e("s_add_u32 s49, s49, 1")
        e("s_cmp_ge_u32 s49, 5")
        e("s_cselect_b32 s49, 0, s49")
    if os.environ.get("K1ST"): e("s_memtime s[84:85]")
    e("s_waitcnt lgkmcnt(0)")
    if os.environ.get("K1ST"): stamp(8)
    srd(24, 4, 2621440)
    e("s_cmp_lt_u32 s20, 8")
    e("s_cselect_b32 s28, s8, s10")
    e("s_cselect_b32 s29, s9, s11")
    e("s_mov_b32 s30, 819200")
    e("s_mov_b32 s31, 0x20000")
    vm = VM()
    XS = 76
    def wdma(sc):
        o = []
        for u in range(5):
            o.append(f"s_add_u32 m0, s47, {sc*20480 + u*1024}")
            o.append(f"s_add_u32 s23, s{50+sc}, {u*10240}")
            o.append("buffer_load_dwordx4 v4, s[28:31], s23 offen lds")
        vm.issue(("W", sc), 5)
        return o
    def xld(c):
        if c < 3:
            o = [f"s_add_u32 m0, s46, {(c%3)*4096}", f"s_add_u32 s22, s{50+(c>>1)}, {(c&1)*128}"]
            for j in range(4):
                o.append(f"buffer_load_dwordx4 v{5+j}, s[24:27], s22 offen offset:{j*1024} lds")
        else:
            o = [f"s_add_u32 s22, s{50+(c>>1)}, {(c&1)*128}"]
            for j in range(4):
                o.append(f"buffer_load_dwordx4 {ar(XS+(c-3)*16+j*4)}, v{5+j}, s[24:27], s22 offen offset:{j*1024}")
        vm.issue(("X", c), 4)
        return o
    for l in wdma(0) + xld(0) + xld(1): e(l)
    if os.environ.get("K1ST"): stamp(9)
    e(f"s_mov_b32 s17, {INV640}")
    e(f"s_mov_b32 s18, {EPS}")
    e("v_and_b32 v26, 7, v2")
    e("v_xor_b32 v26, v26, v3")
    e("v_lshlrev_b32 v11, 7, v2")
    e("v_lshl_add_u32 v11, v26, 4, v11")
    e("v_xor_b32 v12, 64, v11")
    e("v_add_u32 v13, 61440, v11")
    e("v_add_u32 v14, 61440, v12")
    e("v_add_u32 v9, s46, v11")
    e("v_add_u32 v10, s46, v12")
    srd(32, 6, SZ_ABP, WS_ABP)
    if not K2OLD:
        srd(60, 6, SZ_XB, WS_XB)
        for r in range(4): e(f"v_mov_b32 v{156+r}, -1")
    TST = [int(x) for x in os.environ.get("TST", "3,6").split(",")]
    PL, PO, PA = 144, 176, 144
    e(f"v_add_u32 v{PA+8}, s46, v15")
    e("s_cmp_lt_u32 s2, 128")
    e("s_cselect_b32 s56, s56, s58")
    e("s_cselect_b32 s57, s57, s59")
    e("s_mov_b32 s58, 8388608")
    e("s_mov_b32 s59, 0x20000")
    if os.environ.get("TSH"):
        e("s_add_u32 s21, s2, 3")
        e("s_and_b32 s21, s21, 7")
    else:
        e("s_and_b32 s21, s2, 7")
    e("s_bfe_u32 s22, s2, 0x20005")
    e("s_lshl_b32 s21, s21, 2")
    e("s_add_u32 s21, s21, s22")
    e("s_lshl_b32 s21, s21, 2")
    e("s_bfe_u32 s22, s2, 0x20003")
    e("s_add_u32 s21, s21, s22")
    e("s_lshl_b32 s21, s21, 2")
    e("s_add_u32 s21, s21, s16")
    e("s_lshl_b32 s91, s21, 14")
    e(f"v_lshlrev_b32 v{PA+10}, 7, v1")
    def touch():
        if os.environ.get("NOPF"): return []
        vm.issue("T", 1)
        return [f"buffer_load_dword v{PA+11}, v{PA+10}, s[56:59], s91 offen", "s_add_u32 s91, s91, 8192"]
    for t in TST:
        if t == -1:
            for l in touch(): e(l)
    for a in range(76):
        e(f"v_accvgpr_write_b32 a{a}, 0")
    ONES = 16
    for r in range(4):
        e(f"v_mov_b32 v{ONES+r}, 0x3f803f80")
    FB = 32
    def XF(b, st, h): return FB + b * 56 + (st * 2 + h) * 4
    def WF(b, i, h): return FB + b * 56 + 16 + (i * 2 + h) * 4
    def fread(c):
        o = []
        b = c & 1
        for h in range(2):
            for st in range(2):
                o.append(f"ds_read_b128 {vr(XF(b,st,h))}, v{9+h} offset:{(c%3)*4096 + st*2048}")
            for i in range(5):
                off = c * 10240 + i * 2048
                if off < 61440:
                    o.append(f"ds_read_b128 {vr(WF(b,i,h))}, v{11+h} offset:{off}")
                else:
                    o.append(f"ds_read_b128 {vr(WF(b,i,h))}, v{13+h} offset:{off-61440}")
        return o
    stamp(1)
    e(f"s_waitcnt vmcnt({vm.younger([('W',0),('X',0)])})")
    e("s_barrier")
    stamp(2)
    for l in fread(0): e(l)
    for c in range(10):
        b = c & 1
        need = []
        if c + 1 <= 2: need.append(("X", c + 1))
        if c + 1 < 10: need.append(("W", (c + 1) >> 1))
        if 3 <= c + 2 <= 9: need.append(("X", c + 2))
        if need and c < 8:
            e(f"s_waitcnt vmcnt({vm.younger(need)}) lgkmcnt(0)")
        else:
            e("s_waitcnt lgkmcnt(0)")
        if c in (1, 3, 5, 7): e("s_barrier")
        NM = 28
        slots = [[] for _ in range(NM)]
        if c + 1 < 10:
            for j, l in enumerate(fread(c + 1)):
                slots[j].append(l)
        if 3 <= c + 2 <= 9:
            for j in range(4):
                slots[14 + j].append(f"ds_write_b128 v{PA+8}, {ar(XS+(c-1)*16+j*4)} offset:{((c+2)%3)*4096 + j*1024}")
        lst = []
        if c < 4: lst = wdma(c + 1) + xld(2 * c + 2) + xld(2 * c + 3)
        for t in TST:
            if t == c: lst += touch()
        if c == int(os.environ.get("PFC", "5")) and not K2OLD:
            slots[21] += ["s_lshl_b32 s44, s2, 2", "s_add_u32 s44, s44, s16", "s_lshl_b32 s44, s44, 12"]
            for q in range(3):
                slots[22 + q] += [f"buffer_store_dwordx4 v[156:159], v15, s[60:63], s44 offen offset:{q*1024}"]
            slots[25] += ["buffer_store_dwordx4 v[156:159], v15, s[60:63], s44 offen offset:3072"]
            vm.issue("PF", 4)
        if c == PT:
            PSH = int(os.environ.get("PSH", "16"))
            slots[22] += ["s_add_u32 s92, s6, 0x1000000", "s_addc_u32 s93, s7, 0", "s_mov_b32 s60, s6", "s_mov_b32 s61, s7",
                          "s_mov_b32 s62, 0x1000000", "s_mov_b32 s94, 0x1000000", "s_mov_b32 s44, 18",
                          "s_cmp_eq_u32 s16, 1", "s_cselect_b32 s60, s42, s60", "s_cselect_b32 s61, s43, s61", "s_cselect_b32 s92, s36, s92", "s_cselect_b32 s93, s37, s93",
                          "s_cselect_b32 s62, 2621440, s62", "s_cselect_b32 s94, 1966080, s94", f"s_cselect_b32 s44, {PSH}, s44"]
            slots[23] += ["s_cmp_eq_u32 s16, 2", "s_cselect_b32 s60, s38, s60", "s_cselect_b32 s61, s39, s61", "s_cselect_b32 s92, s40, s92", "s_cselect_b32 s93, s41, s93",
                          "s_cselect_b32 s62, 1966080, s62", "s_cselect_b32 s94, 1966080, s94", f"s_cselect_b32 s44, {PSH}, s44",
                          "s_mov_b32 s63, 0x20000", "s_mov_b32 s95, 0x20000", "v_lshlrev_b32 v157, s44, v1",
                          "buffer_load_dword v155, v157, s[60:63], 0 offen", "buffer_load_dword v155, v157, s[92:95], 0 offen"]
            vm.issue("PT", 2)
        if c == int(os.environ.get("CT1", "-1")) and CT:
            slots[20] += code_touch("k2_kernel", "k3_kernel", 156, "v155")
            vm.issue("CT", 1)
        groups = []; grp = []
        for l in lst:
            if grp and any(x.startswith("buffer") for x in grp) and not (l.startswith("s_add_u32 s8") or l.startswith("s_add_u32 s9")):
                groups.append(grp); grp = []
            grp.append(l)
        if grp: groups.append(grp)
        for g, gl in enumerate(groups):
            slots[g] = gl + slots[g]
        ml = []
        for h in range(2):
            for i in range(5):
                for st in range(2):
                    ml.append((ar((st*5+i)*4), vr(XF(b,st,h)), vr(WF(b,i,h))))
            for st in range(2):
                ml.append((ar(40+4*st), vr(XF(b,st,h)), vr(ONES)))
                ml.append((ar(48+4*st), vr(XF(b,st,h)), vr(XF(b,st,h))))
        for k, m in enumerate(ml):
            mfma(*m)
            for l in slots[k]: e(l)
        for wv in range(4):
            e(f"s_cmp_lg_u32 s16, {wv}")
            e(f"s_cbranch_scc1 k1_ws{c}_{wv}")
            for i in range(5):
                for h in range(2):
                    if (c * 2 + i * 2 + h) % 4 == wv:
                        mfma(ar(56+4*i), vr(ONES), vr(WF(b,i,h)))
            lab(f"k1_ws{c}_{wv}")
    stamp(3)
    WX = 151552
    e("s_nop 7")
    e("s_nop 7")
    for i in range(5):
        e(f"v_accvgpr_read_b32 v{20+i}, a{56+4*i}")
    e("v_lshlrev_b32 v25, 2, v2")
    e("s_mul_i32 s21, s16, 320")
    e(f"s_add_u32 s21, s21, {WX}")
    e("v_add_u32 v26, s21, v25")
    for i in range(5):
        e(f"ds_write_b32 v26, v{20+i} offset:{i*64}")
    e("v_mul_u32_u24 v12, 80, v3")
    for st in range(2):
        for r in range(4):
            e(f"v_accvgpr_read_b32 v{32+st*4+r}, a{40+4*st+r}")
            e(f"v_accvgpr_read_b32 v{40+st*4+r}, a{48+4*st+r}")
    e("s_nop 1")
    for st in range(2):
        for r in range(4):
            e(f"ds_bpermute_b32 v{40+st*4+r}, v12, v{40+st*4+r} offset:{4*r}")
    e(f"v_add_u32 v26, {WX}, v25")
    e("s_waitcnt lgkmcnt(0)")
    e("s_barrier")
    for wv in range(4):
        for i in range(5):
            e(f"ds_read_b32 v{124+wv*5+i}, v26 offset:{wv*320 + i*64}")
    for st in range(2):
        for r in range(4):
            ln_stats(32+st*4+r, 40+st*4+r, 52+st*4+r, 60+st*4+r, 48)
    e("s_waitcnt lgkmcnt(0)")
    for i in range(5):
        e(f"v_add_f32 v{20+i}, v{124+i}, v{129+i}")
        e(f"v_add_f32 v{124+i}, v{134+i}, v{139+i}")
        e(f"v_add_f32 v{20+i}, v{20+i}, v{124+i}")
    e("v_and_b32 v26, 1, v3")
    e("v_lshlrev_b32 v26, 9, v26")
    e("v_lshrrev_b32 v27, 1, v3")
    e("v_lshl_add_u32 v26, v27, 8, v26")
    e("v_lshl_add_u32 v26, v2, 4, v26")
    e("s_lshl_b32 s22, s19, 2")
    e("s_add_u32 s21, s22, s16")
    e("s_lshl_b32 s21, s21, 10")
    e(f"s_mul_i32 s22, s20, {5*ES}")
    e("s_add_u32 s21, s21, s22")
    for i in range(5):
        T = 72 + (i & 1) * 16
        O = 104 + i * 4
        for st in range(2):
            for r in range(4):
                e(f"v_accvgpr_read_b32 v{T+st*4+r}, a{(st*5+i)*4+r}")
        for st in range(2):
            for r in range(4):
                e(f"v_fma_f32 v{T+st*4+r}, -v{52+st*4+r}, v{20+i}, v{T+st*4+r}")
        for st in range(2):
            for r in range(4):
                e(f"v_mul_f32 v{T+st*4+r}, v{T+st*4+r}, v{60+st*4+r}")
        for st in range(2):
            e(f"v_cvt_pk_bf16_f32 v{O+2*st}, v{T+st*4}, v{T+st*4+1}")
            e(f"v_cvt_pk_bf16_f32 v{O+2*st+1}, v{T+st*4+2}, v{T+st*4+3}")
        e("s_nop 1")
        e(f"v_permlane16_swap_b32 v{O}, v{O+2}")
        e(f"v_permlane16_swap_b32 v{O+1}, v{O+3}")
        e(f"s_add_u32 s23, s21, {i*ES}")
        e("s_nop 1")
        e(f"buffer_store_dwordx4 {vr(O)}, v26, s[32:35], s23 offen")
        vm.issue("S", 1)
    stamp(4)
    lab("k1_fin")
    stamp(5)
    stamp_dump(0, 6)
    if os.environ.get("K1ST"):
        for i in range(7, 10):
            e(f"v_mov_b32 v2, s{70+2*i}")
            e(f"v_mov_b32 v3, s{71+2*i}")
            e(f"buffer_store_dwordx2 v[2:3], v0, s[64:67], s68 offen offset:{i*8}")
        e("s_waitcnt vmcnt(0)")
    lab("k1_end")
    e("s_endpgm")

ACC = 176
BUF = 32
def bufA(b, i): return BUF + b * 36 + i * 4
def bufB(b, n): return BUF + b * 36 + 20 + n * 4
def acc(i, n): return ACC + (i * 4 + n) * 4

def splitk_core(nsteps, srdA, srdB, shA, shB, vA, vB, mask):
    def addr():
        e("s_add_u32 s44, s40, s41")
        e(f"s_lshl_b32 s42, s44, {shA}")
        e(f"s_lshl_b32 s43, s44, {shB}")
        e("s_add_u32 s40, s40, 1")
        if mask:
            e(f"s_and_b32 s40, s40, {nsteps-1}")
        else:
            e(f"s_cmp_ge_u32 s40, {nsteps}")
            e("s_cselect_b32 s40, 0, s40")
    def loads(b):
        out = []
        for n in range(4):
            out.append(f"buffer_load_dwordx4 {vr(bufB(b,n))}, v{vB+n}, s[{srdB}:{srdB+3}], s43 offen")
        for i in range(5):
            out.append(f"buffer_load_dwordx4 {vr(bufA(b,i))}, v{vA+i}, s[{srdA}:{srdA+3}], s42 offen")
        return out
    for it in range(3):
        addr()
        for l in loads(it): e(l)
    for a in range(80):
        e(f"v_mov_b32 v{ACC+a}, 0")
    for it in range(nsteps):
        b = it % 4
        rem = min(nsteps - 1 - it, 2)
        e(f"s_waitcnt vmcnt({9*rem})")
        ld = []
        if it + 3 < nsteps:
            addr()
            ld = loads((it + 3) % 4)
        k = 0
        for i in range(5):
            for n in range(4):
                mfma(vr(acc(i,n)), vr(bufA(b,i)), vr(bufB(b,n)))
                k += 1
                if k % 2 == 0 and ld:
                    e(ld.pop(0))
        assert not ld

def splitk_exchange():
    e("s_nop 7")
    e("s_nop 7")
    e("s_mul_i32 s44, s16, 5120")
    e("v_add_u32 v9, s44, v8")
    e("v_add_u32 v10, 61440, v9")
    for n in range(4):
        for i in range(5):
            if n < 3:
                e(f"ds_write_b128 v9, {vr(acc(i,n))} offset:{(n*20+i)*1024}")
            else:
                e(f"ds_write_b128 v10, {vr(acc(i,n))} offset:{i*1024}")
    e("s_mul_i32 s44, s16, 20480")
    e("v_add_u32 v9, s44, v8")
    e("s_waitcnt lgkmcnt(0)")
    e("s_barrier")
    for src in range(4):
        for i in range(5):
            e(f"ds_read_b128 {vr(BUF+(src*5+i)*4)}, v9 offset:{(src*5+i)*1024}")


def hp_addr(vdst, s_st, s_d16base, sdst_list):
    e(f"v_lshrrev_b32 v{vdst}, 1, v3")
    e(f"v_lshlrev_b32 v{vdst}, 8, v{vdst}")
    e(f"v_lshl_add_u32 v{vdst}, v2, 4, v{vdst}")
    e("v_and_b32 v10, 1, v3")
    e(f"v_lshl_add_u32 v{vdst}, v10, 3, v{vdst}")
    e(f"s_mul_i32 s44, s{s_st}, 20480")
    for i in range(5):
        e(f"s_add_u32 s45, s{s_d16base}, {i}")
        e(f"s_lshl_b32 s45, s45, 9")
        e(f"s_add_u32 s{sdst_list[i]}, s44, s45")

def gen_k2_old():
    ROT = os.environ.get("K2ROT", "0") == "1"
    kernel_begin("k2_kernel")
    e("s_cmp_ge_u32 s2, 256")
    e("s_cbranch_scc1 k2_end")
    stamp(0)
    e("s_load_dwordx2 s[4:5], s[0:1], 0")
    e("s_load_dwordx2 s[8:9], s[0:1], 8")
    e("s_load_dwordx2 s[10:11], s[0:1], 16")
    e("s_load_dwordx2 s[6:7], s[0:1], 88")
    e("s_load_dwordx4 s[12:15], s[0:1], 48")
    e("s_load_dwordx2 s[60:61], s[0:1], 64")
    if CTS:
        for l in code_touch("k2_kernel", "k3_kernel", 12, "a91", back=True): e(l)
    lane_setup()
    if os.environ.get("MAP2", "1") == "1":
        e("s_bfe_u32 s19, s2, 0x20001")
        e("s_bfe_u32 s21, s2, 0x30003")
        e("s_lshl_b32 s19, s19, 3")
        e("s_add_u32 s19, s19, s21")
        e("s_and_b32 s20, s2, 1")
        e("s_lshl_b32 s20, s20, 2")
        e("s_lshr_b32 s21, s2, 6")
        e("s_add_u32 s20, s20, s21")
    else:
        e("s_and_b32 s19, s2, 7")
        e("s_lshr_b32 s20, s2, 3")
        e("s_lshr_b32 s21, s20, 3")
        e("s_lshl_b32 s19, s19, 2")
        e("s_add_u32 s19, s19, s21")
        e("s_and_b32 s20, s20, 7")
    e("v_lshlrev_b32 v8, 4, v1")
    VC, VA, VB0, VB1 = 16, 24, 29, 30
    e("v_lshrrev_b32 v4, 3, v1")
    e("v_and_b32 v5, 7, v1")
    e("v_xor_b32 v5, v5, v4")
    e("v_lshlrev_b32 v4, 12, v4")
    e("v_lshl_add_u32 v4, v5, 4, v4")
    e("s_lshl_b32 s22, s19, 18")
    if os.environ.get("XC"): e("s_mov_b32 s22, 0")
    e(f"v_add_u32 v{VC}, s22, v4")
    for j in range(1, 8):
        e(f"v_add_u32 v{VC+j}, {j*32768 - (j%4)*1024}, v{VC}")
    e("s_lshr_b32 s22, s16, 1")
    e("s_mul_i32 s22, s22, 40")
    e("s_mul_i32 s23, s20, 5")
    if os.environ.get("XA"): e("s_mov_b32 s23, 0")
    e("s_add_u32 s22, s22, s23")
    e(f"s_mul_i32 s22, s22, {ES}")
    e(f"v_add_u32 v{VA}, s22, v8")
    for i in range(1, 5):
        e(f"v_add_u32 v{VA+i}, {i*ES}, v{VA}")
    e("s_lshl_b32 s46, s16, 15")
    e("v_and_b32 v5, 7, v2")
    e("v_xor_b32 v5, v5, v3")
    e("v_lshlrev_b32 v4, 7, v2")
    e("v_lshl_add_u32 v4, v5, 4, v4")
    e(f"v_add_u32 v{VB0}, s46, v4")
    e(f"v_xor_b32 v{VB1}, 64, v{VB0}")
    e("s_and_b32 s41, s16, 1")
    e("s_lshl_b32 s47, s41, 11")
    e("s_lshl_b32 s41, s41, 15")
    if os.environ.get("SAMEA"): e("s_mov_b32 s41, 0")
    if os.environ.get("SAMEC"): e("s_mov_b32 s47, 0")
    if os.environ.get("HALFWG"):
        e("s_bitcmp1_b32 s2, 3")
        e("s_cbranch_scc1 k2_end")
    if ROT:
        e("s_lshr_b32 s40, s2, 6")
        e("s_lshl_b32 s40, s40, 2")
    elif os.environ.get("K2ROT", "0") == "2":
        e("s_and_b32 s40, s2, 7")
        e("s_lshl_b32 s40, s40, 1")
    elif os.environ.get("K2ROT", "0") == "3":
        e("s_and_b32 s40, s2, 3")
        e("s_lshl_b32 s40, s40, 2")
    else:
        e("s_mov_b32 s40, 0")
    LEAD = int(os.environ.get("LEAD", "0"))
    LM = os.environ.get("LM", "me")
    e("s_mov_b32 s95, 0")
    if "m" in LM: e("s_lshr_b32 s95, s2, 6")
    if "e" in LM: e("s_add_u32 s95, s95, s20")
    e("s_and_b32 s95, s95, 3")
    e("s_lshl_b32 s21, s19, 6")
    e("s_lshl_b32 s22, s16, 4")
    e("s_add_u32 s21, s21, s22")
    e("s_mul_i32 s22, s21, 1280")
    e("s_mul_i32 s23, s20, 160")
    e("s_add_u32 s22, s22, s23")
    e("v_mul_u32_u24 v11, 1280, v2")
    e("v_lshl_add_u32 v11, v3, 3, v11")
    e("v_add_u32 v11, s22, v11")
    e("s_waitcnt lgkmcnt(0)")
    srd(24, 4, 2621440)
    e("s_cmp_lt_u32 s16, 2")
    e("s_cselect_b32 s28, s8, s10")
    e("s_cselect_b32 s29, s9, s11")
    e("s_mov_b32 s30, 8388608")
    e("s_mov_b32 s31, 0x20000")
    srd(32, 6, SZ_ABP, WS_ABP)
    stamp(1)
    AB = 32
    BB = 192
    def A(b, h, i):
        if b < 2: return vr(AB + (b * 10 + h * 5 + i) * 4)
        return ar(96 + ((b - 2) * 10 + h * 5 + i) * 4)
    def B(b, h, n): return BB + (b * 8 + h * 4 + n) * 4
    vm = VM()
    def stage_issue(stg):
        b = stg % 4
        HALFA = os.environ.get("HALFA") and (stg & 1)
        HALFC = os.environ.get("HALFC") and (stg & 1)
        vm.issue(("S", stg), 18 - (10 if HALFA else 0) - (8 if HALFC else 0))
        o = []
        if LEAD:
            o.append(f"s_cmp_eq_u32 s95, {stg & 3}")
            o.append(f"s_cselect_b32 s40, {(stg + LEAD) & 15}, {stg}")
        o.append("s_lshl_b32 s42, s40, 7")
        o.append("s_add_u32 s42, s42, s47")
        o.append(f"s_add_u32 m0, s46, {b*8192}")
        o.append("s_lshl_b32 s43, s40, 11")
        for j in range(4):
            if not HALFC: o.append(f"buffer_load_dwordx4 v{VC+j}, s[28:31], s42 offen offset:{j*1024} lds")
        o.append(f"s_add_u32 m0, s46, {b*8192+4096}")
        o.append("s_add_u32 s43, s43, s41")
        for j in range(4, 8):
            if not HALFC: o.append(f"buffer_load_dwordx4 v{VC+j}, s[28:31], s42 offen offset:{(j-4)*1024} lds")
        for h in range(2):
            for i in range(5):
                if not HALFA: o.append(f"buffer_load_dwordx4 {A(b,h,i)}, v{VA+i}, s[32:35], s43 offen offset:{h*1024}")
        o.append("s_add_u32 s40, s40, 1")
        o.append(f"s_and_b32 s40, s40, {os.environ.get('XK', '15')}")
        return o
    def bread(st):
        o = []
        for h in range(2):
            for n in range(4):
                o.append(f"ds_read_b128 {vr(B(st&1,h,n))}, v{VB0+h} offset:{(st%4)*8192 + n*2048}")
        return o
    if os.environ.get("ABT"):
        e("s_lshl_b32 s22, s2, 2")
        e("s_add_u32 s22, s22, s16")
        e("s_mul_i32 s22, s22, 5120")
        e("v_lshlrev_b32 v12, 7, v1")
        e("s_mov_b32 exec_hi, 0xff")
        e("buffer_load_dword a92, v12, s[32:35], s22 offen")
        e("s_mov_b32 exec_hi, -1")
    for st in range(3):
        for l in stage_issue(st): e(l)
    for i in range(5):
        e(f"buffer_load_dwordx2 a[{80+2*i}:{81+2*i}], v11, s[24:27], 0 offen offset:{i*32}")
    vm.issue("X", 5)
    PL, PO, PA = 112, 144, 176
    e("s_mul_i32 s48, s2, 3")
    e("s_add_u32 s48, s48, s16")
    e("s_cmp_ge_u32 s2, 240")
    e("s_cselect_b64 vcc, -1, 0")
    e("s_cmp_eq_u32 s16, 3")
    e("s_cselect_b64 vcc, -1, vcc")
    e("s_cbranch_vccnz k2_pdum")
    e("s_cmp_ge_u32 s48, 480")
    e("s_cbranch_scc1 k2_pdn")
    e("s_mul_i32 s49, s48, 52429")
    e("s_lshr_b32 s49, s49, 20")
    e("s_mul_i32 s92, s49, 20")
    e("s_sub_u32 s92, s48, s92")
    srd(36, 12, 1966080)
    srd(56, 14, 1966080)
    e("v_bfe_u32 v12, v1, 3, 2")
    e("v_and_b32 v13, 7, v1")
    e("v_lshrrev_b32 v14, 5, v1")
    e(f"v_mul_u32_u24 v{PA+9}, 24576, v12")
    e(f"v_lshl_add_u32 v{PA+9}, v13, 4, v{PA+9}")
    e("v_mul_u32_u24 v15, 12288, v14")
    e(f"v_add_u32 v{PA+9}, v{PA+9}, v15")
    e("s_mul_i32 s84, s92, 98304")
    e("s_lshl_b32 s85, s49, 7")
    e("s_add_u32 s84, s84, s85")
    e("s_mov_b32 s85, s84")
    e("s_mov_b32 s86, 3072")
    e("v_mul_u32_u24 v13, 1040, v13")
    e("v_lshl_add_u32 v13, v12, 8, v13")
    e(f"v_lshl_add_u32 v{PA}, v14, 3, v13")
    e("s_mov_b32 s93, 64")
    e("s_mov_b32 s94, 32")
    e("s_mul_i32 s87, s49, 163840")
    e("s_lshl_b32 s92, s92, 10")
    e("s_add_u32 s87, s87, s92")
    e(f"s_add_u32 s87, s87, {WS_WGU}")
    e("s_mov_b32 s88, 20480")
    e("s_branch k2_pk")
    lab("k2_pdn")
    e("s_sub_u32 s48, s48, 480")
    e("s_mul_i32 s49, s48, 43691")
    e("s_lshr_b32 s49, s49, 21")
    e("s_mul_i32 s92, s49, 48")
    e("s_sub_u32 s92, s48, s92")
    srd(36, 60, 1966080)
    srd(56, 60, 1966080)
    e(f"v_mul_u32_u24 v{PA+9}, 10240, v3")
    e(f"v_lshl_add_u32 v{PA+9}, v2, 4, v{PA+9}")
    e("s_mul_i32 s84, s92, 40960")
    e("s_lshl_b32 s85, s49, 8")
    e("s_add_u32 s84, s84, s85")
    e("s_add_u32 s85, s84, 5120")
    e("s_mov_b32 s86, 1280")
    e("v_lshrrev_b32 v13, 1, v2")
    e("v_mul_u32_u24 v13, 1040, v13")
    e("v_and_b32 v15, 1, v2")
    e("v_lshlrev_b32 v15, 7, v15")
    e("v_lshl_add_u32 v15, v3, 8, v15")
    e(f"v_add_u32 v{PA}, v15, v13")
    e("s_mov_b32 s93, 32")
    e("s_mov_b32 s94, 8")
    e("s_mul_i32 s87, s49, 393216")
    e("s_lshl_b32 s92, s92, 10")
    e("s_add_u32 s87, s87, s92")
    e(f"s_add_u32 s87, s87, {WS_WDN}")
    e("s_mov_b32 s88, 49152")
    lab("k2_pk")
    for which in range(2):
        for j in range(4):
            sr = 84 + which
            e(f"buffer_load_dwordx4 {vr(PL+(which*4+j)*4)}, v{PA+9}, s[{36+20*which}:{39+20*which}], s{sr} offen")
            e(f"s_add_u32 s{sr}, s{sr}, s86")
    e("s_mul_i32 s49, s16, 8320")
    e("s_add_u32 s49, s49, 131072")
    e(f"v_add_u32 v{PA}, s49, v{PA}")
    for k in range(1, 4):
        e(f"v_add_u32 v{PA+k}, s93, v{PA+k-1}")
    for k in range(4):
        e(f"v_add_u32 v{PA+4+k}, s94, v{PA+k}")
    e(f"v_add_u32 v{PA+12}, s49, v8")
    e("s_branch k2_pdone")
    lab("k2_pdum")
    def dummy(n):
        o = ["s_mov_b64 exec, 1"]
        for j in range(n):
            o.append("buffer_load_dword a90, v8, s[24:27], 0 offen")
        o.append("s_mov_b64 exec, -1")
        return o
    for l in dummy(8): e(l)
    lab("k2_pdone")
    vm.issue("P", 8)
    e("s_mov_b32 s89, 0x05040100")
    e("s_mov_b32 s90, 0x07060302")
    e("s_mov_b32 s64, s6")
    e("s_mov_b32 s65, s7")
    e(f"s_mov_b32 s66, {WS_WDN + SZ_WDN}")
    e("s_mov_b32 s67, 0x20000")
    PST = int(os.environ.get("PST", "3"))
    srd(48, 6, SZ_HP, WS_HP)
    srd(52, 6, SZ_HSTAT, WS_HSTAT)
    for a in range(80):
        e(f"v_accvgpr_write_b32 a{a}, 0")
    e(f"s_waitcnt vmcnt({vm.younger([('S', 0)])})")
    for l in bread(0): e(l)
    NS = 16
    for st in range(NS):
        b = st % 4
        if st + 1 < NS:
            allowed = vm.younger([("S", st + 1)] + (["P"] if st == PST else []))
            e(f"s_waitcnt vmcnt({allowed}) lgkmcnt(0)")
        else:
            e("s_waitcnt lgkmcnt(0)")
        if os.environ.get("K2ST") and st in (0,1,2,3,4,6,8,12): stamp(7 + (0,1,2,3,4,6,8,12).index(st))
        slots = [[] for _ in range(40)]
        if st + 1 < NS:
            for j, l in enumerate(bread(st + 1)):
                slots[1 + 2*j].append(l)
        if st + 3 < NS:
            grp = []; groups = []
            for l in stage_issue(st + 3):
                grp.append(l)
                if l.startswith("buffer"):
                    groups.append(grp); grp = []
            groups[-1] += grp
            for g, gl in enumerate(groups):
                slots[(g * 40) // len(groups)] += gl
        if st == int(os.environ.get("CT2", "-1")) and CT:
            slots[30] += code_touch("k3_kernel", "k4_kernel", 12, "a91")
            vm.issue("CT", 1)
        pk = []
        if st == PST:
            for which in range(2):
                for ee in range(8):
                    o = PO + (which*8+ee)*2
                    g = []
                    for t in range(2):
                        g.append(f"v_perm_b32 v{o+t}, v{PL+(which*4+2*t+1)*4+(ee>>1)}, v{PL+(which*4+2*t)*4+(ee>>1)}, s{89+(ee&1)}")
                    g.append(f"ds_write_b64 v{PA+which*4+(ee>>1)}, v[{o}:{o+1}] offset:{(ee&1)*16}")
                    pk.append(g)
            pk = [pk[2*i] + pk[2*i+1] for i in range(8)]
        if st == PST + 1:
            pk = [[f"ds_read_b128 {vr(PL+g*4)}, v{PA+12} offset:{g*1040}"] for g in range(8)]
        for g, gl in enumerate(pk):
            slots[18 + 2*g] += [f"s_cbranch_vccnz k2_np{st}_{g}"] + gl + [f"k2_np{st}_{g}:"]
        if st == PST + 2:
            gl = ["s_cbranch_vccnz k2_sdum"]
            for g in range(8):
                gl += [f"buffer_store_dwordx4 {vr(PL+g*4)}, v8, s[64:67], s87 offen sc1", "s_add_u32 s87, s87, s88"]
            gl += ["s_branch k2_sdone", "k2_sdum:"] + dummy(8) + ["k2_sdone:"]
            slots[39] += gl
            vm.issue("Q", 8)
        k = 0
        for h in range(2):
            for i in range(5):
                for n in range(4):
                    if not os.environ.get("NOMFMA"): mfma(ar((i*4+n)*4), A(b,h,i), vr(B(st&1,h,n)))
                    for l in slots[k]:
                        if os.environ.get("NODS") and l.startswith("ds_"): continue
                        if os.environ.get("NOA") and l.startswith("buffer") and not l.endswith("lds"): continue
                        if os.environ.get("NOC") and l.startswith("buffer") and l.endswith("lds"): continue
                        e(l)
                    k += 1
    stamp(2)
    stamp(3)
    e("s_nop 7")
    e("v_add_u32 v9, s46, v8")
    for n in range(4):
        for i in range(5):
            e(f"ds_write_b128 v9, {ar((i*4+n)*4)} offset:{(n*5+i)*1024}")
    e("s_mul_i32 s44, s16, 5120")
    e("v_add_u32 v9, s44, v8")
    e("v_add_u32 v10, 65536, v9")
    XR = 112
    for i in range(10):
        e(f"v_accvgpr_read_b32 v{XR+i}, a{80+i}")
    e("s_waitcnt lgkmcnt(0)")
    e("s_barrier")
    for src in range(4):
        for i in range(5):
            e(f"ds_read_b128 {vr(BUF+(src*5+i)*4)}, v{9 + (src>>1)} offset:{(src&1)*32768 + i*1024}")
    stamp(4)
    e("s_lshl_b32 s22, s19, 2")
    e("s_add_u32 s22, s22, s16")
    e("s_mul_i32 s23, s20, 5")
    hp_addr(11, 22, 23, [61, 62, 63, 64, 65])
    e("v_mov_b32 v17, 0")
    e("v_mov_b32 v18, 0")
    e("s_waitcnt vmcnt(0) lgkmcnt(0)")
    T = 124
    for i in range(5):
        def S(src, r): return BUF + (src*5+i)*4 + r
        for r in range(4):
            e(f"v_add_f32 v{T+r}, v{S(0,r)}, v{S(1,r)}")
            e(f"v_add_f32 v{T+4+r}, v{S(2,r)}, v{S(3,r)}")
        for r in range(4):
            bf16r(T+r, T+r)
            bf16r(T+4+r, T+4+r)
        for r in range(4):
            e(f"v_sub_f32 v{T+r}, v{T+r}, v{T+4+r}")
        for r in range(4):
            bf16r(T+r, T+r)
        e(f"v_lshlrev_b32 v{T+4}, 16, v{XR+2*i}")
        e(f"v_and_b32 v{T+5}, 0xffff0000, v{XR+2*i}")
        e(f"v_lshlrev_b32 v{T+6}, 16, v{XR+2*i+1}")
        e(f"v_and_b32 v{T+7}, 0xffff0000, v{XR+2*i+1}")
        for r in range(4):
            e(f"v_add_f32 v{T+r}, v{T+r}, v{T+4+r}")
        o = 136 + 2*i
        e(f"v_cvt_pk_bf16_f32 v{o}, v{T}, v{T+1}")
        e(f"v_cvt_pk_bf16_f32 v{o+1}, v{T+2}, v{T+3}")
        e(f"buffer_store_dwordx2 v[{o}:{o+1}], v11, s[48:51], s{61+i} offen")
        e(f"v_lshlrev_b32 v{T}, 16, v{o}")
        e(f"v_and_b32 v{T+1}, 0xffff0000, v{o}")
        e(f"v_lshlrev_b32 v{T+2}, 16, v{o+1}")
        e(f"v_and_b32 v{T+3}, 0xffff0000, v{o+1}")
        for r in range(4):
            e(f"v_add_f32 v17, v17, v{T+r}")
            e(f"v_fmac_f32 v18, v{T+r}, v{T+r}")
    e("v_xor_b32 v10, 16, v1")
    e("v_lshlrev_b32 v10, 2, v10")
    e("ds_bpermute_b32 v19, v10, v17")
    e("ds_bpermute_b32 v28, v10, v18")
    e("s_waitcnt lgkmcnt(0)")
    e("v_add_f32 v17, v17, v19")
    e("v_add_f32 v18, v18, v28")
    e("v_xor_b32 v10, 32, v1")
    e("v_lshlrev_b32 v10, 2, v10")
    e("ds_bpermute_b32 v19, v10, v17")
    e("ds_bpermute_b32 v28, v10, v18")
    e("s_waitcnt lgkmcnt(0)")
    e("v_add_f32 v30, v17, v19")
    e("v_add_f32 v31, v18, v28")
    e("s_lshl_b32 s22, s21, 3")
    e("s_lshl_b32 s23, s20, 14")
    e("s_add_u32 s22, s22, s23")
    e("v_lshlrev_b32 v10, 3, v2")
    e("s_mov_b32 exec_lo, 0x0000ffff")
    e("s_mov_b32 exec_hi, 0")
    e("buffer_store_dwordx2 v[30:31], v10, s[52:55], s22 offen")
    e("s_mov_b64 exec, -1")
    lab("k2_fin")
    stamp(5)
    stamp_dump(1, 6)
    if os.environ.get("K2ST"):
        for i in range(7, 15):
            e(f"v_mov_b32 v2, s{70+2*i}")
            e(f"v_mov_b32 v3, s{71+2*i}")
            e(f"buffer_store_dwordx2 v[2:3], v0, s[64:67], s68 offen offset:{i*8}")
        e("s_waitcnt vmcnt(0)")
    lab("k2_end")
    e("s_endpgm")


def gen_k2():
    WST = 39936
    NRETRY = int(os.environ.get("NRETRY", "24"))
    FORCE = os.environ.get("FORCE", "")
    kernel_begin("k2_kernel")
    e("s_cmp_ge_u32 s2, 256")
    e("s_cbranch_scc1 k2_end")
    stamp(0)
    e("s_load_dwordx2 s[4:5], s[0:1], 0")
    e("s_load_dwordx2 s[8:9], s[0:1], 8")
    e("s_load_dwordx2 s[10:11], s[0:1], 16")
    e("s_load_dwordx2 s[6:7], s[0:1], 88")
    e("s_load_dwordx4 s[12:15], s[0:1], 48")
    e("s_load_dwordx2 s[60:61], s[0:1], 64")
    if CTS:
        for l in code_touch("k2_kernel", "k3_kernel", 12, "a251", back=True): e(l)
    lane_setup()
    e("s_and_b32 s17, s2, 1")
    if os.environ.get("SWAPR"): e("s_xor_b32 s17, s17, 1")
    if os.environ.get("DELAY"):
        dl = os.environ["DELAY"]
        if dl in "01": e(f"s_cmp_lg_u32 s17, {dl}")
        else:
            e("s_lshr_b32 s22, s2, 3")
            e("s_xor_b32 s22, s22, s2")
            e("s_bitcmp1_b32 s22, 0")
        e("s_cbranch_scc1 k2_nodelay")
        for _ in range(10): e("s_sleep 127")
        lab("k2_nodelay")
    if os.environ.get("MAP2", "1") == "1":
        e("s_bfe_u32 s19, s2, 0x20001")
        e("s_bfe_u32 s21, s2, 0x20003")
        e("s_lshl_b32 s19, s19, 2")
        e("s_add_u32 s19, s19, s21")
        e("s_lshr_b32 s20, s2, 5")
    else:
        e("s_bfe_u32 s19, s2, 0x10002")
        e("s_bfe_u32 s21, s2, 0x30003")
        e("s_lshl_b32 s19, s19, 3")
        e("s_add_u32 s19, s19, s21")
        e("s_bfe_u32 s20, s2, 0x10001")
        e("s_lshl_b32 s20, s20, 2")
        e("s_lshr_b32 s21, s2, 6")
        e("s_add_u32 s20, s20, s21")
    e("v_lshlrev_b32 v8, 4, v1")
    VC, VA, VB0, VB1 = 16, 24, 29, 30
    e("v_lshrrev_b32 v4, 3, v1")
    e("v_and_b32 v5, 7, v1")
    e("v_xor_b32 v5, v5, v4")
    e("v_lshlrev_b32 v4, 12, v4")
    e("v_lshl_add_u32 v4, v5, 4, v4")
    e("s_lshl_b32 s22, s19, 19")
    e("v_add_u32 v4, s22, v4")
    e("s_lshl_b32 s23, s16, 1")
    for j in range(8):
        e(f"s_add_u32 s22, s23, {j+2}")
        e("s_and_b32 s22, s22, 7")
        e("s_lshl_b32 s22, s22, 15")
        e(f"s_add_u32 s22, s22, {4096 - (j%4)*1024}")
        e(f"v_add_u32 v{VC+j}, s22, v4")
    e("s_mul_i32 s22, s17, 40")
    e("s_mul_i32 s23, s20, 5")
    e("s_add_u32 s22, s22, s23")
    e(f"s_mul_i32 s22, s22, {ES}")
    e(f"v_add_u32 v{VA}, s22, v8")
    for i in range(1, 5):
        e(f"v_add_u32 v{VA+i}, {i*ES}, v{VA}")
    e(f"s_mul_i32 s46, s16, {WST}")
    e("s_lshl_b32 s41, s17, 18")
    e("s_xor_b32 s40, s41, 0x40000")
    e("s_lshl_b32 s22, s16, 10")
    e("s_add_u32 s40, s40, s22")
    e("s_add_u32 s41, s41, s22")
    e("s_lshl_b32 s47, s16, 14")
    e("s_waitcnt lgkmcnt(0)")
    e("s_cmp_eq_u32 s17, 0")
    e("s_cselect_b32 s28, s8, s10")
    e("s_cselect_b32 s29, s9, s11")
    e("s_sub_u32 s28, s28, 4096")
    e("s_subb_u32 s29, s29, 0")
    e(f"s_mov_b32 s30, {8388608 + 4096}")
    e("s_mov_b32 s31, 0x20000")
    srd(32, 6, SZ_ABP, WS_ABP)
    stamp(1)
    BB = 192
    def A(u, h, i):
        b = u % 4
        if b < 2: return vr(32 + (b * 10 + h * 5 + i) * 4)
        return ar(160 + ((b - 2) * 10 + h * 5 + i) * 4)
    def B(b, h, n): return BB + (b * 8 + h * 4 + n) * 4
    def AC(c, i, n): return (c * 20 + i * 4 + n) * 4
    seq = []
    for u in range(5): seq += [(u, 0), (u, 1)]
    seq += [(5, 0), (6, 0), (7, 0), (5, 1), (6, 1), (7, 1)]
    vm = VM()
    def cld(s):
        u, c = seq[s]
        b = s % 4
        o = [f"s_add_u32 s42, s{40+c}, {u*128}", f"s_add_u32 m0, s46, {b*8192}"]
        for j in range(4):
            o.append(f"buffer_load_dwordx4 v{VC+j}, s[28:31], s42 offen offset:{j*1024} lds")
        o.append(f"s_add_u32 m0, s46, {b*8192+4096}")
        for j in range(4, 8):
            o.append(f"buffer_load_dwordx4 v{VC+j}, s[28:31], s42 offen offset:{(j-4)*1024} lds")
        vm.issue(("C", s), 8)
        return o
    def ald(u, h):
        o = [f"s_add_u32 s43, s47, {u*2048}"]
        for i in range(5):
            o.append(f"buffer_load_dwordx4 {A(u,h,i)}, v{VA+i}, s[32:35], s43 offen offset:{h*1024}")
        vm.issue(("A", u), 5)
        return o
    def bread(s):
        o = []
        for h in range(2):
            for n in range(4):
                o.append(f"ds_read_b128 {vr(B(s&1,h,n))}, v{VB0+h} offset:{(s%4)*8192 + n*2048}")
        return o
    def items(lst):
        o = []
        for it in lst:
            if it[0] == "C": o += cld(int(it[1:]))
            else: o += ald(int(it[1]), int(it[2]))
        return o
    for l in items(["C0", "A00", "A01", "C1", "C2", "A10", "A11", "C3"]): e(l)
    plan = {0: ["C4", "A20"], 1: ["A21", "C5"], 2: ["C6", "A30"], 3: ["A31", "C7"], 4: ["C8", "A40"], 5: ["A41", "C9"],
            6: ["C10", "A50"], 7: ["A51", "C11", "A60"], 8: ["A61", "C12", "A70"], 9: ["A71", "C13"], 10: ["C14"], 11: ["C15"]}
    e("v_and_b32 v5, 7, v2")
    e("v_xor_b32 v5, v5, v3")
    e("v_lshlrev_b32 v4, 7, v2")
    e("v_lshl_add_u32 v4, v5, 4, v4")
    e(f"v_add_u32 v{VB0}, s46, v4")
    e(f"v_xor_b32 v{VB1}, 64, v{VB0}")
    srd(24, 4, 2621440)
    e("v_add_u32 v9, s46, v8")
    for n in range(3):
        e(f"s_sub_u32 s22, s16, {n+1}")
        e("s_and_b32 s22, s22, 3")
        e(f"s_mul_i32 s22, s22, {WST}")
        e(f"v_add_u32 v{4+n}, s22, v8")
    e("s_lshl_b32 s21, s19, 3")
    e("s_lshl_b32 s22, s17, 2")
    e("s_add_u32 s21, s21, s22")
    e("s_add_u32 s21, s21, s16")
    e("v_mul_u32_u24 v11, 1280, v2")
    e("v_lshl_add_u32 v11, v3, 3, v11")
    e("v_lshrrev_b32 v7, 1, v3")
    e("v_lshlrev_b32 v7, 8, v7")
    e("v_lshl_add_u32 v7, v2, 4, v7")
    e("v_and_b32 v10, 1, v3")
    e("v_lshl_add_u32 v7, v10, 3, v7")
    e("s_lshl_b32 s63, s19, 3")
    e("s_add_u32 s63, s63, s20")
    e("s_lshl_b32 s63, s63, 2")
    e("s_add_u32 s63, s63, s16")
    e("s_lshl_b32 s63, s63, 1")
    e("s_add_u32 s63, s63, s17")
    e("s_lshl_b32 s63, s63, 12")
    e("s_xor_b32 s68, s63, 4096")
    e(f"s_mov_b32 s69, {NRETRY}")
    srd(96, 6, SZ_XB, WS_XB)
    e("s_mul_i32 s18, s17, 0x80008000")
    PL, PO, PA = 112, 144, 176
    e("s_mul_i32 s48, s2, 3")
    e("s_add_u32 s48, s48, s16")
    e("s_mov_b32 s95, 1")
    e("s_cmp_ge_u32 s2, 240")
    e("s_cbranch_scc1 k2_pdone")
    e("s_cmp_eq_u32 s16, 3")
    e("s_cbranch_scc1 k2_pdone")
    e("s_mov_b32 s95, 0")
    e("s_cmp_ge_u32 s48, 480")
    e("s_cbranch_scc1 k2_pdn")
    e("s_mul_i32 s49, s48, 52429")
    e("s_lshr_b32 s49, s49, 20")
    e("s_mul_i32 s92, s49, 20")
    e("s_sub_u32 s92, s48, s92")
    srd(36, 12, 1966080)
    srd(56, 14, 1966080)
    e("v_bfe_u32 v12, v1, 3, 2")
    e("v_and_b32 v13, 7, v1")
    e("v_lshrrev_b32 v14, 5, v1")
    e(f"v_mul_u32_u24 v{PA+9}, 24576, v12")
    e(f"v_lshl_add_u32 v{PA+9}, v13, 4, v{PA+9}")
    e("v_mul_u32_u24 v15, 12288, v14")
    e(f"v_add_u32 v{PA+9}, v{PA+9}, v15")
    e("s_mul_i32 s84, s92, 98304")
    e("s_lshl_b32 s85, s49, 7")
    e("s_add_u32 s84, s84, s85")
    e("s_mov_b32 s85, s84")
    e("s_mov_b32 s86, 3072")
    e("v_mul_u32_u24 v13, 1040, v13")
    e("v_lshl_add_u32 v13, v12, 8, v13")
    e(f"v_lshl_add_u32 v{PA}, v14, 3, v13")
    e("s_mov_b32 s93, 64")
    e("s_mov_b32 s94, 32")
    e("s_mul_i32 s87, s49, 163840")
    e("s_lshl_b32 s92, s92, 10")
    e("s_add_u32 s87, s87, s92")
    e(f"s_add_u32 s87, s87, {WS_WGU}")
    e("s_mov_b32 s88, 20480")
    e("s_branch k2_pk")
    lab("k2_pdn")
    e("s_sub_u32 s48, s48, 480")
    e("s_mul_i32 s49, s48, 43691")
    e("s_lshr_b32 s49, s49, 21")
    e("s_mul_i32 s92, s49, 48")
    e("s_sub_u32 s92, s48, s92")
    srd(36, 60, 1966080)
    srd(56, 60, 1966080)
    e(f"v_mul_u32_u24 v{PA+9}, 10240, v3")
    e(f"v_lshl_add_u32 v{PA+9}, v2, 4, v{PA+9}")
    e("s_mul_i32 s84, s92, 40960")
    e("s_lshl_b32 s85, s49, 8")
    e("s_add_u32 s84, s84, s85")
    e("s_add_u32 s85, s84, 5120")
    e("s_mov_b32 s86, 1280")
    e("v_lshrrev_b32 v13, 1, v2")
    e("v_mul_u32_u24 v13, 1040, v13")
    e("v_and_b32 v15, 1, v2")
    e("v_lshlrev_b32 v15, 7, v15")
    e("v_lshl_add_u32 v15, v3, 8, v15")
    e(f"v_add_u32 v{PA}, v15, v13")
    e("s_mov_b32 s93, 32")
    e("s_mov_b32 s94, 8")
    e("s_mul_i32 s87, s49, 393216")
    e("s_lshl_b32 s92, s92, 10")
    e("s_add_u32 s87, s87, s92")
    e(f"s_add_u32 s87, s87, {WS_WDN}")
    e("s_mov_b32 s88, 49152")
    lab("k2_pk")
    e("s_add_u32 s49, s46, 23552")
    e(f"v_add_u32 v{PA}, s49, v{PA}")
    for k in range(1, 4):
        e(f"v_add_u32 v{PA+k}, s93, v{PA+k-1}")
    for k in range(4):
        e(f"v_add_u32 v{PA+4+k}, s94, v{PA+k}")
    e(f"v_add_u32 v{PA+12}, s49, v8")
    lab("k2_pdone")
    def dummy(n):
        o = ["s_mov_b64 exec, 1"]
        for j in range(n):
            o.append("buffer_load_dword a250, v8, s[24:27], 0 offen")
        o.append("s_mov_b64 exec, -1")
        return o
    e("s_mov_b32 s89, 0x05040100")
    e("s_mov_b32 s90, 0x07060302")
    e("s_mov_b32 s64, s6")
    e("s_mov_b32 s65, s7")
    e(f"s_mov_b32 s66, {WS_WDN + SZ_WDN}")
    e("s_mov_b32 s67, 0x20000")
    srd(48, 6, SZ_HP, WS_HP)
    srd(52, 6, SZ_HSTAT, WS_HSTAT)
    def xaddr(sST, dX, dH, dS):
        return [f"s_mul_i32 s{dX}, s{sST}, 20480", f"s_mul_i32 s{dH}, s20, 2560", f"s_add_u32 s{dH}, s{dH}, s{dX}",
                "s_mul_i32 s22, s20, 160", f"s_add_u32 s{dX}, s{dX}, s22",
                f"s_lshl_b32 s{dS}, s{sST}, 7", "s_lshl_b32 s22, s20, 14", f"s_add_u32 s{dS}, s{dS}, s22"]
    for l in xaddr(21, 44, 62, 45): e(l)
    for a in range(160):
        e(f"v_accvgpr_write_b32 a{a}, 0")
    e(f"s_waitcnt vmcnt({vm.younger([('C', 0)])})")
    for l in bread(0): e(l)
    PP, PD = 16, 72
    def RT(k): return (32 + k * 4) if k < 10 else (144 + (k - 10) * 4)
    def RO(k): return (32 + k * 4) if k < 10 else (84 + (k - 10) * 4)
    def xoff(k): return k * 1024 if k < 8 else 32768 + (k - 8) * 1024
    def poll(): return [f"buffer_load_dwordx4 {vr(PD+4*q)}, v8, s[96:99], s68 offen offset:{q*1024} sc1" for q in range(3)]
    PKS = int(os.environ.get("PKS", "12"))
    POLLP = int(os.environ.get("POLLP", "1"))
    RSP = int(os.environ.get("RSP", "36"))
    MIDB = int(os.environ.get("MIDB", "29"))
    for st in range(16):
        u, c = seq[st]
        need = []
        if st + 1 < 16: need.append(("C", st + 1))
        if c == 0: need.append(("A", u))
        if st == 15: need.append("PK")
        e(f"s_waitcnt vmcnt({vm.younger(need)}) lgkmcnt(0)")
        if st == 13: e("s_barrier")
        slots = [[] for _ in range(40)]
        pre = []
        if st == 13:
            for k in range(15):
                slots[k].append(f"ds_read_b128 {vr(RT(k))}, v{4 + k//5} offset:{xoff(k)}")
        if st + 1 < 16:
            for j, l in enumerate(bread(st + 1)):
                slots[(1 + 2*j) if st != 13 else (15 + j)].append(l)
        lst = items(plan.get(st, []))
        grp = []; groups = []
        for l in lst:
            grp.append(l)
            if l.startswith("buffer"):
                groups.append(grp); grp = []
        for g, gl in enumerate(groups):
            slots[(g * 40) // len(groups)] += gl
        if st == PKS:
            for i in range(5):
                slots[2*i] += [f"buffer_load_dwordx2 a[{240+2*i}:{241+2*i}], v11, s[24:27], s44 offen offset:{i*32}"]
            vm.issue("X", 5)
            for which in range(2):
                gl = ["s_cmp_lg_u32 s95, 0", f"s_cbranch_scc1 k2_ld{which}"]
                for j in range(4):
                    sr = 84 + which
                    gl += [f"buffer_load_dwordx4 {vr(PL+(which*4+j)*4)}, v{PA+9}, s[{36+20*which}:{39+20*which}], s{sr} offen",
                           f"s_add_u32 s{sr}, s{sr}, s86"]
                gl += [f"s_branch k2_le{which}", f"k2_ld{which}:"] + dummy(4) + [f"k2_le{which}:"]
                slots[10 + 8*which] += gl
            vm.issue("PK", 8)
        nmaj = st in (12, 15)
        if nmaj:
            for g in range(3):
                for i in range(5):
                    k = g * 5 + i
                    off = xoff(k) if st == 12 else 8192 + k * 1024
                    slots[10*(g+1) + 2 + i].append(f"ds_write_b128 v9, {ar(AC(c,i,g))} offset:{off}")
        if st == 14:
            ops = []
            for i in range(5):
                t = 164 + (i % 3) * 4
                for r in range(4): ops.append(f"v_accvgpr_read_b32 v{t+r}, a{AC(0,i,3)+r}")
                for r in range(4): ops.append(f"v_add_f32 v{RT(i)+r}, v{RT(i)+r}, v{RT(5+i)+r}")
                for r in range(4): ops.append(f"v_add_f32 v{t+r}, v{t+r}, v{RT(10+i)+r}")
                for r in range(4): ops.append(f"v_add_f32 v{t+r}, v{t+r}, v{RT(i)+r}")
                ops.append(f"v_cvt_pk_bf16_f32 v{PP+2*i}, v{t}, v{t+1}")
                ops.append(f"v_cvt_pk_bf16_f32 v{PP+2*i+1}, v{t+2}, v{t+3}")
                if i == 4: ops += [f"v_mov_b32 v{PP+10}, 0", f"v_mov_b32 v{PP+11}, 0"]
                if i in (1, 3, 4):
                    q = i // 2
                    ops.append(f"buffer_store_dwordx4 {vr(PP+4*q)}, v8, s[96:99], s63 offen offset:{q*1024}")
            vm.issue("P", 3)
            for j, l in enumerate(ops):
                slots[(j * RSP) // len(ops)].append(l)
        if st == 15:
            pk = []
            for which in range(2):
                for ee in range(8):
                    o = PO + (which*8+ee)*2
                    g = []
                    for t in range(2):
                        g.append(f"v_perm_b32 v{o+t}, v{PL+(which*4+2*t+1)*4+(ee>>1)}, v{PL+(which*4+2*t)*4+(ee>>1)}, s{89+(ee&1)}")
                    g.append(f"ds_write_b64 v{PA+which*4+(ee>>1)}, v[{o}:{o+1}] offset:{(ee&1)*16}")
                    pk.append(g)
            pk = [pk[2*i] + pk[2*i+1] for i in range(8)]
            for g, gl in enumerate(pk):
                slots[(0, 1, 3, 4, 6, 7, 9, 10)[g]] += ["s_cmp_lg_u32 s95, 0", f"s_cbranch_scc1 k2_np{g}"] + gl + [f"k2_np{g}:"]
            slots[18] += ["s_cmp_lg_u32 s95, 0", "s_cbranch_scc1 k2_npr"] + \
                         [f"ds_read_b128 {vr(PL+g*4)}, v{PA+12} offset:{g*1040}" for g in range(8)] + ["k2_npr:"]
            if MIDB:
                slots[MIDB] += ["s_waitcnt lgkmcnt(0)", "s_barrier"]
                for k in range(10):
                    slots[MIDB + (k + 1) // 2].append(f"ds_read_b128 {vr(RO(k))}, v{4 + k//5} offset:{8192 + k*1024}")
            if POLLP == 0:
                slots[38] += poll()
        order = [(h, i, n) for n in range(4) for h in range(2) for i in range(5)] if nmaj else \
                [(h, i, n) for h in range(2) for i in range(5) for n in range(4)]
        for k, (h, i, n) in enumerate(order):
            mfma(ar(AC(c,i,n)), A(u,h,i), vr(B(st&1,h,n)))
            for l in slots[k]: e(l)
    stamp(2)
    e("s_waitcnt lgkmcnt(0)")
    e("s_barrier")
    if POLLP == 1:
        for l in poll(): e(l)
    for k in range(10 if MIDB else 0, 15):
        e(f"ds_read_b128 {vr(RO(k))}, v{4 + k//5} offset:{8192 + k*1024}")
    if POLLP == 2:
        for l in poll(): e(l)
    e("s_cmp_lg_u32 s95, 0")
    e("s_cbranch_scc1 k2_nq")
    for g in range(8):
        e(f"buffer_store_dwordx4 {vr(PL+g*4)}, v8, s[64:67], s87 offen sc1")
        e("s_add_u32 s87, s87, s88")
    lab("k2_nq")
    stamp(4)
    XU, MU, T, OP, XP = 192, 212, 232, 144, 156
    NS = 168
    def partX():
        o = []
        for i in range(10): o.append(f"v_accvgpr_read_b32 v{XP+i}, a{240+i}")
        for i in range(10):
            o.append(f"v_lshlrev_b32 v{XU+2*i}, 16, v{XP+i}")
            o.append(f"v_and_b32 v{XU+2*i+1}, 0xffff0000, v{XP+i}")
        return o
    def partM(MP):
        o = []
        for i in range(10):
            o.append(f"v_xor_b32 v{T}, s18, v{MP+i}")
            o.append(f"v_lshlrev_b32 v{MU+2*i}, 16, v{T}")
            o.append(f"v_and_b32 v{MU+2*i+1}, 0xffff0000, v{T}")
        return o
    def partB(sH, sS):
        HO = 104
        for i in range(5):
            t = T + (i & 1) * 8
            e(f"v_lshlrev_b32 v{t}, 16, v{PD+2*i}")
            e(f"v_and_b32 v{t+1}, 0xffff0000, v{PD+2*i}")
            e(f"v_lshlrev_b32 v{t+2}, 16, v{PD+2*i+1}")
            e(f"v_and_b32 v{t+3}, 0xffff0000, v{PD+2*i+1}")
            for p in (0, 2):
                e(f"v_pk_fma_f32 v[{t+p}:{t+p+1}], v[{t+p}:{t+p+1}], v[{NS}:{NS+1}], v[{MU+4*i+p}:{MU+4*i+p+1}]")
            e(f"v_cvt_pk_bf16_f32 v{t+4}, v{t}, v{t+1}")
            e(f"v_cvt_pk_bf16_f32 v{t+5}, v{t+2}, v{t+3}")
            e(f"v_lshlrev_b32 v{t}, 16, v{t+4}")
            e(f"v_and_b32 v{t+1}, 0xffff0000, v{t+4}")
            e(f"v_lshlrev_b32 v{t+2}, 16, v{t+5}")
            e(f"v_and_b32 v{t+3}, 0xffff0000, v{t+5}")
            for p in (0, 2):
                e(f"v_pk_add_f32 v[{t+p}:{t+p+1}], v[{t+p}:{t+p+1}], v[{XU+4*i+p}:{XU+4*i+p+1}]")
            o = 32 + 2*i
            e(f"v_cvt_pk_bf16_f32 v{o}, v{t}, v{t+1}")
            e(f"v_cvt_pk_bf16_f32 v{o+1}, v{t+2}, v{t+3}")
            e(f"buffer_store_dwordx2 v[{o}:{o+1}], v7, s[48:51], s{sH} offen offset:{i*512}")
        e("v_mov_b32 v44, 0")
        e("v_mov_b32 v45, 0")
        e("s_mov_b32 s23, 0x3f803f80")
        for i in range(10):
            e(f"v_dot2_f32_bf16 v44, v{32+i}, s23, v44")
            e(f"v_dot2_f32_bf16 v45, v{32+i}, v{32+i}, v45")
        for sw in ("v_permlane16_swap_b32", "v_permlane32_swap_b32"):
            e("s_nop 3")
            e("v_mov_b32 v46, v44")
            e("v_mov_b32 v47, v45")
            e("s_nop 1")
            e(f"{sw} v44, v46")
            e(f"{sw} v45, v47")
            e("s_nop 1")
            e("v_add_f32 v44, v44, v46")
            e("v_add_f32 v45, v45, v47")
        e("v_lshlrev_b32 v10, 3, v2")
        e("s_mov_b64 exec, 0xffff")
        e(f"buffer_store_dwordx2 v[44:45], v10, s[52:55], s{sS} offen")
        e("s_mov_b64 exec, -1")
    def check():
        e(f"v_max3_u32 v{T}, v{PD}, v{PD+1}, v{PD+2}")
        e(f"v_max3_u32 v{T+1}, v{PD+3}, v{PD+4}, v{PD+5}")
        e(f"v_max3_u32 v{T+2}, v{PD+6}, v{PD+7}, v{PD+8}")
        e(f"v_max3_u32 v{T}, v{T}, v{T+1}, v{PD+9}")
        e(f"v_max_u32 v{T}, v{T}, v{T+2}")
        e(f"v_cmp_eq_u32 vcc, -1, v{T}")
    def atomic(dst, soff):
        e(f"v_mov_b32 v{dst}, 1")
        e("s_mov_b64 exec, 1")
        e(f"buffer_atomic_add v{dst}, v8, s[96:99], s{soff} offen offset:3072 sc0")
        e("s_mov_b64 exec, -1")
    for l in partX(): e(l)
    e("s_lshl_b32 s22, s17, 31")
    e("s_xor_b32 s22, s22, 0xbf800000")
    e(f"v_mov_b32 v{NS}, s22")
    e(f"v_mov_b32 v{NS+1}, s22")
    for i in range(5):
        for r in range(4): e(f"v_accvgpr_read_b32 v{MU+4*i+r}, a{AC(1,i,3)+r}")
    e("s_waitcnt lgkmcnt(0)")
    for i in range(5):
        for p in (0, 2):
            e(f"v_pk_add_f32 v[{RO(i)+p}:{RO(i)+p+1}], v[{RO(i)+p}:{RO(i)+p+1}], v[{RO(5+i)+p}:{RO(5+i)+p+1}]")
            e(f"v_pk_add_f32 v[{MU+4*i+p}:{MU+4*i+p+1}], v[{MU+4*i+p}:{MU+4*i+p+1}], v[{RO(10+i)+p}:{RO(10+i)+p+1}]")
        for p in (0, 2):
            e(f"v_pk_add_f32 v[{MU+4*i+p}:{MU+4*i+p+1}], v[{MU+4*i+p}:{MU+4*i+p+1}], v[{RO(i)+p}:{RO(i)+p+1}]")
        e(f"v_cvt_pk_bf16_f32 v{OP+2*i}, v{MU+4*i}, v{MU+4*i+1}")
        e(f"v_cvt_pk_bf16_f32 v{OP+2*i+1}, v{MU+4*i+2}, v{MU+4*i+3}")
    for l in partM(OP): e(l)
    if os.environ.get("K2T") == "1": stamp(2)
    e("s_cmp_lg_u32 s95, 0")
    e("s_cbranch_scc1 k2_w0")
    e("s_waitcnt vmcnt(8)")
    e("s_branch k2_w1")
    lab("k2_w0")
    e("s_waitcnt vmcnt(0)")
    lab("k2_w1")
    if os.environ.get("K2T") == "1": stamp(4)
    atomic(170, 63)
    check()
    if FORCE:
        e(f"s_cmp_eq_u32 s17, {FORCE[0]}" if FORCE[0] in "01" else "s_cmp_eq_u32 s17, s17")
        e("s_cbranch_scc1 k2_giveup")
    e("s_cbranch_vccnz k2_retry")
    lab("k2_own")
    if os.environ.get("K2T") == "2": stamp(2)
    partB(62, 45)
    if os.environ.get("K2T") == "2": stamp(4)
    e("s_waitcnt vmcnt(6)")
    lab("k2_after")
    e("v_readfirstlane_b32 s22, v170")
    e("s_cmp_eq_u32 s22, 0")
    e("s_cbranch_scc1 k2_help")
    lab("k2_fin")
    stamp(5)
    if DIAG:
        e("s_mov_b32 s76, s69")
        e("s_mov_b32 s77, 0")
    stamp_dump(1, 6)
    lab("k2_end")
    e("s_endpgm")
    lab("k2_retry")
    e("s_sub_u32 s69, s69, 1")
    e("s_cbranch_scc1 k2_giveup")
    for l in poll(): e(l)
    e("s_waitcnt vmcnt(0)")
    check()
    e("s_cbranch_vccnz k2_retry")
    e("s_branch k2_own")
    lab("k2_giveup")
    e(f"s_add_u32 s22, s68, {SZ_XB//2}")
    for q in range(3):
        e(f"buffer_store_dwordx4 {vr(OP+4*q)}, v8, s[96:99], s22 offen offset:{q*1024}")
    e("s_waitcnt vmcnt(0)")
    atomic(171, 68)
    e("s_waitcnt vmcnt(0)")
    e("v_readfirstlane_b32 s22, v171")
    e("s_cmp_lg_u32 s22, 0")
    e("s_cbranch_scc1 k2_after")
    e("s_mov_b32 s69, 8")
    lab("k2_g2")
    for l in poll(): e(l)
    e("s_waitcnt vmcnt(0)")
    check()
    e("s_cbranch_vccz k2_own")
    e("s_sub_u32 s69, s69, 1")
    e("s_cbranch_scc0 k2_g2")
    e("s_branch k2_own")
    lab("k2_help")
    e("s_xor_b32 s21, s21, 4")
    for l in xaddr(21, 44, 62, 45): e(l)
    e(f"s_add_u32 s68, s63, {SZ_XB//2}")
    for l in poll(): e(l)
    for i in range(5):
        e(f"buffer_load_dwordx2 a[{240+2*i}:{241+2*i}], v11, s[24:27], s44 offen offset:{i*32}")
    e("s_waitcnt vmcnt(0)")
    for l in partX() + partM(PP): e(l)
    partB(62, 45)
    e("s_branch k2_fin")

def gen_k4():
    kernel_begin("k4_kernel")
    e("s_cmp_ge_u32 s2, 256")
    e("s_cbranch_scc1 k4_end")
    stamp(0)
    e("s_load_dwordx2 s[4:5], s[0:1], 72")
    e("s_load_dwordx2 s[6:7], s[0:1], 88")
    if CTS:
        for l in code_touch("k4_kernel", "code_end", 26, "v27", back=True): e(l)
    lane_setup()
    if MAP34:
        e("s_bfe_u32 s19, s2, 0x20001")
        e("s_bfe_u32 s21, s2, 0x30003")
        e("s_lshl_b32 s19, s19, 3")
        e("s_add_u32 s19, s19, s21")
        e("s_and_b32 s20, s2, 1")
        e("s_lshl_b32 s20, s20, 2")
        e("s_lshr_b32 s21, s2, 6")
        e("s_add_u32 s20, s20, s21")
    else:
        e("s_and_b32 s19, s2, 7")
        e("s_lshr_b32 s20, s2, 3")
        e("s_lshr_b32 s21, s20, 3")
        e("s_lshl_b32 s19, s19, 2")
        e("s_add_u32 s19, s19, s21")
        e("s_and_b32 s20, s20, 7")
    e("v_lshlrev_b32 v8, 4, v1")
    e("s_mul_i32 s22, s19, 196608")
    e("v_add_u32 v4, s22, v8")
    for n in range(1, 4):
        e(f"v_add_u32 v{4+n}, {n*49152}, v4")
    e("s_mul_i32 s22, s20, 245760")
    e("v_add_u32 v12, s22, v8")
    for i in range(1, 5):
        e(f"v_add_u32 v{12+i}, {i*49152}, v12")
    e("s_mul_i32 s41, s16, 12")
    e("s_lshr_b32 s40, s2, 3")
    e("s_mul_i32 s44, s40, 43691")
    e("s_lshr_b32 s44, s44, 19")
    e("s_mul_i32 s44, s44, 12")
    e("s_sub_u32 s40, s40, s44")
    e("s_waitcnt lgkmcnt(0)")
    srd(28, 6, SZ_ACT, WS_ACT)
    srd(32, 6, SZ_WDN, WS_WDN)
    NSL, AH = 8, 7
    def slot(b, k):
        if b < 6: return vr(32 + b * 36 + k * 4)
        return ar(80 + (b - 6) * 36 + k * 4)
    vm = VM()
    def issue(t):
        o = ["s_add_u32 s44, s40, s41", "s_lshl_b32 s42, s44, 10", "s_add_u32 s40, s40, 1",
             "s_cmp_ge_u32 s40, 12", "s_cselect_b32 s40, 0, s40"]
        b = t % NSL
        for n in range(4):
            o.append(f"buffer_load_dwordx4 {slot(b,5+n)}, v{4+n}, s[28:31], s42 offen")
        for i in range(5):
            o.append(f"buffer_load_dwordx4 {slot(b,i)}, v{12+i}, s[32:35], s42 offen")
        vm.issue(("S", t), 9)
        return o
    for t in range(AH):
        for l in issue(t): e(l)
    stamp(1)
    srd(24, 4, 2621440)
    srd(48, 6, SZ_HP, WS_HP)
    for a in range(80):
        e(f"v_accvgpr_write_b32 a{a}, 0")
    e("v_lshrrev_b32 v18, 2, v1")
    e("v_and_b32 v19, 3, v1")
    e("s_lshl_b32 s22, s19, 2")
    e("s_add_u32 s22, s22, s16")
    e("s_mul_i32 s23, s22, 20480")
    e("s_mul_i32 s45, s20, 2560")
    e("s_add_u32 s45, s45, s23")
    e("v_lshlrev_b32 v20, 4, v18")
    e("v_lshl_add_u32 v20, v19, 8, v20")
    e("v_and_b32 v21, 1, v1")
    e("v_lshlrev_b32 v22, 4, v18")
    e("v_lshl_add_u32 v21, v21, 8, v22")
    e("s_mul_i32 s46, s20, 160")
    e("s_add_u32 s46, s46, s23")
    e("v_mul_u32_u24 v22, 1280, v18")
    e("v_lshl_add_u32 v22, v19, 4, v22")
    if os.environ.get("OT"):
        e("buffer_load_dword v26, v22, s[24:27], s46 offen")
        vm.issue("O", 1)
    e("s_mul_i32 s47, s16, 23040")
    e("v_mul_u32_u24 v23, 288, v3")
    e("v_lshl_add_u32 v23, v2, 4, v23")
    e("v_add_u32 v23, s47, v23")
    e("s_mul_i32 s47, s16, 5760")
    e("v_mul_u32_u24 v24, 576, v19")
    e("v_lshl_add_u32 v24, v18, 4, v24")
    e("v_add_u32 v24, s47, v24")
    e("v_add_u32 v25, 46080, v24")
    HR = 152
    for t in range(12):
        b = t % NSL
        e(f"s_waitcnt vmcnt({vm.younger([('S', t)])})")
        ld = []
        if t + AH < 12:
            ld = issue(t + AH)
        elif t == 12 - AH:
            ld = [f"buffer_load_dwordx4 {ar(HR)}, v20, s[48:51], s45 offen",
                  f"buffer_load_dwordx4 {ar(HR+4)}, v20, s[48:51], s45 offen offset:1024",
                  f"buffer_load_dwordx4 {ar(HR+8)}, v21, s[48:51], s45 offen offset:2048"]
            vm.issue("H", 3)
        grp = []; groups = []
        for l in ld:
            grp.append(l)
            if l.startswith("buffer"):
                groups.append(grp); grp = []
        k = 0
        for i in range(5):
            for n in range(4):
                mfma(ar((i*4+n)*4), slot(b, i), slot(b, 5+n))
                k += 1
                if k % 2 == 0 and groups:
                    for l in groups.pop(0): e(l)
        assert not groups
    stamp(2)
    stamp(3)
    e("s_nop 7")
    e("s_nop 7")
    for n in range(4):
        for i in range(5):
            e(f"ds_write_b128 v23, {ar((i*4+n)*4)} offset:{(n*5+i)*1152}")
    XR = 128
    e("s_waitcnt vmcnt(0)")
    for r in range(12):
        e(f"v_accvgpr_read_b32 v{XR+r}, a{HR+r}")
    e("s_waitcnt lgkmcnt(0)")
    e("s_barrier")
    def S(src, j, hf): return 32 + ((j * 4 + src) * 2 + hf) * 4
    for j in range(3):
        for src in range(4):
            for hf in range(2):
                e(f"ds_read_b128 {vr(S(src,j,hf))}, v{24 + (src>>1)} offset:{(src&1)*23040 + j*2304 + hf*288}")
    stamp(4)
    for j in range(3):
        e(f"s_waitcnt lgkmcnt({min(15,(2-j)*8)})")
        T = 144 + j * 16
        for hf in range(2):
            for p in (0, 2):
                e(f"v_pk_add_f32 v[{T+hf*4+p}:{T+hf*4+p+1}], v[{S(0,j,hf)+p}:{S(0,j,hf)+p+1}], v[{S(1,j,hf)+p}:{S(1,j,hf)+p+1}]")
                e(f"v_pk_add_f32 v[{T+8+hf*4+p}:{T+8+hf*4+p+1}], v[{S(2,j,hf)+p}:{S(2,j,hf)+p+1}], v[{S(3,j,hf)+p}:{S(3,j,hf)+p+1}]")
        for p in range(0, 8, 2):
            e(f"v_pk_add_f32 v[{T+p}:{T+p+1}], v[{T+p}:{T+p+1}], v[{T+8+p}:{T+8+p+1}]")
        for p in range(4):
            e(f"v_cvt_pk_bf16_f32 v{T+8+p}, v{T+2*p}, v{T+2*p+1}")
        for p in range(4):
            e(f"v_lshlrev_b32 v{T+2*p}, 16, v{T+8+p}")
            e(f"v_and_b32 v{T+2*p+1}, 0xffff0000, v{T+8+p}")
        for p in range(4):
            e(f"v_lshlrev_b32 v{T+8+2*p}, 16, v{XR+4*j+p}")
            e(f"v_and_b32 v{T+8+2*p+1}, 0xffff0000, v{XR+4*j+p}")
        for p in range(0, 8, 2):
            e(f"v_pk_add_f32 v[{T+p}:{T+p+1}], v[{T+p}:{T+p+1}], v[{T+8+p}:{T+8+p+1}]")
        O = 192 + 4 * j
        for p in range(4):
            e(f"v_cvt_pk_bf16_f32 v{O+p}, v{T+2*p}, v{T+2*p+1}")
        if j == 2:
            e("s_mov_b32 exec_lo, 0x33333333")
            e("s_mov_b32 exec_hi, 0x33333333")
        e(f"buffer_store_dwordx4 {vr(O)}, v22, s[24:27], s46 offen offset:{j*64}")
    e("s_mov_b64 exec, -1")
    stamp(5)
    stamp_dump(3, 6)
    lab("k4_end")
    e("s_endpgm")

class VM:
    def __init__(self): self.q = []
    def issue(self, tag, n=1): self.q += [tag] * n
    def younger(self, tags):
        last = max(i for i, t in enumerate(self.q) if t in tags)
        return min(63, len(self.q) - 1 - last)

def gen_k3():
    kernel_begin("k3_kernel")
    e("s_cmp_ge_u32 s2, 256")
    e("s_cbranch_scc1 k3_end")
    stamp(0)
    e("s_load_dwordx2 s[6:7], s[0:1], 88")
    if FUSE34: e("s_load_dwordx2 s[4:5], s[0:1], 72")
    if CTS:
        for l in code_touch("k3_kernel", "code_end" if FUSE34 else "k4_kernel", 14, "v22", back=True): e(l)
    lane_setup()
    if os.environ.get("MAP3", "1") == "1":
        e("s_and_b32 s19, s2, 1")
        e("s_bfe_u32 s21, s2, 0x30003")
        e("s_lshl_b32 s19, s19, 3")
        e("s_add_u32 s19, s19, s21")
        e("s_bfe_u32 s20, s2, 0x20001")
        e("s_lshl_b32 s20, s20, 2")
        e("s_lshr_b32 s21, s2, 6")
        e("s_add_u32 s20, s20, s21")
    elif MAP34:
        e("s_bfe_u32 s19, s2, 0x20001")
        e("s_bfe_u32 s21, s2, 0x20003")
        e("s_lshl_b32 s19, s19, 2")
        e("s_add_u32 s19, s19, s21")
        e("s_and_b32 s20, s2, 1")
        e("s_lshl_b32 s20, s20, 3")
        e("s_lshr_b32 s21, s2, 5")
        e("s_add_u32 s20, s20, s21")
    else:
        e("s_and_b32 s19, s2, 7")
        e("s_lshr_b32 s20, s2, 3")
        e("s_and_b32 s21, s20, 1")
        e("s_lshl_b32 s19, s19, 1")
        e("s_add_u32 s19, s19, s21")
        e("s_lshr_b32 s20, s20, 1")
    e(f"s_mov_b32 s17, {INV640}")
    e(f"s_mov_b32 s18, {EPS}")
    e("s_mov_b32 s62, 0x3f803f80")
    e("v_lshlrev_b32 v8, 4, v1")
    if FUSE34:
        e("s_lshr_b32 s86, s20, 3")
        e("s_lshl_b32 s87, s19, 1")
        e("s_add_u32 s86, s86, s87")
        e("s_and_b32 s87, s20, 7")
        lab("k3_body")
    e("s_mul_i32 s21, s20, 12")
    e("s_mul_i32 s23, s16, 3")
    e("s_add_u32 s21, s21, s23")
    e("s_mul_i32 s22, s21, 20480")
    e("v_add_u32 v4, s22, v8")
    e("v_add_u32 v5, 20480, v4")
    e("v_add_u32 v6, 40960, v4")
    e("s_mul_i32 s22, s19, 163840")
    e("s_mul_i32 s23, s16, 40960")
    e("s_add_u32 s22, s22, s23")
    e("v_lshlrev_b32 v9, 3, v1")
    e("s_lshl_b32 s48, s19, 10")
    e("s_waitcnt lgkmcnt(0)")
    srd(24, 6, SZ_HP, WS_HP)
    srd(32, 6, SZ_WGU, WS_WGU)
    srd(28, 6, SZ_HSTAT, WS_HSTAT)
    vm = VM()
    D = 6
    WB = 88
    ACC3 = 160
    def Wf(kk, i): return WB + ((kk % D) * 3 + i) * 4
    def Hf(kk, n): return ((kk & 1) * 8 + n) * 4
    HGS = int(os.environ.get("HGS", "2")); LW = int(os.environ.get("LW", "3")); LH = int(os.environ.get("LH", "3"))
    HG = {chr(65 + g): (g * HGS, min(20, g * HGS + HGS)) for g in range((19 + HGS) // HGS)}
    def hdma_l(g, t):
        o = []
        k0, k1 = HG[g]
        for k in range(k0, k1, 4):
            base = t * 20480 + k * 1024
            o.append(f"s_add_u32 m0, s23, {base}")
            o.append(f"s_add_u32 s44, s22, {base}")
            for u in range(min(4, k1 - k)):
                o.append(f"buffer_load_dwordx4 v8, s[24:27], s44 offen offset:{u*1024} lds")
        vm.issue(("H", g), k1 - k0)
        return o
    def wload(kk):
        out = []
        if kk >= 4:
            out.append(f"s_mov_b32 s{45+(kk&1)}, {kk*1024}")
        for i in range(3):
            if kk < 4:
                out.append(f"buffer_load_dwordx4 {vr(Wf(kk,i))}, v{4+i}, s[32:35], 0 offen offset:{kk*1024}")
            else:
                out.append(f"buffer_load_dwordx4 {vr(Wf(kk,i))}, v{4+i}, s[32:35], s{45+(kk&1)} offen")
        vm.issue(("W", kk), 3)
        return out
    def sload(q):
        o = []
        for x in range(4 * q, 4 * q + 4):
            j, eb = x >> 3, x & 7
            o.append(f"s_add_u32 s47, s48, {eb*16384 + j*512}")
            o.append(f"buffer_load_dwordx2 v[{40+(j*8+eb)*2}:{41+(j*8+eb)*2}], v9, s[28:31], s47 offen")
        vm.issue("S", 4)
        return o
    def tload():
        vm.issue("P", 1)
        return ["buffer_load_dword v22, v23, s[52:55], s50 offen", "s_add_u32 s50, s50, 4096"]
    items = []
    for g, (k0, k1) in HG.items():
        for t in range(2):
            items.append((k0 - 1 - LH + (t if HGS > 1 else 0), k0 - 1, f"H{g}{t}"))
    for kk in range(20):
        items.append((kk - LW, kk - 0.5, f"W{kk}"))
    for q in range(4): items.append((9 + q, 30, f"S{q}"))
    last = max(it[0] for it in items)
    WPK = [int(x) for x in os.environ.get("WPK", "17,17,17,17,18,18,18,18,19,19,19,19").split(",")]
    def WD(j, i):
        idx = (j >> 2) * 20 + i * 4 + (j & 3)
        return 64 + idx * 4 if idx < 48 else (idx - 48) * 4
    def wdload(x):
        g, i = x // 5, x % 5
        o = [f"s_add_u32 s49, s{88+g}, s{91+i}"]
        for t in range(4):
            o.append(f"buffer_load_dwordx4 {ar(WD(4*g+t,i))}, v8, s[52:55], s49 offen offset:{t*1024}")
        vm.issue(("D", g), 4)
        return o
    if FUSE34:
        for x in range(12): items.append((WPK[x], 40 + x, f"D{x}"))
    else:
        for q in range(0 if os.environ.get("NOT3", "0") == "1" else (1 if MAP34 else 4)): items.append((min(19, max(15, last + 1) + q), 40, "T"))
    items.sort(key=lambda x: (max(x[0], -1), x[1]))
    sched = {}
    for it, dl, nm in items: sched.setdefault(max(it, -1), []).append(nm)
    BAR = {k0 - 1: g for g, (k0, k1) in HG.items() if k0 > 0}
    def do_items(lst_):
        lst = []
        for it in lst_:
            if it[0] == "W": lst += wload(int(it[1:]))
            elif it[0] == "H": lst += hdma_l(it[1], int(it[2]))
            elif it[0] == "S": lst += sload(int(it[1]))
            elif it[0] == "D": lst += wdload(int(it[1:]))
            else: lst += tload()
        return lst
    for l in do_items(sched[-1]): e(l)
    srd(36, 6, SZ_ACT, WS_ACT)
    srd(52, 6, SZ_WDN, WS_WDN)
    e("s_lshr_b32 s50, s2, 3")
    e("s_lshl_b32 s50, s50, 2")
    e("s_add_u32 s50, s50, s16")
    if FUSE34:
        e("s_lshr_b32 s50, s2, 3")
        e("s_mul_i32 s51, s50, 171")
        e("s_lshr_b32 s51, s51, 9")
        e("s_mul_i32 s51, s51, 3")
        e("s_sub_u32 s50, s50, s51")
        e("s_mul_i32 s51, s16, 12288")
        for g in range(3):
            e(f"s_lshl_b32 s{88+g}, s50, 12")
            e(f"s_add_u32 s{88+g}, s{88+g}, s51")
            e("s_add_u32 s50, s50, 1")
            e("s_cmp_ge_u32 s50, 3")
            e("s_cselect_b32 s50, 0, s50")
        e("s_mul_i32 s91, s87, 245760")
        for i in range(1, 5):
            e(f"s_add_u32 s{91+i}, s91, {i*49152}")
        srd(96, 6, SZ_XB, WS_XB)
    elif MAP34:
        e("s_mul_i32 s50, s50, 7680")
        e("s_and_b32 s51, s2, 1")
        if os.environ.get("TX3"): e("s_xor_b32 s51, s51, 1")
        e("s_mul_i32 s51, s51, 983040")
        e("s_add_u32 s50, s50, s51")
        e("v_lshlrev_b32 v23, 7, v1")
    else:
        e("s_mul_i32 s50, s50, 15360")
        e("v_lshlrev_b32 v23, 6, v1")
    for a in range(96):
        e(f"v_mov_b32 v{ACC3+a}, 0")
    for r in range(24, 36):
        e(f"v_mov_b32 v{r}, 0")
    for r in range(16, 20):
        e(f"v_mov_b32 v{r}, 0x3f803f80")
    e("v_add_u32 v10, 65536, v8")
    e("v_add_u32 v11, 131072, v8")
    e("v_lshlrev_b32 v12, 2, v2")
    e("v_lshlrev_b32 v13, 4, v3")
    def hread(kk):
        o = []
        for n in range(8):
            off = (n * 20 + kk) * 1024
            base = 8 if off < 65536 else (10 if off < 131072 else 11)
            o.append(f"ds_read_b128 {ar(Hf(kk,n))}, v{base} offset:{off % 65536}")
        return o
    def dots(kk):
        return [f"v_dot2_f32_bf16 v{16+i}, v{Wf(kk,i)+r}, s62, v{16+i}" for r in range(4) for i in range(3)]
    def stats_code():
        sv = L[:]
        del L[:]
        for j in range(2):
            b = 40 + j * 16
            for k in (2, 4, 6, 8, 10, 12, 14):
                e(f"v_add_f32 v{b}, v{b}, v{b+k}")
                e(f"v_add_f32 v{b+1}, v{b+1}, v{b+k+1}")
            ln_stats(b, b+1, 36+2*j, 37+2*j, 20+j)
        for t in range(8):
            e(f"ds_bpermute_b32 v{72+2*t}, v12, v{36+2*(t>>2)} offset:{(t&3)*64}")
            e(f"ds_bpermute_b32 v{73+2*t}, v12, v{37+2*(t>>2)} offset:{(t&3)*64}")
            e(f"ds_bpermute_b32 v{64+t}, v12, v{20+(t>>2)} offset:{(t&3)*64}")
        o = [x.strip() for x in L]
        L[:] = sv
        return o
    stamp(1)
    e(f"s_waitcnt vmcnt({vm.younger([('H','A')])})")
    stamp(2)
    e("s_barrier")
    stamp(3)
    for l in hread(0): e(l)
    for kk in range(20):
        need = [("W", kk)]
        if kk in BAR: need.append(("H", BAR[kk]))
        if kk == 15: need.append("S")
        e(f"s_waitcnt vmcnt({vm.younger(need)}) lgkmcnt(0)")
        if kk in BAR and "r" not in os.environ.get("K3X", ""): e("s_barrier")
        slots = [[] for _ in range(27)]
        if kk + 1 < 20:
            for j, l in enumerate(hread(kk + 1)):
                slots[(j * int(os.environ.get("HRS", "2"))) // 2].append(l)
        lst = do_items(sched.get(kk, []))
        groups = []; grp = []
        for l in lst:
            if grp and any(x.startswith("buffer") for x in grp) and not l.startswith("s_add_u32 s50"):
                groups.append(grp); grp = []
            grp.append(l)
        if grp: groups.append(grp)
        for g, gl in enumerate(groups):
            slots[1 + (g * 25) // max(len(groups), 8)] += gl
        if kk == int(os.environ.get("CT3", "-1")) and CT:
            slots[26] += code_touch("k4_kernel", "code_end", 14, "v22")
            vm.issue("CT", 1)
        if kk == 15: sc = stats_code()
        if kk in (15, 16):
            part = sc[:54] if kk == 15 else sc[54:]
            for j, l in enumerate(part):
                slots[(j * 27) // len(part)].append(l)
        if kk == 19:
            for j, l in enumerate(["v_mul_u32_u24 v9, 49152, v3", "v_lshl_add_u32 v9, v2, 4, v9", "s_mul_i32 s22, s19, 393216", "s_lshl_b32 s23, s21, 8",
                                   "s_add_u32 s22, s22, s23", "v_mov_b32 v36, 0xbdd2d3e8", "v_mov_b32 v37, 0xc0135761"]):
                slots[j].append(l)
        K3X = os.environ.get("K3X", "")
        if "d" in K3X: slots = [[l for l in sl if not l.startswith("ds_read")] for sl in slots]
        if "b" in K3X: slots = [[l for l in sl if not l.startswith("buffer")] for sl in slots]
        if "s" in K3X: slots = [[l for l in sl if not l.startswith("s_")] for sl in slots]
        if "v" in K3X: slots = [[l for l in sl if not (l.startswith("v_") or l.startswith("ds_bp"))] for sl in slots]
        k = 0
        for i in range(3):
            mfma(vr(24+4*i), vr(Wf(kk,i)), vr(16))
            for l in slots[k]: e(l)
            k += 1
        for n in range(8):
            for i in range(3):
                mfma(vr(ACC3+(i*8+n)*4), vr(Wf(kk,i)), ar(Hf(kk,n)))
                for l in slots[k]: e(l)
                k += 1
    stamp(4)
    def epi(i):
        o = []
        for hi, n0 in enumerate((0, 4)):
            TB = 40 + hi * 12
            O = TB + 8
            lists = []
            for g in range(4):
                n = n0 + g
                A = ACC3 + (i*8+n)*4
                S = 72 + 2*n
                SD = 64 + (n & ~1); sd = n & 1
                WS = 24 + i*4
                t2 = TB + g*2
                l = []
                for p in (0, 2):
                    l.append(f"v_pk_fma_f32 v[{A+p}:{A+p+1}], v[{S}:{S+1}], v[{WS+p}:{WS+p+1}], v[{A+p}:{A+p+1}] op_sel:[0,0,0] op_sel_hi:[0,1,1] neg_lo:[1,0,0] neg_hi:[1,0,0]")
                l.append(f"v_pk_mul_f32 v[{A}:{A+1}], v[{A}:{A+1}], v[{S}:{S+1}] op_sel:[0,1] op_sel_hi:[1,1]")
                l.append(f"v_pk_mul_f32 v[{t2}:{t2+1}], v[{A}:{A+1}], v[{A}:{A+1}]")
                l.append(f"v_pk_fma_f32 v[{t2}:{t2+1}], v[{t2}:{t2+1}], v[36:37], v[36:37] op_sel:[0,0,1] op_sel_hi:[1,0,1]")
                l.append(f"v_pk_mul_f32 v[{t2}:{t2+1}], v[{t2}:{t2+1}], v[{A}:{A+1}]")
                l.append(f"v_exp_f32 v{t2}, v{t2}")
                l.append(f"v_exp_f32 v{t2+1}, v{t2+1}")
                l.append(f"v_pk_mul_f32 v[{A}:{A+1}], v[{A}:{A+1}], v[{A+2}:{A+3}]")
                l.append(f"v_pk_fma_f32 v[{t2}:{t2+1}], v[{t2}:{t2+1}], v[{SD}:{SD+1}], v[{SD}:{SD+1}] op_sel:[0,{sd},{sd}] op_sel_hi:[1,{sd},{sd}]")
                l.append(f"v_rcp_f32 v{t2}, v{t2}")
                l.append(f"v_rcp_f32 v{t2+1}, v{t2+1}")
                l.append(f"v_pk_mul_f32 v[{t2}:{t2+1}], v[{t2}:{t2+1}], v[{A}:{A+1}]")
                l.append(f"v_cvt_pk_bf16_f32 v{O+g}, v{t2}, v{t2+1}")
                lists.append(l)
            for k in range(len(lists[0])):
                for g in range(4): o.append(lists[g][k])
            o.append("s_nop 1")
            o.append(f"v_permlane16_swap_b32 v{O}, v{O+1}")
            o.append(f"v_permlane16_swap_b32 v{O+2}, v{O+3}")
            o.append("s_nop 1")
            o.append(f"v_permlane32_swap_b32 v{O}, v{O+2}")
            o.append(f"v_permlane32_swap_b32 v{O+1}, v{O+3}")
            o.append(f"s_add_u32 s44, s22, {n0*49152 + i*256}")
            o.append("s_nop 1")
            o.append(f"buffer_store_dwordx4 {vr(O)}, v9, s[36:39], s44 offen")
        return o
    if FUSE34: e("s_barrier")
    e("s_nop 7")
    stamp(5)
    for i in range(3):
        for l in epi(i): e(l)
    stamp(6)
    if not FUSE34:
        stamp_dump(2, 7)
        lab("k3_end")
        e("s_endpgm")
        return
    NR4 = int(os.environ.get("NR4", "64"))
    vm = VM()
    e("s_lshl_b32 s56, s19, 12")
    e("s_lshl_b32 s22, s20, 4")
    e("s_lshl_b32 s23, s16, 2")
    e("s_add_u32 s22, s22, s23")
    e("s_add_u32 s22, s22, s56")
    e("v_mov_b32 v20, 0")
    e("s_lshl_b32 s23, s16, 6")
    e("s_add_u32 s56, s56, s23")
    e("v_lshlrev_b32 v17, 2, v1")
    e("s_mul_i32 s23, s86, 196608")
    e("v_add_u32 v4, s23, v8")
    for n in range(1, 4):
        e(f"v_add_u32 v{4+n}, {n*49152}, v4")
    e("s_waitcnt vmcnt(0)")
    e("s_mov_b64 exec, 1")
    e("buffer_store_dword v20, v20, s[96:99], s22 offen offset:3328")
    e("s_mov_b64 exec, -1")
    if DIAG:
        stamp_dump(2, 7)
        e("s_mov_b64 exec, -1")
        e("v_and_b32 v2, 15, v1")
        e("v_lshrrev_b32 v3, 4, v1")
        stamp(0)
    def poll4():
        return ["s_mov_b64 exec, 0xffff", "buffer_load_dword v26, v17, s[96:99], s56 offen offset:3328 sc1", "s_mov_b64 exec, -1"]
    for x in range(12, 15):
        for l in wdload(x): e(l)
    srd(24, 4, 2621440)
    srd(28, 6, SZ_HP, WS_HP)
    e("v_lshrrev_b32 v18, 2, v1")
    e("v_and_b32 v19, 3, v1")
    e("s_lshl_b32 s22, s86, 2")
    e("s_add_u32 s22, s22, s16")
    e("s_mul_i32 s23, s22, 20480")
    e("s_mul_i32 s45, s87, 2560")
    e("s_add_u32 s45, s45, s23")
    e("v_lshlrev_b32 v20, 4, v18")
    e("v_lshl_add_u32 v20, v19, 8, v20")
    e("v_and_b32 v21, 1, v1")
    e("v_lshlrev_b32 v22, 4, v18")
    e("v_lshl_add_u32 v21, v21, 8, v22")
    HR = 48
    e(f"buffer_load_dwordx4 {ar(HR)}, v20, s[28:31], s45 offen")
    e(f"buffer_load_dwordx4 {ar(HR+4)}, v20, s[28:31], s45 offen offset:1024")
    e(f"buffer_load_dwordx4 {ar(HR+8)}, v21, s[28:31], s45 offen offset:2048")
    for l in poll4(): e(l)
    e("s_mul_i32 s46, s87, 160")
    e("s_add_u32 s46, s46, s23")
    e("v_mul_u32_u24 v22, 1280, v18")
    e("v_lshl_add_u32 v22, v19, 4, v22")
    e("s_mul_i32 s47, s16, 23040")
    e("v_mul_u32_u24 v23, 288, v3")
    e("v_lshl_add_u32 v23, v2, 4, v23")
    e("v_add_u32 v23, s47, v23")
    e("s_mul_i32 s47, s16, 5760")
    e("v_mul_u32_u24 v24, 576, v19")
    e("v_lshl_add_u32 v24, v18, 4, v24")
    e("v_add_u32 v24, s47, v24")
    e("v_add_u32 v25, 46080, v24")
    e("s_lshl_b32 s47, s16, 2")
    e(f"s_add_u32 s47, s47, 94208")
    e("v_mov_b32 v27, s47")
    e("v_mov_b32 v28, 94208")
    e("v_mov_b32 v29, 0")
    AC4 = 176
    for a in range(80):
        e(f"v_mov_b32 v{AC4+a}, 0")
    e(f"s_mov_b32 s57, {NR4}")
    if os.environ.get("FORCE4"):
        e("s_cmp_eq_u32 s58, 12345")
        e("s_cbranch_scc1 k4_nf")
        e("s_mov_b32 s58, 12345")
        e("s_mov_b32 s57, 0")
        e(f"s_mov_b32 vcc_lo, {1 << int(os.environ['FORCE4'])}")
        e("s_waitcnt vmcnt(0)")
        e("s_branch k4_miss")
        lab("k4_nf")
    e("s_waitcnt vmcnt(0)")
    e("s_mov_b64 exec, 0xffff")
    e("v_cmp_ne_u32 vcc, 0, v26")
    e("s_mov_b64 exec, -1")
    e("s_cbranch_vccnz k4_miss")
    lab("k4_go")
    stamp(1)
    def ACT(j, n): return 32 + ((j % 9) * 4 + n) * 4
    def aload(j):
        vm.issue(("S", j), 4)
        return [f"buffer_load_dwordx4 {vr(ACT(j,n))}, v{4+n}, s[36:39], s{88+(j>>2)} offen offset:{(j&3)*1024} sc1" for n in range(4)]
    for j in range(9):
        for l in aload(j): e(l)
    for j in range(12):
        e(f"s_waitcnt vmcnt({vm.younger([('S', j)])})")
        for i in range(5):
            for n in range(4):
                mfma(vr(AC4+(i*4+n)*4), ar(WD(j,i)), vr(ACT(j,n)))
        if j + 9 < 12:
            for l in aload(j + 9): e(l)
    stamp(2)
    stamp(3)
    e("s_nop 7")
    e("s_nop 7")
    for n in range(4):
        for i in range(5):
            e(f"ds_write_b128 v23, {vr(AC4+(i*4+n)*4)} offset:{(n*5+i)*1152}")
    lab("k4_stat")
    e("ds_write_b32 v27, v29")
    XR = 128
    for r in range(12):
        e(f"v_accvgpr_read_b32 v{XR+r}, a{HR+r}")
    e("s_waitcnt lgkmcnt(0)")
    e("s_barrier")
    e("ds_read_b128 v[140:143], v28")
    def S(src, j, hf): return 32 + ((j * 4 + src) * 2 + hf) * 4
    for j in range(3):
        for src in range(4):
            for hf in range(2):
                e(f"ds_read_b128 {vr(S(src,j,hf))}, v{24 + (src>>1)} offset:{(src&1)*23040 + j*2304 + hf*288}")
    stamp(4)
    e("s_waitcnt lgkmcnt(15)")
    e("v_max3_u32 v140, v140, v141, v142")
    e("v_max_u32 v140, v140, v143")
    e("s_nop 0")
    e("v_readfirstlane_b32 s22, v140")
    e("s_cmp_lg_u32 s22, 0")
    e("s_cbranch_scc1 k4_help")
    for j in range(3):
        e(f"s_waitcnt lgkmcnt({min(15,(2-j)*8)})")
        T = 144 + j * 16
        for hf in range(2):
            for p in (0, 2):
                e(f"v_pk_add_f32 v[{T+hf*4+p}:{T+hf*4+p+1}], v[{S(0,j,hf)+p}:{S(0,j,hf)+p+1}], v[{S(1,j,hf)+p}:{S(1,j,hf)+p+1}]")
                e(f"v_pk_add_f32 v[{T+8+hf*4+p}:{T+8+hf*4+p+1}], v[{S(2,j,hf)+p}:{S(2,j,hf)+p+1}], v[{S(3,j,hf)+p}:{S(3,j,hf)+p+1}]")
        for p in range(0, 8, 2):
            e(f"v_pk_add_f32 v[{T+p}:{T+p+1}], v[{T+p}:{T+p+1}], v[{T+8+p}:{T+8+p+1}]")
        for p in range(4):
            e(f"v_cvt_pk_bf16_f32 v{T+8+p}, v{T+2*p}, v{T+2*p+1}")
        for p in range(4):
            e(f"v_lshlrev_b32 v{T+2*p}, 16, v{T+8+p}")
            e(f"v_and_b32 v{T+2*p+1}, 0xffff0000, v{T+8+p}")
        for p in range(4):
            e(f"v_lshlrev_b32 v{T+8+2*p}, 16, v{XR+4*j+p}")
            e(f"v_and_b32 v{T+8+2*p+1}, 0xffff0000, v{XR+4*j+p}")
        for p in range(0, 8, 2):
            e(f"v_pk_add_f32 v[{T+p}:{T+p+1}], v[{T+p}:{T+p+1}], v[{T+8+p}:{T+8+p+1}]")
        O = 192 + 4 * j
        for p in range(4):
            e(f"v_cvt_pk_bf16_f32 v{O+p}, v{T+2*p}, v{T+2*p+1}")
        if j == 2:
            e("s_mov_b32 exec_lo, 0x33333333")
            e("s_mov_b32 exec_hi, 0x33333333")
        e(f"buffer_store_dwordx4 {vr(O)}, v22, s[24:27], s46 offen offset:{j*64}")
    e("s_mov_b64 exec, -1")
    stamp(5)
    if DIAG:
        e("s_mov_b32 s76, s57")
        e("s_mov_b32 s77, 0")
    stamp_dump(3, 6)
    lab("k3_end")
    e("s_endpgm")
    lab("k4_miss")
    e("s_sub_u32 s57, s57, 1")
    e("s_cbranch_scc1 k4_to")
    if int(os.environ.get("PSL", "0")): e(f"s_sleep {os.environ['PSL']}")
    for l in poll4(): e(l)
    e("s_waitcnt vmcnt(0)")
    e("s_mov_b64 exec, 0xffff")
    e("v_cmp_ne_u32 vcc, 0, v26")
    e("s_mov_b64 exec, -1")
    e("s_cbranch_vccnz k4_miss")
    e("s_branch k4_go")
    lab("k4_to")
    e("s_ff1_i32_b32 s22, vcc_lo")
    e("s_lshr_b32 s22, s22, 2")
    e("s_lshl_b32 s23, s16, 2")
    e("s_add_u32 s22, s22, s23")
    e("s_add_u32 s22, s22, 1")
    e("v_mov_b32 v29, s22")
    e("s_branch k4_stat")
    lab("k4_help")
    e("s_sub_u32 s20, s22, 1")
    e("s_waitcnt vmcnt(0) lgkmcnt(0)")
    e("s_barrier")
    e("s_branch k3_body")

def descriptor(name, vgpr, accum, sgpr=102):
    raw(f".amdhsa_kernel {name}")
    raw(f"  .amdhsa_next_free_vgpr {vgpr}")
    raw(f"  .amdhsa_next_free_sgpr {sgpr}")
    raw(f"  .amdhsa_accum_offset {accum}")
    raw("  .amdhsa_group_segment_fixed_size 0")
    raw("  .amdhsa_kernarg_size 96")
    raw("  .amdhsa_user_sgpr_count 2")
    raw("  .amdhsa_user_sgpr_kernarg_segment_ptr 1")
    raw("  .amdhsa_system_sgpr_workgroup_id_x 1")
    raw(".end_amdhsa_kernel")

def main():
    raw("; 4-kernel pipeline: K1 LN1+hidden DFT GEMM, K2 seq DFT GEMM + residual, K3 LN2+gate/up GEMM+GEGLU, K4 down GEMM + residual")
    raw("; @launch kernel=k1_kernel grid=(256,1,1) block=(256,1,1) lds=152832")
    raw(f"; @launch kernel=k2_kernel grid=(256,1,1) block=(256,1,1) lds={156032 if K2OLD else 159744}")
    raw("; @launch kernel=k3_kernel grid=(256,1,1) block=(256,1,1) lds=163840")
    if not FUSE34: raw("; @launch kernel=k4_kernel grid=(256,1,1) block=(256,1,1) lds=94208")
    raw('.amdgcn_target "amdgcn-amd-amdhsa--gfx950"')
    raw(".text")
    gen_k1(); (gen_k2_old if K2OLD else gen_k2)(); gen_k3()
    if not FUSE34: gen_k4()
    lab("code_end")
    raw('.section .rodata,"a"')
    raw(".p2align 6")
    descriptor("k1_kernel", 348, 160)
    raw(".p2align 6")
    descriptor("k2_kernel", 432 if K2OLD else 512, 256)
    raw(".p2align 6")
    descriptor("k3_kernel", 512 if FUSE34 else 320, 256)
    if not FUSE34:
        raw(".p2align 6")
        descriptor("k4_kernel", 424, 256)
    out = sys.argv[1] if len(sys.argv) > 1 else f"cdna_kernels/{NAME}.s"
    NOSC = os.environ.get("NOSC", "").split(",")
    LL = [ (l + " sc1") if ("buffer_store" in l and "s[64:67]" not in l and not any(x and x in l for x in NOSC)) else l for l in L]
    open(out, "w").write("\n".join(LL) + "\n")

main()
```

```python
import sys

L = []
def e(s): L.append("    " + s)
def lab(s): L.append(s + ":")
def raw(s): L.append(s)

NAME = "sequential_preLN__spectral_fnet__geglu_ffn__prompt"

import os
ES = 65536 + int(os.environ.get("EPAD", "0"))
WS_ABP = 0 if ES == 65536 else 0x1800000
SZ_ABP = 80 * ES
WS_HP = 0x500000
SZ_HP = 128 * 20 * 1024
WS_HSTAT = 0x780000
SZ_HSTAT = 2048 * 8 * 8
WS_ACT = 0x800000
SZ_ACT = 128 * 48 * 1024
WS_WGU = 0xE00000
WSUM_OFF = 192 * 20 * 1024
SZ_WGU = WSUM_OFF + 192 * 4 * 64
WS_WDN = 0x1200000
SZ_WDN = 40 * 48 * 1024

WS_XB = 0x1400000
SZ_XB = 0x800000
K2OLD = os.environ.get("K2OLD", "0") == "1"
FUSE34 = os.environ.get("FUSE34", "1") == "1"
PFA = int(os.environ.get("PFA", "-1"))
INV640 = 0x3ACCCCCD
EPS = 0x3727C5AC

import os
DIAG = os.environ.get("DIAG", "0") == "1"
WS_DIAG = 0x3000000
DIAG2 = os.environ.get("DIAG2", "0") == "1"
def stamp(i):
    if DIAG2 and i == 0:
        e("s_memrealtime s[70:71]")
        e("s_memtime s[72:73]")
        e("s_waitcnt lgkmcnt(0)")
    if DIAG:
        if os.environ.get("RT"): e(f"s_memrealtime s[{70+2*i}:{71+2*i}]")
        else: e(f"s_memtime s[{70+2*i}:{71+2*i}]")
        e("s_waitcnt lgkmcnt(0)")
def stamp_dump(kidx, n):
    if DIAG2:
        e("s_waitcnt vmcnt(0)")
        e("s_memrealtime s[74:75]")
        e("s_memtime s[76:77]")
        e("s_load_dwordx2 s[64:65], s[0:1], 80")
        e("s_waitcnt lgkmcnt(0)")
        e("s_lshl_b32 s68, s2, 2")
        e("s_add_u32 s68, s68, s16")
        e("s_cmp_lg_u32 s68, 0")
        e(f"s_cbranch_scc1 dg_skip{kidx}")
        e("s_mov_b32 s66, 256")
        e("s_mov_b32 s67, 0x20000")
        e("v_mov_b32 v0, 0")
        e("s_mov_b64 exec, 1")
        e("v_mov_b32 v2, s70")
        e("v_mov_b32 v3, s74")
        e("v_mov_b32 v4, s72")
        e("v_mov_b32 v5, s76")
        e(f"buffer_store_dwordx4 v[2:5], v0, s[64:67], 0 offen offset:{kidx*16}")
        e("s_waitcnt vmcnt(0)")
        lab(f"dg_skip{kidx}")
    if not DIAG: return
    e("s_waitcnt vmcnt(0)")
    stamp(n)
    e(f"s_add_u32 s64, s6, {WS_DIAG + kidx*0x40000}")
    e("s_addc_u32 s65, s7, 0")
    e("s_mov_b32 s66, 0x40000")
    e("s_mov_b32 s67, 0x20000")
    e("s_lshl_b32 s68, s2, 2")
    e("s_add_u32 s68, s68, s16")
    e("s_lshl_b32 s68, s68, 8")
    e("v_mov_b32 v0, 0")
    e("s_mov_b64 exec, 1")
    for i in range(n+1):
        e(f"v_mov_b32 v2, s{70+2*i}")
        e(f"v_mov_b32 v3, s{71+2*i}")
        e(f"buffer_store_dwordx2 v[2:3], v0, s[64:67], s68 offen offset:{i*8}")
    e("s_getreg_b32 s69, hwreg(HW_REG_XCC_ID)")
    e("v_mov_b32 v2, s69")
    e("s_getreg_b32 s69, hwreg(HW_REG_HW_ID)")
    e("v_mov_b32 v3, s69")
    e(f"buffer_store_dwordx2 v[2:3], v0, s[64:67], s68 offen offset:248")
    e("s_waitcnt vmcnt(0)")

LST = os.environ.get("LST", "0") == "1"
def lstamp(idx):
    if not LST: return
    e("s_memrealtime s[100:101]")
    e("s_waitcnt lgkmcnt(0)")
    e(f"v_writelane_b32 v15, s100, {idx}")
def lst_dump(kidx):
    if not LST: return
    e("s_waitcnt vmcnt(0)")
    lstamp(63)
    e(f"s_add_u32 s64, s6, {WS_DIAG + 0x100000 + kidx*0x40000}")
    e("s_addc_u32 s65, s7, 0")
    e("s_mov_b32 s66, 0x40000")
    e("s_mov_b32 s67, 0x20000")
    e("s_lshl_b32 s68, s2, 2")
    e("s_add_u32 s68, s68, s16")
    e("s_lshl_b32 s68, s68, 8")
    e("v_lshlrev_b32 v0, 2, v1")
    e("s_mov_b64 exec, -1")
    e("buffer_store_dword v15, v0, s[64:67], s68 offen")
    e("s_waitcnt vmcnt(0)")

def srd(d, lo, size, off=0):
    if off:
        e(f"s_add_u32 s{d}, s{lo}, {off}")
        e(f"s_addc_u32 s{d+1}, s{lo+1}, 0")
    else:
        e(f"s_mov_b32 s{d}, s{lo}")
        e(f"s_mov_b32 s{d+1}, s{lo+1}")
    e(f"s_mov_b32 s{d+2}, {size}")
    e(f"s_mov_b32 s{d+3}, 0x20000")

def bf16r(dst, src):
    e(f"v_cvt_pk_bf16_f32 v{dst}, v{src}, v{src}")
    e(f"v_lshlrev_b32 v{dst}, 16, v{dst}")

def vr(b, n=4): return f"v[{b}:{b+n-1}]"
def ar(b, n=4): return f"a[{b}:{b+n-1}]"

def mfma(d, a, b, c=None):
    c = d if c is None else c
    if L and L[-1].split()[0] in ("v_exp_f32", "v_rcp_f32", "v_sqrt_f32", "v_rsq_f32"): e("s_nop 1")
    e(f"v_mfma_f32_16x16x32_bf16 {d}, {a}, {b}, {c}")

def kernel_begin(name):
    raw(f".globl {name}")
    raw(".p2align 8")
    raw(f".type {name},@function")
    lab(name)

CT = os.environ.get("CT", "1") == "1"
MAP34 = os.environ.get("MAP34", "1") == "1"
CTS = os.environ.get("CTS", "1") == "1"
_ctn = [0]
def code_touch(target, endl, vtmp, dst, back=False, n=1):
    if not CT: return []
    _ctn[0] += 1
    u = f"ct_pc{_ctn[0]}"
    o = ["s_getpc_b64 s[96:97]", u + ":"]
    if back:
        o += [f"s_sub_u32 s96, s96, {u}-{target}", "s_subb_u32 s97, s97, 0"]
    else:
        o += [f"s_add_u32 s96, s96, {target}-{u}", "s_addc_u32 s97, s97, 0"]
    o += [f"s_mov_b32 s98, {endl}-{target}", "s_mov_b32 s99, 0x20000", f"v_lshlrev_b32 v{vtmp}, 7, v0"]
    o.append(f"buffer_load_dword {dst}, v{vtmp}, s[96:99], 0 offen")
    if n > 1:
        o.append(f"v_add_u32 v{vtmp}, 32768, v{vtmp}")
        o.append(f"buffer_load_dword {dst}, v{vtmp}, s[96:99], 0 offen")
    return o

def lane_setup():
    e("v_lshrrev_b32 v4, 6, v0")
    e("v_and_b32 v1, 63, v0")
    e("v_readfirstlane_b32 s16, v4")
    e("v_and_b32 v2, 15, v1")
    e("v_lshrrev_b32 v3, 4, v1")

def ln_stats(vsum, vsq, vm, vrd, t):
    e(f"v_mul_f32 v{vm}, s17, v{vsum}")
    e(f"v_mul_f32 v{t}, s17, v{vsq}")
    e(f"v_fma_f32 v{t}, -v{vm}, v{vm}, v{t}")
    e(f"v_max_f32 v{t}, 0, v{t}")
    bf16r(vm, vm)
    bf16r(t, t)
    e(f"v_add_f32 v{t}, s18, v{t}")
    bf16r(t, t)
    e(f"v_sqrt_f32 v{t}, v{t}")
    e("s_nop 0")
    bf16r(t, t)
    e(f"v_rcp_f32 v{vrd}, v{t}")
    e("s_nop 0")

def gen_k1():
    kernel_begin("k1_kernel")
    e("s_cmp_ge_u32 s2, 256")
    e("s_cbranch_scc1 k1_end")
    stamp(0)
    e("s_load_dwordx2 s[4:5], s[0:1], 0")
    e("s_load_dwordx2 s[8:9], s[0:1], 24")
    e("s_load_dwordx2 s[10:11], s[0:1], 32")
    e("s_load_dwordx2 s[6:7], s[0:1], 88")
    e("s_load_dwordx4 s[56:59], s[0:1], 8")
    PT = int(os.environ.get("PT", "-1"))
    if PT >= 0:
        e("s_load_dwordx4 s[36:39], s[0:1], 48")
        e("s_load_dwordx4 s[40:43], s[0:1], 64")
    for l in code_touch("k1_kernel", "code_end", 154, "v155", back=True, n=2): e(l)
    lane_setup()
    e("s_and_b32 s19, s2, 3")
    e("s_lshl_b32 s19, s19, 2")
    e("s_bfe_u32 s21, s2, 0x20003")
    e("s_add_u32 s19, s19, s21")
    e("s_lshr_b32 s22, s2, 5")
    e("s_bfe_u32 s20, s2, 0x10002")
    e("s_lshl_b32 s20, s20, 3")
    e("s_add_u32 s20, s20, s22")
    e("s_add_u32 s48, s21, s22")
    e("v_lshlrev_b32 v15, 4, v1")
    e("v_lshrrev_b32 v25, 3, v1")
    e("v_and_b32 v26, 7, v1")
    e("v_xor_b32 v26, v26, v25")
    e("v_mul_u32_u24 v25, 1280, v25")
    e("v_lshl_add_u32 v25, v26, 4, v25")
    e("s_and_b32 s21, s20, 7")
    e("s_mul_i32 s21, s21, 102400")
    e("s_and_b32 s22, s16, 1")
    e("s_mul_i32 s22, s22, 51200")
    e("s_add_u32 s21, s21, s22")
    e("s_lshr_b32 s22, s16, 1")
    e("s_lshl_b32 s22, s22, 7")
    e("s_add_u32 s21, s21, s22")
    e("v_add_u32 v4, s21, v25")
    e("s_lshl_b32 s21, s19, 7")
    e("s_lshl_b32 s22, s16, 5")
    e("s_add_u32 s21, s21, s22")
    e("s_mul_i32 s21, s21, 1280")
    e("v_add_u32 v5, s21, v25")
    for j in range(1, 4):
        e(f"v_add_u32 v{5+j}, {j*10240 - j*1024}, v5")
    e("s_mul_i32 s46, s16, 12288")
    e("s_add_u32 s46, s46, 102400")
    e("s_mul_i32 s47, s16, 5120")
    e("s_mul_i32 s49, s48, 205")
    e("s_lshr_b32 s49, s49, 10")
    e("s_mul_i32 s49, s49, 5")
    e("s_sub_u32 s49, s48, s49")
    if os.environ.get("K1NOROT"): e("s_mov_b32 s49, 0")
    for sc in range(5):
        e(f"s_lshl_b32 s{50+sc}, s49, 8")
        e("s_add_u32 s49, s49, 1")
        e("s_cmp_ge_u32 s49, 5")
        e("s_cselect_b32 s49, 0, s49")
    if os.environ.get("K1ST"): e("s_memtime s[84:85]")
    e("s_waitcnt lgkmcnt(0)")
    if os.environ.get("K1ST"): stamp(8)
    srd(24, 4, 2621440)
    e("s_cmp_lt_u32 s20, 8")
    e("s_cselect_b32 s28, s8, s10")
    e("s_cselect_b32 s29, s9, s11")
    e("s_mov_b32 s30, 819200")
    e("s_mov_b32 s31, 0x20000")
    vm = VM()
    XS = 76
    def wdma(sc):
        o = []
        for u in range(5):
            o.append(f"s_add_u32 m0, s47, {sc*20480 + u*1024}")
            o.append(f"s_add_u32 s23, s{50+sc}, {u*10240}")
            o.append("buffer_load_dwordx4 v4, s[28:31], s23 offen lds")
        vm.issue(("W", sc), 5)
        return o
    def xld(c):
        if c < 3:
            o = [f"s_add_u32 m0, s46, {(c%3)*4096}", f"s_add_u32 s22, s{50+(c>>1)}, {(c&1)*128}"]
            for j in range(4):
                o.append(f"buffer_load_dwordx4 v{5+j}, s[24:27], s22 offen offset:{j*1024} lds")
        else:
            o = [f"s_add_u32 s22, s{50+(c>>1)}, {(c&1)*128}"]
            for j in range(4):
                o.append(f"buffer_load_dwordx4 {ar(XS+(c-3)*16+j*4)}, v{5+j}, s[24:27], s22 offen offset:{j*1024}")
        vm.issue(("X", c), 4)
        return o
    for l in wdma(0) + xld(0) + xld(1): e(l)
    if os.environ.get("K1ST"): stamp(9)
    e(f"s_mov_b32 s17, {INV640}")
    e(f"s_mov_b32 s18, {EPS}")
    e("v_and_b32 v26, 7, v2")
    e("v_xor_b32 v26, v26, v3")
    e("v_lshlrev_b32 v11, 7, v2")
    e("v_lshl_add_u32 v11, v26, 4, v11")
    e("v_xor_b32 v12, 64, v11")
    e("v_add_u32 v13, 61440, v11")
    e("v_add_u32 v14, 61440, v12")
    e("v_add_u32 v9, s46, v11")
    e("v_add_u32 v10, s46, v12")
    srd(32, 6, SZ_ABP, WS_ABP)
    if not K2OLD:
        srd(60, 6, WS_XB + SZ_XB - WS_ACT, WS_ACT)
        for r in range(4): e(f"v_mov_b32 v{156+r}, -1")
    TST = [int(x) for x in os.environ.get("TST", "3,6").split(",")]
    PL, PO, PA = 144, 176, 144
    e(f"v_add_u32 v{PA+8}, s46, v15")
    e("s_cmp_lt_u32 s2, 128")
    e("s_cselect_b32 s56, s56, s58")
    e("s_cselect_b32 s57, s57, s59")
    e("s_mov_b32 s58, 8388608")
    e("s_mov_b32 s59, 0x20000")
    if os.environ.get("TSH"):
        e("s_add_u32 s21, s2, 3")
        e("s_and_b32 s21, s21, 7")
    else:
        e("s_and_b32 s21, s2, 7")
    e("s_bfe_u32 s22, s2, 0x20005")
    e("s_lshl_b32 s21, s21, 2")
    e("s_add_u32 s21, s21, s22")
    e("s_lshl_b32 s21, s21, 2")
    e("s_bfe_u32 s22, s2, 0x20003")
    e("s_add_u32 s21, s21, s22")
    e("s_lshl_b32 s21, s21, 2")
    e("s_add_u32 s21, s21, s16")
    e("s_lshl_b32 s91, s21, 14")
    e(f"v_lshlrev_b32 v{PA+10}, 7, v1")
    def touch():
        if os.environ.get("NOPF"): return []
        vm.issue("T", 1)
        return [f"buffer_load_dword v{PA+11}, v{PA+10}, s[56:59], s91 offen", "s_add_u32 s91, s91, 8192"]
    for t in TST:
        if t == -1:
            for l in touch(): e(l)
    for a in range(76):
        e(f"v_accvgpr_write_b32 a{a}, 0")
    ONES = 16
    for r in range(4):
        e(f"v_mov_b32 v{ONES+r}, 0x3f803f80")
    FB = 32
    def XF(b, st, h): return FB + b * 56 + (st * 2 + h) * 4
    def WF(b, i, h): return FB + b * 56 + 16 + (i * 2 + h) * 4
    def fread(c):
        o = []
        b = c & 1
        for h in range(2):
            for st in range(2):
                o.append(f"ds_read_b128 {vr(XF(b,st,h))}, v{9+h} offset:{(c%3)*4096 + st*2048}")
            for i in range(5):
                off = c * 10240 + i * 2048
                if off < 61440:
                    o.append(f"ds_read_b128 {vr(WF(b,i,h))}, v{11+h} offset:{off}")
                else:
                    o.append(f"ds_read_b128 {vr(WF(b,i,h))}, v{13+h} offset:{off-61440}")
        return o
    stamp(1)
    e(f"s_waitcnt vmcnt({vm.younger([('W',0),('X',0)])})")
    e("s_barrier")
    stamp(2)
    for l in fread(0): e(l)
    for c in range(10):
        b = c & 1
        need = []
        if c + 1 <= 2: need.append(("X", c + 1))
        if c + 1 < 10: need.append(("W", (c + 1) >> 1))
        if 3 <= c + 2 <= 9: need.append(("X", c + 2))
        if need and c < 8:
            e(f"s_waitcnt vmcnt({vm.younger(need)}) lgkmcnt(0)")
        else:
            e("s_waitcnt lgkmcnt(0)")
        if c in (1, 3, 5, 7): e("s_barrier")
        NM = 28
        slots = [[] for _ in range(NM)]
        if c + 1 < 10:
            for j, l in enumerate(fread(c + 1)):
                slots[j].append(l)
        if 3 <= c + 2 <= 9:
            for j in range(4):
                slots[14 + j].append(f"ds_write_b128 v{PA+8}, {ar(XS+(c-1)*16+j*4)} offset:{((c+2)%3)*4096 + j*1024}")
        lst = []
        if c < 4: lst = wdma(c + 1) + xld(2 * c + 2) + xld(2 * c + 3)
        for t in TST:
            if t == c: lst += touch()
        if c == int(os.environ.get("PFC", "5")) and not K2OLD:
            slots[21] += ["s_lshl_b32 s44, s2, 2", "s_add_u32 s44, s44, s16", "s_lshl_b32 s44, s44, 12", f"s_add_u32 s44, s44, {WS_XB - WS_ACT}"]
            for q in range(3):
                slots[22 + q] += [f"buffer_store_dwordx4 v[156:159], v15, s[60:63], s44 offen offset:{q*1024}"]
            slots[25] += ["s_mov_b64 exec, 1", "buffer_store_dword v156, v15, s[60:63], s44 offen offset:3072", "s_mov_b64 exec, -1"]
            vm.issue("PF", 4)
        if c == PFA and FUSE34:
            slots[18] += ["s_lshl_b32 s44, s2, 2", "s_add_u32 s44, s44, s16", "s_mul_i32 s44, s44, 6144"]
            for q in range(6):
                if q == 4: slots[19 + q] += ["s_add_u32 s44, s44, 4096"]
                slots[19 + q] += [f"buffer_store_dwordx4 v[156:159], v15, s[60:63], s44 offen offset:{(q&3)*1024}"]
            vm.issue("PF", 6)
        if c == PT:
            PSH = int(os.environ.get("PSH", "16"))
            slots[22] += ["s_add_u32 s92, s6, 0x1000000", "s_addc_u32 s93, s7, 0", "s_mov_b32 s60, s6", "s_mov_b32 s61, s7",
                          "s_mov_b32 s62, 0x1000000", "s_mov_b32 s94, 0x1000000", "s_mov_b32 s44, 18",
                          "s_cmp_eq_u32 s16, 1", "s_cselect_b32 s60, s42, s60", "s_cselect_b32 s61, s43, s61", "s_cselect_b32 s92, s36, s92", "s_cselect_b32 s93, s37, s93",
                          "s_cselect_b32 s62, 2621440, s62", "s_cselect_b32 s94, 1966080, s94", f"s_cselect_b32 s44, {PSH}, s44"]
            slots[23] += ["s_cmp_eq_u32 s16, 2", "s_cselect_b32 s60, s38, s60", "s_cselect_b32 s61, s39, s61", "s_cselect_b32 s92, s40, s92", "s_cselect_b32 s93, s41, s93",
                          "s_cselect_b32 s62, 1966080, s62", "s_cselect_b32 s94, 1966080, s94", f"s_cselect_b32 s44, {PSH}, s44",
                          "s_mov_b32 s63, 0x20000", "s_mov_b32 s95, 0x20000", "v_lshlrev_b32 v157, s44, v1",
                          "buffer_load_dword v155, v157, s[60:63], 0 offen", "buffer_load_dword v155, v157, s[92:95], 0 offen"]
            vm.issue("PT", 2)
        if c == int(os.environ.get("CT1", "-1")) and CT:
            slots[20] += code_touch("k2_kernel", "k3_kernel", 156, "v155")
            vm.issue("CT", 1)
        groups = []; grp = []
        for l in lst:
            if grp and any(x.startswith("buffer") for x in grp) and not (l.startswith("s_add_u32 s8") or l.startswith("s_add_u32 s9")):
                groups.append(grp); grp = []
            grp.append(l)
        if grp: groups.append(grp)
        for g, gl in enumerate(groups):
            slots[g] = gl + slots[g]
        ml = []
        for h in range(2):
            for i in range(5):
                for st in range(2):
                    ml.append((ar((st*5+i)*4), vr(XF(b,st,h)), vr(WF(b,i,h))))
            for st in range(2):
                ml.append((ar(40+4*st), vr(XF(b,st,h)), vr(ONES)))
                ml.append((ar(48+4*st), vr(XF(b,st,h)), vr(XF(b,st,h))))
        for k, m in enumerate(ml):
            mfma(*m)
            for l in slots[k]: e(l)
        for wv in range(4):
            e(f"s_cmp_lg_u32 s16, {wv}")
            e(f"s_cbranch_scc1 k1_ws{c}_{wv}")
            for i in range(5):
                for h in range(2):
                    if (c * 2 + i * 2 + h) % 4 == wv:
                        mfma(ar(56+4*i), vr(ONES), vr(WF(b,i,h)))
            lab(f"k1_ws{c}_{wv}")
    stamp(3)
    WX = 151552
    e("s_nop 7")
    e("s_nop 7")
    for i in range(5):
        e(f"v_accvgpr_read_b32 v{20+i}, a{56+4*i}")
    e("v_lshlrev_b32 v25, 2, v2")
    e("s_mul_i32 s21, s16, 320")
    e(f"s_add_u32 s21, s21, {WX}")
    e("v_add_u32 v26, s21, v25")
    for i in range(5):
        e(f"ds_write_b32 v26, v{20+i} offset:{i*64}")
    e("v_mul_u32_u24 v12, 80, v3")
    for st in range(2):
        for r in range(4):
            e(f"v_accvgpr_read_b32 v{32+st*4+r}, a{40+4*st+r}")
            e(f"v_accvgpr_read_b32 v{40+st*4+r}, a{48+4*st+r}")
    e("s_nop 1")
    for st in range(2):
        for r in range(4):
            e(f"ds_bpermute_b32 v{40+st*4+r}, v12, v{40+st*4+r} offset:{4*r}")
    e(f"v_add_u32 v26, {WX}, v25")
    e("s_waitcnt lgkmcnt(0)")
    e("s_barrier")
    for wv in range(4):
        for i in range(5):
            e(f"ds_read_b32 v{124+wv*5+i}, v26 offset:{wv*320 + i*64}")
    for st in range(2):
        for r in range(4):
            ln_stats(32+st*4+r, 40+st*4+r, 52+st*4+r, 60+st*4+r, 48)
    e("s_waitcnt lgkmcnt(0)")
    for i in range(5):
        e(f"v_add_f32 v{20+i}, v{124+i}, v{129+i}")
        e(f"v_add_f32 v{124+i}, v{134+i}, v{139+i}")
        e(f"v_add_f32 v{20+i}, v{20+i}, v{124+i}")
    e("v_and_b32 v26, 1, v3")
    e("v_lshlrev_b32 v26, 9, v26")
    e("v_lshrrev_b32 v27, 1, v3")
    e("v_lshl_add_u32 v26, v27, 8, v26")
    e("v_lshl_add_u32 v26, v2, 4, v26")
    e("s_lshl_b32 s22, s19, 2")
    e("s_add_u32 s21, s22, s16")
    e("s_lshl_b32 s21, s21, 10")
    e(f"s_mul_i32 s22, s20, {5*ES}")
    e("s_add_u32 s21, s21, s22")
    for i in range(5):
        T = 72 + (i & 1) * 16
        O = 104 + i * 4
        for st in range(2):
            for r in range(4):
                e(f"v_accvgpr_read_b32 v{T+st*4+r}, a{(st*5+i)*4+r}")
        for st in range(2):
            for r in range(4):
                e(f"v_fma_f32 v{T+st*4+r}, -v{52+st*4+r}, v{20+i}, v{T+st*4+r}")
        for st in range(2):
            for r in range(4):
                e(f"v_mul_f32 v{T+st*4+r}, v{T+st*4+r}, v{60+st*4+r}")
        for st in range(2):
            e(f"v_cvt_pk_bf16_f32 v{O+2*st}, v{T+st*4}, v{T+st*4+1}")
            e(f"v_cvt_pk_bf16_f32 v{O+2*st+1}, v{T+st*4+2}, v{T+st*4+3}")
        e("s_nop 1")
        e(f"v_permlane16_swap_b32 v{O}, v{O+2}")
        e(f"v_permlane16_swap_b32 v{O+1}, v{O+3}")
        e(f"s_add_u32 s23, s21, {i*ES}")
        e("s_nop 1")
        e(f"buffer_store_dwordx4 {vr(O)}, v26, s[32:35], s23 offen")
        vm.issue("S", 1)
    stamp(4)
    lab("k1_fin")
    stamp(5)
    stamp_dump(0, 6)
    if os.environ.get("K1ST"):
        for i in range(7, 10):
            e(f"v_mov_b32 v2, s{70+2*i}")
            e(f"v_mov_b32 v3, s{71+2*i}")
            e(f"buffer_store_dwordx2 v[2:3], v0, s[64:67], s68 offen offset:{i*8}")
        e("s_waitcnt vmcnt(0)")
    lab("k1_end")
    e("s_endpgm")

ACC = 176
BUF = 32
def bufA(b, i): return BUF + b * 36 + i * 4
def bufB(b, n): return BUF + b * 36 + 20 + n * 4
def acc(i, n): return ACC + (i * 4 + n) * 4

def splitk_core(nsteps, srdA, srdB, shA, shB, vA, vB, mask):
    def addr():
        e("s_add_u32 s44, s40, s41")
        e(f"s_lshl_b32 s42, s44, {shA}")
        e(f"s_lshl_b32 s43, s44, {shB}")
        e("s_add_u32 s40, s40, 1")
        if mask:
            e(f"s_and_b32 s40, s40, {nsteps-1}")
        else:
            e(f"s_cmp_ge_u32 s40, {nsteps}")
            e("s_cselect_b32 s40, 0, s40")
    def loads(b):
        out = []
        for n in range(4):
            out.append(f"buffer_load_dwordx4 {vr(bufB(b,n))}, v{vB+n}, s[{srdB}:{srdB+3}], s43 offen")
        for i in range(5):
            out.append(f"buffer_load_dwordx4 {vr(bufA(b,i))}, v{vA+i}, s[{srdA}:{srdA+3}], s42 offen")
        return out
    for it in range(3):
        addr()
        for l in loads(it): e(l)
    for a in range(80):
        e(f"v_mov_b32 v{ACC+a}, 0")
    for it in range(nsteps):
        b = it % 4
        rem = min(nsteps - 1 - it, 2)
        e(f"s_waitcnt vmcnt({9*rem})")
        ld = []
        if it + 3 < nsteps:
            addr()
            ld = loads((it + 3) % 4)
        k = 0
        for i in range(5):
            for n in range(4):
                mfma(vr(acc(i,n)), vr(bufA(b,i)), vr(bufB(b,n)))
                k += 1
                if k % 2 == 0 and ld:
                    e(ld.pop(0))
        assert not ld

def splitk_exchange():
    e("s_nop 7")
    e("s_nop 7")
    e("s_mul_i32 s44, s16, 5120")
    e("v_add_u32 v9, s44, v8")
    e("v_add_u32 v10, 61440, v9")
    for n in range(4):
        for i in range(5):
            if n < 3:
                e(f"ds_write_b128 v9, {vr(acc(i,n))} offset:{(n*20+i)*1024}")
            else:
                e(f"ds_write_b128 v10, {vr(acc(i,n))} offset:{i*1024}")
    e("s_mul_i32 s44, s16, 20480")
    e("v_add_u32 v9, s44, v8")
    e("s_waitcnt lgkmcnt(0)")
    e("s_barrier")
    for src in range(4):
        for i in range(5):
            e(f"ds_read_b128 {vr(BUF+(src*5+i)*4)}, v9 offset:{(src*5+i)*1024}")


def hp_addr(vdst, s_st, s_d16base, sdst_list):
    e(f"v_lshrrev_b32 v{vdst}, 1, v3")
    e(f"v_lshlrev_b32 v{vdst}, 8, v{vdst}")
    e(f"v_lshl_add_u32 v{vdst}, v2, 4, v{vdst}")
    e("v_and_b32 v10, 1, v3")
    e(f"v_lshl_add_u32 v{vdst}, v10, 3, v{vdst}")
    e(f"s_mul_i32 s44, s{s_st}, 20480")
    for i in range(5):
        e(f"s_add_u32 s45, s{s_d16base}, {i}")
        e(f"s_lshl_b32 s45, s45, 9")
        e(f"s_add_u32 s{sdst_list[i]}, s44, s45")

def gen_k2_old():
    ROT = os.environ.get("K2ROT", "0") == "1"
    kernel_begin("k2_kernel")
    e("s_cmp_ge_u32 s2, 256")
    e("s_cbranch_scc1 k2_end")
    stamp(0)
    e("s_load_dwordx2 s[4:5], s[0:1], 0")
    e("s_load_dwordx2 s[8:9], s[0:1], 8")
    e("s_load_dwordx2 s[10:11], s[0:1], 16")
    e("s_load_dwordx2 s[6:7], s[0:1], 88")
    e("s_load_dwordx4 s[12:15], s[0:1], 48")
    e("s_load_dwordx2 s[60:61], s[0:1], 64")
    if CTS:
        for l in code_touch("k2_kernel", "k3_kernel", 12, "a91", back=True): e(l)
    lane_setup()
    if os.environ.get("MAP2", "1") == "1":
        e("s_bfe_u32 s19, s2, 0x20001")
        e("s_bfe_u32 s21, s2, 0x30003")
        e("s_lshl_b32 s19, s19, 3")
        e("s_add_u32 s19, s19, s21")
        e("s_and_b32 s20, s2, 1")
        e("s_lshl_b32 s20, s20, 2")
        e("s_lshr_b32 s21, s2, 6")
        e("s_add_u32 s20, s20, s21")
    else:
        e("s_and_b32 s19, s2, 7")
        e("s_lshr_b32 s20, s2, 3")
        e("s_lshr_b32 s21, s20, 3")
        e("s_lshl_b32 s19, s19, 2")
        e("s_add_u32 s19, s19, s21")
        e("s_and_b32 s20, s20, 7")
    e("v_lshlrev_b32 v8, 4, v1")
    VC, VA, VB0, VB1 = 16, 24, 29, 30
    e("v_lshrrev_b32 v4, 3, v1")
    e("v_and_b32 v5, 7, v1")
    e("v_xor_b32 v5, v5, v4")
    e("v_lshlrev_b32 v4, 12, v4")
    e("v_lshl_add_u32 v4, v5, 4, v4")
    e("s_lshl_b32 s22, s19, 18")
    if os.environ.get("XC"): e("s_mov_b32 s22, 0")
    e(f"v_add_u32 v{VC}, s22, v4")
    for j in range(1, 8):
        e(f"v_add_u32 v{VC+j}, {j*32768 - (j%4)*1024}, v{VC}")
    e("s_lshr_b32 s22, s16, 1")
    e("s_mul_i32 s22, s22, 40")
    e("s_mul_i32 s23, s20, 5")
    if os.environ.get("XA"): e("s_mov_b32 s23, 0")
    e("s_add_u32 s22, s22, s23")
    e(f"s_mul_i32 s22, s22, {ES}")
    e(f"v_add_u32 v{VA}, s22, v8")
    for i in range(1, 5):
        e(f"v_add_u32 v{VA+i}, {i*ES}, v{VA}")
    e("s_lshl_b32 s46, s16, 15")
    e("v_and_b32 v5, 7, v2")
    e("v_xor_b32 v5, v5, v3")
    e("v_lshlrev_b32 v4, 7, v2")
    e("v_lshl_add_u32 v4, v5, 4, v4")
    e(f"v_add_u32 v{VB0}, s46, v4")
    e(f"v_xor_b32 v{VB1}, 64, v{VB0}")
    e("s_and_b32 s41, s16, 1")
    e("s_lshl_b32 s47, s41, 11")
    e("s_lshl_b32 s41, s41, 15")
    if os.environ.get("SAMEA"): e("s_mov_b32 s41, 0")
    if os.environ.get("SAMEC"): e("s_mov_b32 s47, 0")
    if os.environ.get("HALFWG"):
        e("s_bitcmp1_b32 s2, 3")
        e("s_cbranch_scc1 k2_end")
    if ROT:
        e("s_lshr_b32 s40, s2, 6")
        e("s_lshl_b32 s40, s40, 2")
    elif os.environ.get("K2ROT", "0") == "2":
        e("s_and_b32 s40, s2, 7")
        e("s_lshl_b32 s40, s40, 1")
    elif os.environ.get("K2ROT", "0") == "3":
        e("s_and_b32 s40, s2, 3")
        e("s_lshl_b32 s40, s40, 2")
    else:
        e("s_mov_b32 s40, 0")
    LEAD = int(os.environ.get("LEAD", "0"))
    LM = os.environ.get("LM", "me")
    e("s_mov_b32 s95, 0")
    if "m" in LM: e("s_lshr_b32 s95, s2, 6")
    if "e" in LM: e("s_add_u32 s95, s95, s20")
    e("s_and_b32 s95, s95, 3")
    e("s_lshl_b32 s21, s19, 6")
    e("s_lshl_b32 s22, s16, 4")
    e("s_add_u32 s21, s21, s22")
    e("s_mul_i32 s22, s21, 1280")
    e("s_mul_i32 s23, s20, 160")
    e("s_add_u32 s22, s22, s23")
    e("v_mul_u32_u24 v11, 1280, v2")
    e("v_lshl_add_u32 v11, v3, 3, v11")
    e("v_add_u32 v11, s22, v11")
    e("s_waitcnt lgkmcnt(0)")
    srd(24, 4, 2621440)
    e("s_cmp_lt_u32 s16, 2")
    e("s_cselect_b32 s28, s8, s10")
    e("s_cselect_b32 s29, s9, s11")
    e("s_mov_b32 s30, 8388608")
    e("s_mov_b32 s31, 0x20000")
    srd(32, 6, SZ_ABP, WS_ABP)
    stamp(1)
    AB = 32
    BB = 192
    def A(b, h, i):
        if b < 2: return vr(AB + (b * 10 + h * 5 + i) * 4)
        return ar(96 + ((b - 2) * 10 + h * 5 + i) * 4)
    def B(b, h, n): return BB + (b * 8 + h * 4 + n) * 4
    vm = VM()
    def stage_issue(stg):
        b = stg % 4
        HALFA = os.environ.get("HALFA") and (stg & 1)
        HALFC = os.environ.get("HALFC") and (stg & 1)
        vm.issue(("S", stg), 18 - (10 if HALFA else 0) - (8 if HALFC else 0))
        o = []
        if LEAD:
            o.append(f"s_cmp_eq_u32 s95, {stg & 3}")
            o.append(f"s_cselect_b32 s40, {(stg + LEAD) & 15}, {stg}")
        o.append("s_lshl_b32 s42, s40, 7")
        o.append("s_add_u32 s42, s42, s47")
        o.append(f"s_add_u32 m0, s46, {b*8192}")
        o.append("s_lshl_b32 s43, s40, 11")
        for j in range(4):
            if not HALFC: o.append(f"buffer_load_dwordx4 v{VC+j}, s[28:31], s42 offen offset:{j*1024} lds")
        o.append(f"s_add_u32 m0, s46, {b*8192+4096}")
        o.append("s_add_u32 s43, s43, s41")
        for j in range(4, 8):
            if not HALFC: o.append(f"buffer_load_dwordx4 v{VC+j}, s[28:31], s42 offen offset:{(j-4)*1024} lds")
        for h in range(2):
            for i in range(5):
                if not HALFA: o.append(f"buffer_load_dwordx4 {A(b,h,i)}, v{VA+i}, s[32:35], s43 offen offset:{h*1024}")
        o.append("s_add_u32 s40, s40, 1")
        o.append(f"s_and_b32 s40, s40, {os.environ.get('XK', '15')}")
        return o
    def bread(st):
        o = []
        for h in range(2):
            for n in range(4):
                o.append(f"ds_read_b128 {vr(B(st&1,h,n))}, v{VB0+h} offset:{(st%4)*8192 + n*2048}")
        return o
    if os.environ.get("ABT"):
        e("s_lshl_b32 s22, s2, 2")
        e("s_add_u32 s22, s22, s16")
        e("s_mul_i32 s22, s22, 5120")
        e("v_lshlrev_b32 v12, 7, v1")
        e("s_mov_b32 exec_hi, 0xff")
        e("buffer_load_dword a92, v12, s[32:35], s22 offen")
        e("s_mov_b32 exec_hi, -1")
    for st in range(3):
        for l in stage_issue(st): e(l)
    for i in range(5):
        e(f"buffer_load_dwordx2 a[{80+2*i}:{81+2*i}], v11, s[24:27], 0 offen offset:{i*32}")
    vm.issue("X", 5)
    PL, PO, PA = 112, 144, 176
    e("s_mul_i32 s48, s2, 3")
    e("s_add_u32 s48, s48, s16")
    e("s_cmp_ge_u32 s2, 240")
    e("s_cselect_b64 vcc, -1, 0")
    e("s_cmp_eq_u32 s16, 3")
    e("s_cselect_b64 vcc, -1, vcc")
    e("s_cbranch_vccnz k2_pdum")
    e("s_cmp_ge_u32 s48, 480")
    e("s_cbranch_scc1 k2_pdn")
    e("s_mul_i32 s49, s48, 52429")
    e("s_lshr_b32 s49, s49, 20")
    e("s_mul_i32 s92, s49, 20")
    e("s_sub_u32 s92, s48, s92")
    srd(36, 12, 1966080)
    srd(56, 14, 1966080)
    e("v_bfe_u32 v12, v1, 3, 2")
    e("v_and_b32 v13, 7, v1")
    e("v_lshrrev_b32 v14, 5, v1")
    e(f"v_mul_u32_u24 v{PA+9}, 24576, v12")
    e(f"v_lshl_add_u32 v{PA+9}, v13, 4, v{PA+9}")
    e("v_mul_u32_u24 v15, 12288, v14")
    e(f"v_add_u32 v{PA+9}, v{PA+9}, v15")
    e("s_mul_i32 s84, s92, 98304")
    e("s_lshl_b32 s85, s49, 7")
    e("s_add_u32 s84, s84, s85")
    e("s_mov_b32 s85, s84")
    e("s_mov_b32 s86, 3072")
    e("v_mul_u32_u24 v13, 1040, v13")
    e("v_lshl_add_u32 v13, v12, 8, v13")
    e(f"v_lshl_add_u32 v{PA}, v14, 3, v13")
    e("s_mov_b32 s93, 64")
    e("s_mov_b32 s94, 32")
    e("s_mul_i32 s87, s49, 163840")
    e("s_lshl_b32 s92, s92, 10")
    e("s_add_u32 s87, s87, s92")
    e(f"s_add_u32 s87, s87, {WS_WGU}")
    e("s_mov_b32 s88, 20480")
    e("s_branch k2_pk")
    lab("k2_pdn")
    e("s_sub_u32 s48, s48, 480")
    e("s_mul_i32 s49, s48, 43691")
    e("s_lshr_b32 s49, s49, 21")
    e("s_mul_i32 s92, s49, 48")
    e("s_sub_u32 s92, s48, s92")
    srd(36, 60, 1966080)
    srd(56, 60, 1966080)
    e(f"v_mul_u32_u24 v{PA+9}, 10240, v3")
    e(f"v_lshl_add_u32 v{PA+9}, v2, 4, v{PA+9}")
    e("s_mul_i32 s84, s92, 40960")
    e("s_lshl_b32 s85, s49, 8")
    e("s_add_u32 s84, s84, s85")
    e("s_add_u32 s85, s84, 5120")
    e("s_mov_b32 s86, 1280")
    e("v_lshrrev_b32 v13, 1, v2")
    e("v_mul_u32_u24 v13, 1040, v13")
    e("v_and_b32 v15, 1, v2")
    e("v_lshlrev_b32 v15, 7, v15")
    e("v_lshl_add_u32 v15, v3, 8, v15")
    e(f"v_add_u32 v{PA}, v15, v13")
    e("s_mov_b32 s93, 32")
    e("s_mov_b32 s94, 8")
    e("s_mul_i32 s87, s49, 393216")
    e("s_lshl_b32 s92, s92, 10")
    e("s_add_u32 s87, s87, s92")
    e(f"s_add_u32 s87, s87, {WS_WDN}")
    e("s_mov_b32 s88, 49152")
    lab("k2_pk")
    for which in range(2):
        for j in range(4):
            sr = 84 + which
            e(f"buffer_load_dwordx4 {vr(PL+(which*4+j)*4)}, v{PA+9}, s[{36+20*which}:{39+20*which}], s{sr} offen")
            e(f"s_add_u32 s{sr}, s{sr}, s86")
    e("s_mul_i32 s49, s16, 8320")
    e("s_add_u32 s49, s49, 131072")
    e(f"v_add_u32 v{PA}, s49, v{PA}")
    for k in range(1, 4):
        e(f"v_add_u32 v{PA+k}, s93, v{PA+k-1}")
    for k in range(4):
        e(f"v_add_u32 v{PA+4+k}, s94, v{PA+k}")
    e(f"v_add_u32 v{PA+12}, s49, v8")
    e("s_branch k2_pdone")
    lab("k2_pdum")
    def dummy(n):
        o = ["s_mov_b64 exec, 1"]
        for j in range(n):
            o.append("buffer_load_dword a90, v8, s[24:27], 0 offen")
        o.append("s_mov_b64 exec, -1")
        return o
    for l in dummy(8): e(l)
    lab("k2_pdone")
    vm.issue("P", 8)
    e("s_mov_b32 s89, 0x05040100")
    e("s_mov_b32 s90, 0x07060302")
    e("s_mov_b32 s64, s6")
    e("s_mov_b32 s65, s7")
    e(f"s_mov_b32 s66, {WS_WDN + SZ_WDN}")
    e("s_mov_b32 s67, 0x20000")
    PST = int(os.environ.get("PST", "3"))
    srd(48, 6, SZ_HP, WS_HP)
    srd(52, 6, SZ_HSTAT, WS_HSTAT)
    for a in range(80):
        e(f"v_accvgpr_write_b32 a{a}, 0")
    e(f"s_waitcnt vmcnt({vm.younger([('S', 0)])})")
    for l in bread(0): e(l)
    NS = 16
    for st in range(NS):
        b = st % 4
        if st + 1 < NS:
            allowed = vm.younger([("S", st + 1)] + (["P"] if st == PST else []))
            e(f"s_waitcnt vmcnt({allowed}) lgkmcnt(0)")
        else:
            e("s_waitcnt lgkmcnt(0)")
        if os.environ.get("K2ST") and st in (0,1,2,3,4,6,8,12): stamp(7 + (0,1,2,3,4,6,8,12).index(st))
        slots = [[] for _ in range(40)]
        if st + 1 < NS:
            for j, l in enumerate(bread(st + 1)):
                slots[1 + 2*j].append(l)
        if st + 3 < NS:
            grp = []; groups = []
            for l in stage_issue(st + 3):
                grp.append(l)
                if l.startswith("buffer"):
                    groups.append(grp); grp = []
            groups[-1] += grp
            for g, gl in enumerate(groups):
                slots[(g * 40) // len(groups)] += gl
        if st == int(os.environ.get("CT2", "-1")) and CT:
            slots[30] += code_touch("k3_kernel", "k4_kernel", 12, "a91")
            vm.issue("CT", 1)
        pk = []
        if st == PST:
            for which in range(2):
                for ee in range(8):
                    o = PO + (which*8+ee)*2
                    g = []
                    for t in range(2):
                        g.append(f"v_perm_b32 v{o+t}, v{PL+(which*4+2*t+1)*4+(ee>>1)}, v{PL+(which*4+2*t)*4+(ee>>1)}, s{89+(ee&1)}")
                    g.append(f"ds_write_b64 v{PA+which*4+(ee>>1)}, v[{o}:{o+1}] offset:{(ee&1)*16}")
                    pk.append(g)
            pk = [pk[2*i] + pk[2*i+1] for i in range(8)]
        if st == PST + 1:
            pk = [[f"ds_read_b128 {vr(PL+g*4)}, v{PA+12} offset:{g*1040}"] for g in range(8)]
        for g, gl in enumerate(pk):
            slots[18 + 2*g] += [f"s_cbranch_vccnz k2_np{st}_{g}"] + gl + [f"k2_np{st}_{g}:"]
        if st == PST + 2:
            gl = ["s_cbranch_vccnz k2_sdum"]
            for g in range(8):
                gl += [f"buffer_store_dwordx4 {vr(PL+g*4)}, v8, s[64:67], s87 offen sc1", "s_add_u32 s87, s87, s88"]
            gl += ["s_branch k2_sdone", "k2_sdum:"] + dummy(8) + ["k2_sdone:"]
            slots[39] += gl
            vm.issue("Q", 8)
        k = 0
        for h in range(2):
            for i in range(5):
                for n in range(4):
                    if not os.environ.get("NOMFMA"): mfma(ar((i*4+n)*4), A(b,h,i), vr(B(st&1,h,n)))
                    for l in slots[k]:
                        if os.environ.get("NODS") and l.startswith("ds_"): continue
                        if os.environ.get("NOA") and l.startswith("buffer") and not l.endswith("lds"): continue
                        if os.environ.get("NOC") and l.startswith("buffer") and l.endswith("lds"): continue
                        e(l)
                    k += 1
    stamp(2)
    stamp(3)
    e("s_nop 7")
    e("v_add_u32 v9, s46, v8")
    for n in range(4):
        for i in range(5):
            e(f"ds_write_b128 v9, {ar((i*4+n)*4)} offset:{(n*5+i)*1024}")
    e("s_mul_i32 s44, s16, 5120")
    e("v_add_u32 v9, s44, v8")
    e("v_add_u32 v10, 65536, v9")
    XR = 112
    for i in range(10):
        e(f"v_accvgpr_read_b32 v{XR+i}, a{80+i}")
    e("s_waitcnt lgkmcnt(0)")
    e("s_barrier")
    for src in range(4):
        for i in range(5):
            e(f"ds_read_b128 {vr(BUF+(src*5+i)*4)}, v{9 + (src>>1)} offset:{(src&1)*32768 + i*1024}")
    stamp(4)
    e("s_lshl_b32 s22, s19, 2")
    e("s_add_u32 s22, s22, s16")
    e("s_mul_i32 s23, s20, 5")
    hp_addr(11, 22, 23, [61, 62, 63, 64, 65])
    e("v_mov_b32 v17, 0")
    e("v_mov_b32 v18, 0")
    e("s_waitcnt vmcnt(0) lgkmcnt(0)")
    T = 124
    for i in range(5):
        def S(src, r): return BUF + (src*5+i)*4 + r
        for r in range(4):
            e(f"v_add_f32 v{T+r}, v{S(0,r)}, v{S(1,r)}")
            e(f"v_add_f32 v{T+4+r}, v{S(2,r)}, v{S(3,r)}")
        for r in range(4):
            bf16r(T+r, T+r)
            bf16r(T+4+r, T+4+r)
        for r in range(4):
            e(f"v_sub_f32 v{T+r}, v{T+r}, v{T+4+r}")
        for r in range(4):
            bf16r(T+r, T+r)
        e(f"v_lshlrev_b32 v{T+4}, 16, v{XR+2*i}")
        e(f"v_and_b32 v{T+5}, 0xffff0000, v{XR+2*i}")
        e(f"v_lshlrev_b32 v{T+6}, 16, v{XR+2*i+1}")
        e(f"v_and_b32 v{T+7}, 0xffff0000, v{XR+2*i+1}")
        for r in range(4):
            e(f"v_add_f32 v{T+r}, v{T+r}, v{T+4+r}")
        o = 136 + 2*i
        e(f"v_cvt_pk_bf16_f32 v{o}, v{T}, v{T+1}")
        e(f"v_cvt_pk_bf16_f32 v{o+1}, v{T+2}, v{T+3}")
        e(f"buffer_store_dwordx2 v[{o}:{o+1}], v11, s[48:51], s{61+i} offen")
        e(f"v_lshlrev_b32 v{T}, 16, v{o}")
        e(f"v_and_b32 v{T+1}, 0xffff0000, v{o}")
        e(f"v_lshlrev_b32 v{T+2}, 16, v{o+1}")
        e(f"v_and_b32 v{T+3}, 0xffff0000, v{o+1}")
        for r in range(4):
            e(f"v_add_f32 v17, v17, v{T+r}")
            e(f"v_fmac_f32 v18, v{T+r}, v{T+r}")
    e("v_xor_b32 v10, 16, v1")
    e("v_lshlrev_b32 v10, 2, v10")
    e("ds_bpermute_b32 v19, v10, v17")
    e("ds_bpermute_b32 v28, v10, v18")
    e("s_waitcnt lgkmcnt(0)")
    e("v_add_f32 v17, v17, v19")
    e("v_add_f32 v18, v18, v28")
    e("v_xor_b32 v10, 32, v1")
    e("v_lshlrev_b32 v10, 2, v10")
    e("ds_bpermute_b32 v19, v10, v17")
    e("ds_bpermute_b32 v28, v10, v18")
    e("s_waitcnt lgkmcnt(0)")
    e("v_add_f32 v30, v17, v19")
    e("v_add_f32 v31, v18, v28")
    e("s_lshl_b32 s22, s21, 3")
    e("s_lshl_b32 s23, s20, 14")
    e("s_add_u32 s22, s22, s23")
    e("v_lshlrev_b32 v10, 3, v2")
    e("s_mov_b32 exec_lo, 0x0000ffff")
    e("s_mov_b32 exec_hi, 0")
    e("buffer_store_dwordx2 v[30:31], v10, s[52:55], s22 offen")
    e("s_mov_b64 exec, -1")
    lab("k2_fin")
    lstamp(40)
    lst_dump(1)
    stamp(5)
    stamp_dump(1, 6)
    if os.environ.get("K2ST"):
        for i in range(7, 15):
            e(f"v_mov_b32 v2, s{70+2*i}")
            e(f"v_mov_b32 v3, s{71+2*i}")
            e(f"buffer_store_dwordx2 v[2:3], v0, s[64:67], s68 offen offset:{i*8}")
        e("s_waitcnt vmcnt(0)")
    lab("k2_end")
    e("s_endpgm")


def gen_k2():
    WST = 39936
    NRETRY = int(os.environ.get("NRETRY", "24"))
    FORCE = os.environ.get("FORCE", "")
    kernel_begin("k2_kernel")
    e("s_cmp_ge_u32 s2, 256")
    e("s_cbranch_scc1 k2_end")
    stamp(0)
    e("s_load_dwordx2 s[4:5], s[0:1], 0")
    e("s_load_dwordx2 s[8:9], s[0:1], 8")
    e("s_load_dwordx2 s[10:11], s[0:1], 16")
    e("s_load_dwordx2 s[6:7], s[0:1], 88")
    e("s_load_dwordx4 s[12:15], s[0:1], 48")
    e("s_load_dwordx2 s[60:61], s[0:1], 64")
    if CTS:
        for l in code_touch("k2_kernel", "k3_kernel", 12, "a251", back=True): e(l)
    lane_setup()
    e("s_and_b32 s17, s2, 1")
    if os.environ.get("SWAPR"): e("s_xor_b32 s17, s17, 1")
    if os.environ.get("DELAY"):
        dl = os.environ["DELAY"]
        if dl in "01": e(f"s_cmp_lg_u32 s17, {dl}")
        else:
            e("s_lshr_b32 s22, s2, 3")
            e("s_xor_b32 s22, s22, s2")
            e("s_bitcmp1_b32 s22, 0")
        e("s_cbranch_scc1 k2_nodelay")
        for _ in range(10): e("s_sleep 127")
        lab("k2_nodelay")
    if os.environ.get("MAP2", "1") == "1":
        e("s_bfe_u32 s19, s2, 0x20001")
        e("s_bfe_u32 s21, s2, 0x20003")
        e("s_lshl_b32 s19, s19, 2")
        e("s_add_u32 s19, s19, s21")
        e("s_lshr_b32 s20, s2, 5")
    else:
        e("s_bfe_u32 s19, s2, 0x10002")
        e("s_bfe_u32 s21, s2, 0x30003")
        e("s_lshl_b32 s19, s19, 3")
        e("s_add_u32 s19, s19, s21")
        e("s_bfe_u32 s20, s2, 0x10001")
        e("s_lshl_b32 s20, s20, 2")
        e("s_lshr_b32 s21, s2, 6")
        e("s_add_u32 s20, s20, s21")
    e("v_lshlrev_b32 v8, 4, v1")
    VC, VA, VB0, VB1 = 16, 24, 29, 30
    e("v_lshrrev_b32 v4, 3, v1")
    e("v_and_b32 v5, 7, v1")
    e("v_xor_b32 v5, v5, v4")
    e("v_lshlrev_b32 v4, 12, v4")
    e("v_lshl_add_u32 v4, v5, 4, v4")
    e("s_lshl_b32 s22, s19, 19")
    e("v_add_u32 v4, s22, v4")
    e("s_lshl_b32 s23, s16, 1")
    for j in range(8):
        e(f"s_add_u32 s22, s23, {j+2}")
        e("s_and_b32 s22, s22, 7")
        e("s_lshl_b32 s22, s22, 15")
        e(f"s_add_u32 s22, s22, {4096 - (j%4)*1024}")
        e(f"v_add_u32 v{VC+j}, s22, v4")
    e("s_mul_i32 s22, s17, 40")
    e("s_mul_i32 s23, s20, 5")
    e("s_add_u32 s22, s22, s23")
    e(f"s_mul_i32 s22, s22, {ES}")
    e(f"v_add_u32 v{VA}, s22, v8")
    for i in range(1, 5):
        e(f"v_add_u32 v{VA+i}, {i*ES}, v{VA}")
    e(f"s_mul_i32 s46, s16, {WST}")
    e("s_lshl_b32 s41, s17, 18")
    e("s_xor_b32 s40, s41, 0x40000")
    e("s_lshl_b32 s22, s16, 10")
    e("s_add_u32 s40, s40, s22")
    e("s_add_u32 s41, s41, s22")
    e("s_lshl_b32 s47, s16, 14")
    e("s_waitcnt lgkmcnt(0)")
    e("s_cmp_eq_u32 s17, 0")
    e("s_cselect_b32 s28, s8, s10")
    e("s_cselect_b32 s29, s9, s11")
    e("s_sub_u32 s28, s28, 4096")
    e("s_subb_u32 s29, s29, 0")
    e(f"s_mov_b32 s30, {8388608 + 4096}")
    e("s_mov_b32 s31, 0x20000")
    srd(32, 6, SZ_ABP, WS_ABP)
    stamp(1)
    BB = 192
    def A(u, h, i):
        b = u % 4
        if b < 2: return vr(32 + (b * 10 + h * 5 + i) * 4)
        return ar(160 + ((b - 2) * 10 + h * 5 + i) * 4)
    def B(b, h, n): return BB + (b * 8 + h * 4 + n) * 4
    def AC(c, i, n): return (c * 20 + i * 4 + n) * 4
    seq = []
    for u in range(5): seq += [(u, 0), (u, 1)]
    seq += [(5, 0), (6, 0), (7, 0), (5, 1), (6, 1), (7, 1)]
    vm = VM()
    def cld(s):
        u, c = seq[s]
        b = s % 4
        o = [f"s_add_u32 s42, s{40+c}, {u*128}", f"s_add_u32 m0, s46, {b*8192}"]
        for j in range(4):
            o.append(f"buffer_load_dwordx4 v{VC+j}, s[28:31], s42 offen offset:{j*1024} lds")
        o.append(f"s_add_u32 m0, s46, {b*8192+4096}")
        for j in range(4, 8):
            o.append(f"buffer_load_dwordx4 v{VC+j}, s[28:31], s42 offen offset:{(j-4)*1024} lds")
        vm.issue(("C", s), 8)
        return o
    def ald(u, h):
        o = [f"s_add_u32 s43, s47, {u*2048}"]
        for i in range(5):
            o.append(f"buffer_load_dwordx4 {A(u,h,i)}, v{VA+i}, s[32:35], s43 offen offset:{h*1024}")
        vm.issue(("A", u), 5)
        return o
    def bread(s):
        o = []
        for h in range(2):
            for n in range(4):
                o.append(f"ds_read_b128 {vr(B(s&1,h,n))}, v{VB0+h} offset:{(s%4)*8192 + n*2048}")
        return o
    def tch(u0, nu):
        mc, ma = (1 << (16 * nu)) - 1, (1 << (20 * nu)) - 1
        o = [f"s_mov_b32 exec_lo, 0x{mc & 0xffffffff:x}", f"s_mov_b32 exec_hi, 0x{mc >> 32:x}",
             f"buffer_load_dword a250, v189, s[28:31], 0 offen offset:{u0*128}",
             f"s_mov_b32 exec_lo, 0x{ma & 0xffffffff:x}", f"s_mov_b32 exec_hi, 0x{ma >> 32:x}", f"s_movk_i32 s43, {u0*2048}",
             f"buffer_load_dword a250, v190, s[32:35], s43 offen", "s_mov_b64 exec, -1"]
        vm.issue("T", 2)
        return o
    def items(lst):
        o = []
        for it in lst:
            if it[0] == "C": o += cld(int(it[1:]))
            elif it[0] == "T": o += tch(int(it[1]), int(it[2]))
            else: o += ald(int(it[1]), int(it[2]))
        return o
    TCH = os.environ.get("TCH", "")
    pro = ["C0", "A00", "A01", "C1", "C2", "A10", "A11", "C3"]
    plan = {0: ["C4", "A20"], 1: ["A21", "C5"], 2: ["C6", "A30"], 3: ["A31", "C7"], 4: ["C8", "A40"], 5: ["A41", "C9"],
            6: ["C10", "A50"], 7: ["A51", "C11", "A60"], 8: ["A61", "C12", "A70"], 9: ["A71", "C13"], 10: ["C14"], 11: ["C15"]}
    if TCH:
        for t in reversed(TCH.split(",")):
            p_, u_ = t.split(":")
            if p_[0] == "p": pro.insert(int(p_[1:]), "T" + u_)
            else: plan[int(p_)] = ["T" + u_] + plan[int(p_)]
        e("v_and_b32 v189, 15, v1")
        e("v_lshlrev_b32 v189, 12, v189")
        e("v_lshrrev_b32 v190, 4, v1")
        e("v_lshl_add_u32 v189, v190, 7, v189")
        e("s_lshl_b32 s22, s19, 19")
        e("s_lshl_b32 s23, s20, 16")
        e("s_add_u32 s22, s22, s23")
        e("s_lshl_b32 s23, s16, 10")
        e("s_add_u32 s22, s22, s23")
        e("s_add_u32 s22, s22, 4096")
        e("v_add_u32 v189, s22, v189")
        e("v_mul_u32_u24 v191, 13, v1")
        e("v_lshrrev_b32 v191, 8, v191")
        e("v_mul_u32_u24 v190, 20, v191")
        e("v_sub_u32 v190, v1, v190")
        e("v_lshlrev_b32 v191, 11, v191")
        e("v_and_b32 v188, 3, v190")
        e("v_lshl_add_u32 v191, v188, 7, v191")
        e("v_lshrrev_b32 v190, 2, v190")
        e(f"v_mul_u32_u24 v190, {ES}, v190")
        e("v_add_u32 v190, v190, v191")
        e("s_mul_i32 s22, s17, 40")
        e("s_mul_i32 s23, s20, 5")
        e("s_add_u32 s22, s22, s23")
        e(f"s_mul_i32 s22, s22, {ES}")
        e("s_add_u32 s22, s22, s47")
        e("s_and_b32 s23, s19, 3")
        e("s_lshl_b32 s23, s23, 9")
        e("s_add_u32 s22, s22, s23")
        e("v_add_u32 v190, s22, v190")
    for l in items(pro): e(l)
    e("v_and_b32 v5, 7, v2")
    e("v_xor_b32 v5, v5, v3")
    e("v_lshlrev_b32 v4, 7, v2")
    e("v_lshl_add_u32 v4, v5, 4, v4")
    e(f"v_add_u32 v{VB0}, s46, v4")
    e(f"v_xor_b32 v{VB1}, 64, v{VB0}")
    srd(24, 4, 2621440)
    e("v_add_u32 v9, s46, v8")
    for n in range(3):
        e(f"s_sub_u32 s22, s16, {n+1}")
        e("s_and_b32 s22, s22, 3")
        e(f"s_mul_i32 s22, s22, {WST}")
        e(f"v_add_u32 v{4+n}, s22, v8")
    e("s_lshl_b32 s21, s19, 3")
    e("s_lshl_b32 s22, s17, 2")
    e("s_add_u32 s21, s21, s22")
    e("s_add_u32 s21, s21, s16")
    e("v_mul_u32_u24 v11, 1280, v2")
    e("v_lshl_add_u32 v11, v3, 3, v11")
    e("v_lshrrev_b32 v7, 1, v3")
    e("v_lshlrev_b32 v7, 8, v7")
    e("v_lshl_add_u32 v7, v2, 4, v7")
    e("v_and_b32 v10, 1, v3")
    e("v_lshl_add_u32 v7, v10, 3, v7")
    e("s_lshl_b32 s63, s19, 3")
    e("s_add_u32 s63, s63, s20")
    e("s_lshl_b32 s63, s63, 2")
    e("s_add_u32 s63, s63, s16")
    e("s_lshl_b32 s63, s63, 1")
    e("s_add_u32 s63, s63, s17")
    e("s_lshl_b32 s63, s63, 12")
    e("s_xor_b32 s68, s63, 4096")
    e(f"s_mov_b32 s69, {NRETRY}")
    srd(96, 6, SZ_XB, WS_XB)
    e("s_mul_i32 s18, s17, 0x80008000")
    PL, PO, PA = 112, 144, 176
    e("s_mul_i32 s48, s2, 3")
    e("s_add_u32 s48, s48, s16")
    e("s_mov_b32 s95, 1")
    e("s_cmp_ge_u32 s2, 240")
    e("s_cbranch_scc1 k2_pdone")
    e("s_cmp_eq_u32 s16, 3")
    e("s_cbranch_scc1 k2_pdone")
    e("s_mov_b32 s95, 0")
    e("s_cmp_ge_u32 s48, 480")
    e("s_cbranch_scc1 k2_pdn")
    e("s_mul_i32 s49, s48, 52429")
    e("s_lshr_b32 s49, s49, 20")
    e("s_mul_i32 s92, s49, 20")
    e("s_sub_u32 s92, s48, s92")
    srd(36, 12, 1966080)
    srd(56, 14, 1966080)
    e("v_bfe_u32 v12, v1, 3, 2")
    e("v_and_b32 v13, 7, v1")
    e("v_lshrrev_b32 v14, 5, v1")
    e(f"v_mul_u32_u24 v{PA+9}, 24576, v12")
    e(f"v_lshl_add_u32 v{PA+9}, v13, 4, v{PA+9}")
    e("v_mul_u32_u24 v15, 12288, v14")
    e(f"v_add_u32 v{PA+9}, v{PA+9}, v15")
    e("s_mul_i32 s84, s92, 98304")
    e("s_lshl_b32 s85, s49, 7")
    e("s_add_u32 s84, s84, s85")
    e("s_mov_b32 s85, s84")
    e("s_mov_b32 s86, 3072")
    e("v_mul_u32_u24 v13, 1040, v13")
    e("v_lshl_add_u32 v13, v12, 8, v13")
    e(f"v_lshl_add_u32 v{PA}, v14, 3, v13")
    e("s_mov_b32 s93, 64")
    e("s_mov_b32 s94, 32")
    e("s_mul_i32 s87, s49, 163840")
    e("s_lshl_b32 s92, s92, 10")
    e("s_add_u32 s87, s87, s92")
    e(f"s_add_u32 s87, s87, {WS_WGU}")
    e("s_mov_b32 s88, 20480")
    e("s_branch k2_pk")
    lab("k2_pdn")
    e("s_sub_u32 s48, s48, 480")
    e("s_mul_i32 s49, s48, 43691")
    e("s_lshr_b32 s49, s49, 21")
    e("s_mul_i32 s92, s49, 48")
    e("s_sub_u32 s92, s48, s92")
    srd(36, 60, 1966080)
    srd(56, 60, 1966080)
    e(f"v_mul_u32_u24 v{PA+9}, 10240, v3")
    e(f"v_lshl_add_u32 v{PA+9}, v2, 4, v{PA+9}")
    e("s_mul_i32 s84, s92, 40960")
    e("s_lshl_b32 s85, s49, 8")
    e("s_add_u32 s84, s84, s85")
    e("s_add_u32 s85, s84, 5120")
    e("s_mov_b32 s86, 1280")
    e("v_lshrrev_b32 v13, 1, v2")
    e("v_mul_u32_u24 v13, 1040, v13")
    e("v_and_b32 v15, 1, v2")
    e("v_lshlrev_b32 v15, 7, v15")
    e("v_lshl_add_u32 v15, v3, 8, v15")
    e(f"v_add_u32 v{PA}, v15, v13")
    e("s_mov_b32 s93, 32")
    e("s_mov_b32 s94, 8")
    e("s_mul_i32 s87, s49, 393216")
    e("s_lshl_b32 s92, s92, 10")
    e("s_add_u32 s87, s87, s92")
    e(f"s_add_u32 s87, s87, {WS_WDN}")
    e("s_mov_b32 s88, 49152")
    lab("k2_pk")
    e("s_add_u32 s49, s46, 23552")
    e(f"v_add_u32 v{PA}, s49, v{PA}")
    for k in range(1, 4):
        e(f"v_add_u32 v{PA+k}, s93, v{PA+k-1}")
    for k in range(4):
        e(f"v_add_u32 v{PA+4+k}, s94, v{PA+k}")
    e(f"v_add_u32 v{PA+12}, s49, v8")
    lab("k2_pdone")
    def dummy(n):
        o = ["s_mov_b64 exec, 1"]
        for j in range(n):
            o.append("buffer_load_dword a250, v8, s[24:27], 0 offen")
        o.append("s_mov_b64 exec, -1")
        return o
    e("s_mov_b32 s89, 0x05040100")
    e("s_mov_b32 s90, 0x07060302")
    e("s_mov_b32 s64, s6")
    e("s_mov_b32 s65, s7")
    e(f"s_mov_b32 s66, {WS_WDN + SZ_WDN}")
    e("s_mov_b32 s67, 0x20000")
    srd(48, 6, SZ_HP, WS_HP)
    srd(52, 6, SZ_HSTAT, WS_HSTAT)
    def xaddr(sST, dX, dH, dS):
        return [f"s_mul_i32 s{dX}, s{sST}, 20480", f"s_mul_i32 s{dH}, s20, 2560", f"s_add_u32 s{dH}, s{dH}, s{dX}",
                "s_mul_i32 s22, s20, 160", f"s_add_u32 s{dX}, s{dX}, s22",
                f"s_lshl_b32 s{dS}, s{sST}, 7", "s_lshl_b32 s22, s20, 14", f"s_add_u32 s{dS}, s{dS}, s22"]
    for l in xaddr(21, 44, 62, 45): e(l)
    PF2 = [int(x) for x in os.environ.get("PF2", "1,3,5,7,9,11").split(",")] if (FUSE34 and PFA < 0) else []
    PF2S = int(os.environ.get("PF2S", "38"))
    if PF2:
        e("s_lshl_b32 s91, s2, 2")
        e("s_add_u32 s91, s91, s16")
        e("s_mul_i32 s91, s91, 6144")
        e(f"s_add_u32 s91, s91, {WS_ACT}")
        e("s_add_u32 s92, s91, 4096")
        for r in range(4): e(f"v_mov_b32 v{144+r}, -1")
    for a in range(160):
        e(f"v_accvgpr_write_b32 a{a}, 0")
    lstamp(0)
    e(f"s_waitcnt vmcnt({vm.younger([('C', 0)])})")
    lstamp(1)
    for l in bread(0): e(l)
    PP, PD = 16, 72
    def RT(k): return (32 + k * 4) if k < 10 else (144 + (k - 10) * 4)
    def RO(k): return (32 + k * 4) if k < 10 else (84 + (k - 10) * 4)
    def xoff(k): return k * 1024 if k < 8 else 32768 + (k - 8) * 1024
    def poll(): return [f"buffer_load_dwordx4 {vr(PD+4*q)}, v8, s[96:99], s68 offen offset:{q*1024} sc1" for q in range(3)]
    PKS = int(os.environ.get("PKS", "12"))
    POLLP = int(os.environ.get("POLLP", "1"))
    RSP = int(os.environ.get("RSP", "36"))
    MIDB = int(os.environ.get("MIDB", "29"))
    for st in range(16):
        u, c = seq[st]
        need = []
        if st + 1 < 16: need.append(("C", st + 1))
        if c == 0: need.append(("A", u))
        if st == 15: need.append("PK")
        lstamp(2 * st + 2)
        e(f"s_waitcnt vmcnt({vm.younger(need)}) lgkmcnt(0)")
        lstamp(2 * st + 3)
        if st == 13: e("s_barrier")
        slots = [[] for _ in range(40)]
        pre = []
        if st == 13:
            for k in range(15):
                slots[k].append(f"ds_read_b128 {vr(RT(k))}, v{4 + k//5} offset:{xoff(k)}")
        if st + 1 < 16:
            for j, l in enumerate(bread(st + 1)):
                slots[(1 + 2*j) if st != 13 else (15 + j)].append(l)
        lst = items(plan.get(st, []))
        grp = []; groups = []
        for l in lst:
            grp.append(l)
            if (l.startswith("buffer") and "a250" not in l) or l.startswith("s_mov_b64 exec"):
                groups.append(grp); grp = []
        for g, gl in enumerate(groups):
            slots[(g * (PF2S if st in PF2 else 40)) // len(groups)] += gl
        for q in range(len(PF2)):
            if PF2[q] == st:
                assert st < 12
                slots[39].append(f"buffer_store_dwordx4 v[144:147], v8, s[64:67], s{91 + (q>>2)} offen offset:{(q&3)*1024} sc1")
                vm.issue("PF", 1)
        if st == PKS:
            for i in range(5):
                slots[2*i] += [f"buffer_load_dwordx2 a[{240+2*i}:{241+2*i}], v11, s[24:27], s44 offen offset:{i*32}"]
            vm.issue("X", 5)
            for which in range(2):
                gl = ["s_cmp_lg_u32 s95, 0", f"s_cbranch_scc1 k2_ld{which}"]
                for j in range(4):
                    sr = 84 + which
                    gl += [f"buffer_load_dwordx4 {vr(PL+(which*4+j)*4)}, v{PA+9}, s[{36+20*which}:{39+20*which}], s{sr} offen",
                           f"s_add_u32 s{sr}, s{sr}, s86"]
                gl += [f"s_branch k2_le{which}", f"k2_ld{which}:"] + dummy(4) + [f"k2_le{which}:"]
                slots[10 + 8*which] += gl
            vm.issue("PK", 8)
        nmaj = st in (12, 15)
        if nmaj:
            for g in range(3):
                for i in range(5):
                    k = g * 5 + i
                    off = xoff(k) if st == 12 else 8192 + k * 1024
                    slots[10*(g+1) + 2 + i].append(f"ds_write_b128 v9, {ar(AC(c,i,g))} offset:{off}")
        if st == 14:
            ops = []
            for i in range(5):
                t = 164 + (i % 3) * 4
                for r in range(4): ops.append(f"v_accvgpr_read_b32 v{t+r}, a{AC(0,i,3)+r}")
                for r in range(4): ops.append(f"v_add_f32 v{RT(i)+r}, v{RT(i)+r}, v{RT(5+i)+r}")
                for r in range(4): ops.append(f"v_add_f32 v{t+r}, v{t+r}, v{RT(10+i)+r}")
                for r in range(4): ops.append(f"v_add_f32 v{t+r}, v{t+r}, v{RT(i)+r}")
                ops.append(f"v_cvt_pk_bf16_f32 v{PP+2*i}, v{t}, v{t+1}")
                ops.append(f"v_cvt_pk_bf16_f32 v{PP+2*i+1}, v{t+2}, v{t+3}")
                if i == 4: ops += [f"v_mov_b32 v{PP+10}, 0", f"v_mov_b32 v{PP+11}, 0"]
                if i in (1, 3, 4):
                    q = i // 2
                    ops.append(f"buffer_store_dwordx4 {vr(PP+4*q)}, v8, s[96:99], s63 offen offset:{q*1024}")
            vm.issue("P", 3)
            for j, l in enumerate(ops):
                slots[(j * RSP) // len(ops)].append(l)
        if st == 15:
            pk = []
            for which in range(2):
                for ee in range(8):
                    o = PO + (which*8+ee)*2
                    g = []
                    for t in range(2):
                        g.append(f"v_perm_b32 v{o+t}, v{PL+(which*4+2*t+1)*4+(ee>>1)}, v{PL+(which*4+2*t)*4+(ee>>1)}, s{89+(ee&1)}")
                    g.append(f"ds_write_b64 v{PA+which*4+(ee>>1)}, v[{o}:{o+1}] offset:{(ee&1)*16}")
                    pk.append(g)
            pk = [pk[2*i] + pk[2*i+1] for i in range(8)]
            for g, gl in enumerate(pk):
                slots[(0, 1, 3, 4, 6, 7, 9, 10)[g]] += ["s_cmp_lg_u32 s95, 0", f"s_cbranch_scc1 k2_np{g}"] + gl + [f"k2_np{g}:"]
            slots[18] += ["s_cmp_lg_u32 s95, 0", "s_cbranch_scc1 k2_npr"] + \
                         [f"ds_read_b128 {vr(PL+g*4)}, v{PA+12} offset:{g*1040}" for g in range(8)] + ["k2_npr:"]
            if MIDB:
                slots[MIDB] += ["s_waitcnt lgkmcnt(0)", "s_barrier"]
                for k in range(10):
                    slots[MIDB + (k + 1) // 2].append(f"ds_read_b128 {vr(RO(k))}, v{4 + k//5} offset:{8192 + k*1024}")
            if POLLP == 0:
                slots[38] += poll()
        order = [(h, i, n) for n in range(4) for h in range(2) for i in range(5)] if nmaj else \
                [(h, i, n) for h in range(2) for i in range(5) for n in range(4)]
        for k, (h, i, n) in enumerate(order):
            mfma(ar(AC(c,i,n)), A(u,h,i), vr(B(st&1,h,n)))
            for l in slots[k]: e(l)
    stamp(2)
    lstamp(34)
    e("s_waitcnt lgkmcnt(0)")
    e("s_barrier")
    if POLLP == 1:
        for l in poll(): e(l)
    for k in range(10 if MIDB else 0, 15):
        e(f"ds_read_b128 {vr(RO(k))}, v{4 + k//5} offset:{8192 + k*1024}")
    if POLLP == 2:
        for l in poll(): e(l)
    e("s_cmp_lg_u32 s95, 0")
    e("s_cbranch_scc1 k2_nq")
    for g in range(8):
        e(f"buffer_store_dwordx4 {vr(PL+g*4)}, v8, s[64:67], s87 offen sc1")
        e("s_add_u32 s87, s87, s88")
    lab("k2_nq")
    stamp(4)
    XU, MU, T, OP, XP = 192, 212, 232, 144, 156
    NS = 168
    def partX():
        o = []
        for i in range(10): o.append(f"v_accvgpr_read_b32 v{XP+i}, a{240+i}")
        for i in range(10):
            o.append(f"v_lshlrev_b32 v{XU+2*i}, 16, v{XP+i}")
            o.append(f"v_and_b32 v{XU+2*i+1}, 0xffff0000, v{XP+i}")
        return o
    def partM(MP):
        o = []
        for i in range(10):
            o.append(f"v_xor_b32 v{T}, s18, v{MP+i}")
            o.append(f"v_lshlrev_b32 v{MU+2*i}, 16, v{T}")
            o.append(f"v_and_b32 v{MU+2*i+1}, 0xffff0000, v{T}")
        return o
    def partB(sH, sS):
        HO = 104
        for i in range(5):
            t = T + (i & 1) * 8
            e(f"v_lshlrev_b32 v{t}, 16, v{PD+2*i}")
            e(f"v_and_b32 v{t+1}, 0xffff0000, v{PD+2*i}")
            e(f"v_lshlrev_b32 v{t+2}, 16, v{PD+2*i+1}")
            e(f"v_and_b32 v{t+3}, 0xffff0000, v{PD+2*i+1}")
            for p in (0, 2):
                e(f"v_pk_fma_f32 v[{t+p}:{t+p+1}], v[{t+p}:{t+p+1}], v[{NS}:{NS+1}], v[{MU+4*i+p}:{MU+4*i+p+1}]")
            e(f"v_cvt_pk_bf16_f32 v{t+4}, v{t}, v{t+1}")
            e(f"v_cvt_pk_bf16_f32 v{t+5}, v{t+2}, v{t+3}")
            e(f"v_lshlrev_b32 v{t}, 16, v{t+4}")
            e(f"v_and_b32 v{t+1}, 0xffff0000, v{t+4}")
            e(f"v_lshlrev_b32 v{t+2}, 16, v{t+5}")
            e(f"v_and_b32 v{t+3}, 0xffff0000, v{t+5}")
            for p in (0, 2):
                e(f"v_pk_add_f32 v[{t+p}:{t+p+1}], v[{t+p}:{t+p+1}], v[{XU+4*i+p}:{XU+4*i+p+1}]")
            o = 32 + 2*i
            e(f"v_cvt_pk_bf16_f32 v{o}, v{t}, v{t+1}")
            e(f"v_cvt_pk_bf16_f32 v{o+1}, v{t+2}, v{t+3}")
            e(f"buffer_store_dwordx2 v[{o}:{o+1}], v7, s[48:51], s{sH} offen offset:{i*512}")
        e("v_mov_b32 v44, 0")
        e("v_mov_b32 v45, 0")
        e("s_mov_b32 s23, 0x3f803f80")
        for i in range(10):
            e(f"v_dot2_f32_bf16 v44, v{32+i}, s23, v44")
            e(f"v_dot2_f32_bf16 v45, v{32+i}, v{32+i}, v45")
        for sw in ("v_permlane16_swap_b32", "v_permlane32_swap_b32"):
            e("s_nop 3")
            e("v_mov_b32 v46, v44")
            e("v_mov_b32 v47, v45")
            e("s_nop 1")
            e(f"{sw} v44, v46")
            e(f"{sw} v45, v47")
            e("s_nop 1")
            e("v_add_f32 v44, v44, v46")
            e("v_add_f32 v45, v45, v47")
        e("v_lshlrev_b32 v10, 3, v2")
        e("s_mov_b64 exec, 0xffff")
        e(f"buffer_store_dwordx2 v[44:45], v10, s[52:55], s{sS} offen")
        e("s_mov_b64 exec, -1")
    def check():
        e(f"v_max3_u32 v{T}, v{PD}, v{PD+1}, v{PD+2}")
        e(f"v_max3_u32 v{T+1}, v{PD+3}, v{PD+4}, v{PD+5}")
        e(f"v_max3_u32 v{T+2}, v{PD+6}, v{PD+7}, v{PD+8}")
        e(f"v_max3_u32 v{T}, v{T}, v{T+1}, v{PD+9}")
        e(f"v_max_u32 v{T}, v{T}, v{T+2}")
        e(f"v_cmp_eq_u32 vcc, -1, v{T}")
    def atomic(dst, soff):
        e(f"v_mov_b32 v{dst}, 1")
        e("s_mov_b64 exec, 1")
        e(f"buffer_atomic_add v{dst}, v8, s[96:99], s{soff} offen offset:3072 sc0")
        e("s_mov_b64 exec, -1")
    for l in partX(): e(l)
    e("s_lshl_b32 s22, s17, 31")
    e("s_xor_b32 s22, s22, 0xbf800000")
    e(f"v_mov_b32 v{NS}, s22")
    e(f"v_mov_b32 v{NS+1}, s22")
    for i in range(5):
        for r in range(4): e(f"v_accvgpr_read_b32 v{MU+4*i+r}, a{AC(1,i,3)+r}")
    e("s_waitcnt lgkmcnt(0)")
    for i in range(5):
        for p in (0, 2):
            e(f"v_pk_add_f32 v[{RO(i)+p}:{RO(i)+p+1}], v[{RO(i)+p}:{RO(i)+p+1}], v[{RO(5+i)+p}:{RO(5+i)+p+1}]")
            e(f"v_pk_add_f32 v[{MU+4*i+p}:{MU+4*i+p+1}], v[{MU+4*i+p}:{MU+4*i+p+1}], v[{RO(10+i)+p}:{RO(10+i)+p+1}]")
        for p in (0, 2):
            e(f"v_pk_add_f32 v[{MU+4*i+p}:{MU+4*i+p+1}], v[{MU+4*i+p}:{MU+4*i+p+1}], v[{RO(i)+p}:{RO(i)+p+1}]")
        e(f"v_cvt_pk_bf16_f32 v{OP+2*i}, v{MU+4*i}, v{MU+4*i+1}")
        e(f"v_cvt_pk_bf16_f32 v{OP+2*i+1}, v{MU+4*i+2}, v{MU+4*i+3}")
    for l in partM(OP): e(l)
    if os.environ.get("K2T") == "1": stamp(2)
    e("s_cmp_lg_u32 s95, 0")
    e("s_cbranch_scc1 k2_w0")
    e("s_waitcnt vmcnt(8)")
    e("s_branch k2_w1")
    lab("k2_w0")
    e("s_waitcnt vmcnt(0)")
    lab("k2_w1")
    if os.environ.get("K2T") == "1": stamp(4)
    atomic(170, 63)
    check()
    if FORCE:
        e(f"s_cmp_eq_u32 s17, {FORCE[0]}" if FORCE[0] in "01" else "s_cmp_eq_u32 s17, s17")
        e("s_cbranch_scc1 k2_giveup")
    e("s_cbranch_vccnz k2_retry")
    lab("k2_own")
    if os.environ.get("K2T") == "2": stamp(2)
    partB(62, 45)
    if os.environ.get("K2T") == "2": stamp(4)
    e("s_waitcnt vmcnt(6)")
    lab("k2_after")
    e("v_readfirstlane_b32 s22, v170")
    e("s_cmp_eq_u32 s22, 0")
    e("s_cbranch_scc1 k2_help")
    lab("k2_fin")
    lstamp(40)
    lst_dump(1)
    stamp(5)
    if DIAG:
        e("s_mov_b32 s76, s69")
        e("s_mov_b32 s77, 0")
    stamp_dump(1, 6)
    lab("k2_end")
    e("s_endpgm")
    lab("k2_retry")
    e("s_sub_u32 s69, s69, 1")
    e("s_cbranch_scc1 k2_giveup")
    for l in poll(): e(l)
    e("s_waitcnt vmcnt(0)")
    check()
    e("s_cbranch_vccnz k2_retry")
    e("s_branch k2_own")
    lab("k2_giveup")
    e(f"s_add_u32 s22, s68, {SZ_XB//2}")
    for q in range(3):
        e(f"buffer_store_dwordx4 {vr(OP+4*q)}, v8, s[96:99], s22 offen offset:{q*1024}")
    e("s_waitcnt vmcnt(0)")
    atomic(171, 68)
    e("s_waitcnt vmcnt(0)")
    e("v_readfirstlane_b32 s22, v171")
    e("s_cmp_lg_u32 s22, 0")
    e("s_cbranch_scc1 k2_after")
    e("s_mov_b32 s69, 8")
    lab("k2_g2")
    for l in poll(): e(l)
    e("s_waitcnt vmcnt(0)")
    check()
    e("s_cbranch_vccz k2_own")
    e("s_sub_u32 s69, s69, 1")
    e("s_cbranch_scc0 k2_g2")
    e("s_branch k2_own")
    lab("k2_help")
    e("s_xor_b32 s21, s21, 4")
    for l in xaddr(21, 44, 62, 45): e(l)
    e(f"s_add_u32 s68, s63, {SZ_XB//2}")
    for l in poll(): e(l)
    for i in range(5):
        e(f"buffer_load_dwordx2 a[{240+2*i}:{241+2*i}], v11, s[24:27], s44 offen offset:{i*32}")
    e("s_waitcnt vmcnt(0)")
    for l in partX() + partM(PP): e(l)
    partB(62, 45)
    e("s_branch k2_fin")

def gen_k4():
    kernel_begin("k4_kernel")
    e("s_cmp_ge_u32 s2, 256")
    e("s_cbranch_scc1 k4_end")
    stamp(0)
    e("s_load_dwordx2 s[4:5], s[0:1], 72")
    e("s_load_dwordx2 s[6:7], s[0:1], 88")
    if CTS:
        for l in code_touch("k4_kernel", "code_end", 26, "v27", back=True): e(l)
    lane_setup()
    if MAP34:
        e("s_bfe_u32 s19, s2, 0x20001")
        e("s_bfe_u32 s21, s2, 0x30003")
        e("s_lshl_b32 s19, s19, 3")
        e("s_add_u32 s19, s19, s21")
        e("s_and_b32 s20, s2, 1")
        e("s_lshl_b32 s20, s20, 2")
        e("s_lshr_b32 s21, s2, 6")
        e("s_add_u32 s20, s20, s21")
    else:
        e("s_and_b32 s19, s2, 7")
        e("s_lshr_b32 s20, s2, 3")
        e("s_lshr_b32 s21, s20, 3")
        e("s_lshl_b32 s19, s19, 2")
        e("s_add_u32 s19, s19, s21")
        e("s_and_b32 s20, s20, 7")
    e("v_lshlrev_b32 v8, 4, v1")
    e("s_mul_i32 s22, s19, 196608")
    e("v_add_u32 v4, s22, v8")
    for n in range(1, 4):
        e(f"v_add_u32 v{4+n}, {n*49152}, v4")
    e("s_mul_i32 s22, s20, 245760")
    e("v_add_u32 v12, s22, v8")
    for i in range(1, 5):
        e(f"v_add_u32 v{12+i}, {i*49152}, v12")
    e("s_mul_i32 s41, s16, 12")
    e("s_lshr_b32 s40, s2, 3")
    e("s_mul_i32 s44, s40, 43691")
    e("s_lshr_b32 s44, s44, 19")
    e("s_mul_i32 s44, s44, 12")
    e("s_sub_u32 s40, s40, s44")
    e("s_waitcnt lgkmcnt(0)")
    srd(28, 6, SZ_ACT, WS_ACT)
    srd(32, 6, SZ_WDN, WS_WDN)
    NSL, AH = 8, 7
    def slot(b, k):
        if b < 6: return vr(32 + b * 36 + k * 4)
        return ar(80 + (b - 6) * 36 + k * 4)
    vm = VM()
    def issue(t):
        o = ["s_add_u32 s44, s40, s41", "s_lshl_b32 s42, s44, 10", "s_add_u32 s40, s40, 1",
             "s_cmp_ge_u32 s40, 12", "s_cselect_b32 s40, 0, s40"]
        b = t % NSL
        for n in range(4):
            o.append(f"buffer_load_dwordx4 {slot(b,5+n)}, v{4+n}, s[28:31], s42 offen")
        for i in range(5):
            o.append(f"buffer_load_dwordx4 {slot(b,i)}, v{12+i}, s[32:35], s42 offen")
        vm.issue(("S", t), 9)
        return o
    for t in range(AH):
        for l in issue(t): e(l)
    stamp(1)
    srd(24, 4, 2621440)
    srd(48, 6, SZ_HP, WS_HP)
    for a in range(80):
        e(f"v_accvgpr_write_b32 a{a}, 0")
    e("v_lshrrev_b32 v18, 2, v1")
    e("v_and_b32 v19, 3, v1")
    e("s_lshl_b32 s22, s19, 2")
    e("s_add_u32 s22, s22, s16")
    e("s_mul_i32 s23, s22, 20480")
    e("s_mul_i32 s45, s20, 2560")
    e("s_add_u32 s45, s45, s23")
    e("v_lshlrev_b32 v20, 4, v18")
    e("v_lshl_add_u32 v20, v19, 8, v20")
    e("v_and_b32 v21, 1, v1")
    e("v_lshlrev_b32 v22, 4, v18")
    e("v_lshl_add_u32 v21, v21, 8, v22")
    e("s_mul_i32 s46, s20, 160")
    e("s_add_u32 s46, s46, s23")
    e("v_mul_u32_u24 v22, 1280, v18")
    e("v_lshl_add_u32 v22, v19, 4, v22")
    if os.environ.get("OT"):
        e("buffer_load_dword v26, v22, s[24:27], s46 offen")
        vm.issue("O", 1)
    e("s_mul_i32 s47, s16, 23040")
    e("v_mul_u32_u24 v23, 288, v3")
    e("v_lshl_add_u32 v23, v2, 4, v23")
    e("v_add_u32 v23, s47, v23")
    e("s_mul_i32 s47, s16, 5760")
    e("v_mul_u32_u24 v24, 576, v19")
    e("v_lshl_add_u32 v24, v18, 4, v24")
    e("v_add_u32 v24, s47, v24")
    e("v_add_u32 v25, 46080, v24")
    HR = 152
    for t in range(12):
        b = t % NSL
        e(f"s_waitcnt vmcnt({vm.younger([('S', t)])})")
        ld = []
        if t + AH < 12:
            ld = issue(t + AH)
        elif t == 12 - AH:
            ld = [f"buffer_load_dwordx4 {ar(HR)}, v20, s[48:51], s45 offen",
                  f"buffer_load_dwordx4 {ar(HR+4)}, v20, s[48:51], s45 offen offset:1024",
                  f"buffer_load_dwordx4 {ar(HR+8)}, v21, s[48:51], s45 offen offset:2048"]
            vm.issue("H", 3)
        grp = []; groups = []
        for l in ld:
            grp.append(l)
            if l.startswith("buffer"):
                groups.append(grp); grp = []
        k = 0
        for i in range(5):
            for n in range(4):
                mfma(ar((i*4+n)*4), slot(b, i), slot(b, 5+n))
                k += 1
                if k % 2 == 0 and groups:
                    for l in groups.pop(0): e(l)
        assert not groups
    stamp(2)
    stamp(3)
    e("s_nop 7")
    e("s_nop 7")
    for n in range(4):
        for i in range(5):
            e(f"ds_write_b128 v23, {ar((i*4+n)*4)} offset:{(n*5+i)*1152}")
    XR = 128
    e("s_waitcnt vmcnt(0)")
    for r in range(12):
        e(f"v_accvgpr_read_b32 v{XR+r}, a{HR+r}")
    e("s_waitcnt lgkmcnt(0)")
    e("s_barrier")
    def S(src, j, hf): return 32 + ((j * 4 + src) * 2 + hf) * 4
    for j in range(3):
        for src in range(4):
            for hf in range(2):
                e(f"ds_read_b128 {vr(S(src,j,hf))}, v{24 + (src>>1)} offset:{(src&1)*23040 + j*2304 + hf*288}")
    stamp(4)
    for j in range(3):
        e(f"s_waitcnt lgkmcnt({min(15,(2-j)*8)})")
        T = 144 + j * 16
        for hf in range(2):
            for p in (0, 2):
                e(f"v_pk_add_f32 v[{T+hf*4+p}:{T+hf*4+p+1}], v[{S(0,j,hf)+p}:{S(0,j,hf)+p+1}], v[{S(1,j,hf)+p}:{S(1,j,hf)+p+1}]")
                e(f"v_pk_add_f32 v[{T+8+hf*4+p}:{T+8+hf*4+p+1}], v[{S(2,j,hf)+p}:{S(2,j,hf)+p+1}], v[{S(3,j,hf)+p}:{S(3,j,hf)+p+1}]")
        for p in range(0, 8, 2):
            e(f"v_pk_add_f32 v[{T+p}:{T+p+1}], v[{T+p}:{T+p+1}], v[{T+8+p}:{T+8+p+1}]")
        for p in range(4):
            e(f"v_cvt_pk_bf16_f32 v{T+8+p}, v{T+2*p}, v{T+2*p+1}")
        for p in range(4):
            e(f"v_lshlrev_b32 v{T+2*p}, 16, v{T+8+p}")
            e(f"v_and_b32 v{T+2*p+1}, 0xffff0000, v{T+8+p}")
        for p in range(4):
            e(f"v_lshlrev_b32 v{T+8+2*p}, 16, v{XR+4*j+p}")
            e(f"v_and_b32 v{T+8+2*p+1}, 0xffff0000, v{XR+4*j+p}")
        for p in range(0, 8, 2):
            e(f"v_pk_add_f32 v[{T+p}:{T+p+1}], v[{T+p}:{T+p+1}], v[{T+8+p}:{T+8+p+1}]")
        O = 192 + 4 * j
        for p in range(4):
            e(f"v_cvt_pk_bf16_f32 v{O+p}, v{T+2*p}, v{T+2*p+1}")
        if j == 2:
            e("s_mov_b32 exec_lo, 0x33333333")
            e("s_mov_b32 exec_hi, 0x33333333")
        e(f"buffer_store_dwordx4 {vr(O)}, v22, s[24:27], s46 offen offset:{j*64}")
    e("s_mov_b64 exec, -1")
    stamp(5)
    stamp_dump(3, 6)
    lab("k4_end")
    e("s_endpgm")

class VM:
    def __init__(self): self.q = []
    def issue(self, tag, n=1): self.q += [tag] * n
    def younger(self, tags):
        last = max(i for i, t in enumerate(self.q) if t in tags)
        return min(63, len(self.q) - 1 - last)

DIAGF = os.environ.get("DIAGF", "0") == "1"
def stF(i, j):
    if DIAGF:
        if j >= 0: stamp(j)
    else: stamp(i)

def gen_k3():
    kernel_begin("k3_kernel")
    e("s_cmp_ge_u32 s2, 256")
    e("s_cbranch_scc1 k3_end")
    stF(0, 0)
    e("s_load_dwordx2 s[6:7], s[0:1], 88")
    if FUSE34: e("s_load_dwordx2 s[4:5], s[0:1], 72")
    if CTS:
        for l in code_touch("k3_kernel", "code_end" if FUSE34 else "k4_kernel", 14, "v22", back=True): e(l)
    lane_setup()
    if os.environ.get("MAP3", "1") == "1":
        e("s_and_b32 s19, s2, 1")
        e("s_bfe_u32 s21, s2, 0x30003")
        e("s_lshl_b32 s19, s19, 3")
        e("s_add_u32 s19, s19, s21")
        e("s_bfe_u32 s20, s2, 0x20001")
        e("s_lshl_b32 s20, s20, 2")
        e("s_lshr_b32 s21, s2, 6")
        e("s_add_u32 s20, s20, s21")
    elif MAP34 and os.environ.get("MAP3") != "2":
        e("s_bfe_u32 s19, s2, 0x20001")
        e("s_bfe_u32 s21, s2, 0x20003")
        e("s_lshl_b32 s19, s19, 2")
        e("s_add_u32 s19, s19, s21")
        e("s_and_b32 s20, s2, 1")
        e("s_lshl_b32 s20, s20, 3")
        e("s_lshr_b32 s21, s2, 5")
        e("s_add_u32 s20, s20, s21")
    else:
        e("s_and_b32 s19, s2, 7")
        e("s_lshr_b32 s20, s2, 3")
        e("s_and_b32 s21, s20, 1")
        e("s_lshl_b32 s19, s19, 1")
        e("s_add_u32 s19, s19, s21")
        e("s_lshr_b32 s20, s20, 1")
    e(f"s_mov_b32 s17, {INV640}")
    e(f"s_mov_b32 s18, {EPS}")
    e("s_mov_b32 s62, 0x3f803f80")
    e("v_lshlrev_b32 v8, 4, v1")
    ROT3 = os.environ.get("ROT3", "0")
    RT3 = [8, 9, 10, 11, 12, 13, 14, 15, 40, 41]
    if ROT3 != "0":
        e("s_bfe_u32 s21, s2, 0x30003")
        e("s_lshr_b32 s22, s2, 6")
        if ROT3 == "2": e("s_mov_b32 s21, 0")
        if ROT3 == "3": e("s_mov_b32 s22, 0")
        e("s_mul_i32 s22, s22, 5")
        e("s_lshr_b32 s22, s22, 1")
        e("s_add_u32 s21, s21, s22")
        e("s_lshl_b32 s21, s21, 11")
        for g in range(10):
            e(f"s_sub_u32 s22, s21, 20480")
            e(f"s_cselect_b32 s{RT3[g]}, s21, s22")
            if g < 9: e(f"s_add_u32 s21, s{RT3[g]}, 2048")
    if FUSE34:
        e("s_lshr_b32 s86, s20, 3")
        e("s_lshl_b32 s87, s19, 1")
        e("s_add_u32 s86, s86, s87")
        e("s_and_b32 s87, s20, 7")
        e("s_mov_b32 s60, 0")
        e("s_mov_b32 s61, 0")
        lab("k3_body")
    e("s_mul_i32 s21, s20, 12")
    e("s_add_u32 s21, s21, s16")
    e("s_mul_i32 s22, s21, 20480")
    e("v_add_u32 v4, s22, v8")
    e("v_add_u32 v5, 81920, v4")
    e("v_add_u32 v6, 163840, v4")
    e("s_mul_i32 s22, s19, 163840")
    e("s_mul_i32 s23, s16, 40960")
    e("s_add_u32 s22, s22, s23")
    e("s_add_u32 s42, s22, 20480")
    e("v_lshlrev_b32 v9, 3, v1")
    e("s_lshl_b32 s48, s19, 10")
    e("s_waitcnt lgkmcnt(0)")
    srd(24, 6, SZ_HP, WS_HP)
    srd(32, 6, SZ_WGU, WS_WGU)
    srd(28, 6, SZ_HSTAT, WS_HSTAT)
    vm = VM()
    D = 6
    WB = 88
    ACC3 = 160
    def Wf(kk, i): return WB + ((kk % D) * 3 + i) * 4
    def Hf(kk, n): return ((kk & 1) * 8 + n) * 4
    HGS = int(os.environ.get("HGS", "2")); LW = int(os.environ.get("LW", "3")); LH = int(os.environ.get("LH", "3"))
    HG = {chr(65 + g): (g * HGS, min(20, g * HGS + HGS)) for g in range((19 + HGS) // HGS)}
    def hdma_l(g, t):
        o = []
        k0, k1 = HG[g]
        for k in range(k0, k1, 4):
            base = t * 20480 + k * 1024
            o.append(f"s_add_u32 m0, s23, {base}")
            if ROT3 != "0":
                assert HGS == 2
                o.append(f"s_add_u32 s44, s{42 if t else 22}, s{RT3[k>>1]}")
            else: o.append(f"s_add_u32 s44, s22, {base}")
            for u in range(min(4, k1 - k)):
                o.append(f"buffer_load_dwordx4 v8, s[24:27], s44 offen offset:{u*1024} lds")
        vm.issue(("H", g), k1 - k0)
        return o
    def wload(kk):
        out = []
        if ROT3 != "0":
            for i in range(3):
                out.append(f"buffer_load_dwordx4 {vr(Wf(kk,i))}, v{4+i}, s[32:35], s{RT3[kk>>1]} offen offset:{(kk&1)*1024}")
            vm.issue(("W", kk), 3)
            return out
        if kk >= 4:
            out.append(f"s_mov_b32 s{45+(kk&1)}, {kk*1024}")
        for i in range(3):
            if kk < 4:
                out.append(f"buffer_load_dwordx4 {vr(Wf(kk,i))}, v{4+i}, s[32:35], 0 offen offset:{kk*1024}")
            else:
                out.append(f"buffer_load_dwordx4 {vr(Wf(kk,i))}, v{4+i}, s[32:35], s{45+(kk&1)} offen")
        vm.issue(("W", kk), 3)
        return out
    def sload(q):
        o = []
        for x in range(4 * q, 4 * q + 4):
            j, eb = x >> 3, x & 7
            o.append(f"s_add_u32 s47, s48, {eb*16384 + j*512}")
            o.append(f"buffer_load_dwordx2 v[{40+(j*8+eb)*2}:{41+(j*8+eb)*2}], v9, s[28:31], s47 offen")
        vm.issue("S", 4)
        return o
    def tload():
        vm.issue("P", 1)
        return ["buffer_load_dword v22, v23, s[52:55], s50 offen", "s_add_u32 s50, s50, 4096"]
    items = []
    for g, (k0, k1) in HG.items():
        for t in range(2):
            items.append((k0 - 1 - LH + (t if HGS > 1 else 0), k0 - 1, f"H{g}{t}"))
    for kk in range(20):
        items.append((kk - LW, kk - 0.5, f"W{kk}"))
    for q in range(4): items.append((9 + q, 30, f"S{q}"))
    last = max(it[0] for it in items)
    WPK = []
    for t in os.environ.get("WPK", "17:6,18:8,19:8,20:4,21:4,22:4,23:4,24:4,25:4,28:14").split(","):
        p_, c_ = t.split(":")
        WPK += [int(p_)] * int(c_)
    NWG = 60
    assert len(WPK) == NWG
    def WD(j, i):
        idx = j * 5 + i
        return 64 + idx * 4 if idx < 48 else (idx - 48) * 4
    def wdload(x):
        j, i = x // 5, x % 5
        sr = 49 + (x & 1)
        o = [f"s_add_u32 s{sr}, s{92+(j&3)}, {i*49152}",
             f"buffer_load_dwordx4 {ar(WD(j,i))}, v8, s[52:55], s{sr} offen offset:{(j>>2)*1024}"]
        vm.issue(("D", j), 1)
        return o
    if FUSE34:
        for x in range(48):
            if WPK[x] < 20: items.append((WPK[x], 40 + x, f"D{x}"))
        assert all(WPK[x] >= 20 for x in range(48, NWG))
    else:
        for q in range(0 if os.environ.get("NOT3", "0") == "1" else (1 if MAP34 else 4)): items.append((min(19, max(15, last + 1) + q), 40, "T"))
    items.sort(key=lambda x: (max(x[0], -1), x[1]))
    sched = {}
    for it, dl, nm in items: sched.setdefault(max(it, -1), []).append(nm)
    BAR = {k0 - 1: g for g, (k0, k1) in HG.items() if k0 > 0}
    def do_items(lst_):
        lst = []
        for it in lst_:
            if it[0] == "W": lst += wload(int(it[1:]))
            elif it[0] == "H": lst += hdma_l(it[1], int(it[2]))
            elif it[0] == "S": lst += sload(int(it[1]))
            elif it[0] == "D": lst += wdload(int(it[1:]))
            else: lst += tload()
        return lst
    for l in do_items(sched[-1]): e(l)
    srd(36, 6, SZ_ACT, WS_ACT)
    srd(52, 6, SZ_WDN, WS_WDN)
    e("s_lshr_b32 s50, s2, 3")
    e("s_lshl_b32 s50, s50, 2")
    e("s_add_u32 s50, s50, s16")
    if FUSE34:
        e(f"s_lshr_b32 s50, s2, {os.environ.get('RSH', '6')}")
        e("s_mul_i32 s51, s16, 12288")
        e("s_mul_i32 s59, s87, 245760")
        for f in range(4):
            e("s_and_b32 s50, s50, 3")
            e(f"s_mul_i32 s{88+f}, s50, 3072")
            e(f"s_add_u32 s{88+f}, s{88+f}, s51")
            e(f"s_add_u32 s{92+f}, s{88+f}, s59")
            e("s_add_u32 s50, s50, 1")
    elif MAP34:
        e("s_mul_i32 s50, s50, 7680")
        e("s_and_b32 s51, s2, 1")
        if os.environ.get("TX3"): e("s_xor_b32 s51, s51, 1")
        e("s_mul_i32 s51, s51, 983040")
        e("s_add_u32 s50, s50, s51")
        e("v_lshlrev_b32 v23, 7, v1")
    else:
        e("s_mul_i32 s50, s50, 15360")
        e("v_lshlrev_b32 v23, 6, v1")
    for a in range(96):
        e(f"v_mov_b32 v{ACC3+a}, 0")
    for r in range(24, 36):
        e(f"v_mov_b32 v{r}, 0")
    for r in range(16, 20):
        e(f"v_mov_b32 v{r}, 0x3f803f80")
    e("v_add_u32 v10, 65536, v8")
    e("v_add_u32 v11, 131072, v8")
    e("v_lshlrev_b32 v12, 2, v2")
    e("v_lshlrev_b32 v13, 4, v3")
    def hread(kk):
        o = []
        for n in range(8):
            off = (n * 20 + kk) * 1024
            base = 8 if off < 65536 else (10 if off < 131072 else 11)
            o.append(f"ds_read_b128 {ar(Hf(kk,n))}, v{base} offset:{off % 65536}")
        return o
    def dots(kk):
        return [f"v_dot2_f32_bf16 v{16+i}, v{Wf(kk,i)+r}, s62, v{16+i}" for r in range(4) for i in range(3)]
    def stats_code():
        sv = L[:]
        del L[:]
        for j in range(2):
            b = 40 + j * 16
            for k in (2, 4, 6, 8, 10, 12, 14):
                e(f"v_add_f32 v{b}, v{b}, v{b+k}")
                e(f"v_add_f32 v{b+1}, v{b+1}, v{b+k+1}")
            ln_stats(b, b+1, 36+2*j, 37+2*j, 20+j)
        for t in range(8):
            e(f"ds_bpermute_b32 v{72+2*t}, v12, v{36+2*(t>>2)} offset:{(t&3)*64}")
            e(f"ds_bpermute_b32 v{73+2*t}, v12, v{37+2*(t>>2)} offset:{(t&3)*64}")
            e(f"ds_bpermute_b32 v{64+t}, v12, v{20+(t>>2)} offset:{(t&3)*64}")
        o = [x.strip() for x in L]
        L[:] = sv
        return o
    stF(1, -1)
    lstamp(0)
    e(f"s_waitcnt vmcnt({vm.younger([('H','A')])})")
    lstamp(1)
    stF(2, -1)
    e("s_barrier")
    stF(3, 1)
    for l in hread(0): e(l)
    for kk in range(20):
        need = [("W", kk)]
        if kk in BAR: need.append(("H", BAR[kk]))
        if kk == 15: need.append("S")
        lstamp(2 * kk + 2)
        e(f"s_waitcnt vmcnt({vm.younger(need)}) lgkmcnt(0)")
        lstamp(2 * kk + 3)
        if kk in BAR and "r" not in os.environ.get("K3X", ""): e("s_barrier")
        slots = [[] for _ in range(27)]
        if kk + 1 < 20:
            for j, l in enumerate(hread(kk + 1)):
                slots[(j * int(os.environ.get("HRS", "2"))) // 2].append(l)
        lst = do_items(sched.get(kk, []))
        groups = []; grp = []
        for l in lst:
            if grp and any(x.startswith("buffer") for x in grp) and not l.startswith("s_add_u32 s50"):
                groups.append(grp); grp = []
            grp.append(l)
        if grp: groups.append(grp)
        for g, gl in enumerate(groups):
            slots[1 + (g * 25) // max(len(groups), 8)] += gl
        if kk == int(os.environ.get("CT3", "-1")) and CT:
            slots[26] += code_touch("k4_kernel", "code_end", 14, "v22")
            vm.issue("CT", 1)
        if kk == 15: sc = stats_code()
        if kk in (15, 16):
            part = sc[:54] if kk == 15 else sc[54:]
            for j, l in enumerate(part):
                slots[(j * 27) // len(part)].append(l)
        if kk == 19:
            for j, l in enumerate(["v_mul_u32_u24 v9, 49152, v3", "v_lshl_add_u32 v9, v2, 4, v9", "s_mul_i32 s22, s19, 393216", "s_lshl_b32 s23, s21, 8",
                                   "s_add_u32 s22, s22, s23", "v_mov_b32 v36, 0xbdd2d3e8", "v_mov_b32 v37, 0xc0135761"]):
                slots[j].append(l)
        if kk == 18 and FUSE34:
            for j, l in enumerate(["s_mul_i32 s51, s86, 196608", "v_add_u32 v4, s51, v8", "v_add_u32 v5, 49152, v4", "v_add_u32 v6, 98304, v4",
                                   "v_add_u32 v7, 147456, v4", f"s_mov_b32 s57, {int(os.environ.get('NR4', '64'))}"]):
                slots[20 + j].append(l)
        K3X = os.environ.get("K3X", "")
        if "d" in K3X: slots = [[l for l in sl if not l.startswith("ds_read")] for sl in slots]
        if "b" in K3X: slots = [[l for l in sl if not l.startswith("buffer")] for sl in slots]
        if "s" in K3X: slots = [[l for l in sl if not l.startswith("s_")] for sl in slots]
        if "v" in K3X: slots = [[l for l in sl if not (l.startswith("v_") or l.startswith("ds_bp"))] for sl in slots]
        k = 0
        for i in range(3):
            mfma(vr(24+4*i), vr(Wf(kk,i)), vr(16))
            for l in slots[k]: e(l)
            k += 1
        for n in range(8):
            for i in range(3):
                mfma(vr(ACC3+(i*8+n)*4), vr(Wf(kk,i)), ar(Hf(kk,n)))
                for l in slots[k]: e(l)
                k += 1
    stF(4, 2)
    lstamp(42)
    AP0 = [int(x) for x in os.environ.get("AP0", "84,84,84,84").split(",")]
    def ACT(j, n): return 32 + (((j + 4) % 9) * 4 + n) * 4
    def aload(j):
        vm.issue(("S", j), 4)
        return [f"buffer_load_dwordx4 {vr(ACT(j,n))}, v{4+n}, s[36:39], s{88+(j&3)} offen offset:{(j>>2)*1024} sc1" for n in range(4)]
    def epi(i):
        o = []
        for hi, n0 in enumerate((0, 4)):
            TB = 40 + hi * 12
            O = TB + 8
            lists = []
            for g in range(4):
                n = n0 + g
                A = ACC3 + (i*8+n)*4
                S = 72 + 2*n
                SD = 64 + (n & ~1); sd = n & 1
                WS = 24 + i*4
                t2 = TB + g*2
                l = []
                for p in (0, 2):
                    l.append(f"v_pk_fma_f32 v[{A+p}:{A+p+1}], v[{S}:{S+1}], v[{WS+p}:{WS+p+1}], v[{A+p}:{A+p+1}] op_sel:[0,0,0] op_sel_hi:[0,1,1] neg_lo:[1,0,0] neg_hi:[1,0,0]")
                l.append(f"v_pk_mul_f32 v[{A}:{A+1}], v[{A}:{A+1}], v[{S}:{S+1}] op_sel:[0,1] op_sel_hi:[1,1]")
                l.append(f"v_pk_mul_f32 v[{t2}:{t2+1}], v[{A}:{A+1}], v[{A}:{A+1}]")
                l.append(f"v_pk_fma_f32 v[{t2}:{t2+1}], v[{t2}:{t2+1}], v[36:37], v[36:37] op_sel:[0,0,1] op_sel_hi:[1,0,1]")
                l.append(f"v_pk_mul_f32 v[{t2}:{t2+1}], v[{t2}:{t2+1}], v[{A}:{A+1}]")
                l.append(f"v_exp_f32 v{t2}, v{t2}")
                l.append(f"v_exp_f32 v{t2+1}, v{t2+1}")
                l.append(f"v_pk_mul_f32 v[{A}:{A+1}], v[{A}:{A+1}], v[{A+2}:{A+3}]")
                l.append(f"v_pk_fma_f32 v[{t2}:{t2+1}], v[{t2}:{t2+1}], v[{SD}:{SD+1}], v[{SD}:{SD+1}] op_sel:[0,{sd},{sd}] op_sel_hi:[1,{sd},{sd}]")
                l.append(f"v_rcp_f32 v{t2}, v{t2}")
                l.append(f"v_rcp_f32 v{t2+1}, v{t2+1}")
                l.append(f"v_pk_mul_f32 v[{t2}:{t2+1}], v[{t2}:{t2+1}], v[{A}:{A+1}]")
                l.append(f"v_cvt_pk_bf16_f32 v{O+g}, v{t2}, v{t2+1}")
                lists.append(l)
            ex = []
            if FUSE34:
                for x in range(NWG):
                    if WPK[x] == 20 + 2*i + hi: ex.append(x)
            nk = len(lists[0])
            for k in range(nk):
                for g in range(4): o.append(lists[g][k])
                for q, x in enumerate(ex):
                    if (q * nk) // len(ex) == k: o += wdload(x)
                if FUSE34:
                    for j in range(4):
                        if AP0[j] == (2*i + hi) * nk + k: o += aload(j)
            o.append("s_nop 1")
            o.append(f"v_permlane16_swap_b32 v{O}, v{O+1}")
            o.append(f"v_permlane16_swap_b32 v{O+2}, v{O+3}")
            o.append("s_nop 1")
            o.append(f"v_permlane32_swap_b32 v{O}, v{O+2}")
            o.append(f"v_permlane32_swap_b32 v{O+1}, v{O+3}")
            o.append(f"s_add_u32 s44, s22, {n0*49152 + i*1024}")
            o.append("s_nop 1")
            o.append(f"buffer_store_dwordx4 {vr(O)}, v9, s[36:39], s44 offen")
            vm.issue(("AS", i), 1)
        return o
    if FUSE34: e("s_barrier")
    e("s_nop 7")
    stF(5, -1)
    for i in range(3):
        for l in epi(i): e(l)
    stF(6, 3)
    lstamp(43)
    if not FUSE34:
        stamp_dump(2, 7)
        lab("k3_end")
        e("s_endpgm")
        return
    def wdat(p):
        for x in range(NWG):
            if WPK[x] == p:
                for l in wdload(x): e(l)
    e("s_cmp_lg_u32 s61, 0")
    e("s_cbranch_scc1 k4_trust")
    lab("k4_tr2")
    wdat(26)
    for j in range(4):
        if AP0[j] >= 84:
            for l in aload(j): e(l)
    AC4 = 176
    HR = 48
    F4 = os.environ.get("FORCE4")
    def chk(j):
        r = [ACT(j, 0) + t for t in range(16)]
        o = [f"v_max3_u32 v16, v{r[0]}, v{r[1]}, v{r[2]}", f"v_max3_u32 v17, v{r[3]}, v{r[4]}, v{r[5]}",
             f"v_max3_u32 v16, v16, v{r[6]}, v{r[7]}", f"v_max3_u32 v17, v17, v{r[8]}, v{r[9]}",
             f"v_max3_u32 v16, v16, v{r[10]}, v{r[11]}", f"v_max3_u32 v17, v17, v{r[12]}, v{r[13]}",
             f"v_max3_u32 v16, v16, v{r[14]}, v{r[15]}", "v_max_u32 v16, v16, v17", "v_cmp_eq_u32 vcc, -1, v16"]
        return o
    wdat(27)
    srd(24, 4, 2621440)
    srd(28, 6, SZ_HP, WS_HP)
    su = []
    sv = L[:]
    del L[:]
    e("v_lshrrev_b32 v18, 2, v1")
    e("v_and_b32 v19, 3, v1")
    e("s_lshl_b32 s22, s86, 2")
    e("s_add_u32 s22, s22, s16")
    e("s_mul_i32 s23, s22, 20480")
    e("s_mul_i32 s45, s87, 2560")
    e("s_add_u32 s45, s45, s23")
    e("v_lshlrev_b32 v20, 4, v18")
    e("v_lshl_add_u32 v20, v19, 8, v20")
    e("v_and_b32 v21, 1, v1")
    e("v_lshlrev_b32 v22, 4, v18")
    e("v_lshl_add_u32 v21, v21, 8, v22")
    e("s_mul_i32 s46, s87, 160")
    e("s_add_u32 s46, s46, s23")
    e("v_mul_u32_u24 v22, 1280, v18")
    e("v_lshl_add_u32 v22, v19, 4, v22")
    e("s_mul_i32 s47, s16, 23040")
    e("v_mul_u32_u24 v14, 288, v3")
    e("v_lshl_add_u32 v14, v2, 4, v14")
    e("v_add_u32 v14, s47, v14")
    e("s_mul_i32 s47, s16, 5760")
    e("v_mul_u32_u24 v24, 576, v19")
    e("v_lshl_add_u32 v24, v18, 4, v24")
    e("v_add_u32 v24, s47, v24")
    e("v_add_u32 v25, 46080, v24")
    e("s_lshl_b32 s47, s16, 2")
    e(f"s_add_u32 s47, s47, 94208")
    e("v_mov_b32 v27, s47")
    e("v_mov_b32 v28, 94208")
    e("v_mov_b32 v29, 0")
    su = [x.strip() for x in L]
    L[:] = sv
    for l in su: e(l)
    for _ in range(int(os.environ.get("D1", "0"))): e("s_sleep 1")
    PB = {}
    for t in os.environ.get("PB", "0:A4,A5;1:A6,A7;2:A8,A9;3:A10,A11;4:D4;5:D4;6:D4;7:D2,H").split(";"):
        k_, v_ = t.split(":")
        PB[k_] = v_.split(",")
    late = [x for x in range(NWG) if WPK[x] == 28]
    def hrl(q):
        vm.issue("HR", 1)
        return [f"buffer_load_dwordx4 {ar(HR+4*q)}, v{20 + (q>>1)}, s[28:31], s45 offen offset:{q*1024}"]
    def aload1(j, n):
        vm.issue(("S", j), 1)
        return [f"buffer_load_dwordx4 {vr(ACT(j,n))}, v{4+n}, s[36:39], s{88+(j&3)} offen offset:{(j>>2)*1024} sc1"]
    def pbitems(key):
        o = []
        for it in PB.get(key, []):
            if it[0] == "A":
                ja = int(it[1:])
                if ja >= 9: assert key != "p" and int(key) > ja - 9
                o += [(lambda ja=ja, n=n: aload1(ja, n)) for n in range(4)]
            elif it[0] == "D":
                for _ in range(int(it[1:])):
                    x = late.pop(0)
                    o.append(lambda x=x: wdload(x))
            else: o += [(lambda q=q: hrl(q)) for q in range(3)]
        return o
    for f in pbitems("p"):
        for l in f(): e(l)
    if DIAGF: stamp(4)
    CKP = int(os.environ.get("CKP", "10"))
    PBS = int(os.environ.get("PBS", "20"))
    e(f"s_waitcnt vmcnt({vm.younger([('S', 0)])})")
    for l in chk(0): e(l)
    for j in range(12):
        if F4 and int(F4) == j:
            e("s_cmp_eq_u32 s58, 12345")
            e(f"s_cbranch_scc1 k4_nf")
            e("s_mov_b32 s58, 12345")
            e("s_mov_b32 s57, 0")
            e(f"s_branch k4_r{j}")
            lab(f"k4_nf")
        e(f"s_cbranch_vccnz k4_r{j}")
        lab(f"k4_ok{j}")
        lstamp(44 + j)
        if j == 0: stF(1, 5)
        e(f"s_waitcnt vmcnt({vm.younger([('D', j)])})")
        ck = []
        if j < 11: ck = ["W"] + chk(j + 1)
        its = pbitems(str(j))
        sl = [[] for _ in range(20)]
        for g, f in enumerate(its): sl[(g * PBS) // len(its)].append(f)
        def ckp():
            l = ck.pop(0)
            e(f"s_waitcnt vmcnt({vm.younger([('S', j + 1)])})" if l == "W" else l)
        k = 0
        for i in range(5):
            for n in range(4):
                mfma(vr(AC4+(i*4+n)*4), ar(WD(j,i)), vr(ACT(j,n)), "0" if j == 0 else None)
                for f in sl[k]:
                    for l in f(): e(l)
                if k >= CKP and ck:
                    ckp()
                    if k == CKP: ckp()
                k += 1
        while ck: ckp()
    assert not late
    e(f"s_waitcnt vmcnt({vm.younger(['HR'])})")
    if DIAGF:
        e("s_mov_b32 s72, s57")
        e("s_mov_b32 s73, s57")
    stF(2, 6)
    lstamp(56)
    stF(3, -1)
    e("s_nop 7")
    e("s_nop 7")
    for n in range(4):
        for i in range(5):
            e(f"ds_write_b128 v14, {vr(AC4+(i*4+n)*4)} offset:{(n*5+i)*1152}")
    lab("k4_stat")
    e("ds_write_b32 v27, v29")
    XR = 128
    for r in range(12):
        e(f"v_accvgpr_read_b32 v{XR+r}, a{HR+r}")
    e("s_waitcnt lgkmcnt(0)")
    e("s_barrier")
    e("ds_read_b128 v[140:143], v28")
    def S(src, j, hf): return 32 + ((j * 4 + src) * 2 + hf) * 4
    for j in range(3):
        for src in range(4):
            for hf in range(2):
                e(f"ds_read_b128 {vr(S(src,j,hf))}, v{24 + (src>>1)} offset:{(src&1)*23040 + j*2304 + hf*288}")
    stF(4, -1)
    e("s_waitcnt lgkmcnt(15)")
    e("v_max3_u32 v140, v140, v141, v142")
    e("v_max_u32 v140, v140, v143")
    e("s_nop 0")
    e("v_readfirstlane_b32 s22, v140")
    e("s_cmp_lg_u32 s22, 0")
    e("s_cbranch_scc1 k4_help")
    for j in range(3):
        e(f"s_waitcnt lgkmcnt({min(15,(2-j)*8)})")
        T = 144 + j * 16
        for hf in range(2):
            for p in (0, 2):
                e(f"v_pk_add_f32 v[{T+hf*4+p}:{T+hf*4+p+1}], v[{S(0,j,hf)+p}:{S(0,j,hf)+p+1}], v[{S(1,j,hf)+p}:{S(1,j,hf)+p+1}]")
                e(f"v_pk_add_f32 v[{T+8+hf*4+p}:{T+8+hf*4+p+1}], v[{S(2,j,hf)+p}:{S(2,j,hf)+p+1}], v[{S(3,j,hf)+p}:{S(3,j,hf)+p+1}]")
        for p in range(0, 8, 2):
            e(f"v_pk_add_f32 v[{T+p}:{T+p+1}], v[{T+p}:{T+p+1}], v[{T+8+p}:{T+8+p+1}]")
        for p in range(4):
            e(f"v_cvt_pk_bf16_f32 v{T+8+p}, v{T+2*p}, v{T+2*p+1}")
        for p in range(4):
            e(f"v_lshlrev_b32 v{T+2*p}, 16, v{T+8+p}")
            e(f"v_and_b32 v{T+2*p+1}, 0xffff0000, v{T+8+p}")
        for p in range(4):
            e(f"v_lshlrev_b32 v{T+8+2*p}, 16, v{XR+4*j+p}")
            e(f"v_and_b32 v{T+8+2*p+1}, 0xffff0000, v{XR+4*j+p}")
        for p in range(0, 8, 2):
            e(f"v_pk_add_f32 v[{T+p}:{T+p+1}], v[{T+p}:{T+p+1}], v[{T+8+p}:{T+8+p+1}]")
        O = 192 + 4 * j
        for p in range(4):
            e(f"v_cvt_pk_bf16_f32 v{O+p}, v{T+2*p}, v{T+2*p+1}")
        if j == 2:
            e("s_mov_b32 exec_lo, 0x33333333")
            e("s_mov_b32 exec_hi, 0x33333333")
        e(f"buffer_store_dwordx4 {vr(O)}, v22, s[24:27], s46 offen offset:{j*64}")
    e("s_mov_b64 exec, -1")
    stF(5, 7)
    lstamp(57)
    lst_dump(2)
    if DIAGF: stamp_dump(2, 8)
    else:
      if DIAG:
        e("s_mov_b32 s76, s57")
        e("s_mov_b32 s77, 0")
      stamp_dump(3, 6)
    lab("k3_end")
    e("s_endpgm")
    for j in range(12):
        lab(f"k4_r{j}")
        e(f"s_lshr_b32 s22, s{88+(j&3)}, 10")
        e("s_mul_i32 s22, s22, 171")
        e("s_lshr_b32 s22, s22, 9")
        e("s_sub_u32 s57, s57, 1")
        e("s_cbranch_scc1 k4_to")
        if int(os.environ.get("PSL", "0")): e(f"s_sleep {os.environ['PSL']}")
        for l in aload(j): e(l)
        e("s_waitcnt vmcnt(0)")
        for l in chk(j): e(l)
        e(f"s_cbranch_vccz k4_ok{j}")
        e("s_bitcmp1_b32 s60, s22")
        e(f"s_cbranch_scc1 k4_ok{j}")
        e(f"s_branch k4_r{j}")
    lab("k4_to")
    e("s_waitcnt vmcnt(0)")
    e("s_add_u32 s22, s22, 1")
    e("v_mov_b32 v29, s22")
    e("s_branch k4_stat")
    lab("k4_trust")
    e("s_waitcnt vmcnt(0)")
    e("s_barrier")
    e("s_bitset1_b32 s60, s20")
    e("s_branch k4_tr2")
    lab("k4_help")
    e("s_sub_u32 s20, s22, 1")
    e("s_mov_b32 s61, 1")
    e("s_waitcnt vmcnt(0) lgkmcnt(0)")
    e("s_barrier")
    e("s_branch k3_body")

def descriptor(name, vgpr, accum, sgpr=102):
    raw(f".amdhsa_kernel {name}")
    raw(f"  .amdhsa_next_free_vgpr {vgpr}")
    raw(f"  .amdhsa_next_free_sgpr {sgpr}")
    raw(f"  .amdhsa_accum_offset {accum}")
    raw("  .amdhsa_group_segment_fixed_size 0")
    raw("  .amdhsa_kernarg_size 96")
    raw("  .amdhsa_user_sgpr_count 2")
    raw("  .amdhsa_user_sgpr_kernarg_segment_ptr 1")
    raw("  .amdhsa_system_sgpr_workgroup_id_x 1")
    raw(".end_amdhsa_kernel")

def main():
    raw("; 4-kernel pipeline: K1 LN1+hidden DFT GEMM, K2 seq DFT GEMM + residual, K3 LN2+gate/up GEMM+GEGLU, K4 down GEMM + residual")
    raw("; @launch kernel=k1_kernel grid=(256,1,1) block=(256,1,1) lds=152832")
    raw(f"; @launch kernel=k2_kernel grid=(256,1,1) block=(256,1,1) lds={156032 if K2OLD else 159744}")
    raw("; @launch kernel=k3_kernel grid=(256,1,1) block=(256,1,1) lds=163840")
    if not FUSE34: raw("; @launch kernel=k4_kernel grid=(256,1,1) block=(256,1,1) lds=94208")
    raw('.amdgcn_target "amdgcn-amd-amdhsa--gfx950"')
    raw(".text")
    gen_k1(); (gen_k2_old if K2OLD else gen_k2)(); gen_k3()
    if not FUSE34: gen_k4()
    lab("code_end")
    raw('.section .rodata,"a"')
    raw(".p2align 6")
    descriptor("k1_kernel", 348, 160)
    raw(".p2align 6")
    descriptor("k2_kernel", 432 if K2OLD else 512, 256)
    raw(".p2align 6")
    descriptor("k3_kernel", 512 if FUSE34 else 320, 256)
    if not FUSE34:
        raw(".p2align 6")
        descriptor("k4_kernel", 424, 256)
    out = sys.argv[1] if len(sys.argv) > 1 else f"cdna_kernels/{NAME}.s"
    NOSC = os.environ.get("NOSC", "").split(",")
    LL = [ (l + " sc1") if ("buffer_store" in l and "; plain" not in l and "s[64:67]" not in l and not any(x and x in l for x in NOSC)) else l for l in L]
    open(out, "w").write("\n".join(LL) + "\n")

main()
```

```python
import sys

L = []
def e(s): L.append("    " + s)
def lab(s): L.append(s + ":")
def raw(s): L.append(s)

NAME = "sequential_preLN__spectral_fnet__geglu_ffn__prompt"

import os
ES = 65536 + int(os.environ.get("EPAD", "0"))
WS_ABP = 0 if ES == 65536 else 0x1800000
SZ_ABP = 80 * ES
WS_HP = 0x500000
SZ_HP = 128 * 20 * 1024
WS_HSTAT = 0x780000
SZ_HSTAT = 2048 * 8 * 8
WS_ACT = 0x800000
SZ_ACT = 128 * 48 * 1024
WS_WGU = 0xE00000
WSUM_OFF = 192 * 20 * 1024
SZ_WGU = WSUM_OFF + 192 * 4 * 64
WS_WDN = 0x1200000
SZ_WDN = 40 * 48 * 1024

WS_XB = 0x1400000
SZ_XB = 0x800000
K2OLD = os.environ.get("K2OLD", "0") == "1"
FUSE34 = os.environ.get("FUSE34", "1") == "1"
PFA = int(os.environ.get("PFA", "-1"))
INV640 = 0x3ACCCCCD
EPS = 0x3727C5AC

import os
DIAG = os.environ.get("DIAG", "0") == "1"
WS_DIAG = 0x3000000
DIAG2 = os.environ.get("DIAG2", "0") == "1"
def stamp(i):
    if DIAG2 and i == 0:
        e("s_memrealtime s[70:71]")
        e("s_memtime s[72:73]")
        e("s_waitcnt lgkmcnt(0)")
    if DIAG:
        if os.environ.get("RT"): e(f"s_memrealtime s[{70+2*i}:{71+2*i}]")
        else: e(f"s_memtime s[{70+2*i}:{71+2*i}]")
        e("s_waitcnt lgkmcnt(0)")
def stamp_dump(kidx, n):
    if DIAG2:
        e("s_waitcnt vmcnt(0)")
        e("s_memrealtime s[74:75]")
        e("s_memtime s[76:77]")
        e("s_load_dwordx2 s[64:65], s[0:1], 80")
        e("s_waitcnt lgkmcnt(0)")
        e("s_lshl_b32 s68, s2, 2")
        e("s_add_u32 s68, s68, s16")
        e("s_cmp_lg_u32 s68, 0")
        e(f"s_cbranch_scc1 dg_skip{kidx}")
        e("s_mov_b32 s66, 256")
        e("s_mov_b32 s67, 0x20000")
        e("v_mov_b32 v0, 0")
        e("s_mov_b64 exec, 1")
        e("v_mov_b32 v2, s70")
        e("v_mov_b32 v3, s74")
        e("v_mov_b32 v4, s72")
        e("v_mov_b32 v5, s76")
        e(f"buffer_store_dwordx4 v[2:5], v0, s[64:67], 0 offen offset:{kidx*16}")
        e("s_waitcnt vmcnt(0)")
        lab(f"dg_skip{kidx}")
    if not DIAG: return
    e("s_waitcnt vmcnt(0)")
    stamp(n)
    e(f"s_add_u32 s64, s6, {WS_DIAG + kidx*0x40000}")
    e("s_addc_u32 s65, s7, 0")
    e("s_mov_b32 s66, 0x40000")
    e("s_mov_b32 s67, 0x20000")
    e("s_lshl_b32 s68, s2, 2")
    e("s_add_u32 s68, s68, s16")
    e("s_lshl_b32 s68, s68, 8")
    e("v_mov_b32 v0, 0")
    e("s_mov_b64 exec, 1")
    for i in range(n+1):
        e(f"v_mov_b32 v2, s{70+2*i}")
        e(f"v_mov_b32 v3, s{71+2*i}")
        e(f"buffer_store_dwordx2 v[2:3], v0, s[64:67], s68 offen offset:{i*8}")
    e("s_getreg_b32 s69, hwreg(HW_REG_XCC_ID)")
    e("v_mov_b32 v2, s69")
    e("s_getreg_b32 s69, hwreg(HW_REG_HW_ID)")
    e("v_mov_b32 v3, s69")
    e(f"buffer_store_dwordx2 v[2:3], v0, s[64:67], s68 offen offset:248")
    e("s_waitcnt vmcnt(0)")

LST = os.environ.get("LST", "0") == "1"
def lstamp(idx):
    if not LST: return
    e("s_memrealtime s[100:101]")
    e("s_waitcnt lgkmcnt(0)")
    e(f"v_writelane_b32 v15, s100, {idx}")
def lst_dump(kidx):
    if not LST: return
    e("s_waitcnt vmcnt(0)")
    lstamp(63)
    e(f"s_add_u32 s64, s6, {WS_DIAG + 0x100000 + kidx*0x40000}")
    e("s_addc_u32 s65, s7, 0")
    e("s_mov_b32 s66, 0x40000")
    e("s_mov_b32 s67, 0x20000")
    e("s_lshl_b32 s68, s2, 2")
    e("s_add_u32 s68, s68, s16")
    e("s_lshl_b32 s68, s68, 8")
    e("v_lshlrev_b32 v0, 2, v1")
    e("s_mov_b64 exec, -1")
    e("buffer_store_dword v15, v0, s[64:67], s68 offen")
    e("s_waitcnt vmcnt(0)")

def srd(d, lo, size, off=0):
    if off:
        e(f"s_add_u32 s{d}, s{lo}, {off}")
        e(f"s_addc_u32 s{d+1}, s{lo+1}, 0")
    else:
        e(f"s_mov_b32 s{d}, s{lo}")
        e(f"s_mov_b32 s{d+1}, s{lo+1}")
    e(f"s_mov_b32 s{d+2}, {size}")
    e(f"s_mov_b32 s{d+3}, 0x20000")

def bf16r(dst, src):
    e(f"v_cvt_pk_bf16_f32 v{dst}, v{src}, v{src}")
    e(f"v_lshlrev_b32 v{dst}, 16, v{dst}")

def vr(b, n=4): return f"v[{b}:{b+n-1}]"
def ar(b, n=4): return f"a[{b}:{b+n-1}]"

def mfma(d, a, b, c=None):
    c = d if c is None else c
    if L and L[-1].split()[0] in ("v_exp_f32", "v_rcp_f32", "v_sqrt_f32", "v_rsq_f32"): e("s_nop 1")
    e(f"v_mfma_f32_16x16x32_bf16 {d}, {a}, {b}, {c}")

def kernel_begin(name):
    raw(f".globl {name}")
    raw(".p2align 8")
    raw(f".type {name},@function")
    lab(name)

CT = os.environ.get("CT", "1") == "1"
MAP34 = os.environ.get("MAP34", "1") == "1"
CTS = os.environ.get("CTS", "1") == "1"
_ctn = [0]
def code_touch(target, endl, vtmp, dst, back=False, n=1):
    if not CT: return []
    _ctn[0] += 1
    u = f"ct_pc{_ctn[0]}"
    o = ["s_getpc_b64 s[96:97]", u + ":"]
    if back:
        o += [f"s_sub_u32 s96, s96, {u}-{target}", "s_subb_u32 s97, s97, 0"]
    else:
        o += [f"s_add_u32 s96, s96, {target}-{u}", "s_addc_u32 s97, s97, 0"]
    o += [f"s_mov_b32 s98, {endl}-{target}", "s_mov_b32 s99, 0x20000", f"v_lshlrev_b32 v{vtmp}, 7, v0"]
    o.append(f"buffer_load_dword {dst}, v{vtmp}, s[96:99], 0 offen")
    if n > 1:
        o.append(f"v_add_u32 v{vtmp}, 32768, v{vtmp}")
        o.append(f"buffer_load_dword {dst}, v{vtmp}, s[96:99], 0 offen")
    return o

def lane_setup():
    e("v_lshrrev_b32 v4, 6, v0")
    e("v_and_b32 v1, 63, v0")
    e("v_readfirstlane_b32 s16, v4")
    e("v_and_b32 v2, 15, v1")
    e("v_lshrrev_b32 v3, 4, v1")

def ln_stats(vsum, vsq, vm, vrd, t):
    e(f"v_mul_f32 v{vm}, s17, v{vsum}")
    e(f"v_mul_f32 v{t}, s17, v{vsq}")
    e(f"v_fma_f32 v{t}, -v{vm}, v{vm}, v{t}")
    e(f"v_max_f32 v{t}, 0, v{t}")
    bf16r(vm, vm)
    bf16r(t, t)
    e(f"v_add_f32 v{t}, s18, v{t}")
    bf16r(t, t)
    e(f"v_sqrt_f32 v{t}, v{t}")
    e("s_nop 0")
    bf16r(t, t)
    e(f"v_rcp_f32 v{vrd}, v{t}")
    e("s_nop 0")

def gen_k1():
    kernel_begin("k1_kernel")
    e("s_cmp_ge_u32 s2, 256")
    e("s_cbranch_scc1 k1_end")
    stamp(0)
    e("s_load_dwordx2 s[4:5], s[0:1], 0")
    e("s_load_dwordx2 s[8:9], s[0:1], 24")
    e("s_load_dwordx2 s[10:11], s[0:1], 32")
    e("s_load_dwordx2 s[6:7], s[0:1], 88")
    e("s_load_dwordx4 s[56:59], s[0:1], 8")
    PT = int(os.environ.get("PT", "-1"))
    if PT >= 0:
        e("s_load_dwordx4 s[36:39], s[0:1], 48")
        e("s_load_dwordx4 s[40:43], s[0:1], 64")
    for l in code_touch("k1_kernel", "code_end", 154, "v155", back=True, n=2): e(l)
    lane_setup()
    e("s_and_b32 s19, s2, 3")
    e("s_lshl_b32 s19, s19, 2")
    e("s_bfe_u32 s21, s2, 0x20003")
    e("s_add_u32 s19, s19, s21")
    e("s_lshr_b32 s22, s2, 5")
    e("s_bfe_u32 s20, s2, 0x10002")
    e("s_lshl_b32 s20, s20, 3")
    e("s_add_u32 s20, s20, s22")
    e("s_add_u32 s48, s21, s22")
    e("v_lshlrev_b32 v15, 4, v1")
    e("v_lshrrev_b32 v25, 3, v1")
    e("v_and_b32 v26, 7, v1")
    e("v_xor_b32 v26, v26, v25")
    e("v_mul_u32_u24 v25, 1280, v25")
    e("v_lshl_add_u32 v25, v26, 4, v25")
    e("s_and_b32 s21, s20, 7")
    e("s_mul_i32 s21, s21, 102400")
    e("s_and_b32 s22, s16, 1")
    e("s_mul_i32 s22, s22, 51200")
    e("s_add_u32 s21, s21, s22")
    e("s_lshr_b32 s22, s16, 1")
    e("s_lshl_b32 s22, s22, 7")
    e("s_add_u32 s21, s21, s22")
    e("v_add_u32 v4, s21, v25")
    e("s_lshl_b32 s21, s19, 7")
    e("s_lshl_b32 s22, s16, 5")
    e("s_add_u32 s21, s21, s22")
    e("s_mul_i32 s21, s21, 1280")
    e("v_add_u32 v5, s21, v25")
    for j in range(1, 4):
        e(f"v_add_u32 v{5+j}, {j*10240 - j*1024}, v5")
    e("s_mul_i32 s46, s16, 12288")
    e("s_add_u32 s46, s46, 102400")
    e("s_mul_i32 s47, s16, 5120")
    e("s_mul_i32 s49, s48, 205")
    e("s_lshr_b32 s49, s49, 10")
    e("s_mul_i32 s49, s49, 5")
    e("s_sub_u32 s49, s48, s49")
    if os.environ.get("K1NOROT"): e("s_mov_b32 s49, 0")
    for sc in range(5):
        e(f"s_lshl_b32 s{50+sc}, s49, 8")
        e("s_add_u32 s49, s49, 1")
        e("s_cmp_ge_u32 s49, 5")
        e("s_cselect_b32 s49, 0, s49")
    if os.environ.get("K1ST"): e("s_memtime s[84:85]")
    e("s_waitcnt lgkmcnt(0)")
    if os.environ.get("K1ST"): stamp(8)
    srd(24, 4, 2621440)
    e("s_cmp_lt_u32 s20, 8")
    e("s_cselect_b32 s28, s8, s10")
    e("s_cselect_b32 s29, s9, s11")
    e("s_mov_b32 s30, 819200")
    e("s_mov_b32 s31, 0x20000")
    vm = VM()
    XS = 76
    def wdma(sc):
        o = []
        for u in range(5):
            o.append(f"s_add_u32 m0, s47, {sc*20480 + u*1024}")
            o.append(f"s_add_u32 s23, s{50+sc}, {u*10240}")
            o.append("buffer_load_dwordx4 v4, s[28:31], s23 offen lds")
        vm.issue(("W", sc), 5)
        return o
    def xld(c):
        if c < 3:
            o = [f"s_add_u32 m0, s46, {(c%3)*4096}", f"s_add_u32 s22, s{50+(c>>1)}, {(c&1)*128}"]
            for j in range(4):
                o.append(f"buffer_load_dwordx4 v{5+j}, s[24:27], s22 offen offset:{j*1024} lds")
        else:
            o = [f"s_add_u32 s22, s{50+(c>>1)}, {(c&1)*128}"]
            for j in range(4):
                o.append(f"buffer_load_dwordx4 {ar(XS+(c-3)*16+j*4)}, v{5+j}, s[24:27], s22 offen offset:{j*1024}")
        vm.issue(("X", c), 4)
        return o
    for l in wdma(0) + xld(0) + xld(1): e(l)
    if os.environ.get("K1ST"): stamp(9)
    e(f"s_mov_b32 s17, {INV640}")
    e(f"s_mov_b32 s18, {EPS}")
    e("v_and_b32 v26, 7, v2")
    e("v_xor_b32 v26, v26, v3")
    e("v_lshlrev_b32 v11, 7, v2")
    e("v_lshl_add_u32 v11, v26, 4, v11")
    e("v_xor_b32 v12, 64, v11")
    e("v_add_u32 v13, 61440, v11")
    e("v_add_u32 v14, 61440, v12")
    e("v_add_u32 v9, s46, v11")
    e("v_add_u32 v10, s46, v12")
    srd(32, 6, SZ_ABP, WS_ABP)
    if not K2OLD:
        srd(60, 6, WS_XB + SZ_XB - WS_ACT, WS_ACT)
        for r in range(4): e(f"v_mov_b32 v{156+r}, -1")
    TST = [int(x) for x in os.environ.get("TST", "3,6").split(",")]
    PL, PO, PA = 144, 176, 144
    e(f"v_add_u32 v{PA+8}, s46, v15")
    e("s_cmp_lt_u32 s2, 128")
    e("s_cselect_b32 s56, s56, s58")
    e("s_cselect_b32 s57, s57, s59")
    e("s_mov_b32 s58, 8388608")
    e("s_mov_b32 s59, 0x20000")
    if os.environ.get("TSH"):
        e("s_add_u32 s21, s2, 3")
        e("s_and_b32 s21, s21, 7")
    else:
        e("s_and_b32 s21, s2, 7")
    e("s_bfe_u32 s22, s2, 0x20005")
    e("s_lshl_b32 s21, s21, 2")
    e("s_add_u32 s21, s21, s22")
    e("s_lshl_b32 s21, s21, 2")
    e("s_bfe_u32 s22, s2, 0x20003")
    e("s_add_u32 s21, s21, s22")
    e("s_lshl_b32 s21, s21, 2")
    e("s_add_u32 s21, s21, s16")
    e("s_lshl_b32 s91, s21, 14")
    e(f"v_lshlrev_b32 v{PA+10}, 7, v1")
    def touch():
        if os.environ.get("NOPF"): return []
        vm.issue("T", 1)
        return [f"buffer_load_dword v{PA+11}, v{PA+10}, s[56:59], s91 offen", "s_add_u32 s91, s91, 8192"]
    for t in TST:
        if t == -1:
            for l in touch(): e(l)
    for a in range(76):
        e(f"v_accvgpr_write_b32 a{a}, 0")
    ONES = 16
    for r in range(4):
        e(f"v_mov_b32 v{ONES+r}, 0x3f803f80")
    FB = 32
    def XF(b, st, h): return FB + b * 56 + (st * 2 + h) * 4
    def WF(b, i, h): return FB + b * 56 + 16 + (i * 2 + h) * 4
    def fread(c):
        o = []
        b = c & 1
        for h in range(2):
            for st in range(2):
                o.append(f"ds_read_b128 {vr(XF(b,st,h))}, v{9+h} offset:{(c%3)*4096 + st*2048}")
            for i in range(5):
                off = c * 10240 + i * 2048
                if off < 61440:
                    o.append(f"ds_read_b128 {vr(WF(b,i,h))}, v{11+h} offset:{off}")
                else:
                    o.append(f"ds_read_b128 {vr(WF(b,i,h))}, v{13+h} offset:{off-61440}")
        return o
    stamp(1)
    e(f"s_waitcnt vmcnt({vm.younger([('W',0),('X',0)])})")
    e("s_barrier")
    stamp(2)
    for l in fread(0): e(l)
    for c in range(10):
        b = c & 1
        need = []
        if c + 1 <= 2: need.append(("X", c + 1))
        if c + 1 < 10: need.append(("W", (c + 1) >> 1))
        if 3 <= c + 2 <= 9: need.append(("X", c + 2))
        if need and c < 8:
            e(f"s_waitcnt vmcnt({vm.younger(need)}) lgkmcnt(0)")
        else:
            e("s_waitcnt lgkmcnt(0)")
        if c in (1, 3, 5, 7): e("s_barrier")
        NM = 28
        slots = [[] for _ in range(NM)]
        if c + 1 < 10:
            for j, l in enumerate(fread(c + 1)):
                slots[j].append(l)
        if 3 <= c + 2 <= 9:
            for j in range(4):
                slots[14 + j].append(f"ds_write_b128 v{PA+8}, {ar(XS+(c-1)*16+j*4)} offset:{((c+2)%3)*4096 + j*1024}")
        lst = []
        if c < 4: lst = wdma(c + 1) + xld(2 * c + 2) + xld(2 * c + 3)
        for t in TST:
            if t == c: lst += touch()
        if c == int(os.environ.get("PFC", "5")) and not K2OLD:
            slots[21] += ["s_lshl_b32 s44, s2, 2", "s_add_u32 s44, s44, s16", "s_lshl_b32 s44, s44, 12", f"s_add_u32 s44, s44, {WS_XB - WS_ACT}"]
            for q in range(3):
                slots[22 + q] += [f"buffer_store_dwordx4 v[156:159], v15, s[60:63], s44 offen offset:{q*1024}"]
            slots[25] += ["s_mov_b64 exec, 1", "buffer_store_dword v156, v15, s[60:63], s44 offen offset:3072", "s_mov_b64 exec, -1"]
            vm.issue("PF", 4)
        if c == PFA and FUSE34:
            slots[18] += ["s_lshl_b32 s44, s2, 2", "s_add_u32 s44, s44, s16", "s_mul_i32 s44, s44, 6144"]
            for q in range(6):
                if q == 4: slots[19 + q] += ["s_add_u32 s44, s44, 4096"]
                slots[19 + q] += [f"buffer_store_dwordx4 v[156:159], v15, s[60:63], s44 offen offset:{(q&3)*1024}"]
            vm.issue("PF", 6)
        if c == PT:
            PSH = int(os.environ.get("PSH", "16"))
            slots[22] += ["s_add_u32 s92, s6, 0x1000000", "s_addc_u32 s93, s7, 0", "s_mov_b32 s60, s6", "s_mov_b32 s61, s7",
                          "s_mov_b32 s62, 0x1000000", "s_mov_b32 s94, 0x1000000", "s_mov_b32 s44, 18",
                          "s_cmp_eq_u32 s16, 1", "s_cselect_b32 s60, s42, s60", "s_cselect_b32 s61, s43, s61", "s_cselect_b32 s92, s36, s92", "s_cselect_b32 s93, s37, s93",
                          "s_cselect_b32 s62, 2621440, s62", "s_cselect_b32 s94, 1966080, s94", f"s_cselect_b32 s44, {PSH}, s44"]
            slots[23] += ["s_cmp_eq_u32 s16, 2", "s_cselect_b32 s60, s38, s60", "s_cselect_b32 s61, s39, s61", "s_cselect_b32 s92, s40, s92", "s_cselect_b32 s93, s41, s93",
                          "s_cselect_b32 s62, 1966080, s62", "s_cselect_b32 s94, 1966080, s94", f"s_cselect_b32 s44, {PSH}, s44",
                          "s_mov_b32 s63, 0x20000", "s_mov_b32 s95, 0x20000", "v_lshlrev_b32 v157, s44, v1",
                          "buffer_load_dword v155, v157, s[60:63], 0 offen", "buffer_load_dword v155, v157, s[92:95], 0 offen"]
            vm.issue("PT", 2)
        if c == int(os.environ.get("CT1", "-1")) and CT:
            slots[20] += code_touch("k2_kernel", "k3_kernel", 156, "v155")
            vm.issue("CT", 1)
        groups = []; grp = []
        for l in lst:
            if grp and any(x.startswith("buffer") for x in grp) and not (l.startswith("s_add_u32 s8") or l.startswith("s_add_u32 s9")):
                groups.append(grp); grp = []
            grp.append(l)
        if grp: groups.append(grp)
        for g, gl in enumerate(groups):
            slots[g] = gl + slots[g]
        ml = []
        for h in range(2):
            for i in range(5):
                for st in range(2):
                    ml.append((ar((st*5+i)*4), vr(XF(b,st,h)), vr(WF(b,i,h))))
            for st in range(2):
                ml.append((ar(40+4*st), vr(XF(b,st,h)), vr(ONES)))
                ml.append((ar(48+4*st), vr(XF(b,st,h)), vr(XF(b,st,h))))
        for k, m in enumerate(ml):
            mfma(*m)
            for l in slots[k]: e(l)
        for wv in range(4):
            e(f"s_cmp_lg_u32 s16, {wv}")
            e(f"s_cbranch_scc1 k1_ws{c}_{wv}")
            for i in range(5):
                for h in range(2):
                    if (c * 2 + i * 2 + h) % 4 == wv:
                        mfma(ar(56+4*i), vr(ONES), vr(WF(b,i,h)))
            lab(f"k1_ws{c}_{wv}")
    stamp(3)
    WX = 151552
    e("s_nop 7")
    e("s_nop 7")
    for i in range(5):
        e(f"v_accvgpr_read_b32 v{20+i}, a{56+4*i}")
    e("v_lshlrev_b32 v25, 2, v2")
    e("s_mul_i32 s21, s16, 320")
    e(f"s_add_u32 s21, s21, {WX}")
    e("v_add_u32 v26, s21, v25")
    for i in range(5):
        e(f"ds_write_b32 v26, v{20+i} offset:{i*64}")
    e("v_mul_u32_u24 v12, 80, v3")
    for st in range(2):
        for r in range(4):
            e(f"v_accvgpr_read_b32 v{32+st*4+r}, a{40+4*st+r}")
            e(f"v_accvgpr_read_b32 v{40+st*4+r}, a{48+4*st+r}")
    e("s_nop 1")
    for st in range(2):
        for r in range(4):
            e(f"ds_bpermute_b32 v{40+st*4+r}, v12, v{40+st*4+r} offset:{4*r}")
    e(f"v_add_u32 v26, {WX}, v25")
    e("s_waitcnt lgkmcnt(0)")
    e("s_barrier")
    for wv in range(4):
        for i in range(5):
            e(f"ds_read_b32 v{124+wv*5+i}, v26 offset:{wv*320 + i*64}")
    for st in range(2):
        for r in range(4):
            ln_stats(32+st*4+r, 40+st*4+r, 52+st*4+r, 60+st*4+r, 48)
    e("s_waitcnt lgkmcnt(0)")
    for i in range(5):
        e(f"v_add_f32 v{20+i}, v{124+i}, v{129+i}")
        e(f"v_add_f32 v{124+i}, v{134+i}, v{139+i}")
        e(f"v_add_f32 v{20+i}, v{20+i}, v{124+i}")
    e("v_and_b32 v26, 1, v3")
    e("v_lshlrev_b32 v26, 9, v26")
    e("v_lshrrev_b32 v27, 1, v3")
    e("v_lshl_add_u32 v26, v27, 8, v26")
    e("v_lshl_add_u32 v26, v2, 4, v26")
    e("s_lshl_b32 s22, s19, 2")
    e("s_add_u32 s21, s22, s16")
    e("s_lshl_b32 s21, s21, 10")
    e(f"s_mul_i32 s22, s20, {5*ES}")
    e("s_add_u32 s21, s21, s22")
    for i in range(5):
        T = 72 + (i & 1) * 16
        O = 104 + i * 4
        for st in range(2):
            for r in range(4):
                e(f"v_accvgpr_read_b32 v{T+st*4+r}, a{(st*5+i)*4+r}")
        for st in range(2):
            for r in range(4):
                e(f"v_fma_f32 v{T+st*4+r}, -v{52+st*4+r}, v{20+i}, v{T+st*4+r}")
        for st in range(2):
            for r in range(4):
                e(f"v_mul_f32 v{T+st*4+r}, v{T+st*4+r}, v{60+st*4+r}")
        for st in range(2):
            e(f"v_cvt_pk_bf16_f32 v{O+2*st}, v{T+st*4}, v{T+st*4+1}")
            e(f"v_cvt_pk_bf16_f32 v{O+2*st+1}, v{T+st*4+2}, v{T+st*4+3}")
        e("s_nop 1")
        e(f"v_permlane16_swap_b32 v{O}, v{O+2}")
        e(f"v_permlane16_swap_b32 v{O+1}, v{O+3}")
        e(f"s_add_u32 s23, s21, {i*ES}")
        e("s_nop 1")
        e(f"buffer_store_dwordx4 {vr(O)}, v26, s[32:35], s23 offen")
        vm.issue("S", 1)
    stamp(4)
    lab("k1_fin")
    stamp(5)
    stamp_dump(0, 6)
    if os.environ.get("K1ST"):
        for i in range(7, 10):
            e(f"v_mov_b32 v2, s{70+2*i}")
            e(f"v_mov_b32 v3, s{71+2*i}")
            e(f"buffer_store_dwordx2 v[2:3], v0, s[64:67], s68 offen offset:{i*8}")
        e("s_waitcnt vmcnt(0)")
    lab("k1_end")
    e("s_endpgm")

ACC = 176
BUF = 32
def bufA(b, i): return BUF + b * 36 + i * 4
def bufB(b, n): return BUF + b * 36 + 20 + n * 4
def acc(i, n): return ACC + (i * 4 + n) * 4

def splitk_core(nsteps, srdA, srdB, shA, shB, vA, vB, mask):
    def addr():
        e("s_add_u32 s44, s40, s41")
        e(f"s_lshl_b32 s42, s44, {shA}")
        e(f"s_lshl_b32 s43, s44, {shB}")
        e("s_add_u32 s40, s40, 1")
        if mask:
            e(f"s_and_b32 s40, s40, {nsteps-1}")
        else:
            e(f"s_cmp_ge_u32 s40, {nsteps}")
            e("s_cselect_b32 s40, 0, s40")
    def loads(b):
        out = []
        for n in range(4):
            out.append(f"buffer_load_dwordx4 {vr(bufB(b,n))}, v{vB+n}, s[{srdB}:{srdB+3}], s43 offen")
        for i in range(5):
            out.append(f"buffer_load_dwordx4 {vr(bufA(b,i))}, v{vA+i}, s[{srdA}:{srdA+3}], s42 offen")
        return out
    for it in range(3):
        addr()
        for l in loads(it): e(l)
    for a in range(80):
        e(f"v_mov_b32 v{ACC+a}, 0")
    for it in range(nsteps):
        b = it % 4
        rem = min(nsteps - 1 - it, 2)
        e(f"s_waitcnt vmcnt({9*rem})")
        ld = []
        if it + 3 < nsteps:
            addr()
            ld = loads((it + 3) % 4)
        k = 0
        for i in range(5):
            for n in range(4):
                mfma(vr(acc(i,n)), vr(bufA(b,i)), vr(bufB(b,n)))
                k += 1
                if k % 2 == 0 and ld:
                    e(ld.pop(0))
        assert not ld

def splitk_exchange():
    e("s_nop 7")
    e("s_nop 7")
    e("s_mul_i32 s44, s16, 5120")
    e("v_add_u32 v9, s44, v8")
    e("v_add_u32 v10, 61440, v9")
    for n in range(4):
        for i in range(5):
            if n < 3:
                e(f"ds_write_b128 v9, {vr(acc(i,n))} offset:{(n*20+i)*1024}")
            else:
                e(f"ds_write_b128 v10, {vr(acc(i,n))} offset:{i*1024}")
    e("s_mul_i32 s44, s16, 20480")
    e("v_add_u32 v9, s44, v8")
    e("s_waitcnt lgkmcnt(0)")
    e("s_barrier")
    for src in range(4):
        for i in range(5):
            e(f"ds_read_b128 {vr(BUF+(src*5+i)*4)}, v9 offset:{(src*5+i)*1024}")


def hp_addr(vdst, s_st, s_d16base, sdst_list):
    e(f"v_lshrrev_b32 v{vdst}, 1, v3")
    e(f"v_lshlrev_b32 v{vdst}, 8, v{vdst}")
    e(f"v_lshl_add_u32 v{vdst}, v2, 4, v{vdst}")
    e("v_and_b32 v10, 1, v3")
    e(f"v_lshl_add_u32 v{vdst}, v10, 3, v{vdst}")
    e(f"s_mul_i32 s44, s{s_st}, 20480")
    for i in range(5):
        e(f"s_add_u32 s45, s{s_d16base}, {i}")
        e(f"s_lshl_b32 s45, s45, 9")
        e(f"s_add_u32 s{sdst_list[i]}, s44, s45")

def gen_k2_old():
    ROT = os.environ.get("K2ROT", "0") == "1"
    kernel_begin("k2_kernel")
    e("s_cmp_ge_u32 s2, 256")
    e("s_cbranch_scc1 k2_end")
    stamp(0)
    e("s_load_dwordx2 s[4:5], s[0:1], 0")
    e("s_load_dwordx2 s[8:9], s[0:1], 8")
    e("s_load_dwordx2 s[10:11], s[0:1], 16")
    e("s_load_dwordx2 s[6:7], s[0:1], 88")
    e("s_load_dwordx4 s[12:15], s[0:1], 48")
    e("s_load_dwordx2 s[60:61], s[0:1], 64")
    if CTS:
        for l in code_touch("k2_kernel", "k3_kernel", 12, "a91", back=True): e(l)
    lane_setup()
    if os.environ.get("MAP2", "1") == "1":
        e("s_bfe_u32 s19, s2, 0x20001")
        e("s_bfe_u32 s21, s2, 0x30003")
        e("s_lshl_b32 s19, s19, 3")
        e("s_add_u32 s19, s19, s21")
        e("s_and_b32 s20, s2, 1")
        e("s_lshl_b32 s20, s20, 2")
        e("s_lshr_b32 s21, s2, 6")
        e("s_add_u32 s20, s20, s21")
    else:
        e("s_and_b32 s19, s2, 7")
        e("s_lshr_b32 s20, s2, 3")
        e("s_lshr_b32 s21, s20, 3")
        e("s_lshl_b32 s19, s19, 2")
        e("s_add_u32 s19, s19, s21")
        e("s_and_b32 s20, s20, 7")
    e("v_lshlrev_b32 v8, 4, v1")
    VC, VA, VB0, VB1 = 16, 24, 29, 30
    e("v_lshrrev_b32 v4, 3, v1")
    e("v_and_b32 v5, 7, v1")
    e("v_xor_b32 v5, v5, v4")
    e("v_lshlrev_b32 v4, 12, v4")
    e("v_lshl_add_u32 v4, v5, 4, v4")
    e("s_lshl_b32 s22, s19, 18")
    if os.environ.get("XC"): e("s_mov_b32 s22, 0")
    e(f"v_add_u32 v{VC}, s22, v4")
    for j in range(1, 8):
        e(f"v_add_u32 v{VC+j}, {j*32768 - (j%4)*1024}, v{VC}")
    e("s_lshr_b32 s22, s16, 1")
    e("s_mul_i32 s22, s22, 40")
    e("s_mul_i32 s23, s20, 5")
    if os.environ.get("XA"): e("s_mov_b32 s23, 0")
    e("s_add_u32 s22, s22, s23")
    e(f"s_mul_i32 s22, s22, {ES}")
    e(f"v_add_u32 v{VA}, s22, v8")
    for i in range(1, 5):
        e(f"v_add_u32 v{VA+i}, {i*ES}, v{VA}")
    e("s_lshl_b32 s46, s16, 15")
    e("v_and_b32 v5, 7, v2")
    e("v_xor_b32 v5, v5, v3")
    e("v_lshlrev_b32 v4, 7, v2")
    e("v_lshl_add_u32 v4, v5, 4, v4")
    e(f"v_add_u32 v{VB0}, s46, v4")
    e(f"v_xor_b32 v{VB1}, 64, v{VB0}")
    e("s_and_b32 s41, s16, 1")
    e("s_lshl_b32 s47, s41, 11")
    e("s_lshl_b32 s41, s41, 15")
    if os.environ.get("SAMEA"): e("s_mov_b32 s41, 0")
    if os.environ.get("SAMEC"): e("s_mov_b32 s47, 0")
    if os.environ.get("HALFWG"):
        e("s_bitcmp1_b32 s2, 3")
        e("s_cbranch_scc1 k2_end")
    if ROT:
        e("s_lshr_b32 s40, s2, 6")
        e("s_lshl_b32 s40, s40, 2")
    elif os.environ.get("K2ROT", "0") == "2":
        e("s_and_b32 s40, s2, 7")
        e("s_lshl_b32 s40, s40, 1")
    elif os.environ.get("K2ROT", "0") == "3":
        e("s_and_b32 s40, s2, 3")
        e("s_lshl_b32 s40, s40, 2")
    else:
        e("s_mov_b32 s40, 0")
    LEAD = int(os.environ.get("LEAD", "0"))
    LM = os.environ.get("LM", "me")
    e("s_mov_b32 s95, 0")
    if "m" in LM: e("s_lshr_b32 s95, s2, 6")
    if "e" in LM: e("s_add_u32 s95, s95, s20")
    e("s_and_b32 s95, s95, 3")
    e("s_lshl_b32 s21, s19, 6")
    e("s_lshl_b32 s22, s16, 4")
    e("s_add_u32 s21, s21, s22")
    e("s_mul_i32 s22, s21, 1280")
    e("s_mul_i32 s23, s20, 160")
    e("s_add_u32 s22, s22, s23")
    e("v_mul_u32_u24 v11, 1280, v2")
    e("v_lshl_add_u32 v11, v3, 3, v11")
    e("v_add_u32 v11, s22, v11")
    e("s_waitcnt lgkmcnt(0)")
    srd(24, 4, 2621440)
    e("s_cmp_lt_u32 s16, 2")
    e("s_cselect_b32 s28, s8, s10")
    e("s_cselect_b32 s29, s9, s11")
    e("s_mov_b32 s30, 8388608")
    e("s_mov_b32 s31, 0x20000")
    srd(32, 6, SZ_ABP, WS_ABP)
    stamp(1)
    AB = 32
    BB = 192
    def A(b, h, i):
        if b < 2: return vr(AB + (b * 10 + h * 5 + i) * 4)
        return ar(96 + ((b - 2) * 10 + h * 5 + i) * 4)
    def B(b, h, n): return BB + (b * 8 + h * 4 + n) * 4
    vm = VM()
    def stage_issue(stg):
        b = stg % 4
        HALFA = os.environ.get("HALFA") and (stg & 1)
        HALFC = os.environ.get("HALFC") and (stg & 1)
        vm.issue(("S", stg), 18 - (10 if HALFA else 0) - (8 if HALFC else 0))
        o = []
        if LEAD:
            o.append(f"s_cmp_eq_u32 s95, {stg & 3}")
            o.append(f"s_cselect_b32 s40, {(stg + LEAD) & 15}, {stg}")
        o.append("s_lshl_b32 s42, s40, 7")
        o.append("s_add_u32 s42, s42, s47")
        o.append(f"s_add_u32 m0, s46, {b*8192}")
        o.append("s_lshl_b32 s43, s40, 11")
        for j in range(4):
            if not HALFC: o.append(f"buffer_load_dwordx4 v{VC+j}, s[28:31], s42 offen offset:{j*1024} lds")
        o.append(f"s_add_u32 m0, s46, {b*8192+4096}")
        o.append("s_add_u32 s43, s43, s41")
        for j in range(4, 8):
            if not HALFC: o.append(f"buffer_load_dwordx4 v{VC+j}, s[28:31], s42 offen offset:{(j-4)*1024} lds")
        for h in range(2):
            for i in range(5):
                if not HALFA: o.append(f"buffer_load_dwordx4 {A(b,h,i)}, v{VA+i}, s[32:35], s43 offen offset:{h*1024}")
        o.append("s_add_u32 s40, s40, 1")
        o.append(f"s_and_b32 s40, s40, {os.environ.get('XK', '15')}")
        return o
    def bread(st):
        o = []
        for h in range(2):
            for n in range(4):
                o.append(f"ds_read_b128 {vr(B(st&1,h,n))}, v{VB0+h} offset:{(st%4)*8192 + n*2048}")
        return o
    if os.environ.get("ABT"):
        e("s_lshl_b32 s22, s2, 2")
        e("s_add_u32 s22, s22, s16")
        e("s_mul_i32 s22, s22, 5120")
        e("v_lshlrev_b32 v12, 7, v1")
        e("s_mov_b32 exec_hi, 0xff")
        e("buffer_load_dword a92, v12, s[32:35], s22 offen")
        e("s_mov_b32 exec_hi, -1")
    for st in range(3):
        for l in stage_issue(st): e(l)
    for i in range(5):
        e(f"buffer_load_dwordx2 a[{80+2*i}:{81+2*i}], v11, s[24:27], 0 offen offset:{i*32}")
    vm.issue("X", 5)
    PL, PO, PA = 112, 144, 176
    e("s_mul_i32 s48, s2, 3")
    e("s_add_u32 s48, s48, s16")
    e("s_cmp_ge_u32 s2, 240")
    e("s_cselect_b64 vcc, -1, 0")
    e("s_cmp_eq_u32 s16, 3")
    e("s_cselect_b64 vcc, -1, vcc")
    e("s_cbranch_vccnz k2_pdum")
    e("s_cmp_ge_u32 s48, 480")
    e("s_cbranch_scc1 k2_pdn")
    e("s_mul_i32 s49, s48, 52429")
    e("s_lshr_b32 s49, s49, 20")
    e("s_mul_i32 s92, s49, 20")
    e("s_sub_u32 s92, s48, s92")
    srd(36, 12, 1966080)
    srd(56, 14, 1966080)
    e("v_bfe_u32 v12, v1, 3, 2")
    e("v_and_b32 v13, 7, v1")
    e("v_lshrrev_b32 v14, 5, v1")
    e(f"v_mul_u32_u24 v{PA+9}, 24576, v12")
    e(f"v_lshl_add_u32 v{PA+9}, v13, 4, v{PA+9}")
    e("v_mul_u32_u24 v15, 12288, v14")
    e(f"v_add_u32 v{PA+9}, v{PA+9}, v15")
    e("s_mul_i32 s84, s92, 98304")
    e("s_lshl_b32 s85, s49, 7")
    e("s_add_u32 s84, s84, s85")
    e("s_mov_b32 s85, s84")
    e("s_mov_b32 s86, 3072")
    e("v_mul_u32_u24 v13, 1040, v13")
    e("v_lshl_add_u32 v13, v12, 8, v13")
    e(f"v_lshl_add_u32 v{PA}, v14, 3, v13")
    e("s_mov_b32 s93, 64")
    e("s_mov_b32 s94, 32")
    e("s_mul_i32 s87, s49, 163840")
    e("s_lshl_b32 s92, s92, 10")
    e("s_add_u32 s87, s87, s92")
    e(f"s_add_u32 s87, s87, {WS_WGU}")
    e("s_mov_b32 s88, 20480")
    e("s_branch k2_pk")
    lab("k2_pdn")
    e("s_sub_u32 s48, s48, 480")
    e("s_mul_i32 s49, s48, 43691")
    e("s_lshr_b32 s49, s49, 21")
    e("s_mul_i32 s92, s49, 48")
    e("s_sub_u32 s92, s48, s92")
    srd(36, 60, 1966080)
    srd(56, 60, 1966080)
    e(f"v_mul_u32_u24 v{PA+9}, 10240, v3")
    e(f"v_lshl_add_u32 v{PA+9}, v2, 4, v{PA+9}")
    e("s_mul_i32 s84, s92, 40960")
    e("s_lshl_b32 s85, s49, 8")
    e("s_add_u32 s84, s84, s85")
    e("s_add_u32 s85, s84, 5120")
    e("s_mov_b32 s86, 1280")
    e("v_lshrrev_b32 v13, 1, v2")
    e("v_mul_u32_u24 v13, 1040, v13")
    e("v_and_b32 v15, 1, v2")
    e("v_lshlrev_b32 v15, 7, v15")
    e("v_lshl_add_u32 v15, v3, 8, v15")
    e(f"v_add_u32 v{PA}, v15, v13")
    e("s_mov_b32 s93, 32")
    e("s_mov_b32 s94, 8")
    e("s_mul_i32 s87, s49, 393216")
    e("s_lshl_b32 s92, s92, 10")
    e("s_add_u32 s87, s87, s92")
    e(f"s_add_u32 s87, s87, {WS_WDN}")
    e("s_mov_b32 s88, 49152")
    lab("k2_pk")
    for which in range(2):
        for j in range(4):
            sr = 84 + which
            e(f"buffer_load_dwordx4 {vr(PL+(which*4+j)*4)}, v{PA+9}, s[{36+20*which}:{39+20*which}], s{sr} offen")
            e(f"s_add_u32 s{sr}, s{sr}, s86")
    e("s_mul_i32 s49, s16, 8320")
    e("s_add_u32 s49, s49, 131072")
    e(f"v_add_u32 v{PA}, s49, v{PA}")
    for k in range(1, 4):
        e(f"v_add_u32 v{PA+k}, s93, v{PA+k-1}")
    for k in range(4):
        e(f"v_add_u32 v{PA+4+k}, s94, v{PA+k}")
    e(f"v_add_u32 v{PA+12}, s49, v8")
    e("s_branch k2_pdone")
    lab("k2_pdum")
    def dummy(n):
        o = ["s_mov_b64 exec, 1"]
        for j in range(n):
            o.append("buffer_load_dword a90, v8, s[24:27], 0 offen")
        o.append("s_mov_b64 exec, -1")
        return o
    for l in dummy(8): e(l)
    lab("k2_pdone")
    vm.issue("P", 8)
    e("s_mov_b32 s89, 0x05040100")
    e("s_mov_b32 s90, 0x07060302")
    e("s_mov_b32 s64, s6")
    e("s_mov_b32 s65, s7")
    e(f"s_mov_b32 s66, {WS_WDN + SZ_WDN}")
    e("s_mov_b32 s67, 0x20000")
    PST = int(os.environ.get("PST", "3"))
    srd(48, 6, SZ_HP, WS_HP)
    srd(52, 6, SZ_HSTAT, WS_HSTAT)
    for a in range(80):
        e(f"v_accvgpr_write_b32 a{a}, 0")
    e(f"s_waitcnt vmcnt({vm.younger([('S', 0)])})")
    for l in bread(0): e(l)
    NS = 16
    for st in range(NS):
        b = st % 4
        if st + 1 < NS:
            allowed = vm.younger([("S", st + 1)] + (["P"] if st == PST else []))
            e(f"s_waitcnt vmcnt({allowed}) lgkmcnt(0)")
        else:
            e("s_waitcnt lgkmcnt(0)")
        if os.environ.get("K2ST") and st in (0,1,2,3,4,6,8,12): stamp(7 + (0,1,2,3,4,6,8,12).index(st))
        slots = [[] for _ in range(40)]
        if st + 1 < NS:
            for j, l in enumerate(bread(st + 1)):
                slots[1 + 2*j].append(l)
        if st + 3 < NS:
            grp = []; groups = []
            for l in stage_issue(st + 3):
                grp.append(l)
                if l.startswith("buffer"):
                    groups.append(grp); grp = []
            groups[-1] += grp
            for g, gl in enumerate(groups):
                slots[(g * 40) // len(groups)] += gl
        if st == int(os.environ.get("CT2", "-1")) and CT:
            slots[30] += code_touch("k3_kernel", "k4_kernel", 12, "a91")
            vm.issue("CT", 1)
        pk = []
        if st == PST:
            for which in range(2):
                for ee in range(8):
                    o = PO + (which*8+ee)*2
                    g = []
                    for t in range(2):
                        g.append(f"v_perm_b32 v{o+t}, v{PL+(which*4+2*t+1)*4+(ee>>1)}, v{PL+(which*4+2*t)*4+(ee>>1)}, s{89+(ee&1)}")
                    g.append(f"ds_write_b64 v{PA+which*4+(ee>>1)}, v[{o}:{o+1}] offset:{(ee&1)*16}")
                    pk.append(g)
            pk = [pk[2*i] + pk[2*i+1] for i in range(8)]
        if st == PST + 1:
            pk = [[f"ds_read_b128 {vr(PL+g*4)}, v{PA+12} offset:{g*1040}"] for g in range(8)]
        for g, gl in enumerate(pk):
            slots[18 + 2*g] += [f"s_cbranch_vccnz k2_np{st}_{g}"] + gl + [f"k2_np{st}_{g}:"]
        if st == PST + 2:
            gl = ["s_cbranch_vccnz k2_sdum"]
            for g in range(8):
                gl += [f"buffer_store_dwordx4 {vr(PL+g*4)}, v8, s[64:67], s87 offen sc1", "s_add_u32 s87, s87, s88"]
            gl += ["s_branch k2_sdone", "k2_sdum:"] + dummy(8) + ["k2_sdone:"]
            slots[39] += gl
            vm.issue("Q", 8)
        k = 0
        for h in range(2):
            for i in range(5):
                for n in range(4):
                    if not os.environ.get("NOMFMA"): mfma(ar((i*4+n)*4), A(b,h,i), vr(B(st&1,h,n)))
                    for l in slots[k]:
                        if os.environ.get("NODS") and l.startswith("ds_"): continue
                        if os.environ.get("NOA") and l.startswith("buffer") and not l.endswith("lds"): continue
                        if os.environ.get("NOC") and l.startswith("buffer") and l.endswith("lds"): continue
                        e(l)
                    k += 1
    stamp(2)
    stamp(3)
    e("s_nop 7")
    e("v_add_u32 v9, s46, v8")
    for n in range(4):
        for i in range(5):
            e(f"ds_write_b128 v9, {ar((i*4+n)*4)} offset:{(n*5+i)*1024}")
    e("s_mul_i32 s44, s16, 5120")
    e("v_add_u32 v9, s44, v8")
    e("v_add_u32 v10, 65536, v9")
    XR = 112
    for i in range(10):
        e(f"v_accvgpr_read_b32 v{XR+i}, a{80+i}")
    e("s_waitcnt lgkmcnt(0)")
    e("s_barrier")
    for src in range(4):
        for i in range(5):
            e(f"ds_read_b128 {vr(BUF+(src*5+i)*4)}, v{9 + (src>>1)} offset:{(src&1)*32768 + i*1024}")
    stamp(4)
    e("s_lshl_b32 s22, s19, 2")
    e("s_add_u32 s22, s22, s16")
    e("s_mul_i32 s23, s20, 5")
    hp_addr(11, 22, 23, [61, 62, 63, 64, 65])
    e("v_mov_b32 v17, 0")
    e("v_mov_b32 v18, 0")
    e("s_waitcnt vmcnt(0) lgkmcnt(0)")
    T = 124
    for i in range(5):
        def S(src, r): return BUF + (src*5+i)*4 + r
        for r in range(4):
            e(f"v_add_f32 v{T+r}, v{S(0,r)}, v{S(1,r)}")
            e(f"v_add_f32 v{T+4+r}, v{S(2,r)}, v{S(3,r)}")
        for r in range(4):
            bf16r(T+r, T+r)
            bf16r(T+4+r, T+4+r)
        for r in range(4):
            e(f"v_sub_f32 v{T+r}, v{T+r}, v{T+4+r}")
        for r in range(4):
            bf16r(T+r, T+r)
        e(f"v_lshlrev_b32 v{T+4}, 16, v{XR+2*i}")
        e(f"v_and_b32 v{T+5}, 0xffff0000, v{XR+2*i}")
        e(f"v_lshlrev_b32 v{T+6}, 16, v{XR+2*i+1}")
        e(f"v_and_b32 v{T+7}, 0xffff0000, v{XR+2*i+1}")
        for r in range(4):
            e(f"v_add_f32 v{T+r}, v{T+r}, v{T+4+r}")
        o = 136 + 2*i
        e(f"v_cvt_pk_bf16_f32 v{o}, v{T}, v{T+1}")
        e(f"v_cvt_pk_bf16_f32 v{o+1}, v{T+2}, v{T+3}")
        e(f"buffer_store_dwordx2 v[{o}:{o+1}], v11, s[48:51], s{61+i} offen")
        e(f"v_lshlrev_b32 v{T}, 16, v{o}")
        e(f"v_and_b32 v{T+1}, 0xffff0000, v{o}")
        e(f"v_lshlrev_b32 v{T+2}, 16, v{o+1}")
        e(f"v_and_b32 v{T+3}, 0xffff0000, v{o+1}")
        for r in range(4):
            e(f"v_add_f32 v17, v17, v{T+r}")
            e(f"v_fmac_f32 v18, v{T+r}, v{T+r}")
    e("v_xor_b32 v10, 16, v1")
    e("v_lshlrev_b32 v10, 2, v10")
    e("ds_bpermute_b32 v19, v10, v17")
    e("ds_bpermute_b32 v28, v10, v18")
    e("s_waitcnt lgkmcnt(0)")
    e("v_add_f32 v17, v17, v19")
    e("v_add_f32 v18, v18, v28")
    e("v_xor_b32 v10, 32, v1")
    e("v_lshlrev_b32 v10, 2, v10")
    e("ds_bpermute_b32 v19, v10, v17")
    e("ds_bpermute_b32 v28, v10, v18")
    e("s_waitcnt lgkmcnt(0)")
    e("v_add_f32 v30, v17, v19")
    e("v_add_f32 v31, v18, v28")
    e("s_lshl_b32 s22, s21, 3")
    e("s_lshl_b32 s23, s20, 14")
    e("s_add_u32 s22, s22, s23")
    e("v_lshlrev_b32 v10, 3, v2")
    e("s_mov_b32 exec_lo, 0x0000ffff")
    e("s_mov_b32 exec_hi, 0")
    e("buffer_store_dwordx2 v[30:31], v10, s[52:55], s22 offen")
    e("s_mov_b64 exec, -1")
    lab("k2_fin")
    lstamp(40)
    lst_dump(1)
    stamp(5)
    stamp_dump(1, 6)
    if os.environ.get("K2ST"):
        for i in range(7, 15):
            e(f"v_mov_b32 v2, s{70+2*i}")
            e(f"v_mov_b32 v3, s{71+2*i}")
            e(f"buffer_store_dwordx2 v[2:3], v0, s[64:67], s68 offen offset:{i*8}")
        e("s_waitcnt vmcnt(0)")
    lab("k2_end")
    e("s_endpgm")


def gen_k2():
    WST = 39936
    NRETRY = int(os.environ.get("NRETRY", "24"))
    FORCE = os.environ.get("FORCE", "")
    kernel_begin("k2_kernel")
    e("s_cmp_ge_u32 s2, 256")
    e("s_cbranch_scc1 k2_end")
    stamp(0)
    e("s_load_dwordx2 s[4:5], s[0:1], 0")
    e("s_load_dwordx2 s[8:9], s[0:1], 8")
    e("s_load_dwordx2 s[10:11], s[0:1], 16")
    e("s_load_dwordx2 s[6:7], s[0:1], 88")
    e("s_load_dwordx4 s[12:15], s[0:1], 48")
    e("s_load_dwordx2 s[60:61], s[0:1], 64")
    if CTS:
        for l in code_touch("k2_kernel", "k3_kernel", 12, "a251", back=True): e(l)
    lane_setup()
    e("s_and_b32 s17, s2, 1")
    if os.environ.get("SWAPR"): e("s_xor_b32 s17, s17, 1")
    if os.environ.get("DELAY"):
        dl = os.environ["DELAY"]
        if dl in "01": e(f"s_cmp_lg_u32 s17, {dl}")
        else:
            e("s_lshr_b32 s22, s2, 3")
            e("s_xor_b32 s22, s22, s2")
            e("s_bitcmp1_b32 s22, 0")
        e("s_cbranch_scc1 k2_nodelay")
        for _ in range(10): e("s_sleep 127")
        lab("k2_nodelay")
    if os.environ.get("MAP2", "1") == "1":
        e("s_bfe_u32 s19, s2, 0x20001")
        e("s_bfe_u32 s21, s2, 0x20003")
        e("s_lshl_b32 s19, s19, 2")
        e("s_add_u32 s19, s19, s21")
        e("s_lshr_b32 s20, s2, 5")
    else:
        e("s_bfe_u32 s19, s2, 0x10002")
        e("s_bfe_u32 s21, s2, 0x30003")
        e("s_lshl_b32 s19, s19, 3")
        e("s_add_u32 s19, s19, s21")
        e("s_bfe_u32 s20, s2, 0x10001")
        e("s_lshl_b32 s20, s20, 2")
        e("s_lshr_b32 s21, s2, 6")
        e("s_add_u32 s20, s20, s21")
    e("v_lshlrev_b32 v8, 4, v1")
    VC, VA, VB0, VB1 = 16, 24, 29, 30
    e("v_lshrrev_b32 v4, 3, v1")
    e("v_and_b32 v5, 7, v1")
    e("v_xor_b32 v5, v5, v4")
    e("v_lshlrev_b32 v4, 12, v4")
    e("v_lshl_add_u32 v4, v5, 4, v4")
    e("s_lshl_b32 s22, s19, 19")
    e("v_add_u32 v4, s22, v4")
    e("s_lshl_b32 s23, s16, 1")
    for j in range(8):
        e(f"s_add_u32 s22, s23, {j+2}")
        e("s_and_b32 s22, s22, 7")
        e("s_lshl_b32 s22, s22, 15")
        e(f"s_add_u32 s22, s22, {4096 - (j%4)*1024}")
        e(f"v_add_u32 v{VC+j}, s22, v4")
    e("s_mul_i32 s22, s17, 40")
    e("s_mul_i32 s23, s20, 5")
    e("s_add_u32 s22, s22, s23")
    e(f"s_mul_i32 s22, s22, {ES}")
    e(f"v_add_u32 v{VA}, s22, v8")
    for i in range(1, 5):
        e(f"v_add_u32 v{VA+i}, {i*ES}, v{VA}")
    e(f"s_mul_i32 s46, s16, {WST}")
    e("s_lshl_b32 s41, s17, 18")
    e("s_xor_b32 s40, s41, 0x40000")
    e("s_lshl_b32 s22, s16, 10")
    e("s_add_u32 s40, s40, s22")
    e("s_add_u32 s41, s41, s22")
    e("s_lshl_b32 s47, s16, 14")
    e("s_waitcnt lgkmcnt(0)")
    e("s_cmp_eq_u32 s17, 0")
    e("s_cselect_b32 s28, s8, s10")
    e("s_cselect_b32 s29, s9, s11")
    e("s_sub_u32 s28, s28, 4096")
    e("s_subb_u32 s29, s29, 0")
    e(f"s_mov_b32 s30, {8388608 + 4096}")
    e("s_mov_b32 s31, 0x20000")
    srd(32, 6, SZ_ABP, WS_ABP)
    stamp(1)
    BB = 192
    def A(u, h, i):
        b = u % 4
        if b < 2: return vr(32 + (b * 10 + h * 5 + i) * 4)
        return ar(160 + ((b - 2) * 10 + h * 5 + i) * 4)
    def B(b, h, n): return BB + (b * 8 + h * 4 + n) * 4
    def AC(c, i, n): return (c * 20 + i * 4 + n) * 4
    seq = []
    for u in range(5): seq += [(u, 0), (u, 1)]
    seq += [(5, 0), (6, 0), (7, 0), (5, 1), (6, 1), (7, 1)]
    vm = VM()
    def cld(s):
        u, c = seq[s]
        b = s % 4
        o = [f"s_add_u32 s42, s{40+c}, {u*128}", f"s_add_u32 m0, s46, {b*8192}"]
        for j in range(4):
            o.append(f"buffer_load_dwordx4 v{VC+j}, s[28:31], s42 offen offset:{j*1024} lds")
        o.append(f"s_add_u32 m0, s46, {b*8192+4096}")
        for j in range(4, 8):
            o.append(f"buffer_load_dwordx4 v{VC+j}, s[28:31], s42 offen offset:{(j-4)*1024} lds")
        vm.issue(("C", s), 8)
        return o
    def ald(u, h):
        o = [f"s_add_u32 s43, s47, {u*2048}"]
        for i in range(5):
            o.append(f"buffer_load_dwordx4 {A(u,h,i)}, v{VA+i}, s[32:35], s43 offen offset:{h*1024}")
        vm.issue(("A", u), 5)
        return o
    def bread(s):
        o = []
        for h in range(2):
            for n in range(4):
                o.append(f"ds_read_b128 {vr(B(s&1,h,n))}, v{VB0+h} offset:{(s%4)*8192 + n*2048}")
        return o
    def tch(u0, nu):
        mc, ma = (1 << (16 * nu)) - 1, (1 << (20 * nu)) - 1
        o = [f"s_mov_b32 exec_lo, 0x{mc & 0xffffffff:x}", f"s_mov_b32 exec_hi, 0x{mc >> 32:x}",
             f"buffer_load_dword a250, v189, s[28:31], 0 offen offset:{u0*128}",
             f"s_mov_b32 exec_lo, 0x{ma & 0xffffffff:x}", f"s_mov_b32 exec_hi, 0x{ma >> 32:x}", f"s_movk_i32 s43, {u0*2048}",
             f"buffer_load_dword a250, v190, s[32:35], s43 offen", "s_mov_b64 exec, -1"]
        vm.issue("T", 2)
        return o
    def items(lst):
        o = []
        for it in lst:
            if it[0] == "C": o += cld(int(it[1:]))
            elif it[0] == "T": o += tch(int(it[1]), int(it[2]))
            else: o += ald(int(it[1]), int(it[2]))
        return o
    TCH = os.environ.get("TCH", "")
    pro = ["C0", "A00", "A01", "C1", "C2", "A10", "A11", "C3"]
    plan = {0: ["C4", "A20"], 1: ["A21", "C5"], 2: ["C6", "A30"], 3: ["A31", "C7"], 4: ["C8", "A40"], 5: ["A41", "C9"],
            6: ["C10", "A50"], 7: ["A51", "C11", "A60"], 8: ["A61", "C12", "A70"], 9: ["A71", "C13"], 10: ["C14"], 11: ["C15"]}
    if TCH:
        for t in reversed(TCH.split(",")):
            p_, u_ = t.split(":")
            if p_[0] == "p": pro.insert(int(p_[1:]), "T" + u_)
            else: plan[int(p_)] = ["T" + u_] + plan[int(p_)]
        e("v_and_b32 v189, 15, v1")
        e("v_lshlrev_b32 v189, 12, v189")
        e("v_lshrrev_b32 v190, 4, v1")
        e("v_lshl_add_u32 v189, v190, 7, v189")
        e("s_lshl_b32 s22, s19, 19")
        e("s_lshl_b32 s23, s20, 16")
        e("s_add_u32 s22, s22, s23")
        e("s_lshl_b32 s23, s16, 10")
        e("s_add_u32 s22, s22, s23")
        e("s_add_u32 s22, s22, 4096")
        e("v_add_u32 v189, s22, v189")
        e("v_mul_u32_u24 v191, 13, v1")
        e("v_lshrrev_b32 v191, 8, v191")
        e("v_mul_u32_u24 v190, 20, v191")
        e("v_sub_u32 v190, v1, v190")
        e("v_lshlrev_b32 v191, 11, v191")
        e("v_and_b32 v188, 3, v190")
        e("v_lshl_add_u32 v191, v188, 7, v191")
        e("v_lshrrev_b32 v190, 2, v190")
        e(f"v_mul_u32_u24 v190, {ES}, v190")
        e("v_add_u32 v190, v190, v191")
        e("s_mul_i32 s22, s17, 40")
        e("s_mul_i32 s23, s20, 5")
        e("s_add_u32 s22, s22, s23")
        e(f"s_mul_i32 s22, s22, {ES}")
        e("s_add_u32 s22, s22, s47")
        e("s_and_b32 s23, s19, 3")
        e("s_lshl_b32 s23, s23, 9")
        e("s_add_u32 s22, s22, s23")
        e("v_add_u32 v190, s22, v190")
    for l in items(pro): e(l)
    e("v_and_b32 v5, 7, v2")
    e("v_xor_b32 v5, v5, v3")
    e("v_lshlrev_b32 v4, 7, v2")
    e("v_lshl_add_u32 v4, v5, 4, v4")
    e(f"v_add_u32 v{VB0}, s46, v4")
    e(f"v_xor_b32 v{VB1}, 64, v{VB0}")
    srd(24, 4, 2621440)
    e("v_add_u32 v9, s46, v8")
    for n in range(3):
        e(f"s_sub_u32 s22, s16, {n+1}")
        e("s_and_b32 s22, s22, 3")
        e(f"s_mul_i32 s22, s22, {WST}")
        e(f"v_add_u32 v{4+n}, s22, v8")
    e("s_lshl_b32 s21, s19, 3")
    e("s_lshl_b32 s22, s17, 2")
    e("s_add_u32 s21, s21, s22")
    e("s_add_u32 s21, s21, s16")
    e("v_mul_u32_u24 v11, 1280, v2")
    e("v_lshl_add_u32 v11, v3, 3, v11")
    e("v_lshrrev_b32 v7, 1, v3")
    e("v_lshlrev_b32 v7, 8, v7")
    e("v_lshl_add_u32 v7, v2, 4, v7")
    e("v_and_b32 v10, 1, v3")
    e("v_lshl_add_u32 v7, v10, 3, v7")
    e("s_lshl_b32 s63, s19, 3")
    e("s_add_u32 s63, s63, s20")
    e("s_lshl_b32 s63, s63, 2")
    e("s_add_u32 s63, s63, s16")
    e("s_lshl_b32 s63, s63, 1")
    e("s_add_u32 s63, s63, s17")
    e("s_lshl_b32 s63, s63, 12")
    e("s_xor_b32 s68, s63, 4096")
    e(f"s_mov_b32 s69, {NRETRY}")
    srd(96, 6, SZ_XB, WS_XB)
    e("s_mul_i32 s18, s17, 0x80008000")
    PL, PO, PA = 112, 144, 176
    e("s_mul_i32 s48, s2, 3")
    e("s_add_u32 s48, s48, s16")
    e("s_mov_b32 s95, 1")
    e("s_cmp_ge_u32 s2, 240")
    e("s_cbranch_scc1 k2_pdone")
    e("s_cmp_eq_u32 s16, 3")
    e("s_cbranch_scc1 k2_pdone")
    e("s_mov_b32 s95, 0")
    e("s_cmp_ge_u32 s48, 480")
    e("s_cbranch_scc1 k2_pdn")
    e("s_mul_i32 s49, s48, 52429")
    e("s_lshr_b32 s49, s49, 20")
    e("s_mul_i32 s92, s49, 20")
    e("s_sub_u32 s92, s48, s92")
    srd(36, 12, 1966080)
    srd(56, 14, 1966080)
    e("v_bfe_u32 v12, v1, 3, 2")
    e("v_and_b32 v13, 7, v1")
    e("v_lshrrev_b32 v14, 5, v1")
    e(f"v_mul_u32_u24 v{PA+9}, 24576, v12")
    e(f"v_lshl_add_u32 v{PA+9}, v13, 4, v{PA+9}")
    e("v_mul_u32_u24 v15, 12288, v14")
    e(f"v_add_u32 v{PA+9}, v{PA+9}, v15")
    e("s_mul_i32 s84, s92, 98304")
    e("s_lshl_b32 s85, s49, 7")
    e("s_add_u32 s84, s84, s85")
    e("s_mov_b32 s85, s84")
    e("s_mov_b32 s86, 3072")
    e("v_mul_u32_u24 v13, 1040, v13")
    e("v_lshl_add_u32 v13, v12, 8, v13")
    e(f"v_lshl_add_u32 v{PA}, v14, 3, v13")
    e("s_mov_b32 s93, 64")
    e("s_mov_b32 s94, 32")
    e("s_mul_i32 s87, s49, 163840")
    e("s_lshl_b32 s92, s92, 10")
    e("s_add_u32 s87, s87, s92")
    e(f"s_add_u32 s87, s87, {WS_WGU}")
    e("s_mov_b32 s88, 20480")
    e("s_branch k2_pk")
    lab("k2_pdn")
    e("s_sub_u32 s48, s48, 480")
    e("s_mul_i32 s49, s48, 43691")
    e("s_lshr_b32 s49, s49, 21")
    e("s_mul_i32 s92, s49, 48")
    e("s_sub_u32 s92, s48, s92")
    srd(36, 60, 1966080)
    srd(56, 60, 1966080)
    e(f"v_mul_u32_u24 v{PA+9}, 10240, v3")
    e(f"v_lshl_add_u32 v{PA+9}, v2, 4, v{PA+9}")
    e("s_mul_i32 s84, s92, 40960")
    e("s_lshl_b32 s85, s49, 8")
    e("s_add_u32 s84, s84, s85")
    e("s_add_u32 s85, s84, 5120")
    e("s_mov_b32 s86, 1280")
    e("v_lshrrev_b32 v13, 1, v2")
    e("v_mul_u32_u24 v13, 1040, v13")
    e("v_and_b32 v15, 1, v2")
    e("v_lshlrev_b32 v15, 7, v15")
    e("v_lshl_add_u32 v15, v3, 8, v15")
    e(f"v_add_u32 v{PA}, v15, v13")
    e("s_mov_b32 s93, 32")
    e("s_mov_b32 s94, 8")
    e("s_mul_i32 s87, s49, 393216")
    e("s_lshl_b32 s92, s92, 10")
    e("s_add_u32 s87, s87, s92")
    e(f"s_add_u32 s87, s87, {WS_WDN}")
    e("s_mov_b32 s88, 49152")
    lab("k2_pk")
    e("s_add_u32 s49, s46, 23552")
    e(f"v_add_u32 v{PA}, s49, v{PA}")
    for k in range(1, 4):
        e(f"v_add_u32 v{PA+k}, s93, v{PA+k-1}")
    for k in range(4):
        e(f"v_add_u32 v{PA+4+k}, s94, v{PA+k}")
    e(f"v_add_u32 v{PA+12}, s49, v8")
    lab("k2_pdone")
    def dummy(n):
        o = ["s_mov_b64 exec, 1"]
        for j in range(n):
            o.append("buffer_load_dword a250, v8, s[24:27], 0 offen")
        o.append("s_mov_b64 exec, -1")
        return o
    e("s_mov_b32 s89, 0x05040100")
    e("s_mov_b32 s90, 0x07060302")
    e("s_mov_b32 s64, s6")
    e("s_mov_b32 s65, s7")
    e(f"s_mov_b32 s66, {WS_WDN + SZ_WDN}")
    e("s_mov_b32 s67, 0x20000")
    srd(48, 6, SZ_HP, WS_HP)
    srd(52, 6, SZ_HSTAT, WS_HSTAT)
    def xaddr(sST, dX, dH, dS):
        return [f"s_mul_i32 s{dX}, s{sST}, 20480", f"s_mul_i32 s{dH}, s20, 2560", f"s_add_u32 s{dH}, s{dH}, s{dX}",
                "s_mul_i32 s22, s20, 160", f"s_add_u32 s{dX}, s{dX}, s22",
                f"s_lshl_b32 s{dS}, s{sST}, 7", "s_lshl_b32 s22, s20, 14", f"s_add_u32 s{dS}, s{dS}, s22"]
    for l in xaddr(21, 44, 62, 45): e(l)
    PF2 = [int(x) for x in os.environ.get("PF2", "1,3,5,7,9,11").split(",")] if (FUSE34 and PFA < 0) else []
    PF2S = int(os.environ.get("PF2S", "38"))
    if PF2:
        e("s_lshl_b32 s91, s2, 2")
        e("s_add_u32 s91, s91, s16")
        e("s_mul_i32 s91, s91, 6144")
        e(f"s_add_u32 s91, s91, {WS_ACT}")
        e("s_add_u32 s92, s91, 4096")
        for r in range(4): e(f"v_mov_b32 v{144+r}, -1")
    for a in range(160):
        e(f"v_accvgpr_write_b32 a{a}, 0")
    lstamp(0)
    e(f"s_waitcnt vmcnt({vm.younger([('C', 0)])})")
    lstamp(1)
    for l in bread(0): e(l)
    PP, PD = 16, 72
    def RT(k): return (32 + k * 4) if k < 10 else (144 + (k - 10) * 4)
    def RO(k): return (32 + k * 4) if k < 10 else (84 + (k - 10) * 4)
    def xoff(k): return k * 1024 if k < 8 else 32768 + (k - 8) * 1024
    def poll(): return [f"buffer_load_dwordx4 {vr(PD+4*q)}, v8, s[96:99], s68 offen offset:{q*1024} sc1" for q in range(3)]
    PKS = int(os.environ.get("PKS", "12"))
    POLLP = int(os.environ.get("POLLP", "1"))
    RSP = int(os.environ.get("RSP", "36"))
    MIDB = int(os.environ.get("MIDB", "29"))
    for st in range(16):
        u, c = seq[st]
        need = []
        if st + 1 < 16: need.append(("C", st + 1))
        if c == 0: need.append(("A", u))
        if st == 15: need.append("PK")
        lstamp(2 * st + 2)
        e(f"s_waitcnt vmcnt({vm.younger(need)}) lgkmcnt(0)")
        lstamp(2 * st + 3)
        if st == 13: e("s_barrier")
        slots = [[] for _ in range(40)]
        pre = []
        if st == 13:
            for k in range(15):
                slots[k].append(f"ds_read_b128 {vr(RT(k))}, v{4 + k//5} offset:{xoff(k)}")
        if st + 1 < 16:
            for j, l in enumerate(bread(st + 1)):
                slots[(1 + 2*j) if st != 13 else (15 + j)].append(l)
        lst = items(plan.get(st, []))
        grp = []; groups = []
        for l in lst:
            grp.append(l)
            if (l.startswith("buffer") and "a250" not in l) or l.startswith("s_mov_b64 exec"):
                groups.append(grp); grp = []
        for g, gl in enumerate(groups):
            slots[(g * (PF2S if st in PF2 else 40)) // len(groups)] += gl
        for q in range(len(PF2)):
            if PF2[q] == st:
                assert st < 12
                slots[39].append(f"buffer_store_dwordx4 v[144:147], v8, s[64:67], s{91 + (q>>2)} offen offset:{(q&3)*1024} sc1")
                vm.issue("PF", 1)
        if st == PKS:
            for i in range(5):
                slots[2*i] += [f"buffer_load_dwordx2 a[{240+2*i}:{241+2*i}], v11, s[24:27], s44 offen offset:{i*32}"]
            vm.issue("X", 5)
            for which in range(2):
                gl = ["s_cmp_lg_u32 s95, 0", f"s_cbranch_scc1 k2_ld{which}"]
                for j in range(4):
                    sr = 84 + which
                    gl += [f"buffer_load_dwordx4 {vr(PL+(which*4+j)*4)}, v{PA+9}, s[{36+20*which}:{39+20*which}], s{sr} offen",
                           f"s_add_u32 s{sr}, s{sr}, s86"]
                gl += [f"s_branch k2_le{which}", f"k2_ld{which}:"] + dummy(4) + [f"k2_le{which}:"]
                slots[10 + 8*which] += gl
            vm.issue("PK", 8)
        nmaj = st in (12, 15)
        if nmaj:
            for g in range(3):
                for i in range(5):
                    k = g * 5 + i
                    off = xoff(k) if st == 12 else 8192 + k * 1024
                    slots[10*(g+1) + 2 + i].append(f"ds_write_b128 v9, {ar(AC(c,i,g))} offset:{off}")
        if st == 14:
            ops = []
            for i in range(5):
                t = 164 + (i % 3) * 4
                for r in range(4): ops.append(f"v_accvgpr_read_b32 v{t+r}, a{AC(0,i,3)+r}")
                for r in range(4): ops.append(f"v_add_f32 v{RT(i)+r}, v{RT(i)+r}, v{RT(5+i)+r}")
                for r in range(4): ops.append(f"v_add_f32 v{t+r}, v{t+r}, v{RT(10+i)+r}")
                for r in range(4): ops.append(f"v_add_f32 v{t+r}, v{t+r}, v{RT(i)+r}")
                ops.append(f"v_cvt_pk_bf16_f32 v{PP+2*i}, v{t}, v{t+1}")
                ops.append(f"v_cvt_pk_bf16_f32 v{PP+2*i+1}, v{t+2}, v{t+3}")
                if i == 4: ops += [f"v_mov_b32 v{PP+10}, 0", f"v_mov_b32 v{PP+11}, 0"]
                if i in (1, 3, 4):
                    q = i // 2
                    ops.append(f"buffer_store_dwordx4 {vr(PP+4*q)}, v8, s[96:99], s63 offen offset:{q*1024}")
            vm.issue("P", 3)
            for j, l in enumerate(ops):
                slots[(j * RSP) // len(ops)].append(l)
        if st == 15:
            pk = []
            for which in range(2):
                for ee in range(8):
                    o = PO + (which*8+ee)*2
                    g = []
                    for t in range(2):
                        g.append(f"v_perm_b32 v{o+t}, v{PL+(which*4+2*t+1)*4+(ee>>1)}, v{PL+(which*4+2*t)*4+(ee>>1)}, s{89+(ee&1)}")
                    g.append(f"ds_write_b64 v{PA+which*4+(ee>>1)}, v[{o}:{o+1}] offset:{(ee&1)*16}")
                    pk.append(g)
            pk = [pk[2*i] + pk[2*i+1] for i in range(8)]
            for g, gl in enumerate(pk):
                slots[(0, 1, 3, 4, 6, 7, 9, 10)[g]] += ["s_cmp_lg_u32 s95, 0", f"s_cbranch_scc1 k2_np{g}"] + gl + [f"k2_np{g}:"]
            slots[18] += ["s_cmp_lg_u32 s95, 0", "s_cbranch_scc1 k2_npr"] + \
                         [f"ds_read_b128 {vr(PL+g*4)}, v{PA+12} offset:{g*1040}" for g in range(8)] + ["k2_npr:"]
            if MIDB:
                slots[MIDB] += ["s_waitcnt lgkmcnt(0)", "s_barrier"]
                for k in range(10):
                    slots[MIDB + (k + 1) // 2].append(f"ds_read_b128 {vr(RO(k))}, v{4 + k//5} offset:{8192 + k*1024}")
            if POLLP == 0:
                slots[38] += poll()
        order = [(h, i, n) for n in range(4) for h in range(2) for i in range(5)] if nmaj else \
                [(h, i, n) for h in range(2) for i in range(5) for n in range(4)]
        for k, (h, i, n) in enumerate(order):
            mfma(ar(AC(c,i,n)), A(u,h,i), vr(B(st&1,h,n)))
            for l in slots[k]: e(l)
    stamp(2)
    lstamp(34)
    e("s_waitcnt lgkmcnt(0)")
    e("s_barrier")
    if POLLP == 1:
        for l in poll(): e(l)
    for k in range(10 if MIDB else 0, 15):
        e(f"ds_read_b128 {vr(RO(k))}, v{4 + k//5} offset:{8192 + k*1024}")
    if POLLP == 2:
        for l in poll(): e(l)
    e("s_cmp_lg_u32 s95, 0")
    e("s_cbranch_scc1 k2_nq")
    for g in range(8):
        e(f"buffer_store_dwordx4 {vr(PL+g*4)}, v8, s[64:67], s87 offen sc1")
        e("s_add_u32 s87, s87, s88")
    lab("k2_nq")
    stamp(4)
    XU, MU, T, OP, XP = 192, 212, 232, 144, 156
    NS = 168
    def partX():
        o = []
        for i in range(10): o.append(f"v_accvgpr_read_b32 v{XP+i}, a{240+i}")
        for i in range(10):
            o.append(f"v_lshlrev_b32 v{XU+2*i}, 16, v{XP+i}")
            o.append(f"v_and_b32 v{XU+2*i+1}, 0xffff0000, v{XP+i}")
        return o
    def partM(MP):
        o = []
        for i in range(10):
            o.append(f"v_xor_b32 v{T}, s18, v{MP+i}")
            o.append(f"v_lshlrev_b32 v{MU+2*i}, 16, v{T}")
            o.append(f"v_and_b32 v{MU+2*i+1}, 0xffff0000, v{T}")
        return o
    def partB(sH, sS):
        HO = 104
        for i in range(5):
            t = T + (i & 1) * 8
            e(f"v_lshlrev_b32 v{t}, 16, v{PD+2*i}")
            e(f"v_and_b32 v{t+1}, 0xffff0000, v{PD+2*i}")
            e(f"v_lshlrev_b32 v{t+2}, 16, v{PD+2*i+1}")
            e(f"v_and_b32 v{t+3}, 0xffff0000, v{PD+2*i+1}")
            for p in (0, 2):
                e(f"v_pk_fma_f32 v[{t+p}:{t+p+1}], v[{t+p}:{t+p+1}], v[{NS}:{NS+1}], v[{MU+4*i+p}:{MU+4*i+p+1}]")
            e(f"v_cvt_pk_bf16_f32 v{t+4}, v{t}, v{t+1}")
            e(f"v_cvt_pk_bf16_f32 v{t+5}, v{t+2}, v{t+3}")
            e(f"v_lshlrev_b32 v{t}, 16, v{t+4}")
            e(f"v_and_b32 v{t+1}, 0xffff0000, v{t+4}")
            e(f"v_lshlrev_b32 v{t+2}, 16, v{t+5}")
            e(f"v_and_b32 v{t+3}, 0xffff0000, v{t+5}")
            for p in (0, 2):
                e(f"v_pk_add_f32 v[{t+p}:{t+p+1}], v[{t+p}:{t+p+1}], v[{XU+4*i+p}:{XU+4*i+p+1}]")
            o = 32 + 2*i
            e(f"v_cvt_pk_bf16_f32 v{o}, v{t}, v{t+1}")
            e(f"v_cvt_pk_bf16_f32 v{o+1}, v{t+2}, v{t+3}")
            e(f"buffer_store_dwordx2 v[{o}:{o+1}], v7, s[48:51], s{sH} offen offset:{i*512}")
        e("v_mov_b32 v44, 0")
        e("v_mov_b32 v45, 0")
        e("s_mov_b32 s23, 0x3f803f80")
        for i in range(10):
            e(f"v_dot2_f32_bf16 v44, v{32+i}, s23, v44")
            e(f"v_dot2_f32_bf16 v45, v{32+i}, v{32+i}, v45")
        for sw in ("v_permlane16_swap_b32", "v_permlane32_swap_b32"):
            e("s_nop 3")
            e("v_mov_b32 v46, v44")
            e("v_mov_b32 v47, v45")
            e("s_nop 1")
            e(f"{sw} v44, v46")
            e(f"{sw} v45, v47")
            e("s_nop 1")
            e("v_add_f32 v44, v44, v46")
            e("v_add_f32 v45, v45, v47")
        e("v_lshlrev_b32 v10, 3, v2")
        e("s_mov_b64 exec, 0xffff")
        e(f"buffer_store_dwordx2 v[44:45], v10, s[52:55], s{sS} offen")
        e("s_mov_b64 exec, -1")
    def check():
        e(f"v_max3_u32 v{T}, v{PD}, v{PD+1}, v{PD+2}")
        e(f"v_max3_u32 v{T+1}, v{PD+3}, v{PD+4}, v{PD+5}")
        e(f"v_max3_u32 v{T+2}, v{PD+6}, v{PD+7}, v{PD+8}")
        e(f"v_max3_u32 v{T}, v{T}, v{T+1}, v{PD+9}")
        e(f"v_max_u32 v{T}, v{T}, v{T+2}")
        e(f"v_cmp_eq_u32 vcc, -1, v{T}")
    def atomic(dst, soff):
        e(f"v_mov_b32 v{dst}, 1")
        e("s_mov_b64 exec, 1")
        e(f"buffer_atomic_add v{dst}, v8, s[96:99], s{soff} offen offset:3072 sc0")
        e("s_mov_b64 exec, -1")
    for l in partX(): e(l)
    e("s_lshl_b32 s22, s17, 31")
    e("s_xor_b32 s22, s22, 0xbf800000")
    e(f"v_mov_b32 v{NS}, s22")
    e(f"v_mov_b32 v{NS+1}, s22")
    for i in range(5):
        for r in range(4): e(f"v_accvgpr_read_b32 v{MU+4*i+r}, a{AC(1,i,3)+r}")
    e("s_waitcnt lgkmcnt(0)")
    for i in range(5):
        for p in (0, 2):
            e(f"v_pk_add_f32 v[{RO(i)+p}:{RO(i)+p+1}], v[{RO(i)+p}:{RO(i)+p+1}], v[{RO(5+i)+p}:{RO(5+i)+p+1}]")
            e(f"v_pk_add_f32 v[{MU+4*i+p}:{MU+4*i+p+1}], v[{MU+4*i+p}:{MU+4*i+p+1}], v[{RO(10+i)+p}:{RO(10+i)+p+1}]")
        for p in (0, 2):
            e(f"v_pk_add_f32 v[{MU+4*i+p}:{MU+4*i+p+1}], v[{MU+4*i+p}:{MU+4*i+p+1}], v[{RO(i)+p}:{RO(i)+p+1}]")
        e(f"v_cvt_pk_bf16_f32 v{OP+2*i}, v{MU+4*i}, v{MU+4*i+1}")
        e(f"v_cvt_pk_bf16_f32 v{OP+2*i+1}, v{MU+4*i+2}, v{MU+4*i+3}")
    for l in partM(OP): e(l)
    if os.environ.get("K2T") == "1": stamp(2)
    e("s_cmp_lg_u32 s95, 0")
    e("s_cbranch_scc1 k2_w0")
    e("s_waitcnt vmcnt(8)")
    e("s_branch k2_w1")
    lab("k2_w0")
    e("s_waitcnt vmcnt(0)")
    lab("k2_w1")
    if os.environ.get("K2T") == "1": stamp(4)
    atomic(170, 63)
    check()
    if FORCE:
        e(f"s_cmp_eq_u32 s17, {FORCE[0]}" if FORCE[0] in "01" else "s_cmp_eq_u32 s17, s17")
        e("s_cbranch_scc1 k2_giveup")
    e("s_cbranch_vccnz k2_retry")
    lab("k2_own")
    if os.environ.get("K2T") == "2": stamp(2)
    partB(62, 45)
    if os.environ.get("K2T") == "2": stamp(4)
    e("s_waitcnt vmcnt(6)")
    lab("k2_after")
    e("v_readfirstlane_b32 s22, v170")
    e("s_cmp_eq_u32 s22, 0")
    e("s_cbranch_scc1 k2_help")
    lab("k2_fin")
    lstamp(40)
    lst_dump(1)
    stamp(5)
    if DIAG:
        e("s_mov_b32 s76, s69")
        e("s_mov_b32 s77, 0")
    stamp_dump(1, 6)
    lab("k2_end")
    e("s_endpgm")
    lab("k2_retry")
    e("s_sub_u32 s69, s69, 1")
    e("s_cbranch_scc1 k2_giveup")
    for l in poll(): e(l)
    e("s_waitcnt vmcnt(0)")
    check()
    e("s_cbranch_vccnz k2_retry")
    e("s_branch k2_own")
    lab("k2_giveup")
    e(f"s_add_u32 s22, s68, {SZ_XB//2}")
    for q in range(3):
        e(f"buffer_store_dwordx4 {vr(OP+4*q)}, v8, s[96:99], s22 offen offset:{q*1024}")
    e("s_waitcnt vmcnt(0)")
    atomic(171, 68)
    e("s_waitcnt vmcnt(0)")
    e("v_readfirstlane_b32 s22, v171")
    e("s_cmp_lg_u32 s22, 0")
    e("s_cbranch_scc1 k2_after")
    e("s_mov_b32 s69, 8")
    lab("k2_g2")
    for l in poll(): e(l)
    e("s_waitcnt vmcnt(0)")
    check()
    e("s_cbranch_vccz k2_own")
    e("s_sub_u32 s69, s69, 1")
    e("s_cbranch_scc0 k2_g2")
    e("s_branch k2_own")
    lab("k2_help")
    e("s_xor_b32 s21, s21, 4")
    for l in xaddr(21, 44, 62, 45): e(l)
    e(f"s_add_u32 s68, s63, {SZ_XB//2}")
    for l in poll(): e(l)
    for i in range(5):
        e(f"buffer_load_dwordx2 a[{240+2*i}:{241+2*i}], v11, s[24:27], s44 offen offset:{i*32}")
    e("s_waitcnt vmcnt(0)")
    for l in partX() + partM(PP): e(l)
    partB(62, 45)
    e("s_branch k2_fin")

def gen_k4():
    kernel_begin("k4_kernel")
    e("s_cmp_ge_u32 s2, 256")
    e("s_cbranch_scc1 k4_end")
    stamp(0)
    e("s_load_dwordx2 s[4:5], s[0:1], 72")
    e("s_load_dwordx2 s[6:7], s[0:1], 88")
    if CTS:
        for l in code_touch("k4_kernel", "code_end", 26, "v27", back=True): e(l)
    lane_setup()
    if MAP34:
        e("s_bfe_u32 s19, s2, 0x20001")
        e("s_bfe_u32 s21, s2, 0x30003")
        e("s_lshl_b32 s19, s19, 3")
        e("s_add_u32 s19, s19, s21")
        e("s_and_b32 s20, s2, 1")
        e("s_lshl_b32 s20, s20, 2")
        e("s_lshr_b32 s21, s2, 6")
        e("s_add_u32 s20, s20, s21")
    else:
        e("s_and_b32 s19, s2, 7")
        e("s_lshr_b32 s20, s2, 3")
        e("s_lshr_b32 s21, s20, 3")
        e("s_lshl_b32 s19, s19, 2")
        e("s_add_u32 s19, s19, s21")
        e("s_and_b32 s20, s20, 7")
    e("v_lshlrev_b32 v8, 4, v1")
    e("s_mul_i32 s22, s19, 196608")
    e("v_add_u32 v4, s22, v8")
    for n in range(1, 4):
        e(f"v_add_u32 v{4+n}, {n*49152}, v4")
    e("s_mul_i32 s22, s20, 245760")
    e("v_add_u32 v12, s22, v8")
    for i in range(1, 5):
        e(f"v_add_u32 v{12+i}, {i*49152}, v12")
    e("s_mul_i32 s41, s16, 12")
    e("s_lshr_b32 s40, s2, 3")
    e("s_mul_i32 s44, s40, 43691")
    e("s_lshr_b32 s44, s44, 19")
    e("s_mul_i32 s44, s44, 12")
    e("s_sub_u32 s40, s40, s44")
    e("s_waitcnt lgkmcnt(0)")
    srd(28, 6, SZ_ACT, WS_ACT)
    srd(32, 6, SZ_WDN, WS_WDN)
    NSL, AH = 8, 7
    def slot(b, k):
        if b < 6: return vr(32 + b * 36 + k * 4)
        return ar(80 + (b - 6) * 36 + k * 4)
    vm = VM()
    def issue(t):
        o = ["s_add_u32 s44, s40, s41", "s_lshl_b32 s42, s44, 10", "s_add_u32 s40, s40, 1",
             "s_cmp_ge_u32 s40, 12", "s_cselect_b32 s40, 0, s40"]
        b = t % NSL
        for n in range(4):
            o.append(f"buffer_load_dwordx4 {slot(b,5+n)}, v{4+n}, s[28:31], s42 offen")
        for i in range(5):
            o.append(f"buffer_load_dwordx4 {slot(b,i)}, v{12+i}, s[32:35], s42 offen")
        vm.issue(("S", t), 9)
        return o
    for t in range(AH):
        for l in issue(t): e(l)
    stamp(1)
    srd(24, 4, 2621440)
    srd(48, 6, SZ_HP, WS_HP)
    for a in range(80):
        e(f"v_accvgpr_write_b32 a{a}, 0")
    e("v_lshrrev_b32 v18, 2, v1")
    e("v_and_b32 v19, 3, v1")
    e("s_lshl_b32 s22, s19, 2")
    e("s_add_u32 s22, s22, s16")
    e("s_mul_i32 s23, s22, 20480")
    e("s_mul_i32 s45, s20, 2560")
    e("s_add_u32 s45, s45, s23")
    e("v_lshlrev_b32 v20, 4, v18")
    e("v_lshl_add_u32 v20, v19, 8, v20")
    e("v_and_b32 v21, 1, v1")
    e("v_lshlrev_b32 v22, 4, v18")
    e("v_lshl_add_u32 v21, v21, 8, v22")
    e("s_mul_i32 s46, s20, 160")
    e("s_add_u32 s46, s46, s23")
    e("v_mul_u32_u24 v22, 1280, v18")
    e("v_lshl_add_u32 v22, v19, 4, v22")
    if os.environ.get("OT"):
        e("buffer_load_dword v26, v22, s[24:27], s46 offen")
        vm.issue("O", 1)
    e("s_mul_i32 s47, s16, 23040")
    e("v_mul_u32_u24 v23, 288, v3")
    e("v_lshl_add_u32 v23, v2, 4, v23")
    e("v_add_u32 v23, s47, v23")
    e("s_mul_i32 s47, s16, 5760")
    e("v_mul_u32_u24 v24, 576, v19")
    e("v_lshl_add_u32 v24, v18, 4, v24")
    e("v_add_u32 v24, s47, v24")
    e("v_add_u32 v25, 46080, v24")
    HR = 152
    for t in range(12):
        b = t % NSL
        e(f"s_waitcnt vmcnt({vm.younger([('S', t)])})")
        ld = []
        if t + AH < 12:
            ld = issue(t + AH)
        elif t == 12 - AH:
            ld = [f"buffer_load_dwordx4 {ar(HR)}, v20, s[48:51], s45 offen",
                  f"buffer_load_dwordx4 {ar(HR+4)}, v20, s[48:51], s45 offen offset:1024",
                  f"buffer_load_dwordx4 {ar(HR+8)}, v21, s[48:51], s45 offen offset:2048"]
            vm.issue("H", 3)
        grp = []; groups = []
        for l in ld:
            grp.append(l)
            if l.startswith("buffer"):
                groups.append(grp); grp = []
        k = 0
        for i in range(5):
            for n in range(4):
                mfma(ar((i*4+n)*4), slot(b, i), slot(b, 5+n))
                k += 1
                if k % 2 == 0 and groups:
                    for l in groups.pop(0): e(l)
        assert not groups
    stamp(2)
    stamp(3)
    e("s_nop 7")
    e("s_nop 7")
    for n in range(4):
        for i in range(5):
            e(f"ds_write_b128 v23, {ar((i*4+n)*4)} offset:{(n*5+i)*1152}")
    XR = 128
    e("s_waitcnt vmcnt(0)")
    for r in range(12):
        e(f"v_accvgpr_read_b32 v{XR+r}, a{HR+r}")
    e("s_waitcnt lgkmcnt(0)")
    e("s_barrier")
    def S(src, j, hf): return 32 + ((j * 4 + src) * 2 + hf) * 4
    for j in range(3):
        for src in range(4):
            for hf in range(2):
                e(f"ds_read_b128 {vr(S(src,j,hf))}, v{24 + (src>>1)} offset:{(src&1)*23040 + j*2304 + hf*288}")
    stamp(4)
    for j in range(3):
        e(f"s_waitcnt lgkmcnt({min(15,(2-j)*8)})")
        T = 144 + j * 16
        for hf in range(2):
            for p in (0, 2):
                e(f"v_pk_add_f32 v[{T+hf*4+p}:{T+hf*4+p+1}], v[{S(0,j,hf)+p}:{S(0,j,hf)+p+1}], v[{S(1,j,hf)+p}:{S(1,j,hf)+p+1}]")
                e(f"v_pk_add_f32 v[{T+8+hf*4+p}:{T+8+hf*4+p+1}], v[{S(2,j,hf)+p}:{S(2,j,hf)+p+1}], v[{S(3,j,hf)+p}:{S(3,j,hf)+p+1}]")
        for p in range(0, 8, 2):
            e(f"v_pk_add_f32 v[{T+p}:{T+p+1}], v[{T+p}:{T+p+1}], v[{T+8+p}:{T+8+p+1}]")
        for p in range(4):
            e(f"v_cvt_pk_bf16_f32 v{T+8+p}, v{T+2*p}, v{T+2*p+1}")
        for p in range(4):
            e(f"v_lshlrev_b32 v{T+2*p}, 16, v{T+8+p}")
            e(f"v_and_b32 v{T+2*p+1}, 0xffff0000, v{T+8+p}")
        for p in range(4):
            e(f"v_lshlrev_b32 v{T+8+2*p}, 16, v{XR+4*j+p}")
            e(f"v_and_b32 v{T+8+2*p+1}, 0xffff0000, v{XR+4*j+p}")
        for p in range(0, 8, 2):
            e(f"v_pk_add_f32 v[{T+p}:{T+p+1}], v[{T+p}:{T+p+1}], v[{T+8+p}:{T+8+p+1}]")
        O = 192 + 4 * j
        for p in range(4):
            e(f"v_cvt_pk_bf16_f32 v{O+p}, v{T+2*p}, v{T+2*p+1}")
        if j == 2:
            e("s_mov_b32 exec_lo, 0x33333333")
            e("s_mov_b32 exec_hi, 0x33333333")
        e(f"buffer_store_dwordx4 {vr(O)}, v22, s[24:27], s46 offen offset:{j*64}")
    e("s_mov_b64 exec, -1")
    stamp(5)
    stamp_dump(3, 6)
    lab("k4_end")
    e("s_endpgm")

class VM:
    def __init__(self): self.q = []
    def issue(self, tag, n=1): self.q += [tag] * n
    def younger(self, tags):
        last = max(i for i, t in enumerate(self.q) if t in tags)
        return min(63, len(self.q) - 1 - last)

DIAGF = os.environ.get("DIAGF", "0") == "1"
ASC = [os.environ.get("ASC", " sc1")]
def stF(i, j):
    if DIAGF:
        if j >= 0: stamp(j)
    else: stamp(i)

def gen_k3():
    kernel_begin("k3_kernel")
    e("s_cmp_ge_u32 s2, 256")
    e("s_cbranch_scc1 k3_end")
    stF(0, 0)
    e("s_load_dwordx2 s[6:7], s[0:1], 88")
    if FUSE34: e("s_load_dwordx2 s[4:5], s[0:1], 72")
    if CTS:
        for l in code_touch("k3_kernel", "code_end" if FUSE34 else "k4_kernel", 14, "v22", back=True): e(l)
    lane_setup()
    if os.environ.get("MAP3", "1") == "1":
        e("s_and_b32 s19, s2, 1")
        e("s_bfe_u32 s21, s2, 0x30003")
        e("s_lshl_b32 s19, s19, 3")
        e("s_add_u32 s19, s19, s21")
        e("s_bfe_u32 s20, s2, 0x20001")
        e("s_lshl_b32 s20, s20, 2")
        e("s_lshr_b32 s21, s2, 6")
        e("s_add_u32 s20, s20, s21")
    elif MAP34 and os.environ.get("MAP3") != "2":
        e("s_bfe_u32 s19, s2, 0x20001")
        e("s_bfe_u32 s21, s2, 0x20003")
        e("s_lshl_b32 s19, s19, 2")
        e("s_add_u32 s19, s19, s21")
        e("s_and_b32 s20, s2, 1")
        e("s_lshl_b32 s20, s20, 3")
        e("s_lshr_b32 s21, s2, 5")
        e("s_add_u32 s20, s20, s21")
    else:
        e("s_and_b32 s19, s2, 7")
        e("s_lshr_b32 s20, s2, 3")
        e("s_and_b32 s21, s20, 1")
        e("s_lshl_b32 s19, s19, 1")
        e("s_add_u32 s19, s19, s21")
        e("s_lshr_b32 s20, s20, 1")
    e(f"s_mov_b32 s17, {INV640}")
    e(f"s_mov_b32 s18, {EPS}")
    e("s_mov_b32 s62, 0x3f803f80")
    e("v_lshlrev_b32 v8, 4, v1")
    ROT3 = os.environ.get("ROT3", "0")
    RT3 = [8, 9, 10, 11, 12, 13, 14, 15, 40, 41]
    if ROT3 != "0":
        e("s_bfe_u32 s21, s2, 0x30003")
        e("s_lshr_b32 s22, s2, 6")
        if ROT3 == "2": e("s_mov_b32 s21, 0")
        if ROT3 == "3": e("s_mov_b32 s22, 0")
        e("s_mul_i32 s22, s22, 5")
        e("s_lshr_b32 s22, s22, 1")
        e("s_add_u32 s21, s21, s22")
        e("s_lshl_b32 s21, s21, 11")
        for g in range(10):
            e(f"s_sub_u32 s22, s21, 20480")
            e(f"s_cselect_b32 s{RT3[g]}, s21, s22")
            if g < 9: e(f"s_add_u32 s21, s{RT3[g]}, 2048")
    if FUSE34:
        e("s_lshr_b32 s86, s20, 3")
        e("s_lshl_b32 s87, s19, 1")
        e("s_add_u32 s86, s86, s87")
        e("s_and_b32 s87, s20, 7")
        e("s_mov_b32 s60, 0")
        e("s_mov_b32 s61, 0")
        lab("k3_body")
    e("s_mul_i32 s21, s20, 12")
    e("s_add_u32 s21, s21, s16")
    e("s_mul_i32 s22, s21, 20480")
    e("v_add_u32 v4, s22, v8")
    e("v_add_u32 v5, 81920, v4")
    e("v_add_u32 v6, 163840, v4")
    e("s_mul_i32 s22, s19, 163840")
    e("s_mul_i32 s23, s16, 40960")
    e("s_add_u32 s22, s22, s23")
    e("s_add_u32 s42, s22, 20480")
    e("v_lshlrev_b32 v9, 3, v1")
    e("s_lshl_b32 s48, s19, 10")
    e("s_waitcnt lgkmcnt(0)")
    srd(24, 6, SZ_HP, WS_HP)
    srd(32, 6, SZ_WGU, WS_WGU)
    srd(28, 6, SZ_HSTAT, WS_HSTAT)
    vm = VM()
    D = 6
    WB = 88
    ACC3 = 160
    def Wf(kk, i): return WB + ((kk % D) * 3 + i) * 4
    def Hf(kk, n): return ((kk & 1) * 8 + n) * 4
    HGS = int(os.environ.get("HGS", "2")); LW = int(os.environ.get("LW", "3")); LH = int(os.environ.get("LH", "3"))
    HG = {chr(65 + g): (g * HGS, min(20, g * HGS + HGS)) for g in range((19 + HGS) // HGS)}
    def hdma_l(g, t):
        o = []
        k0, k1 = HG[g]
        for k in range(k0, k1, 4):
            base = t * 20480 + k * 1024
            o.append(f"s_add_u32 m0, s23, {base}")
            if ROT3 != "0":
                assert HGS == 2
                o.append(f"s_add_u32 s44, s{42 if t else 22}, s{RT3[k>>1]}")
            else: o.append(f"s_add_u32 s44, s22, {base}")
            for u in range(min(4, k1 - k)):
                o.append(f"buffer_load_dwordx4 v8, s[24:27], s44 offen offset:{u*1024} lds")
        vm.issue(("H", g), k1 - k0)
        return o
    def wload(kk):
        out = []
        if ROT3 != "0":
            for i in range(3):
                out.append(f"buffer_load_dwordx4 {vr(Wf(kk,i))}, v{4+i}, s[32:35], s{RT3[kk>>1]} offen offset:{(kk&1)*1024}")
            vm.issue(("W", kk), 3)
            return out
        if kk >= 4:
            out.append(f"s_mov_b32 s{45+(kk&1)}, {kk*1024}")
        for i in range(3):
            if kk < 4:
                out.append(f"buffer_load_dwordx4 {vr(Wf(kk,i))}, v{4+i}, s[32:35], 0 offen offset:{kk*1024}")
            else:
                out.append(f"buffer_load_dwordx4 {vr(Wf(kk,i))}, v{4+i}, s[32:35], s{45+(kk&1)} offen")
        vm.issue(("W", kk), 3)
        return out
    def sload(q):
        o = []
        for x in range(4 * q, 4 * q + 4):
            j, eb = x >> 3, x & 7
            o.append(f"s_add_u32 s47, s48, {eb*16384 + j*512}")
            o.append(f"buffer_load_dwordx2 v[{40+(j*8+eb)*2}:{41+(j*8+eb)*2}], v9, s[28:31], s47 offen")
        vm.issue("S", 4)
        return o
    def tload():
        vm.issue("P", 1)
        return ["buffer_load_dword v22, v23, s[52:55], s50 offen", "s_add_u32 s50, s50, 4096"]
    items = []
    for g, (k0, k1) in HG.items():
        for t in range(2):
            items.append((k0 - 1 - LH + (t if HGS > 1 else 0), k0 - 1, f"H{g}{t}"))
    for kk in range(20):
        items.append((kk - LW, kk - 0.5, f"W{kk}"))
    for q in range(4): items.append((9 + q, 30, f"S{q}"))
    last = max(it[0] for it in items)
    WPK = []
    for t in os.environ.get("WPK", "17:6,18:8,19:8,20:4,21:4,22:4,23:4,24:4,25:4,28:14").split(","):
        p_, c_ = t.split(":")
        WPK += [int(p_)] * int(c_)
    NWG = 60
    assert len(WPK) == NWG
    def WD(j, i):
        idx = j * 5 + i
        return 64 + idx * 4 if idx < 48 else (idx - 48) * 4
    def wdload(x):
        j, i = x // 5, x % 5
        sr = 49 + (x & 1)
        o = [f"s_add_u32 s{sr}, s{92+(j&3)}, {i*49152}",
             f"buffer_load_dwordx4 {ar(WD(j,i))}, v8, s[52:55], s{sr} offen offset:{(j>>2)*1024}"]
        vm.issue(("D", j), 1)
        return o
    if FUSE34:
        for x in range(48):
            if WPK[x] < 20: items.append((WPK[x], 40 + x, f"D{x}"))
        assert all(WPK[x] >= 20 for x in range(48, NWG))
    else:
        for q in range(0 if os.environ.get("NOT3", "0") == "1" else (1 if MAP34 else 4)): items.append((min(19, max(15, last + 1) + q), 40, "T"))
    items.sort(key=lambda x: (max(x[0], -1), x[1]))
    sched = {}
    for it, dl, nm in items: sched.setdefault(max(it, -1), []).append(nm)
    BAR = {k0 - 1: g for g, (k0, k1) in HG.items() if k0 > 0}
    def do_items(lst_):
        lst = []
        for it in lst_:
            if it[0] == "W": lst += wload(int(it[1:]))
            elif it[0] == "H": lst += hdma_l(it[1], int(it[2]))
            elif it[0] == "S": lst += sload(int(it[1]))
            elif it[0] == "D": lst += wdload(int(it[1:]))
            else: lst += tload()
        return lst
    for l in do_items(sched[-1]): e(l)
    srd(36, 6, SZ_ACT, WS_ACT)
    srd(52, 6, SZ_WDN, WS_WDN)
    e("s_lshr_b32 s50, s2, 3")
    e("s_lshl_b32 s50, s50, 2")
    e("s_add_u32 s50, s50, s16")
    if FUSE34:
        e(f"s_lshr_b32 s50, s2, {os.environ.get('RSH', '6')}")
        e("s_mul_i32 s51, s16, 12288")
        e("s_mul_i32 s59, s87, 245760")
        for f in range(4):
            e("s_and_b32 s50, s50, 3")
            e(f"s_mul_i32 s{88+f}, s50, 3072")
            e(f"s_add_u32 s{88+f}, s{88+f}, s51")
            e(f"s_add_u32 s{92+f}, s{88+f}, s59")
            e("s_add_u32 s50, s50, 1")
    elif MAP34:
        e("s_mul_i32 s50, s50, 7680")
        e("s_and_b32 s51, s2, 1")
        if os.environ.get("TX3"): e("s_xor_b32 s51, s51, 1")
        e("s_mul_i32 s51, s51, 983040")
        e("s_add_u32 s50, s50, s51")
        e("v_lshlrev_b32 v23, 7, v1")
    else:
        e("s_mul_i32 s50, s50, 15360")
        e("v_lshlrev_b32 v23, 6, v1")
    for a in range(96):
        e(f"v_mov_b32 v{ACC3+a}, 0")
    for r in range(24, 36):
        e(f"v_mov_b32 v{r}, 0")
    for r in range(16, 20):
        e(f"v_mov_b32 v{r}, 0x3f803f80")
    e("v_add_u32 v10, 65536, v8")
    e("v_add_u32 v11, 131072, v8")
    e("v_lshlrev_b32 v12, 2, v2")
    e("v_lshlrev_b32 v13, 4, v3")
    def hread(kk):
        o = []
        for n in range(8):
            off = (n * 20 + kk) * 1024
            base = 8 if off < 65536 else (10 if off < 131072 else 11)
            o.append(f"ds_read_b128 {ar(Hf(kk,n))}, v{base} offset:{off % 65536}")
        return o
    def dots(kk):
        return [f"v_dot2_f32_bf16 v{16+i}, v{Wf(kk,i)+r}, s62, v{16+i}" for r in range(4) for i in range(3)]
    def stats_code():
        sv = L[:]
        del L[:]
        for j in range(2):
            b = 40 + j * 16
            for k in (2, 4, 6, 8, 10, 12, 14):
                e(f"v_add_f32 v{b}, v{b}, v{b+k}")
                e(f"v_add_f32 v{b+1}, v{b+1}, v{b+k+1}")
            ln_stats(b, b+1, 36+2*j, 37+2*j, 20+j)
        for t in range(8):
            e(f"ds_bpermute_b32 v{72+2*t}, v12, v{36+2*(t>>2)} offset:{(t&3)*64}")
            e(f"ds_bpermute_b32 v{73+2*t}, v12, v{37+2*(t>>2)} offset:{(t&3)*64}")
            e(f"ds_bpermute_b32 v{64+t}, v12, v{20+(t>>2)} offset:{(t&3)*64}")
        o = [x.strip() for x in L]
        L[:] = sv
        return o
    stF(1, -1)
    lstamp(0)
    e(f"s_waitcnt vmcnt({vm.younger([('H','A')])})")
    lstamp(1)
    stF(2, -1)
    e("s_barrier")
    stF(3, 1)
    for l in hread(0): e(l)
    for kk in range(20):
        need = [("W", kk)]
        if kk in BAR: need.append(("H", BAR[kk]))
        if kk == 15: need.append("S")
        lstamp(2 * kk + 2)
        e(f"s_waitcnt vmcnt({vm.younger(need)}) lgkmcnt(0)")
        lstamp(2 * kk + 3)
        if kk in BAR and "r" not in os.environ.get("K3X", ""): e("s_barrier")
        slots = [[] for _ in range(27)]
        if kk + 1 < 20:
            for j, l in enumerate(hread(kk + 1)):
                slots[(j * int(os.environ.get("HRS", "2"))) // 2].append(l)
        lst = do_items(sched.get(kk, []))
        groups = []; grp = []
        for l in lst:
            if grp and any(x.startswith("buffer") for x in grp) and not l.startswith("s_add_u32 s50"):
                groups.append(grp); grp = []
            grp.append(l)
        if grp: groups.append(grp)
        for g, gl in enumerate(groups):
            slots[1 + (g * 25) // max(len(groups), 8)] += gl
        if kk == int(os.environ.get("CT3", "-1")) and CT:
            slots[26] += code_touch("k4_kernel", "code_end", 14, "v22")
            vm.issue("CT", 1)
        if kk == 15: sc = stats_code()
        if kk in (15, 16):
            part = sc[:54] if kk == 15 else sc[54:]
            for j, l in enumerate(part):
                slots[(j * 27) // len(part)].append(l)
        if kk == 19:
            for j, l in enumerate(["v_mul_u32_u24 v9, 49152, v3", "v_lshl_add_u32 v9, v2, 4, v9", "s_mul_i32 s22, s19, 393216", "s_lshl_b32 s23, s21, 8",
                                   "s_add_u32 s22, s22, s23", "v_mov_b32 v36, 0xbdd2d3e8", "v_mov_b32 v37, 0xc0135761"]):
                slots[j].append(l)
        if kk == 18 and FUSE34:
            for j, l in enumerate(["s_mul_i32 s51, s86, 196608", "v_add_u32 v4, s51, v8", "v_add_u32 v5, 49152, v4", "v_add_u32 v6, 98304, v4",
                                   "v_add_u32 v7, 147456, v4", f"s_mov_b32 s57, {int(os.environ.get('NR4', '64'))}"]):
                slots[20 + j].append(l)
        K3X = os.environ.get("K3X", "")
        if "d" in K3X: slots = [[l for l in sl if not l.startswith("ds_read")] for sl in slots]
        if "b" in K3X: slots = [[l for l in sl if not l.startswith("buffer")] for sl in slots]
        if "s" in K3X: slots = [[l for l in sl if not l.startswith("s_")] for sl in slots]
        if "v" in K3X: slots = [[l for l in sl if not (l.startswith("v_") or l.startswith("ds_bp"))] for sl in slots]
        k = 0
        for i in range(3):
            mfma(vr(24+4*i), vr(Wf(kk,i)), vr(16))
            for l in slots[k]: e(l)
            k += 1
        for n in range(8):
            for i in range(3):
                mfma(vr(ACC3+(i*8+n)*4), vr(Wf(kk,i)), ar(Hf(kk,n)))
                for l in slots[k]: e(l)
                k += 1
    stF(4, 2)
    lstamp(42)
    AP0 = [int(x) for x in os.environ.get("AP0", "84,84,84,84").split(",")]
    def ACT(j, n): return 32 + (((j + 4) % 9) * 4 + n) * 4
    def aload(j):
        vm.issue(("S", j), 4)
        return [f"buffer_load_dwordx4 {vr(ACT(j,n))}, v{4+n}, s[36:39], s{88+(j&3)} offen offset:{(j>>2)*1024}{ASC[0]}" for n in range(4)]
    def epi(i):
        o = []
        for hi, n0 in enumerate((0, 4)):
            TB = 40 + hi * 12
            O = TB + 8
            lists = []
            for g in range(4):
                n = n0 + g
                A = ACC3 + (i*8+n)*4
                S = 72 + 2*n
                SD = 64 + (n & ~1); sd = n & 1
                WS = 24 + i*4
                t2 = TB + g*2
                l = []
                for p in (0, 2):
                    l.append(f"v_pk_fma_f32 v[{A+p}:{A+p+1}], v[{S}:{S+1}], v[{WS+p}:{WS+p+1}], v[{A+p}:{A+p+1}] op_sel:[0,0,0] op_sel_hi:[0,1,1] neg_lo:[1,0,0] neg_hi:[1,0,0]")
                l.append(f"v_pk_mul_f32 v[{A}:{A+1}], v[{A}:{A+1}], v[{S}:{S+1}] op_sel:[0,1] op_sel_hi:[1,1]")
                l.append(f"v_pk_mul_f32 v[{t2}:{t2+1}], v[{A}:{A+1}], v[{A}:{A+1}]")
                l.append(f"v_pk_fma_f32 v[{t2}:{t2+1}], v[{t2}:{t2+1}], v[36:37], v[36:37] op_sel:[0,0,1] op_sel_hi:[1,0,1]")
                l.append(f"v_pk_mul_f32 v[{t2}:{t2+1}], v[{t2}:{t2+1}], v[{A}:{A+1}]")
                l.append(f"v_exp_f32 v{t2}, v{t2}")
                l.append(f"v_exp_f32 v{t2+1}, v{t2+1}")
                l.append(f"v_pk_mul_f32 v[{A}:{A+1}], v[{A}:{A+1}], v[{A+2}:{A+3}]")
                l.append(f"v_pk_fma_f32 v[{t2}:{t2+1}], v[{t2}:{t2+1}], v[{SD}:{SD+1}], v[{SD}:{SD+1}] op_sel:[0,{sd},{sd}] op_sel_hi:[1,{sd},{sd}]")
                l.append(f"v_rcp_f32 v{t2}, v{t2}")
                l.append(f"v_rcp_f32 v{t2+1}, v{t2+1}")
                l.append(f"v_pk_mul_f32 v[{t2}:{t2+1}], v[{t2}:{t2+1}], v[{A}:{A+1}]")
                l.append(f"v_cvt_pk_bf16_f32 v{O+g}, v{t2}, v{t2+1}")
                lists.append(l)
            ex = []
            if FUSE34:
                for x in range(NWG):
                    if WPK[x] == 20 + 2*i + hi: ex.append(x)
            nk = len(lists[0])
            for k in range(nk):
                for g in range(4): o.append(lists[g][k])
                for q, x in enumerate(ex):
                    if (q * nk) // len(ex) == k: o += wdload(x)
                if FUSE34:
                    for j in range(4):
                        if AP0[j] == (2*i + hi) * nk + k: o += aload(j)
            o.append("s_nop 1")
            o.append(f"v_permlane16_swap_b32 v{O}, v{O+1}")
            o.append(f"v_permlane16_swap_b32 v{O+2}, v{O+3}")
            o.append("s_nop 1")
            o.append(f"v_permlane32_swap_b32 v{O}, v{O+2}")
            o.append(f"v_permlane32_swap_b32 v{O+1}, v{O+3}")
            o.append(f"s_add_u32 s44, s22, {n0*49152 + i*1024}")
            o.append("s_nop 1")
            o.append(f"buffer_store_dwordx4 {vr(O)}, v9, s[36:39], s44 offen")
            vm.issue(("AS", i), 1)
        return o
    if FUSE34: e("s_barrier")
    e("s_nop 7")
    stF(5, -1)
    for i in range(3):
        for l in epi(i): e(l)
    stF(6, 3)
    lstamp(43)
    if not FUSE34:
        stamp_dump(2, 7)
        lab("k3_end")
        e("s_endpgm")
        return
    def wdat(p):
        for x in range(NWG):
            if WPK[x] == p:
                for l in wdload(x): e(l)
    e("s_cmp_lg_u32 s61, 0")
    e("s_cbranch_scc1 k4_trust")
    lab("k4_tr2")
    wdat(26)
    for j in range(4):
        if AP0[j] >= 84:
            for l in aload(j): e(l)
    AC4 = 176
    HR = 48
    F4 = os.environ.get("FORCE4")
    def chk(j):
        r = [ACT(j, 0) + t for t in range(16)]
        o = [f"v_max3_u32 v16, v{r[0]}, v{r[1]}, v{r[2]}", f"v_max3_u32 v17, v{r[3]}, v{r[4]}, v{r[5]}",
             f"v_max3_u32 v16, v16, v{r[6]}, v{r[7]}", f"v_max3_u32 v17, v17, v{r[8]}, v{r[9]}",
             f"v_max3_u32 v16, v16, v{r[10]}, v{r[11]}", f"v_max3_u32 v17, v17, v{r[12]}, v{r[13]}",
             f"v_max3_u32 v16, v16, v{r[14]}, v{r[15]}", "v_max_u32 v16, v16, v17", "v_cmp_eq_u32 vcc, -1, v16"]
        return o
    wdat(27)
    srd(24, 4, 2621440)
    srd(28, 6, SZ_HP, WS_HP)
    su = []
    sv = L[:]
    del L[:]
    e("v_lshrrev_b32 v18, 2, v1")
    e("v_and_b32 v19, 3, v1")
    e("s_lshl_b32 s22, s86, 2")
    e("s_add_u32 s22, s22, s16")
    e("s_mul_i32 s23, s22, 20480")
    e("s_mul_i32 s45, s87, 2560")
    e("s_add_u32 s45, s45, s23")
    e("v_lshlrev_b32 v20, 4, v18")
    e("v_lshl_add_u32 v20, v19, 8, v20")
    e("v_and_b32 v21, 1, v1")
    e("v_lshlrev_b32 v22, 4, v18")
    e("v_lshl_add_u32 v21, v21, 8, v22")
    e("s_mul_i32 s46, s87, 160")
    e("s_add_u32 s46, s46, s23")
    e("v_mul_u32_u24 v22, 1280, v18")
    e("v_lshl_add_u32 v22, v19, 4, v22")
    e("s_mul_i32 s47, s16, 23040")
    e("v_mul_u32_u24 v14, 288, v3")
    e("v_lshl_add_u32 v14, v2, 4, v14")
    e("v_add_u32 v14, s47, v14")
    e("s_mul_i32 s47, s16, 5760")
    e("v_mul_u32_u24 v24, 576, v19")
    e("v_lshl_add_u32 v24, v18, 4, v24")
    e("v_add_u32 v24, s47, v24")
    e("v_add_u32 v25, 46080, v24")
    e("s_lshl_b32 s47, s16, 2")
    e(f"s_add_u32 s47, s47, 94208")
    e("v_mov_b32 v27, s47")
    e("v_mov_b32 v28, 94208")
    e("v_mov_b32 v29, 0")
    su = [x.strip() for x in L]
    L[:] = sv
    for l in su: e(l)
    for _ in range(int(os.environ.get("D1", "0"))): e("s_sleep 1")
    PB = {}
    for t in os.environ.get("PB", "0:A4,A5;1:A6,A7;2:A8,A9;3:A10,A11;4:D4;5:D4;6:D4;7:D2,H").split(";"):
        k_, v_ = t.split(":")
        PB[k_] = v_.split(",")
    late = [x for x in range(NWG) if WPK[x] == 28]
    def hrl(q):
        vm.issue("HR", 1)
        return [f"buffer_load_dwordx4 {ar(HR+4*q)}, v{20 + (q>>1)}, s[28:31], s45 offen offset:{q*1024}"]
    def aload1(j, n):
        vm.issue(("S", j), 1)
        return [f"buffer_load_dwordx4 {vr(ACT(j,n))}, v{4+n}, s[36:39], s{88+(j&3)} offen offset:{(j>>2)*1024}{ASC[0]}"]
    def pbitems(key):
        o = []
        for it in PB.get(key, []):
            if it[0] == "A":
                ja = int(it[1:])
                if ja >= 9: assert key != "p" and int(key) > ja - 9
                o += [(lambda ja=ja, n=n: aload1(ja, n)) for n in range(4)]
            elif it[0] == "D":
                for _ in range(int(it[1:])):
                    x = late.pop(0)
                    o.append(lambda x=x: wdload(x))
            else: o += [(lambda q=q: hrl(q)) for q in range(3)]
        return o
    for f in pbitems("p"):
        for l in f(): e(l)
    if DIAGF: stamp(4)
    CKP = int(os.environ.get("CKP", "10"))
    PBS = int(os.environ.get("PBS", "20"))
    e(f"s_waitcnt vmcnt({vm.younger([('S', 0)])})")
    for l in chk(0): e(l)
    for j in range(12):
        if F4 and int(F4) == j:
            e("s_cmp_eq_u32 s58, 12345")
            e(f"s_cbranch_scc1 k4_nf")
            e("s_mov_b32 s58, 12345")
            e("s_mov_b32 s57, 0")
            e(f"s_branch k4_r{j}")
            lab(f"k4_nf")
        e(f"s_cbranch_vccnz k4_r{j}")
        lab(f"k4_ok{j}")
        lstamp(44 + j)
        if j == 0: stF(1, 5)
        e(f"s_waitcnt vmcnt({vm.younger([('D', j)])})")
        ck = []
        if j < 11: ck = ["W"] + chk(j + 1)
        its = pbitems(str(j))
        sl = [[] for _ in range(20)]
        for g, f in enumerate(its): sl[(g * PBS) // len(its)].append(f)
        def ckp():
            l = ck.pop(0)
            e(f"s_waitcnt vmcnt({vm.younger([('S', j + 1)])})" if l == "W" else l)
        k = 0
        for i in range(5):
            for n in range(4):
                mfma(vr(AC4+(i*4+n)*4), ar(WD(j,i)), vr(ACT(j,n)), "0" if j == 0 else None)
                for f in sl[k]:
                    for l in f(): e(l)
                if k >= CKP and ck:
                    ckp()
                    if k == CKP: ckp()
                k += 1
        while ck: ckp()
    assert not late
    e(f"s_waitcnt vmcnt({vm.younger(['HR'])})")
    if DIAGF:
        e("s_mov_b32 s72, s57")
        e("s_mov_b32 s73, s57")
    stF(2, 6)
    lstamp(56)
    stF(3, -1)
    e("s_nop 7")
    e("s_nop 7")
    for n in range(4):
        for i in range(5):
            e(f"ds_write_b128 v14, {vr(AC4+(i*4+n)*4)} offset:{(n*5+i)*1152}")
    lab("k4_stat")
    e("ds_write_b32 v27, v29")
    XR = 128
    for r in range(12):
        e(f"v_accvgpr_read_b32 v{XR+r}, a{HR+r}")
    e("s_waitcnt lgkmcnt(0)")
    e("s_barrier")
    e("ds_read_b128 v[140:143], v28")
    def S(src, j, hf): return 32 + ((j * 4 + src) * 2 + hf) * 4
    for j in range(3):
        for src in range(4):
            for hf in range(2):
                e(f"ds_read_b128 {vr(S(src,j,hf))}, v{24 + (src>>1)} offset:{(src&1)*23040 + j*2304 + hf*288}")
    stF(4, -1)
    e("s_waitcnt lgkmcnt(15)")
    e("v_max3_u32 v140, v140, v141, v142")
    e("v_max_u32 v140, v140, v143")
    e("s_nop 0")
    e("v_readfirstlane_b32 s22, v140")
    e("s_cmp_lg_u32 s22, 0")
    e("s_cbranch_scc1 k4_help")
    for j in range(3):
        e(f"s_waitcnt lgkmcnt({min(15,(2-j)*8)})")
        T = 144 + j * 16
        for hf in range(2):
            for p in (0, 2):
                e(f"v_pk_add_f32 v[{T+hf*4+p}:{T+hf*4+p+1}], v[{S(0,j,hf)+p}:{S(0,j,hf)+p+1}], v[{S(1,j,hf)+p}:{S(1,j,hf)+p+1}]")
                e(f"v_pk_add_f32 v[{T+8+hf*4+p}:{T+8+hf*4+p+1}], v[{S(2,j,hf)+p}:{S(2,j,hf)+p+1}], v[{S(3,j,hf)+p}:{S(3,j,hf)+p+1}]")
        for p in range(0, 8, 2):
            e(f"v_pk_add_f32 v[{T+p}:{T+p+1}], v[{T+p}:{T+p+1}], v[{T+8+p}:{T+8+p+1}]")
        for p in range(4):
            e(f"v_cvt_pk_bf16_f32 v{T+8+p}, v{T+2*p}, v{T+2*p+1}")
        for p in range(4):
            e(f"v_lshlrev_b32 v{T+2*p}, 16, v{T+8+p}")
            e(f"v_and_b32 v{T+2*p+1}, 0xffff0000, v{T+8+p}")
        for p in range(4):
            e(f"v_lshlrev_b32 v{T+8+2*p}, 16, v{XR+4*j+p}")
            e(f"v_and_b32 v{T+8+2*p+1}, 0xffff0000, v{XR+4*j+p}")
        for p in range(0, 8, 2):
            e(f"v_pk_add_f32 v[{T+p}:{T+p+1}], v[{T+p}:{T+p+1}], v[{T+8+p}:{T+8+p+1}]")
        O = 192 + 4 * j
        for p in range(4):
            e(f"v_cvt_pk_bf16_f32 v{O+p}, v{T+2*p}, v{T+2*p+1}")
        if j == 2:
            e("s_mov_b32 exec_lo, 0x33333333")
            e("s_mov_b32 exec_hi, 0x33333333")
        e(f"buffer_store_dwordx4 {vr(O)}, v22, s[24:27], s46 offen offset:{j*64}")
    e("s_mov_b64 exec, -1")
    stF(5, 7)
    lstamp(57)
    lst_dump(2)
    if DIAGF: stamp_dump(2, 8)
    else:
      if DIAG:
        e("s_mov_b32 s76, s57")
        e("s_mov_b32 s77, 0")
      stamp_dump(3, 6)
    lab("k3_end")
    e("s_endpgm")
    ASC[0] = " sc1"
    for j in range(12):
        lab(f"k4_r{j}")
        e(f"s_lshr_b32 s22, s{88+(j&3)}, 10")
        e("s_mul_i32 s22, s22, 171")
        e("s_lshr_b32 s22, s22, 9")
        e("s_sub_u32 s57, s57, 1")
        e("s_cbranch_scc1 k4_to")
        if int(os.environ.get("PSL", "0")): e(f"s_sleep {os.environ['PSL']}")
        for l in aload(j): e(l)
        e("s_waitcnt vmcnt(0)")
        for l in chk(j): e(l)
        e(f"s_cbranch_vccz k4_ok{j}")
        e("s_bitcmp1_b32 s60, s22")
        e(f"s_cbranch_scc1 k4_ok{j}")
        e(f"s_branch k4_r{j}")
    lab("k4_to")
    e("s_waitcnt vmcnt(0)")
    e("s_add_u32 s22, s22, 1")
    e("v_mov_b32 v29, s22")
    e("s_branch k4_stat")
    lab("k4_trust")
    e("s_waitcnt vmcnt(0)")
    e("s_barrier")
    e("s_bitset1_b32 s60, s20")
    e("s_branch k4_tr2")
    lab("k4_help")
    e("s_sub_u32 s20, s22, 1")
    e("s_mov_b32 s61, 1")
    e("s_waitcnt vmcnt(0) lgkmcnt(0)")
    e("s_barrier")
    e("s_branch k3_body")

def gen_k3n():
    E = os.environ.get
    kernel_begin("k3_kernel")
    e("s_cmp_ge_u32 s2, 256")
    e("s_cbranch_scc1 k3_end")
    stF(0, 0)
    e("s_load_dwordx2 s[6:7], s[0:1], 88")
    e("s_load_dwordx2 s[4:5], s[0:1], 72")
    if CTS:
        for l in code_touch("k3_kernel", "code_end", 14, "v22", back=True): e(l)
    lane_setup()
    e("s_and_b32 s19, s2, 1")
    e("s_bfe_u32 s21, s2, 0x30003")
    e("s_lshl_b32 s19, s19, 3")
    e("s_add_u32 s19, s19, s21")
    e("s_bfe_u32 s20, s2, 0x20001")
    e("s_lshl_b32 s20, s20, 2")
    e("s_lshr_b32 s21, s2, 6")
    e("s_add_u32 s20, s20, s21")
    e(f"s_mov_b32 s17, {INV640}")
    e(f"s_mov_b32 s18, {EPS}")
    e("v_lshlrev_b32 v8, 4, v1")
    e("s_lshr_b32 s86, s20, 3")
    e("s_lshl_b32 s86, s86, 1")
    e("s_lshl_b32 s87, s19, 3")
    e("s_add_u32 s86, s86, s87")
    e("s_and_b32 s87, s20, 7")
    e("s_mov_b32 s60, 0")
    e("s_mov_b32 s61, 0")
    ROTN = E("ROTN", "")
    RTB = [8, 9, 10, 11, 12, 13, 14, 15, 40, 41]
    if ROTN:
        ra, rb = [int(x) for x in ROTN.split(",")]
        e("s_bfe_u32 s21, s2, 0x30003")
        e(f"s_mul_i32 s21, s21, {ra}")
        e("s_lshr_b32 s22, s2, 6")
        e(f"s_mul_i32 s22, s22, {rb}")
        e("s_add_u32 s21, s21, s22")
        e("s_mul_i32 s22, s21, 205")
        e("s_lshr_b32 s22, s22, 11")
        e("s_mul_i32 s22, s22, 10")
        e("s_sub_u32 s21, s21, s22")
        e(f"s_lshl_b32 s{RTB[0]}, s21, 11")
        for g in range(1, 10):
            e(f"s_add_u32 s21, s{RTB[g-1]}, 2048")
            e(f"s_sub_u32 s22, s21, 20480")
            e(f"s_min_u32 s{RTB[g]}, s21, s22")
    else:
        for g in range(10): e(f"s_mov_b32 s{RTB[g]}, {g*2048}")
    lab("k3_body")
    e("s_mul_i32 s21, s20, 12")
    e("s_add_u32 s21, s21, s16")
    e("s_mul_i32 s22, s21, 20480")
    e("v_add_u32 v4, s22, v8")
    e("v_add_u32 v5, 81920, v4")
    e("v_add_u32 v6, 163840, v4")
    e("s_mul_i32 s22, s19, 163840")
    e("s_mul_i32 s23, s16, 20480")
    e("s_add_u32 s22, s22, s23")
    e("s_add_u32 s49, s22, 81920")
    e("v_and_b32 v9, 3, v1")
    e("v_lshlrev_b32 v9, 14, v9")
    e("v_lshrrev_b32 v20, 2, v1")
    e("v_lshl_add_u32 v9, v20, 4, v9")
    e("s_lshl_b32 s48, s19, 10")
    e("s_lshl_b32 s47, s16, 8")
    e("s_add_u32 s48, s48, s47")
    e("s_add_u32 s47, s48, 65536")
    e("s_waitcnt lgkmcnt(0)")
    srd(24, 6, SZ_HP, WS_HP)
    srd(32, 6, SZ_WGU, WS_WGU)
    srd(28, 6, SZ_HSTAT, WS_HSTAT)
    vm = VM()
    def Wf(k, i): return vr(88 + ((k-8)*3+i)*4) if 8 <= k < 14 else ar(32 + ((k if k < 8 else k-6)*3+i)*4)
    def Hf(it, n): return ((it & 1) * 4 + n) * 4
    def ACC(p, i, n): return 160 + p*48 + (i*4+n)*4
    HGS = int(E("HGS", "2")); LW = int(E("LW", "3")); LH = int(E("LH", "3"))
    HG = {}
    for g in range(20 // HGS): HG[f"a{g}"] = (g*HGS, g*HGS + HGS)
    g2 = [int(x) for x in E("HG2", "0,4,8,12,16,20").split(",")]
    for g in range(len(g2) - 1): HG[f"b{g}"] = (20 + g2[g], 20 + g2[g+1])
    H2P = [int(x) for x in E("H2P", "15,19,23,27,31").split(",")]
    def hdma(g):
        o = []
        i0, i1 = HG[g]
        for it in range(i0, i1, 2):
            base = (it // 20) * 81920 + (it % 20) * 1024
            o.append(f"s_add_u32 m0, s23, {base}")
            o.append(f"s_add_u32 s44, s{22 if it < 20 else 49}, s{RTB[(it%20)>>1]}")
            for u in range(2):
                o.append(f"buffer_load_dwordx4 v8, s[24:27], s44 offen offset:{u*1024} lds")
        vm.issue(("H", g), i1 - i0)
        return o
    def wload(kk):
        out = []
        for i in range(3):
            out.append(f"buffer_load_dwordx4 {Wf(kk,i)}, v{4+i}, s[32:35], s{RTB[kk>>1]} offen offset:{(kk&1)*1024}")
        vm.issue(("W", kk), 3)
        return out
    def sload(q):
        vm.issue("S", 1)
        return [f"buffer_load_dwordx4 {vr(40+4*q)}, v9, s[28:31], s{48-q} offen"]
    WDS = [(ar(200 + 4*q), 0) for q in range(14)]
    for k in list(range(8)) + [14, 15, 16]:
        for i in range(3): WDS.append((Wf(k, i), 21 + k))
    for n in range(4): WDS.append((ar(n*4), 39))
    for n in range(3): WDS.append((ar(16+n*4), 40))
    for n in range(6): WDS.append((vr(184+n*4), 40))
    WDV = [8, 12, 13, 38, 39]
    def WD(j, i): return WDS[j*5+i][0]
    def wdload(x):
        j, i = x // 5, x % 5
        vm.issue(("D", j), 1)
        return [f"buffer_load_dwordx4 {WD(j,i)}, v{WDV[i]}, s[52:55], s{92+(j&3)} offen offset:{(j>>2)*1024}"]
    def ACT(p, j, n):
        if p == 0: b = 88 + 8*j
        else: b = (40 + 8*j) if j < 6 else (88 + 8*(j-6))
        return b + 4*n
    def aload1(p, j, n):
        vm.issue(("A", p, j), 1)
        return [f"buffer_load_dwordx4 {vr(ACT(p,j,n))}, v{4+2*p+n}, s[36:39], s{88+(j&3)} offen offset:{(j>>2)*1024}{ASC[0]}"]
    def aload(p, j): return aload1(p, j, 0) + aload1(p, j, 1)
    A1P = [int(x) for x in E("A1P", "32,32,33,33,38,38,39,39,43,44,44,45").split(",")]
    A2P = [int(x) for x in E("A2P", "49,50,51,52,53,54,55,56,57,58,59,60").split(",")]
    for j in range(12): assert A1P[j] >= (29 + (8*j+7)//12 if j < 9 else 40)
    HRP = int(E("HRP", "61"))
    SP = int(E("SP", "8"))
    items = []
    cnt = {}
    def add(pos, dl, nm, n):
        items.append((pos, dl, nm)); cnt[pos] = cnt.get(pos, 0) + n
    for g, (i0, i1) in HG.items():
        if g[0] == "a": add(i0 - 1 - LH, i0 - 1, f"H{g}", i1 - i0)
        else: add(H2P[int(g[1:])], i0 - 1, f"H{g}", i1 - i0)
    for kk in range(20): add(kk - LW, kk - 0.5, f"W{kk}", 3)
    for q in range(2): add(SP, 30, f"S{q}", 1)
    for j in range(12): add(A1P[j], 90 + j, f"A0{j}", 2)
    for j in range(12): add(A2P[j], 200 + j, f"A1{j}", 2)
    add(HRP, 300, "R", 3)
    WD0 = int(E("WD0", "17")); LPI = int(E("LPI", "4")); LPE = int(E("LPE", "5")); LPB = int(E("LPB", "3"))
    x = 0; WDP = []
    for pos in range(WD0, 56):
        cap = (LPI if pos < 40 else LPE if pos < 43 else 0 if pos == 43 else LPB) - cnt.get(pos, 0)
        while cap > 0 and x < 60 and WDS[x][1] <= pos:
            WDP.append(pos); add(pos, 100 + x, f"D{x}", 1); x += 1; cap -= 1
    assert x == 60
    for x in range(60): assert WDP[x] < 44 + x // 5
    sys.stderr.write("WDP " + " ".join(map(str, WDP)) + "\n")
    items.sort(key=lambda x: (max(x[0], -1), x[1]))
    sched = {}
    for it, dl, nm in items: sched.setdefault(max(it, -1), []).append(nm)
    BAR = {i0 - 1: g for g, (i0, i1) in HG.items() if i0 > 0}
    XR = 148
    def hrl():
        vm.issue("HR", 3)
        return [f"buffer_load_dwordx4 {vr(XR+4*q)}, v{20 + (q>>1)}, s[28:31], s45 offen offset:{q*1024}" for q in range(3)]
    def lazy(lst_):
        o = []
        for it in lst_:
            if it[0] == "W": o.append(lambda k=int(it[1:]): wload(k))
            elif it[0] == "H": o.append(lambda g=it[1:]: hdma(g))
            elif it[0] == "S": o.append(lambda q=int(it[1]): sload(q))
            elif it[0] == "D": o.append(lambda x=int(it[1:]): wdload(x))
            elif it[0] == "A": o.append(lambda p=int(it[1]), j=int(it[2:]): aload(p, j))
            else: o.append(hrl)
        return o
    def groups_of(pos):
        lst = []
        for f in lazy(sched.get(pos, [])): lst += f()
        groups = []; grp = []
        for l in lst:
            grp.append(l)
            if l.startswith("buffer"):
                groups.append(grp); grp = []
        assert not grp
        return groups
    for gl in groups_of(-1):
        for l in gl: e(l)
    srd(36, 6, SZ_ACT, WS_ACT)
    srd(52, 6, SZ_WDN, WS_WDN)
    e(f"s_lshr_b32 s50, s2, {E('RSH', '6')}")
    e("s_mul_i32 s51, s16, 12288")
    e("s_mul_i32 s59, s87, 245760")
    for f in range(4):
        e("s_and_b32 s50, s50, 3")
        e(f"s_mul_i32 s{88+f}, s50, 3072")
        e(f"s_add_u32 s{88+f}, s{88+f}, s51")
        e(f"s_add_u32 s{92+f}, s{88+f}, s59")
        e("s_add_u32 s50, s50, 1")
    e("s_mov_b32 s59, 0")
    e(f"s_mov_b32 s57, {int(E('NR4', '64'))}")
    for r in range(16, 20): e(f"v_mov_b32 v{r}, 0x3f803f80")
    e("v_add_u32 v10, 65536, v8")
    e("v_add_u32 v11, 131072, v8")
    e("v_add_u32 v12, 49152, v8")
    e("v_add_u32 v13, 98304, v8")
    e("v_add_u32 v38, 147456, v8")
    e("v_add_u32 v39, 196608, v8")
    e("v_lshlrev_b32 v20, 5, v20")
    e("v_and_b32 v21, 1, v1")
    e("v_lshl_add_u32 v20, v21, 4, v20")
    e("s_lshl_b32 s50, s16, 9")
    e("v_add_u32 v20, s50, v20")
    e("v_lshlrev_b32 v21, 4, v2")
    e("s_mul_i32 s43, s19, 393216")
    e("s_lshl_b32 s50, s21, 8")
    e("s_add_u32 s43, s43, s50")
    e("s_mov_b32 s62, 0xbdd2d3e8")
    e("s_mov_b32 s63, 0xc0135761")
    def hread(it):
        o = []
        for n in range(4):
            off = (((it // 20) * 4 + n) * 20 + it % 20) * 1024
            base = 8 if off < 65536 else (10 if off < 131072 else 11)
            o.append(f"ds_read_b128 {ar(Hf(it,n))}, v{base} offset:{off % 65536}")
        return o
    def stats_code():
        sv = L[:]
        del L[:]
        for q in range(4): e(f"v_add_f32 v{40+q}, v{40+q}, v{44+q}")
        e("s_mov_b32 vcc_lo, 0xaaaaaaaa")
        e("s_mov_b32 vcc_hi, 0xaaaaaaaa")
        for pm in ("[1,0,3,2]", "[2,3,0,1]"):
            for q in range(4): e(f"v_add_f32_dpp v{40+q}, v{40+q}, v{40+q} quad_perm:{pm} row_mask:0xf bank_mask:0xf")
        e("v_cndmask_b32 v40, v40, v42, vcc")
        e("v_cndmask_b32 v41, v41, v43, vcc")
        ln_stats(40, 41, 44, 48, 47)
        e("v_mul_f32 v45, s63, v48")
        e("v_mul_f32 v46, v48, v48")
        e("v_mul_f32 v48, s62, v48")
        e("v_mul_f32 v47, v47, v47")
        e("v_mul_f32 v46, v46, v48")
        e("ds_write_b128 v20, v[44:47]")
        o = [x.strip() for x in L]
        L[:] = sv
        return o
    def epi_block(p, i, packed):
        TB = 40
        O = TB + 8 + (i & 1) * 4
        lists = []
        for g in range(4):
            n = 4*p + g
            A = ACC(p, i, g)
            S = 56 + 4*n
            WS = 24 + i*4
            t2 = TB + g*2
            l = []
            if packed:
                for q in (0, 2):
                    l.append(f"v_pk_fma_f32 v[{A+q}:{A+q+1}], v[{S}:{S+1}], v[{WS+q}:{WS+q+1}], v[{A+q}:{A+q+1}] op_sel:[0,0,0] op_sel_hi:[0,1,1] neg_lo:[1,0,0] neg_hi:[1,0,0]")
                l.append(f"v_pk_mul_f32 v[{t2}:{t2+1}], v[{A}:{A+1}], v[{A}:{A+1}]")
                l.append(f"v_pk_fma_f32 v[{t2}:{t2+1}], v[{t2}:{t2+1}], v[{S+2}:{S+3}], v[{S}:{S+1}] op_sel:[0,0,1] op_sel_hi:[1,0,1]")
                l.append(f"v_pk_mul_f32 v[{t2}:{t2+1}], v[{t2}:{t2+1}], v[{A}:{A+1}]")
                l.append(f"v_exp_f32 v{t2}, v{t2}")
                l.append(f"v_exp_f32 v{t2+1}, v{t2+1}")
                l.append(f"v_pk_mul_f32 v[{A}:{A+1}], v[{A}:{A+1}], v[{A+2}:{A+3}]")
                l.append(f"v_pk_fma_f32 v[{t2}:{t2+1}], v[{t2}:{t2+1}], v[{S+2}:{S+3}], v[{S+2}:{S+3}] op_sel:[0,1,1] op_sel_hi:[1,1,1]")
                l.append(f"v_rcp_f32 v{t2}, v{t2}")
                l.append(f"v_rcp_f32 v{t2+1}, v{t2+1}")
                l.append(f"v_pk_mul_f32 v[{t2}:{t2+1}], v[{t2}:{t2+1}], v[{A}:{A+1}]")
            else:
                for q in range(4): l.append(f"v_fma_f32 v{A+q}, -v{S}, v{WS+q}, v{A+q}")
                for q in range(2): l.append(f"v_mul_f32 v{t2+q}, v{A+q}, v{A+q}")
                for q in range(2): l.append(f"v_fma_f32 v{t2+q}, v{t2+q}, v{S+2}, v{S+1}")
                for q in range(2): l.append(f"v_mul_f32 v{t2+q}, v{t2+q}, v{A+q}")
                for q in range(2): l.append(f"v_exp_f32 v{t2+q}, v{t2+q}")
                for q in range(2): l.append(f"v_mul_f32 v{A+q}, v{A+q}, v{A+2+q}")
                for q in range(2): l.append(f"v_fma_f32 v{t2+q}, v{t2+q}, v{S+3}, v{S+3}")
                for q in range(2): l.append(f"v_rcp_f32 v{t2+q}, v{t2+q}")
                for q in range(2): l.append(f"v_mul_f32 v{t2+q}, v{t2+q}, v{A+q}")
            l.append(f"v_cvt_pk_bf16_f32 v{O+g}, v{t2}, v{t2+1}")
            lists.append(l)
        o = []
        for k in range(len(lists[0])):
            for g in range(4): o.append(lists[g][k])
        o.append(f"s_add_u32 s42, s43, {4*p*49152 + i*1024}")
        o.append("s_nop 0")
        o.append(f"v_permlane16_swap_b32 v{O}, v{O+1}")
        o.append(f"v_permlane16_swap_b32 v{O+2}, v{O+3}")
        o.append("s_nop 1")
        o.append(f"v_permlane32_swap_b32 v{O}, v{O+2}")
        o.append(f"v_permlane32_swap_b32 v{O+1}, v{O+3}")
        o.append("s_nop 1")
        o.append(("ST", f"buffer_store_dwordx4 {vr(O)}, v9, s[36:39], s42 offen"))
        return o
    def emit(l):
        if isinstance(l, tuple):
            vm.issue("AS", 1)
            e(l[1])
        else: e(l)
    def cost(l):
        if isinstance(l, tuple): return 1
        return 2 if l.split()[0] in ("v_exp_f32", "v_rcp_f32") else 1
    lstamp(0)
    e(f"s_waitcnt vmcnt({vm.younger([('H','a0')])})")
    lstamp(1)
    e("s_barrier")
    stF(3, 1)
    for l in hread(0): e(l)
    ep1 = epi_block(0, 0, False) + epi_block(0, 1, False) + epi_block(0, 2, False)
    SC = int(E("SC", "12"))
    SR = min(b for b in BAR if b >= SC + 2)
    assert SR <= 17 and SP < SC
    EPC = int(E("EPC", "2"))
    EPS0 = int(E("EPS0", "3"))
    for it in range(40):
        p, k = it // 20, it % 20
        need = []
        if p == 0: need.append(("W", k))
        if it in BAR: need.append(("H", BAR[it]))
        if it == SC: need.append("S")
        lstamp(2 + it)
        if DIAGF and it == int(E("ST4", "20")):
            if E("W0"): e("s_waitcnt vmcnt(0)")
            stamp(4)
        if need: e(f"s_waitcnt vmcnt({vm.younger(need)}) lgkmcnt(0)")
        else: e("s_waitcnt lgkmcnt(0)")
        if it in BAR or it == 39: e("s_barrier")
        NS = 15 if p == 0 else 12
        slots = [[] for _ in range(NS)]
        if it + 1 < 40:
            for j, l in enumerate(hread(it + 1)): slots[j * (2 if p else 1)].append(l)
        lz = lazy(sched.get(it, []))
        extra = []
        if it == SC: sc = stats_code()
        if it in (SC, SC + 1): extra = sc[:20] if it == SC else sc[20:]
        if it == SR: extra = [f"ds_read_b128 {vr(56+4*q)}, v21 offset:{q*256}" for q in range(8)]
        if it == 19:
            extra = ["v_mul_u32_u24 v9, 49152, v3", "v_lshl_add_u32 v9, v2, 4, v9"]
        if it == 18:
            extra = ["s_mul_i32 s51, s86, 49152", "v_add_u32 v4, s51, v8", "v_add_u32 v5, 49152, v4", "v_add_u32 v6, 196608, v4", "v_add_u32 v7, 245760, v4"]
        for j, l in enumerate(extra): slots[(j * NS) // len(extra)].append(l)
        lsl = [[] for _ in range(NS)]
        fl = []
        for nm in sched.get(it, []):
            if nm[0] == "W": fl += [("W", int(nm[1:]), i) for i in range(3)]
            elif nm[0] == "A": fl += [("A", int(nm[1]), int(nm[2:]), n) for n in range(2)]
            else: fl.append((nm,))
        for g, f in enumerate(fl): lsl[min(NS - 1, 1 + (g * (NS - 1)) // max(len(fl), 4))].append(f)
        def do(f):
            if f[0] == "W" and len(f) == 3:
                kk, i = f[1], f[2]
                o = []
                o.append(f"buffer_load_dwordx4 {Wf(kk,i)}, v{4+i}, s[32:35], s{RTB[kk>>1]} offen offset:{(kk&1)*1024}")
                vm.issue(("W", kk), 1)
                return o
            if f[0] == "A" and len(f) == 4: return aload1(f[1], f[2], f[3])
            return lazy([f[0]])[0]()
        ml = []
        if p == 0:
            for i in range(3): ml.append((vr(24+4*i), Wf(k,i), vr(16)))
        for n in range(4):
            for i in range(3): ml.append((vr(ACC(p,i,n)), Wf(k,i), ar(Hf(it,n))))
        for q, m in enumerate(ml):
            mfma(*m, "0" if k == 0 else None)
            used = 0
            for l in slots[q]:
                e(l); used += 1
            for f in lsl[q]:
                for l in do(f):
                    e(l); used += 1
            if p == 1 and (k * 12 + q) >= EPS0:
                while ep1 and used + cost(ep1[0]) <= EPC:
                    l = ep1.pop(0)
                    emit(l); used += cost(l)
                if ep1 and used == 0:
                    emit(ep1.pop(0))
    for l in ep1: emit(l)
    stF(4, 2)
    lstamp(42)
    e("s_nop 7")
    for i in range(3):
        blk = epi_block(1, i, True)
        gs = groups_of(40 + i)
        nb_ = len(blk) - 9
        for q, l in enumerate(blk):
            emit(l)
            for g, gl in enumerate(gs):
                if (g * nb_) // len(gs) == q:
                    for x in gl: e(x)
    stF(6, 3)
    lstamp(43)
    e("s_cmp_lg_u32 s61, 0")
    e("s_cbranch_scc1 k4_trust")
    lab("k4_tr2")
    for gl in groups_of(43):
        for l in gl: e(l)
    F4 = E("FORCE4")
    def chk(p, j):
        r = [ACT(p, j, 0) + t for t in range(8)]
        return [f"v_max3_u32 v16, v{r[0]}, v{r[1]}, v{r[2]}", f"v_max3_u32 v17, v{r[3]}, v{r[4]}, v{r[5]}",
                f"v_max3_u32 v16, v16, v{r[6]}, v{r[7]}", "v_max_u32 v16, v16, v17", "v_cmp_eq_u32 vcc, -1, v16"]
    su = ["v_lshrrev_b32 v18, 2, v1", "v_and_b32 v19, 3, v1",
          "s_lshr_b32 s22, s16, 1", "s_lshl_b32 s22, s22, 2", "s_and_b32 s23, s16, 1", "s_add_u32 s22, s22, s23", "s_add_u32 s22, s22, s86",
          "s_mul_i32 s23, s22, 20480", "s_mul_i32 s45, s87, 2560", "s_add_u32 s45, s45, s23",
          "v_lshlrev_b32 v20, 4, v18", "v_lshl_add_u32 v20, v19, 8, v20", "v_and_b32 v21, 1, v1", "v_lshlrev_b32 v22, 4, v18", "v_lshl_add_u32 v21, v21, 8, v22",
          "s_mul_i32 s46, s87, 160", "s_add_u32 s46, s46, s23", "v_mul_u32_u24 v22, 1280, v18", "v_lshl_add_u32 v22, v19, 4, v22",
          "s_mul_i32 s47, s16, 23040", "v_mul_u32_u24 v14, 288, v3", "v_lshl_add_u32 v14, v2, 4, v14", "v_add_u32 v14, s47, v14",
          "s_mul_i32 s47, s16, 5760", "v_mul_u32_u24 v24, 576, v19", "v_lshl_add_u32 v24, v18, 4, v24", "v_add_u32 v24, s47, v24", "v_add_u32 v25, 46080, v24",
          "s_lshl_b32 s47, s16, 2", "s_add_u32 s47, s47, 94208", "v_mov_b32 v27, s47", "v_mov_b32 v28, 94208",
          "s_mov_b32 s24, s4", "s_mov_b32 s25, s5", "s_mov_b32 s26, 2621440", "s_mov_b32 s27, 0x20000",
          f"s_add_u32 s28, s6, {WS_HP}", "s_addc_u32 s29, s7, 0", f"s_mov_b32 s30, {SZ_HP}", "s_mov_b32 s31, 0x20000"]
    def AC4(p, i, n): return (ar(164 + (i*2+n)*4) if i*2+n < 9 else ar(28)) if p == 0 else vr(208 + (i*2+n)*4)
    CKP = int(E("CKP", "4"))
    e(f"s_waitcnt vmcnt({vm.younger([('A', 0, 0)])})")
    for l in chk(0, 0): e(l)
    for t in range(24):
        p, j = t // 12, t % 12
        if F4 and int(F4) == t:
            e("s_cmp_eq_u32 s58, 12345")
            e(f"s_cbranch_scc1 k4_nf")
            e("s_mov_b32 s58, 12345")
            e("s_mov_b32 s57, 0")
            e(f"s_branch k4_r{t}")
            lab(f"k4_nf")
        e(f"s_cbranch_vccnz k4_r{t}")
        lab(f"k4_ok{t}")
        if t % 3 == 0: lstamp(44 + t // 3)
        if t == 12: stF(1, 5)
        if p == 0: e(f"s_waitcnt vmcnt({vm.younger([('D', j)])})")
        ck = []
        if t < 23: ck = ["W"] + chk((t+1) // 12, (t+1) % 12)
        fl = []
        for nm in sched.get(44 + t, []):
            if nm[0] == "A":
                pa, ja = int(nm[1]), int(nm[2:])
                if pa == 1 and ja >= 6: assert t > ja - 6
                fl += [(lambda pa=pa, ja=ja, n=n: aload1(pa, ja, n)) for n in range(2)]
            else:
                if nm == "R": assert t > 8
                fl += lazy([nm])
        sl = [[] for _ in range(10)]
        for g, f in enumerate(fl): sl[(g * 10) // len(fl)].append(f)
        def ckp():
            l = ck.pop(0)
            e(f"s_waitcnt vmcnt({vm.younger([('A', (t+1)//12, (t+1)%12)])})" if l == "W" else l)
        q = 0
        for i in range(5):
            for n in range(2):
                mfma(AC4(p,i,n), WD(j,i), vr(ACT(p,j,n)), "0" if j == 0 else None)
                for f in sl[q]:
                    for l in f(): e(l)
                if q >= CKP and ck:
                    ckp()
                    if q == CKP: ckp()
                elif su and q < CKP and not sl[q]:
                    e(su.pop(0))
                    if su: e(su.pop(0))
                q += 1
        while ck: ckp()
    assert not su
    if DIAGF:
        e("s_mov_b32 s72, s57")
        e("s_mov_b32 s73, s57")
    stF(2, 6)
    lstamp(56)
    e("v_mov_b32 v29, s59")
    e("s_nop 7")
    e("s_nop 7")
    for n in range(4):
        for i in range(5):
            e(f"ds_write_b128 v14, {AC4(n>>1,i,n&1)} offset:{(n*5+i)*1152}")
    e("ds_write_b32 v27, v29")
    e(f"s_waitcnt vmcnt({vm.younger(['HR'])}) lgkmcnt(0)")
    e("s_barrier")
    e("ds_read_b128 v[136:139], v28")
    def S(src, j, hf): return 40 + ((j * 4 + src) * 2 + hf) * 4
    for j in range(3):
        for src in range(4):
            for hf in range(2):
                e(f"ds_read_b128 {vr(S(src,j,hf))}, v{24 + (src>>1)} offset:{(src&1)*23040 + j*2304 + hf*288}")
    e("s_waitcnt lgkmcnt(15)")
    e("v_max3_u32 v136, v136, v137, v138")
    e("v_max_u32 v136, v136, v139")
    e("s_nop 0")
    e("v_readfirstlane_b32 s22, v136")
    e("s_cmp_lg_u32 s22, 0")
    e("s_cbranch_scc1 k4_help")
    for j in range(3):
        e(f"s_waitcnt lgkmcnt({min(15,(2-j)*8)})")
        T = 172 + j * 16
        for hf in range(2):
            for q in (0, 2):
                e(f"v_pk_add_f32 v[{T+hf*4+q}:{T+hf*4+q+1}], v[{S(0,j,hf)+q}:{S(0,j,hf)+q+1}], v[{S(1,j,hf)+q}:{S(1,j,hf)+q+1}]")
                e(f"v_pk_add_f32 v[{T+8+hf*4+q}:{T+8+hf*4+q+1}], v[{S(2,j,hf)+q}:{S(2,j,hf)+q+1}], v[{S(3,j,hf)+q}:{S(3,j,hf)+q+1}]")
        for q in range(0, 8, 2):
            e(f"v_pk_add_f32 v[{T+q}:{T+q+1}], v[{T+q}:{T+q+1}], v[{T+8+q}:{T+8+q+1}]")
        for q in range(4):
            e(f"v_cvt_pk_bf16_f32 v{T+8+q}, v{T+2*q}, v{T+2*q+1}")
        for q in range(4):
            e(f"v_lshlrev_b32 v{T+2*q}, 16, v{T+8+q}")
            e(f"v_and_b32 v{T+2*q+1}, 0xffff0000, v{T+8+q}")
        for q in range(4):
            e(f"v_lshlrev_b32 v{T+8+2*q}, 16, v{XR+4*j+q}")
            e(f"v_and_b32 v{T+8+2*q+1}, 0xffff0000, v{XR+4*j+q}")
        for q in range(0, 8, 2):
            e(f"v_pk_add_f32 v[{T+q}:{T+q+1}], v[{T+q}:{T+q+1}], v[{T+8+q}:{T+8+q+1}]")
        O = 220 + 4 * j
        for q in range(4):
            e(f"v_cvt_pk_bf16_f32 v{O+q}, v{T+2*q}, v{T+2*q+1}")
        if j == 2:
            e("s_mov_b32 exec_lo, 0x33333333")
            e("s_mov_b32 exec_hi, 0x33333333")
        e(f"buffer_store_dwordx4 {vr(O)}, v22, s[24:27], s46 offen offset:{j*64}")
    e("s_mov_b64 exec, -1")
    stF(5, 7)
    lstamp(57)
    lst_dump(2)
    if DIAGF: stamp_dump(2, 8)
    else: stamp_dump(3, 6)
    lab("k3_end")
    e("s_endpgm")
    ASC[0] = " sc1"
    for t in range(24):
        p, j = t // 12, t % 12
        lab(f"k4_r{t}")
        e(f"s_lshr_b32 s50, s{88+(j&3)}, 10")
        e("s_mul_i32 s50, s50, 171")
        e("s_lshr_b32 s50, s50, 9")
        e("s_bitcmp1_b32 s60, s50")
        e(f"s_cbranch_scc1 k4_t{t}")
        e("s_cmp_eq_u32 s57, 0")
        e(f"s_cbranch_scc1 k4_o{t}")
        e("s_sub_u32 s57, s57, 1")
        for l in aload(p, j): e(l)
        e("s_waitcnt vmcnt(0)")
        for l in chk(p, j): e(l)
        e(f"s_cbranch_vccz k4_ok{t}")
        e(f"s_branch k4_r{t}")
        lab(f"k4_t{t}")
        for l in aload(p, j): e(l)
        e("s_waitcnt vmcnt(0)")
        e(f"s_branch k4_ok{t}")
        lab(f"k4_o{t}")
        e("s_add_u32 s50, s50, 1")
        e("s_cmp_eq_u32 s59, 0")
        e("s_cselect_b32 s59, s50, s59")
        e(f"s_branch k4_ok{t}")
    lab("k4_trust")
    e("s_waitcnt vmcnt(0)")
    e("s_barrier")
    e("s_bitset1_b32 s60, s20")
    e("s_branch k4_tr2")
    lab("k4_help")
    e("s_sub_u32 s20, s22, 1")
    e("s_mov_b32 s61, 1")
    e("s_waitcnt vmcnt(0) lgkmcnt(0)")
    e("s_barrier")
    e("s_branch k3_body")

def descriptor(name, vgpr, accum, sgpr=102):
    raw(f".amdhsa_kernel {name}")
    raw(f"  .amdhsa_next_free_vgpr {vgpr}")
    raw(f"  .amdhsa_next_free_sgpr {sgpr}")
    raw(f"  .amdhsa_accum_offset {accum}")
    raw("  .amdhsa_group_segment_fixed_size 0")
    raw("  .amdhsa_kernarg_size 96")
    raw("  .amdhsa_user_sgpr_count 2")
    raw("  .amdhsa_user_sgpr_kernarg_segment_ptr 1")
    raw("  .amdhsa_system_sgpr_workgroup_id_x 1")
    raw(".end_amdhsa_kernel")

def main():
    raw("; 4-kernel pipeline: K1 LN1+hidden DFT GEMM, K2 seq DFT GEMM + residual, K3 LN2+gate/up GEMM+GEGLU, K4 down GEMM + residual")
    raw("; @launch kernel=k1_kernel grid=(256,1,1) block=(256,1,1) lds=152832")
    raw(f"; @launch kernel=k2_kernel grid=(256,1,1) block=(256,1,1) lds={156032 if K2OLD else 159744}")
    raw("; @launch kernel=k3_kernel grid=(256,1,1) block=(256,1,1) lds=163840")
    if not FUSE34: raw("; @launch kernel=k4_kernel grid=(256,1,1) block=(256,1,1) lds=94208")
    raw('.amdgcn_target "amdgcn-amd-amdhsa--gfx950"')
    raw(".text")
    gen_k1(); (gen_k2_old if K2OLD else gen_k2)(); (gen_k3n if os.environ.get('K3N', '1') == '1' else gen_k3)()
    if not FUSE34: gen_k4()
    lab("code_end")
    raw('.section .rodata,"a"')
    raw(".p2align 6")
    descriptor("k1_kernel", 348, 160)
    raw(".p2align 6")
    descriptor("k2_kernel", 432 if K2OLD else 512, 256)
    raw(".p2align 6")
    descriptor("k3_kernel", 512 if FUSE34 else 320, 256)
    if not FUSE34:
        raw(".p2align 6")
        descriptor("k4_kernel", 424, 256)
    out = sys.argv[1] if len(sys.argv) > 1 else f"cdna_kernels/{NAME}.s"
    NOSC = os.environ.get("NOSC", "").split(",")
    LL = [ (l + " sc1") if ("buffer_store" in l and "; plain" not in l and "s[64:67]" not in l and not any(x and x in l for x in NOSC)) else l for l in L]
    open(out, "w").write("\n".join(LL) + "\n")

main()
```
